```python
import torch

def _softmax(x, axis=-1):
    return torch.softmax(x, dim=axis)
def _gelu(x):
    return torch.nn.functional.gelu(x, approximate="tanh")
def _silu(x):
    return torch.nn.functional.silu(x)
def _sigmoid(x):
    return torch.sigmoid(x)
def _layernorm(x, axis=-1, eps=1e-5):
    m = x.mean(dim=axis, keepdim=True)
    v = x.var(dim=axis, keepdim=True, unbiased=False)
    return (x - m) / torch.sqrt(v + eps)
def _scatter_add(tgt, idx, src, axis=0):
    return tgt.clone().index_add_(axis, idx, src)
def _segment_sum(src, seg, n):
    out = torch.zeros((n,) + src.shape[1:], dtype=src.dtype)
    return out.index_add_(0, seg, src)
def _pad(x, pw):
    flat = tuple(v for pair in reversed(pw) for v in pair)
    return torch.nn.functional.pad(x, flat)

kernel_name = 'parallel_sum__sliding_block_cached__geglu_ffn__decode'

def setup_inputs():

    _w = (lambda a: (lambda t: t.to(torch.bfloat16) if t.is_floating_point() else t)(torch.as_tensor(a)))
    def _A_setup():
        B, Sq, D = 8, 1, 576
        Hq, Hkv, Sk, Dh = 32, 16, 8192, 128
        assert Hq % Hkv == 0, (Hq, Hkv)
        return {
            "x": _w((lambda *s: torch.randn(*s, dtype=torch.bfloat16) * 0.05)(B, Sq, D)),
            "k_cache": _w((lambda *s: torch.randn(*s, dtype=torch.bfloat16) * 3.2)(B, Hkv, Sk, Dh)),
            "v_cache": _w((lambda *s: torch.randn(*s, dtype=torch.bfloat16) * 1.6)(B, Hkv, Sk, Dh)),
            "wq": _w((lambda *s: torch.randn(*s, dtype=torch.bfloat16) * 3.2)(D, Hq * Dh) * (D ** -0.5)),
            "wo": _w((lambda *s: torch.randn(*s, dtype=torch.bfloat16) * 1.6)(Hq * Dh, D) * ((Hq * Dh) ** -0.5)),
        }
    _A_in = _A_setup()

    def _B_setup():
        B, S, D, F = 8, 1, 576, 4608
        return {
            "x": _w((lambda *s: torch.randn(*s, dtype=torch.bfloat16) * 0.05)(B, S, D)),
            "w_gate": _w((lambda *s: torch.randn(*s, dtype=torch.bfloat16) * 0.05)(D, F)),
            "w_up": _w((lambda *s: torch.randn(*s, dtype=torch.bfloat16) * 0.05)(D, F)),
            "w_down": _w((lambda *s: torch.randn(*s, dtype=torch.bfloat16) * 0.05)(F, D)),
        }
    _B_in = _B_setup()

    return {
        "A_x": _A_in["x"],
        "A_k_cache": _A_in["k_cache"],
        "A_v_cache": _A_in["v_cache"],
        "A_wq": _A_in["wq"],
        "A_wo": _A_in["wo"],
        "B_x": _B_in["x"],
        "B_w_gate": _B_in["w_gate"],
        "B_w_up": _B_in["w_up"],
        "B_w_down": _B_in["w_down"],
    }

def reference(A_x, A_k_cache, A_v_cache, A_wq, A_wo, B_x, B_w_gate, B_w_up, B_w_down):
    def _A_ref(x, k_cache, v_cache, wq, wo):
        B, Sq, D = x.shape
        Hq, Dh = 32, 128
        Hkv, Sk = k_cache.shape[1], k_cache.shape[2]
        W = min(4096, max(256, Sk // 4))
        rep = Hq // Hkv
        q = (lambda x, *d: x.permute(*d))((x @ wq).reshape(B, Sq, Hq, Dh), 0, 2, 1, 3)
        k = (lambda x, n, axis: torch.repeat_interleave(x, n, dim=axis))(k_cache[:, :, Sk - W:, :], rep, axis=1)
        v = (lambda x, n, axis: torch.repeat_interleave(x, n, dim=axis))(v_cache[:, :, Sk - W:, :], rep, axis=1)
        scores = torch.einsum("bhqd,bhkd->bhqk", q, k) * (Dh ** -0.5)
        p = _softmax(scores, axis=-1)
        o = torch.einsum("bhqk,bhkd->bhqd", p, v)
        return (lambda x, *d: x.permute(*d))(o, 0, 2, 1, 3).reshape(B, Sq, Hq * Dh) @ wo

    def _B_ref(x, w_gate, w_up, w_down):
        return (_gelu(x @ w_gate) * (x @ w_up)) @ w_down

    x = A_x
    xn = _layernorm(x, axis=-1)
    return x + _A_ref(xn, A_k_cache, A_v_cache, A_wq, A_wo) + _B_ref(xn, B_w_gate, B_w_up, B_w_down)
```

```python
import re

TRANS = ("v_exp_f32", "v_log_f32", "v_rcp_f32", "v_rsq_f32", "v_sqrt_f32", "v_sin_f32", "v_cos_f32")
REG = re.compile(r"^(-|\|)?(abs\()?([vsa])(\d+)\)?\|?$")
RNG = re.compile(r"^(-)?([vsa])\[(\d+):(\d+)\]$")


def regs_of(op):
    op = op.strip()
    if op in ("vcc", "vcc_lo", "vcc_hi"):
        return {"vcc"}
    if op in ("exec", "exec_lo", "exec_hi"):
        return {"exec"}
    if op == "m0":
        return {"m0"}
    m = REG.match(op)
    if m:
        return {m.group(3) + m.group(4)}
    m = RNG.match(op)
    if m:
        return {m.group(2) + str(i) for i in range(int(m.group(3)), int(m.group(4)) + 1)}
    return set()


class Ins:
    def __init__(self, text):
        self.text = text
        t = text.split(";")[0].strip()
        self.label = None
        self.op = None
        self.w = set()
        self.r = set()
        self.kind = "other"
        self.states = 0
        self.target = None
        if not t or t.startswith("."):
            return
        if t.endswith(":"):
            self.label = t[:-1]
            return
        parts = t.split(None, 1)
        op = self.op = parts[0]
        rest = parts[1] if len(parts) > 1 else ""
        ops = []
        depth = 0
        cur = ""
        for ch in rest:
            if ch in "[(":
                depth += 1
            if ch in "])":
                depth -= 1
            if ch == "," and depth == 0:
                ops.append(cur.strip())
                cur = ""
            else:
                cur += ch
        if cur.strip():
            ops.append(cur.strip())
        mods = ""
        if ops:
            last = ops[-1].split(None, 1)
            ops[-1] = last[0]
            mods = last[1] if len(last) > 1 else ""
        self.mods = mods
        self.states = 1
        R = [regs_of(o) for o in ops]
        allr = set().union(*R) if R else set()
        if op == "s_nop":
            self.states = int(ops[0], 0) + 1
            self.kind = "nop"
        elif op.startswith("v_mfma"):
            self.kind = "mfma"
            self.w = R[0]
            self.ab = R[1] | R[2]
            self.c = R[3]
            self.r = self.ab | self.c
            self.passes = 8 if ("32x32" in op or op.endswith("16x16x4_f32")) else 4
        elif op.startswith("v_"):
            self.kind = "valu"
            self.dpp = "_dpp" in op or "row_" in mods or "quad_perm" in mods
            self.trans = op.replace("_e32", "").replace("_e64", "") in TRANS
            self.perm = op.startswith("v_permlane")
            self.rdl = op.startswith("v_readlane") or op.startswith("v_readfirstlane")
            if self.perm:
                self.w = allr
                self.r = allr
            elif "_co_" in op:
                self.w = R[0] | R[1]
                self.r = set().union(*R[2:])
            else:
                self.w = R[0]
                self.r = set().union(*R[1:]) if len(R) > 1 else set()
                if op.startswith("v_fmac") or op.startswith("v_dot2c"):
                    self.r |= R[0]
        elif op.startswith(("buffer_", "global_")):
            self.kind = "vmem"
            self.lds = " lds" in (" " + mods) or "_lds_" in op
            isload = "_load" in op
            if isload and not self.lds:
                self.w = R[0]
                self.r = set().union(*R[1:])
            elif "atomic" in op and "sc0" in mods:
                self.w = R[0]
                self.r = allr
            else:
                self.r = allr
            self.wide_data = set()
            if "_store_dwordx3" in op or "_store_dwordx4" in op:
                self.wide_data = R[0] if op.startswith("buffer_") else R[1]
        elif op.startswith("ds_"):
            self.kind = "ds"
            if op.startswith("ds_read") or "_rtn" in op or "permute" in op or "swizzle" in op:
                self.w = R[0]
                self.r = set().union(*R[1:])
            else:
                self.r = allr
        elif op.startswith("s_"):
            self.kind = "salu"
            if op.startswith(("s_cbranch", "s_branch")):
                self.target = ops[0]
            elif op.startswith(("s_cmp", "s_waitcnt", "s_barrier", "s_sleep", "s_endpgm", "s_setprio", "s_bitcmp")):
                self.r = allr
            else:
                self.w = R[0] if R else set()
                self.r = set().union(*R[1:]) if len(R) > 1 else set()


def isv(x):
    return x[0] in "va" and x != "vcc"


def need(p, c):
    n = 0
    if p.kind == "valu":
        pw = {x for x in p.w if isv(x)}
        ps = p.w - pw
        if c.kind == "mfma" and pw & c.r:
            n = max(n, 2)
        if c.kind == "valu":
            if p.trans and pw & c.r:
                n = max(n, 1)
            if (c.dpp or c.perm) and pw & c.r:
                n = max(n, 2)
            if c.rdl and pw & c.r:
                n = max(n, 1)
            if ps & c.r:
                n = max(n, 4 if c.rdl else 2)
        if c.kind == "vmem" and ps & c.r:
            n = max(n, 5)
    if p.kind == "mfma":
        big = {4: 8, 8: 12}[p.passes]
        if c.kind == "mfma":
            if p.w & c.ab:
                n = max(n, big)
            if p.w & c.c and not (p.w == c.c and p.passes == c.passes):
                n = max(n, big - 2)
            if p.w & c.w and not (p.w & c.c):
                n = max(n, big)
        elif c.kind in ("valu", "vmem", "ds"):
            if p.w & (c.r | c.w):
                n = max(n, big)
            if c.kind == "valu" and p.c & c.w:
                n = max(n, p.passes - 1)
    if p.kind == "salu" and "m0" in p.w and c.kind == "vmem" and c.lds:
        n = max(n, 1)
    if p.kind == "vmem" and p.wide_data & c.w:
        n = max(n, 2)
    return n


def pad(lines):
    ins = [Ins(l) for l in lines]
    changed = True
    while changed:
        changed = False
        labels = {x.label: i for i, x in enumerate(ins) if x.label}
        jumps = {}
        for i, x in enumerate(ins):
            if x.target in labels:
                jumps.setdefault(labels[x.target], []).append(i)
        i = 0
        while i < len(ins):
            c = ins[i]
            if c.op and c.kind in ("valu", "mfma", "vmem", "ds"):
                worst = 0
                stack = [(i, 0)]
                seen = set()
                while stack:
                    j, dist = stack.pop()
                    preds = []
                    if j > 0 and ins[j - 1].op not in ("s_branch", "s_endpgm"):
                        preds.append(j - 1)
                    preds += jumps.get(j, [])
                    for q in preds:
                        p = ins[q]
                        if p.op:
                            worst = max(worst, need(p, c) - dist)
                        nd = dist + p.states
                        if nd < 12 and (q, nd) not in seen:
                            seen.add((q, nd))
                            stack.append((q, nd))
                if worst > 0:
                    ins.insert(i, Ins(f"s_nop {worst - 1}"))
                    changed = True
                    break
            i += 1
        if changed:
            continue
    return [x.text for x in ins]


def pad_fast(lines):
    ins = [Ins(l) for l in lines]
    for _ in range(3):
        total = 0
        i = 0
        labels = jumps = None
        dirty = True
        while i < len(ins):
            if dirty:
                labels = {x.label: k for k, x in enumerate(ins) if x.label}
                jumps = {}
                for k, x in enumerate(ins):
                    if x.target in labels:
                        jumps.setdefault(labels[x.target], []).append(k)
                dirty = False
            c = ins[i]
            if c.op and c.kind in ("valu", "mfma", "vmem", "ds"):
                worst = 0
                stack = [(i, 0)]
                seen = set()
                while stack:
                    j, dist = stack.pop()
                    preds = []
                    if j > 0 and ins[j - 1].op not in ("s_branch", "s_endpgm"):
                        preds.append(j - 1)
                    preds += jumps.get(j, [])
                    for q in preds:
                        p = ins[q]
                        if p.op:
                            worst = max(worst, need(p, c) - dist)
                        nd = dist + p.states
                        if nd < 12 and (q, nd) not in seen:
                            seen.add((q, nd))
                            stack.append((q, nd))
                if worst > 0:
                    ins.insert(i, Ins(f"s_nop {worst - 1}"))
                    total += 1
                    dirty = True
                    i += 1
            i += 1
        if total == 0:
            break
    return [x.text for x in ins]


class Asm:
    def __init__(self):
        self.lines = []

    def __call__(self, s):
        for l in s.split("\n"):
            l = l.strip()
            if l:
                self.lines.append(l)

    def text(self):
        out = []
        for l in pad_fast(self.lines):
            if l.endswith(":") or l.startswith(".") or l.startswith(";"):
                out.append(l)
            else:
                out.append("    " + l)
        return "\n".join(out) + "\n"
```

```python
import sys, struct
sys.path.insert(0, "dev")
from asmlib import Asm

KN = "parallel_sum__sliding_block_cached__geglu_ffn__decode_kernel"
REF = "parallel_sum__sliding_block_cached__geglu_ffn__decode.s.ref"

XS, QS, HS, ML, CNT, RED, RED2, LDS_SZ = 110592, 119808, 120320, 124928, 124992, 125056, 129152, 137344
PROW = 26624
RR = 0x40000
OBUF, LSE, PART, DPART = RR, RR + 0x20000, RR + 0x24000, RR + 0x6C000
WS_SZ = 0x100000
STAMP = 0x200000
LIMIT = 400000


def f32(x):
    return "0x%08x" % struct.unpack("<I", struct.pack("<f", x))[0]


LOG2E = 1.4426950408889634


def gen(d=6, d2=6, diag=0, xpol="", pref=0, psleep=1):
    e = Asm()
    uid = [0]

    def stamp(i):
        if diag:
            e(f"s_memrealtime s[{80 + 2 * i}:{81 + 2 * i}]")

    def srd(b, lo, size):
        e(f"s_mov_b32 s{b}, s{lo}\ns_mov_b32 s{b+1}, s{lo+1}\ns_mov_b32 s{b+2}, {size}\ns_mov_b32 s{b+3}, 0x20000")

    def rnd(dst, src):
        e(f"v_cvt_pk_bf16_f32 v{dst}, v{src}, v{src}\nv_lshlrev_b32 v{dst}, 16, v{dst}")

    def poll(loads, regs, tmp, sleep, restore="-1", cmp=None):
        uid[0] += 1
        L = f"L_poll{uid[0]}"
        e(f"s_mov_b32 s70, {LIMIT}\n{L}:")
        e(loads)
        e("s_waitcnt vmcnt(0)")
        if cmp:
            e(cmp)
        else:
            r = list(regs)
            cur = r.pop(0)
            while r:
                if len(r) >= 2:
                    e(f"v_max3_u32 v{tmp}, v{cur}, v{r[0]}, v{r[1]}")
                    r = r[2:]
                else:
                    e(f"v_max_u32 v{tmp}, v{cur}, v{r[0]}")
                    r = r[1:]
                cur = tmp
            e(f"v_cmp_eq_u32 vcc, -1, v{cur}")
        e(f"s_and_b64 exec, exec, vcc\ns_cbranch_scc0 {L}_d\ns_sub_u32 s70, s70, 1\ns_cbranch_scc1 {L}_d")
        if sleep:
            e(f"s_sleep {sleep}")
        e(f"s_branch {L}\n{L}_d:\ns_mov_b64 exec, {restore}")

    def allred_g(v, t, op):
        e(f"v_mov_b32 v{t}, v{v}\nv_permlane16_swap_b32 v{v}, v{t}\n{op} v{v}, v{v}, v{t}")
        e(f"v_mov_b32 v{t}, v{v}\nv_permlane32_swap_b32 v{v}, v{t}\n{op} v{v}, v{v}, v{t}")

    hdr = [l.rstrip("\n") for l in open(REF) if l.startswith(";") and "@launch" not in l and "Override" not in l and "grid=ceil" not in l]
    top = "\n".join(hdr) + f"\n; @launch grid=(256,1,1) block=(512,1,1) lds={LDS_SZ}\n"
    e(f""".amdgcn_target "amdgcn-amd-amdhsa--gfx950"
.text
.globl {KN}
.p2align 8
.type {KN},@function
{KN}:""")
    e("s_cmp_ge_u32 s2, 256\ns_cbranch_scc1 L_end")
    e("s_load_dwordx16 s[16:31], s[0:1], 0\ns_load_dwordx8 s[32:39], s[0:1], 64")
    stamp(0)
    e("v_lshrrev_b32 v1, 6, v0\nv_and_b32 v0, 63, v0\nv_readfirstlane_b32 s3, v1")
    e("s_mul_i32 s8, s2, 57\ns_lshr_b32 s8, s8, 9\ns_mul_i32 s9, s8, 9\ns_sub_u32 s9, s2, s9")
    e("s_sub_u32 s10, s2, 208\ns_mul_i32 s11, s10, 86\ns_lshr_b32 s11, s11, 8\ns_mul_i32 s12, s11, 3\ns_sub_u32 s12, s10, s12")
    e("s_cmp_ge_u32 s3, 4\ns_cbranch_scc1 L_aux")

    VO, KD, KR, MK, VW1, VW2, Q, KF, AB, ACC, T, SP, MRUN, NEGM, LS, VV = 1, 2, 6, 10, 14, 15, 16, 32, 48, 64, 68, 84, 120, 121, 122, 128
    e("""v_lshrrev_b32 v1, 3, v0
v_and_b32 v2, 7, v0
v_and_b32 v3, 2, v1
s_and_b32 s5, s3, 1
s_lshl_b32 s5, s5, 2
v_or_b32 v3, s5, v3
v_xor_b32 v2, v2, v3
v_lshlrev_b32 v2, 4, v2
s_lshl_b32 m0, s3, 10
s_mov_b32 s43, 0x20000
s_cmp_ge_u32 s2, 208
s_cbranch_scc1 L_sD
s_cmp_ge_u32 s2, 144
s_cbranch_scc1 L_sQ
s_cmp_ge_u32 s2, 72
s_cselect_b32 s6, 72, 0
s_waitcnt lgkmcnt(0)
s_cselect_b32 s40, s30, s28
s_cselect_b32 s41, s31, s29
s_sub_u32 s6, s2, s6
s_movk_i32 s7, 9216""")
    e(f"s_mov_b32 s42, {576*9216}\ns_branch L_sP\nL_sQ:")
    e(f"s_sub_u32 s6, s2, 144\ns_movk_i32 s7, 8192\ns_mov_b32 s42, {576*8192}\ns_waitcnt lgkmcnt(0)\ns_mov_b32 s40, s22\ns_mov_b32 s41, s23")
    e("""L_sP:
s_lshl_b32 s60, s6, 7
s_mul_i32 s61, s3, s7
s_lshl_b32 s61, s61, 3
s_add_u32 s60, s60, s61
s_lshl_b32 s62, s7, 5
s_mov_b32 s63, s62
s_movk_i32 s64, 4096
s_movk_i32 s65, 4096
s_mov_b32 s66, 6
s_branch L_sW
L_sD:""")
    e(f"""s_mul_i32 s60, s11, {288*1152}
s_mul_i32 s61, s3, {8*1152}
s_add_u32 s60, s60, s61
s_mul_i32 s61, s12, 384
s_add_u32 s60, s60, s61
s_movk_i32 s62, 128
s_mov_b32 s63, {36864-256}
s_mov_b32 s64, 36864
s_mov_b32 s65, {4096-73728}
s_mov_b32 s66, 9
s_movk_i32 s7, 1152
s_mov_b32 s42, {4608*1152}
s_waitcnt lgkmcnt(0)
s_mov_b32 s40, s32
s_mov_b32 s41, s33
L_sW:
v_mad_u32_u24 v{VW1}, v1, s7, v2
L_w1:""")
    for k in range(3):
        e(f"s_waitcnt vmcnt({d-1})\nbuffer_load_dwordx4 v{VW1}, s[40:43], s60 offen nt lds")
        e(f"s_add_u32 s60, s60, s{62 if k < 2 else 63}\ns_add_u32 m0, m0, s{64 if k < 2 else 65}")
    e("s_sub_u32 s66, s66, 1\ns_cmp_lg_u32 s66, 0\ns_cbranch_scc1 L_w1")
    e("s_cmp_ge_u32 s2, 144\ns_cbranch_scc1 L_sV")
    srd(44, 24, 4096 * 1152)
    e(f"""s_movk_i32 s7, 1152
v_mad_u32_u24 v{VW2}, v1, s7, v2
s_mul_i32 s60, s8, {256*1152}
s_mul_i32 s61, s3, {8*1152}
s_add_u32 s60, s60, s61
s_lshl_b32 s61, s9, 7
s_add_u32 s60, s60, s61
s_mov_b32 s62, {32*1152}
s_mov_b32 s66, 8
L_w2:
s_waitcnt vmcnt({d-1})
buffer_load_dwordx4 v{VW2}, s[44:47], s60 offen nt lds
s_add_u32 s60, s60, s62
s_add_u32 m0, m0, s64
s_sub_u32 s66, s66, 1
s_cmp_lg_u32 s66, 0
s_cbranch_scc1 L_w2
L_sV:""")
    srd(48, 18, 0x10000000)
    srd(52, 20, 0x10000000)
    e(f"""s_lshr_b32 s60, s2, 1
s_lshl_b32 s60, s60, 21
s_and_b32 s61, s2, 1
s_lshl_b32 s61, s61, 18
s_add_u32 s60, s60, s61
s_lshl_b32 s61, s3, 12
s_add_u32 s60, s60, s61
s_add_u32 s60, s60, {6144*256}
s_lshl_b32 s67, s3, 14
v_lshlrev_b32 v{VO}, 4, v0""")

    work = {}

    def at(slot, fn):
        work.setdefault(slot, []).append(fn)

    def setup():
        e(f"v_lshrrev_b32 v{T}, 4, v0\nv_and_b32 v{T+1}, 15, v0\nv_lshlrev_b32 v{T+2}, 2, v{T}\nv_xor_b32 v{T+2}, v{T+2}, v{T+1}")
        e(f"v_lshlrev_b32 v{T+2}, 4, v{T+2}\nv_lshl_add_u32 v{KD}, v{T}, 8, v{T+2}")
        for r in range(1, 4):
            e(f"v_xor_b32 v{KD+r}, {16*r}, v{KD}")
        e(f"v_and_b32 v{T+2}, 3, v0\nv_lshlrev_b32 v{T+2}, 2, v{T+2}\nv_lshrrev_b32 v{T+3}, 2, v{T+1}\nv_or_b32 v{T+2}, v{T+2}, v{T+3}")
        e(f"v_lshl_add_u32 v{T+2}, v{T+2}, 8, s67\nv_xor_b32 v{T+3}, v{T}, v{T+1}\nv_lshl_add_u32 v{KR}, v{T+3}, 4, v{T+2}")
        for t in range(1, 4):
            e(f"v_xor_b32 v{KR+t}, {64*t}, v{KR}")
        e(f"v_and_b32 v{T+2}, 1, v0\nv_lshlrev_b32 v{T+2}, 4, v{T+2}\nv_mov_b32 v{T+3}, 0xffff\nv_lshlrev_b32 v{T+3}, v{T+2}, v{T+3}\nv_bfe_u32 v{T+2}, v0, 1, 2")
        for r in range(4):
            e(f"v_cmp_eq_u32 vcc, {r}, v{T+2}\nv_cndmask_b32 v{MK+r}, 0, v{T+3}, vcc")
        e(f"v_lshrrev_b32 v{T+2}, 3, v{T+1}\nv_lshlrev_b32 v{T+2}, 8, v{T+2}\nv_lshl_add_u32 v{T+2}, v{T}, 4, v{T+2}\nv_add_u32 v{VW1}, {QS}, v{T+2}")
        e(f"s_mov_b32 s68, 0xffff0000\ns_mov_b32 s69, {f32(128 ** -0.5)}\ns_mov_b32 s71, {f32(LOG2E)}")
        e(f"v_mov_b32 v{LS}, 0\nv_mov_b32 v{MRUN}, 0xff800000")
        for r in range(4):
            e(f"v_mov_b32 v{ACC+r}, 0")
        srd(56, 38, WS_SZ if not diag else 0x400000)

    at(d, setup)

    def sreg(c):
        return SP + 4 * (c if c < 8 else (8 if c == 8 else c - 9))

    def kread(c):
        def f():
            for t in range(4):
                e(f"ds_read_b128 v[{KF+4*t}:{KF+4*t+3}], v{KR+t} offset:{(c % 4) * 4096}")
        return f

    def kmma(c):
        def f():
            S = sreg(c)
            e("s_waitcnt lgkmcnt(0)")
            for t in range(4):
                e(f"v_mfma_f32_16x16x32_bf16 v[{S}:{S+3}], v[{KF+4*t}:{KF+4*t+3}], v[{Q+4*t}:{Q+4*t+3}], {'0' if t == 0 else f'v[{S}:{S+3}]'}")
        return f

    def kround(c):
        def f():
            S = sreg(c)
            for _ in range(2):
                e(f"v_cvt_pk_bf16_f32 v{T}, v{S}, v{S+1}\nv_cvt_pk_bf16_f32 v{T+1}, v{S+2}, v{S+3}")
                e(f"v_lshlrev_b32 v{S}, 16, v{T}\nv_and_b32 v{S+1}, s68, v{T}\nv_lshlrev_b32 v{S+2}, 16, v{T+1}\nv_and_b32 v{S+3}, s68, v{T+1}")
                if _ == 0:
                    for r in range(4):
                        e(f"v_mul_f32 v{S+r}, s69, v{S+r}")
            e(f"v_max3_f32 v{MRUN}, v{MRUN}, v{S}, v{S+1}\nv_max3_f32 v{MRUN}, v{MRUN}, v{S+2}, v{S+3}")
        return f

    def maxA():
        allred_g(MRUN, T, "v_max_f32")
        e(f"v_mul_f32 v{NEGM}, s71, v{MRUN}\nv_sub_f32 v{NEGM}, 0, v{NEGM}")

    def maxB():
        allred_g(MRUN, T, "v_max_f32")
        e(f"v_mul_f32 v{T+1}, s71, v{MRUN}\nv_add_f32 v{T+2}, v{NEGM}, v{T+1}\nv_sub_f32 v{NEGM}, 0, v{T+1}\nv_exp_f32 v{T+2}, -v{T+2}")
        e(f"v_mul_f32 v{LS}, v{LS}, v{T+2}\nv_mov_b32 v{T+3}, v{T+2}")
        e(f"v_mov_b32_dpp v{T+3}, v{T+2} row_ror:8 row_mask:0x3 bank_mask:0xc\nv_mov_b32_dpp v{T+3}, v{T+2} row_ror:8 row_mask:0xc bank_mask:0x3")
        for r in range(4):
            e(f"v_mul_f32 v{ACC+r}, v{ACC+r}, v{T+3}")

    def pexp(c):
        def f():
            S = sreg(c)
            for r in range(4):
                e(f"v_fma_f32 v{S+r}, v{S+r}, s71, v{NEGM}")
            for r in range(4):
                e(f"v_exp_f32 v{S+r}, v{S+r}")
            e(f"v_add_f32 v{T}, v{S}, v{S+1}\nv_add_f32 v{T+1}, v{S+2}, v{S+3}\nv_add_f32 v{LS}, v{LS}, v{T}\nv_add_f32 v{LS}, v{LS}, v{T+1}")
            for r in range(4):
                e(f"v_cvt_pk_bf16_f32 v{S+r}, v{S+r}, v{S+r}")
        return f

    def aprep(c, r):
        def f():
            for k in range(4):
                e(f"v_and_b32 v{AB+4*r+k}, v{sreg(c)+r}, v{MK+k}")
        return f

    def pv(c, r):
        def f():
            V = VV + 16 * (c % 8) + 4 * r
            e(f"v_mfma_f32_16x16x32_bf16 v[{ACC}:{ACC+3}], v[{AB+4*r}:{AB+4*r+3}], v[{V}:{V+3}], v[{ACC}:{ACC+3}]")
        return f

    def mlwrite():
        allred_g(LS, T, "v_add_f32")
        e(f"v_sub_f32 v{T+2}, 0, v{NEGM}\nv_mov_b32 v{T+3}, v{LS}")
        e(f"v_bfe_u32 v{T}, v0, 3, 1\nv_lshlrev_b32 v{T}, 5, v{T}\ns_lshl_b32 s63, s3, 3\ns_add_u32 s63, s63, {ML}\nv_add_u32 v{T}, s63, v{T}")
        e(f"ds_write_b64 v{T}, v[{T+2}:{T+3}]")
        e(f"s_lshl_b32 s63, s3, 10\ns_add_u32 s63, s63, {RED}\nv_add_u32 v{VW2}, s63, v{VO}")

    def dep(n):
        return d if n < 96 else d2

    landed = {}
    for n in range(128 + 64):
        top_done = (n - dep(n)) if n < 128 else min(127, n - d2)
        for m in range(top_done + 1):
            landed.setdefault(m, n)
    for c in range(16):
        n0 = landed[35 + 4 * c]
        at(n0, kread(c))
        at(n0 + 1, kmma(c))
        at(n0 + 2, kround(c))
    sA = landed[35 + 28] + 3
    at(sA, maxA)
    for j in range(8):
        s0 = sA + 1 + 3 * j
        at(s0, pexp(j))
        at(s0 + 1, aprep(j, 0)); at(s0 + 1, aprep(j, 1)); at(s0 + 1, pv(j, 0)); at(s0 + 1, pv(j, 1))
        at(s0 + 2, aprep(j, 2)); at(s0 + 2, aprep(j, 3)); at(s0 + 2, pv(j, 2)); at(s0 + 2, pv(j, 3))
        assert s0 + 2 < 96 + 4 * j
        if j < 7:
            assert s0 + 2 < landed[35 + 4 * (9 + j)] + 1
    sB = landed[95] + 3
    at(sB, maxB)
    pre = {}
    for j in range(8):
        at(sB + 1 + j, pexp(8 + j))
    at(sB + 9, mlwrite)
    last = 0
    for n in range(96, 128):
        j, r = (n - 96) // 4, n % 4
        s = max(landed[n], sB + 2 + j, last)
        last = s
        pre.setdefault(s, []).append((8 + j, r))
    nslots = max(max(work), last) + 1
    for n in range(nslots):
        todo = pre.get(n, [])
        assert len(todo) <= 4
        for (c, r) in todo:
            aprep(c, r)()
        if n < 128:
            if n < 32 or n >= 96:
                i = n if n < 32 else n - 64
                if i % 4 == 0:
                    e(f"s_add_u32 s61, s60, {(i // 4) * 16384}")
                e(f"s_waitcnt vmcnt({dep(n)-1})")
                if n == d - 1:
                    stamp(1)
                    e("s_barrier")
                V = VV + 4 * (i % 32)
                e(f"buffer_load_dwordx4 v[{V}:{V+3}], v{VO}, s[52:55], s61 offen offset:{(i % 4) * 1024} nt")
            else:
                i = n - 32
                if i % 4 == 0:
                    e(f"s_add_u32 s62, s60, {(i // 4) * 16384}\ns_add_u32 m0, s67, {((i // 4) % 4) * 4096}")
                e(f"s_waitcnt vmcnt({dep(n)-1})")
                e(f"buffer_load_dwordx4 v{KD + i % 4}, s[48:51], s62 offen offset:{(i % 4) * 1024} nt lds")
            if n == 31:
                stamp(2)
                e("s_barrier")
                stamp(3)
                for t in range(4):
                    e(f"ds_read_b128 v[{Q+4*t}:{Q+4*t+3}], v{VW1} offset:{64*t}")
        elif n - d2 <= 127:
            e(f"s_waitcnt vmcnt({127 - (n - d2)})")
        for (c, r) in todo:
            pv(c, r)()
        for fn in work.get(n, []):
            fn()
    e(f"ds_write_b128 v{VW2}, v[{ACC}:{ACC+3}]")
    stamp(4)
    e("s_waitcnt lgkmcnt(0)\ns_barrier\ns_cmp_lg_u32 s3, 0\ns_cbranch_scc1 L_fin")
    e(f"v_lshrrev_b32 v2, 5, v0\nv_lshlrev_b32 v3, 5, v2\nv_add_u32 v3, {ML}, v3")
    e("ds_read_b128 v[16:19], v3\nds_read_b128 v[20:23], v3 offset:16")
    for w in range(1, 4):
        e(f"ds_read_b128 v[{28+4*w}:{31+4*w}], v{VW2} offset:{1024*w}")
    e(f"""s_lshr_b32 s61, s2, 1
s_and_b32 s61, s61, 15
s_lshr_b32 s62, s2, 5
s_and_b32 s63, s2, 1
s_lshl_b32 s63, s63, 3
s_add_u32 s62, s62, s63
s_lshl_b32 s63, s61, 4
s_add_u32 s63, s63, s62
s_lshl_b32 s63, s63, 9
s_add_u32 s63, s63, {OBUF}
s_lshl_b32 s64, s61, 7
s_lshl_b32 s62, s62, 2
s_add_u32 s64, s64, s62
s_add_u32 s64, s64, {LSE}
v_and_b32 v4, 15, v0
v_lshlrev_b32 v4, 4, v4
v_lshl_add_u32 v4, v2, 8, v4
v_bfe_u32 v5, v0, 4, 1
v_lshl_add_u32 v4, v5, 3, v4
v_lshlrev_b32 v5, 6, v2
s_waitcnt lgkmcnt(3)
v_max3_f32 v24, v16, v18, v20
v_max_f32 v24, v24, v22
v_sub_f32 v16, v16, v24
v_sub_f32 v18, v18, v24
v_sub_f32 v20, v20, v24
v_sub_f32 v22, v22, v24
v_exp_f32 v16, v16
v_exp_f32 v18, v18
v_exp_f32 v20, v20
v_exp_f32 v22, v22
v_mul_f32 v25, v16, v17
v_fmac_f32 v25, v18, v19
v_fmac_f32 v25, v20, v21
v_fmac_f32 v25, v22, v23
v_rcp_f32 v26, v25
v_log_f32 v27, v25""")
    for r in range(4):
        e(f"v_mul_f32 v{ACC+r}, v{ACC+r}, v16")
    e("s_waitcnt lgkmcnt(0)")
    for w in range(1, 4):
        for r in range(4):
            e(f"v_fmac_f32 v{ACC+r}, v{28+4*w+r}, v{16+2*w}")
    for r in range(4):
        e(f"v_mul_f32 v{ACC+r}, v{ACC+r}, v26")
    e(f"""v_cvt_pk_bf16_f32 v28, v{ACC}, v{ACC+1}
v_cvt_pk_bf16_f32 v29, v{ACC+2}, v{ACC+3}
v_add_f32 v27, v27, v24
v_min_u32 v28, -2, v28
v_min_u32 v29, -2, v29
v_min_u32 v27, -2, v27
buffer_store_dwordx2 v[28:29], v4, s[56:59], s63 offen sc1
s_mov_b32 exec_lo, 1
s_mov_b32 exec_hi, 1
buffer_store_dword v27, v5, s[56:59], s64 offen sc1
s_mov_b64 exec, -1""")
    stamp(5)
    e("s_branch L_fin")

    XN, WF, OF, AC = 16, 52, 160, 192
    e("L_aux:\ns_sub_u32 s4, s3, 4\nv_mul_u32_u24 v1, 36, v0\ns_mul_i32 s5, s4, 2304\nv_lshlrev_b32 v2, 4, v0")
    e("s_add_u32 s13, s2, 64\ns_sub_u32 s14, s2, 144\ns_cmp_ge_u32 s2, 144\ns_cselect_b32 s13, s14, s13\ns_lshl_b32 s13, s13, 7")
    e("s_waitcnt lgkmcnt(0)")
    srd(40, 16, 9216)
    srd(56, 38, WS_SZ if not diag else 0x400000)
    srd(44, 36, 256)
    e("s_cmp_lg_u32 s4, 3\ns_cbranch_scc1 L_a1")
    e(f"v_mov_b32 v4, -1\nv_mov_b32 v5, -1\nv_mov_b32 v6, -1\nv_mov_b32 v7, -1\ns_mul_i32 s60, s2, 3072\ns_add_u32 s60, s60, {RR}")
    for k in range(3):
        e(f"buffer_store_dwordx4 v[4:7], v2, s[56:59], s60 offen offset:{1024*k} sc1")
    e(f"s_cmp_ge_u32 s2, 208\ns_cbranch_scc1 L_a1\nv_lshrrev_b32 v3, 3, v0\nv_mul_u32_u24 v3, {PROW}, v3\nv_and_b32 v8, 7, v0\nv_lshl_add_u32 v3, v8, 4, v3")
    e("buffer_store_dwordx4 v[4:7], v3, s[56:59], s13 offen sc1\nL_a1:")
    for k in range(3):
        e(f"buffer_load_dwordx3 v[{16+4*k}:{18+4*k}], v1, s[40:43], s5 offen offset:{12*k} {xpol}")
    e(f"v_mov_b32 v8, {CNT}\nv_mov_b32 v9, 0\nds_write_b32 v8, v9")
    e(f"s_mov_b32 s68, 0xffff0000\ns_mov_b32 s69, {f32(1/576)}\ns_add_u32 s5, s5, {XS}\nv_add_u32 v1, s5, v1")
    e("s_waitcnt vmcnt(0)\ns_cmp_lg_u32 s4, 3\ns_cbranch_scc1 L_a2")
    e("v_mov_b32 v8, 1\nv_mov_b32 v9, 0\ns_mov_b64 exec, 1\nbuffer_store_byte v8, v9, s[44:47], s2 offen sc1\ns_mov_b64 exec, -1\nL_a2:")
    raw = [16, 17, 18, 20, 21, 22, 24, 25, 26]

    def red32(v, t):
        for s in (8, 4, 2, 1):
            e(f"v_add_f32_dpp v{v}, v{v}, v{v} row_ror:{s} row_mask:0xf bank_mask:0xf")
        e(f"v_mov_b32 v{t}, v{v}\nv_permlane16_swap_b32 v{v}, v{t}\nv_add_f32 v{v}, v{v}, v{t}")

    for k in range(9):
        e(f"v_lshlrev_b32 v{28+2*k}, 16, v{raw[k]}\nv_and_b32 v{29+2*k}, s68, v{raw[k]}")
    e("v_pk_add_f32 v[46:47], v[28:29], v[30:31]")
    for k in range(2, 9):
        e(f"v_pk_add_f32 v[46:47], v[46:47], v[{28+2*k}:{29+2*k}]")
    e("v_add_f32 v46, v46, v47")
    red32(46, 47)
    e("v_mul_f32 v48, s69, v46\nv_sub_f32 v50, 0, v48\nv_sub_f32 v51, 0, v48")
    for k in range(9):
        e(f"v_pk_add_f32 v[8:9], v[{28+2*k}:{29+2*k}], v[50:51]")
        e("v_pk_mul_f32 v[46:47], v[8:9], v[8:9]" if k == 0 else "v_pk_fma_f32 v[46:47], v[8:9], v[8:9], v[46:47]")
    e("v_add_f32 v46, v46, v47")
    red32(46, 47)
    e("v_mul_f32 v46, s69, v46")
    rnd(46, 46)
    e(f"v_add_f32 v46, {f32(1e-5)}, v46")
    rnd(46, 46)
    e("v_sqrt_f32 v46, v46")
    rnd(46, 46)
    e("v_rcp_f32 v46, v46")
    rnd(50, 50)
    e("v_mov_b32 v51, v50\nv_mov_b32 v47, v46")
    for k in range(9):
        e(f"v_pk_add_f32 v[8:9], v[{28+2*k}:{29+2*k}], v[50:51]\nv_cvt_pk_bf16_f32 v9, v8, v9\nv_lshlrev_b32 v8, 16, v9\nv_and_b32 v9, s68, v9")
        e(f"v_pk_mul_f32 v[8:9], v[8:9], v[46:47]\nv_cvt_pk_bf16_f32 v{raw[k]}, v8, v9")
    for k in range(0, 8, 2):
        e(f"ds_write2_b32 v1, v{raw[k]}, v{raw[k+1]} offset0:{k} offset1:{k+1}")
    e(f"ds_write_b32 v1, v{raw[8]} offset:32")
    e("""v_lshrrev_b32 v10, 4, v0
v_and_b32 v11, 15, v0
v_bfe_u32 v8, v0, 2, 2
v_lshl_add_u32 v12, v10, 3, v8
v_lshlrev_b32 v12, 7, v12
v_and_b32 v9, 3, v0
v_lshl_add_u32 v12, v9, 3, v12
v_lshrrev_b32 v13, 1, v8
v_and_b32 v9, 1, v10
v_lshl_or_b32 v13, v9, 1, v13
v_lshl_add_u32 v12, v13, 5, v12
s_lshl_b32 s60, s4, 5
v_xor_b32 v3, s60, v12
v_add_u32 v4, 0x10000, v3
v_and_b32 v14, 7, v0""")
    e(f"v_mul_u32_u24 v5, 1152, v14\nv_lshrrev_b32 v8, 3, v11\nv_mul_u32_u24 v8, 576, v8\nv_lshl_add_u32 v8, v10, 4, v8\nv_add3_u32 v5, v5, v8, 0\nv_add_u32 v5, {XS}, v5")
    stamp(1)
    e("s_waitcnt lgkmcnt(0)\ns_barrier")
    stamp(2)

    def trread(kk):
        for hf in range(2):
            off = kk * 4096 + hf * 512
            e(f"ds_read_b64_tr_b16 v[{WF+4*kk+2*hf}:{WF+4*kk+2*hf+1}], v{3 if off < 65536 else 4} offset:{off % 65536}")

    for i in range(9):
        e(f"ds_read_b128 v[{XN+4*i}:{XN+4*i+3}], v5 offset:{64*i}")
    for kk in range(18):
        trread(kk)
    e("s_cmp_ge_u32 s2, 208\ns_cbranch_scc1 L_aD")
    e(f"v_mul_u32_u24 v6, {PROW}, v14\nv_lshl_add_u32 v6, v10, 3, v6\ns_lshl_b32 s60, s4, 5\ns_add_u32 s60, s60, s13")
    e("s_waitcnt lgkmcnt(0)")
    for i in range(9):
        for hf in range(2):
            kk = 9 * hf + i
            A = AC + 4 * hf
            e(f"v_mfma_f32_16x16x32_bf16 v[{A}:{A+3}], v[{WF+4*kk}:{WF+4*kk+3}], v[{XN+4*i}:{XN+4*i+3}], {'0' if i == 0 else f'v[{A}:{A+3}]'}")
    for r in range(4):
        e(f"v_add_f32_dpp v{AC+r}, v{AC+4+r}, v{AC+r} row_ror:8 row_mask:0xf bank_mask:0xf")
    e(f"""v_cvt_pk_bf16_f32 v8, v{AC}, v{AC+1}
v_cvt_pk_bf16_f32 v9, v{AC+2}, v{AC+3}
v_min_u32 v8, -2, v8
v_min_u32 v9, -2, v9
s_mov_b32 exec_lo, 0x00ff00ff
s_mov_b32 exec_hi, 0x00ff00ff
buffer_store_dwordx2 v[8:9], v6, s[56:59], s60 offen sc1
s_mov_b64 exec, -1""")
    stamp(3)
    e("s_cmp_ge_u32 s2, 144\ns_cbranch_scc1 L_aq")
    e(f"s_lshl_b32 s60, s4, 13\ns_add_u32 s60, s60, 73728\nv_add_u32 v3, s60, v12")
    for Tt in range(4):
        if Tt:
            e(f"v_xor_b32 v4, {32*Tt}, v3")
        for kk in range(2):
            for hf in range(2):
                R = OF + 8 * Tt + 4 * kk + 2 * hf
                e(f"ds_read_b64_tr_b16 v[{R}:{R+1}], v{4 if Tt else 3} offset:{kk*4096 + hf*512}")
    e("s_branch L_aq\nL_aD:")
    for kk in range(18, 27):
        trread(kk)
    e("L_aq:\ns_cmp_lg_u32 s4, 3\ns_cbranch_scc1 L_a3")
    e("v_lshlrev_b32 v6, 2, v0\ns_mov_b32 s61, 0x01010101")
    poll("buffer_load_dword v8, v6, s[44:47], 0 offen sc1", None, None, 4, cmp="v_cmp_ne_u32 vcc, s61, v8")
    stamp(4)
    e(f"s_lshr_b32 s60, s2, 5\ns_mul_i32 s60, s60, {PROW}\ns_lshr_b32 s61, s2, 1\ns_and_b32 s61, s61, 15\ns_lshl_b32 s61, s61, 9\ns_add_u32 s60, s60, s61\nv_lshlrev_b32 v6, 3, v0")
    poll("buffer_load_dwordx2 v[8:9], v6, s[56:59], s60 offen sc1", [8, 9], 7, 2)
    e(f"v_add_u32 v6, {QS}, v6\nds_write_b64 v6, v[8:9]")
    stamp(5)
    e("L_a3:\ns_waitcnt lgkmcnt(0)\ns_barrier")
    e("s_cmp_lt_u32 s2, 144\ns_cbranch_scc1 L_aO\ns_cmp_lt_u32 s2, 208\ns_cbranch_scc1 L_fin")

    e(f"""v_cmp_le_u32 vcc, 24, v0
v_mov_b32 v6, {PROW - 576}
v_cndmask_b32 v6, 0, v6, vcc
v_mul_u32_u24 v7, 24, v0
v_add_u32 v6, v6, v7
s_mul_i32 s60, s4, {2*PROW}
s_mul_i32 s61, s11, 576
s_add_u32 s60, s60, s61
s_add_u32 s60, s60, 8192
s_add_u32 s61, s60, 9216
s_mov_b32 s72, -1
s_mov_b32 s73, 0xffff
s_mov_b64 exec, s[72:73]""")
    G = [16, 17, 18, 20, 21, 22]
    U = [24, 25, 26, 28, 29, 30]
    poll("""buffer_load_dwordx3 v[16:18], v6, s[56:59], s60 offen sc1
buffer_load_dwordx3 v[20:22], v6, s[56:59], s60 offen offset:12 sc1
buffer_load_dwordx3 v[24:26], v6, s[56:59], s61 offen sc1
buffer_load_dwordx3 v[28:30], v6, s[56:59], s61 offen offset:12 sc1""", G + U, 8, 8, restore="s[72:73]")
    c0 = -2 * LOG2E * 0.7978845608028654
    e(f"v_mov_b32 v32, {f32(c0)}\nv_mov_b32 v33, {f32(c0 * 0.044715)}\ns_mul_i32 s60, s4, 1152\ns_add_u32 s60, s60, {HS}\nv_add_u32 v7, s60, v7")
    for k in range(6):
        e(f"""v_lshlrev_b32 v34, 16, v{G[k]}
v_and_b32 v35, s68, v{G[k]}
v_mul_f32 v36, v34, v34
v_mul_f32 v37, v35, v35
v_fma_f32 v36, v36, v33, v32
v_fma_f32 v37, v37, v33, v32
v_mul_f32 v36, v36, v34
v_mul_f32 v37, v37, v35
v_exp_f32 v36, v36
v_exp_f32 v37, v37
v_lshlrev_b32 v38, 16, v{U[k]}
v_add_f32 v36, 1.0, v36
v_add_f32 v37, 1.0, v37
v_rcp_f32 v36, v36
v_rcp_f32 v37, v37
v_and_b32 v39, s68, v{U[k]}
v_mul_f32 v34, v34, v36
v_mul_f32 v35, v35, v37
v_cvt_pk_bf16_f32 v35, v34, v35
v_lshlrev_b32 v34, 16, v35
v_and_b32 v35, s68, v35
v_mul_f32 v34, v34, v38
v_mul_f32 v35, v35, v39
v_cvt_pk_bf16_f32 v{40+k}, v34, v35""")
    for k in range(3):
        e(f"ds_write_b64 v7, v[{40+2*k}:{41+2*k}] offset:{8*k}")
    e(f"""s_mov_b64 exec, 1
v_mov_b32 v8, {CNT}
v_mov_b32 v9, 1
s_waitcnt lgkmcnt(0)
ds_add_u32 v8, v9
s_mov_b32 s70, {LIMIT*8}
L_spin:
ds_read_b32 v9, v8
s_waitcnt lgkmcnt(0)
v_readfirstlane_b32 s60, v9
s_cmp_ge_u32 s60, 4
s_cbranch_scc1 L_spind
s_sub_u32 s70, s70, 1
s_cbranch_scc1 L_spind
s_sleep 2
s_branch L_spin
L_spind:
s_mov_b64 exec, -1
v_mul_u32_u24 v5, 576, v14
v_lshl_add_u32 v5, v10, 4, v5
v_add_u32 v5, {HS}, v5""")
    for i in range(9):
        e(f"ds_read_b128 v[{XN+4*i}:{XN+4*i+3}], v5 offset:{64*i}")
    e(f"""v_lshlrev_b32 v6, 12, v14
v_lshl_add_u32 v6, v10, 4, v6
s_mul_i32 s60, s12, {3*32768}
s_lshr_b32 s61, s4, 1
s_lshl_b32 s61, s61, 11
s_add_u32 s60, s60, s61
s_and_b32 s61, s4, 1
s_lshl_b32 s61, s61, 6
s_add_u32 s60, s60, s61
s_lshl_b32 s61, s11, 7
s_add_u32 s60, s60, s61
s_add_u32 s60, s60, {DPART}
s_waitcnt lgkmcnt(0)""")
    for i in range(9):
        for sub in range(3):
            kk = 9 * sub + i
            A = AC + 4 * sub
            e(f"v_mfma_f32_16x16x32_bf16 v[{A}:{A+3}], v[{WF+4*kk}:{WF+4*kk+3}], v[{XN+4*i}:{XN+4*i+3}], {'0' if i == 0 else f'v[{A}:{A+3}]'}")
    for r in range(12):
        e(f"v_min_u32 v{AC+r}, -2, v{AC+r}")
    e("s_mov_b32 exec_lo, 0x00ff00ff\ns_mov_b32 exec_hi, 0x00ff00ff")
    for sub in range(3):
        e(f"buffer_store_dwordx4 v[{AC+4*sub}:{AC+4*sub+3}], v6, s[56:59], s60 offen sc1")
        if sub < 2:
            e("s_add_u32 s60, s60, 32768")
    e("s_mov_b64 exec, -1")
    stamp(6)
    e("s_branch L_fin")

    def gather_reduce(base, sleep):
        e(f"s_add_u32 s60, s74, {base}")
        poll("\n".join(f"buffer_load_dwordx2 v[{16+2*i}:{17+2*i}], v7, s[56:59], s60 offen offset:{512*i} sc1" for i in range(4)), list(range(16, 24)), 24, sleep)
        e("""v_pk_add_f32 v[16:17], v[16:17], v[18:19]
v_pk_add_f32 v[20:21], v[20:21], v[22:23]
v_pk_add_f32 v[16:17], v[16:17], v[20:21]
v_permlane32_swap_b32 v16, v17
v_add_f32 v16, v16, v17
v_mov_b32 v17, v16
v_permlane16_swap_b32 v16, v17
v_add_f32 v16, v16, v17""")
        rnd(16, 16)

    e(f"""L_aO:
v_lshlrev_b32 v5, 9, v11
v_lshl_add_u32 v5, v10, 4, v5
s_lshl_b32 s62, s8, 13
s_lshl_b32 s61, s4, 7
s_add_u32 s62, s62, s61
s_add_u32 s62, s62, {OBUF}
v_lshlrev_b32 v6, 2, v11
s_lshl_b32 s63, s8, 7
s_lshr_b32 s61, s4, 1
s_lshl_b32 s61, s61, 6
s_add_u32 s63, s63, s61
s_add_u32 s63, s63, {LSE}
s_lshl_b32 s61, s4, 11
s_add_u32 s61, s61, {RED2}
v_add_u32 v3, s61, v2
s_sub_u32 s64, s4, 1
s_lshl_b32 s61, s64, 10
s_add_u32 s61, s61, {RED2}
v_add_u32 v4, s61, v2
v_lshrrev_b32 v8, 3, v11
v_lshl_add_u32 v8, v14, 1, v8
v_lshlrev_b32 v8, 11, v8
v_lshl_add_u32 v15, v10, 4, v8
s_lshl_b32 s65, s9, 15
s_lshl_b32 s61, s8, 7
s_add_u32 s65, s65, s61
s_lshl_b32 s61, s64, 6
s_add_u32 s65, s65, s61
s_add_u32 s65, s65, {PART}
s_cmp_lg_u32 s4, 0
s_cbranch_scc1 L_o1
s_lshl_b32 s74, s9, 4
s_add_u32 s74, s74, s8
s_lshl_b32 s74, s74, 11
v_lshlrev_b32 v7, 3, v0
s_lshr_b32 s75, s8, 1
s_mul_i32 s75, s75, 1152
s_lshl_b32 s61, s9, 7
s_add_u32 s75, s75, s61
s_and_b32 s61, s8, 1
s_lshl_b32 s61, s61, 6
s_add_u32 s75, s75, s61
v_lshrrev_b32 v9, 5, v0
v_lshlrev_b32 v9, 1, v9
v_lshl_add_u32 v13, v11, 2, v9
buffer_load_ushort v50, v13, s[40:43], s75 offen""")
    srd(48, 34, 9216)
    gather_reduce(DPART, 16)
    e("v_mov_b32 v51, v16\nv_lshlrev_b32 v50, 16, v50")
    stamp(4)
    e("L_o1:\ns_barrier")
    stamp(5)
    poll("""buffer_load_dwordx4 v[28:31], v5, s[56:59], s62 offen sc1
buffer_load_dwordx4 v[32:35], v5, s[56:59], s62 offen offset:64 sc1
buffer_load_dword v36, v6, s[56:59], s63 offen sc1""", list(range(28, 37)), 37, psleep)
    stamp(6)
    for kk in range(2):
        for Tt in range(4):
            A = AC + 4 * Tt
            R = OF + 8 * Tt + 4 * kk
            e(f"v_mfma_f32_16x16x32_bf16 v[{A}:{A+3}], v[{R}:{R+3}], v[{28+4*kk}:{31+4*kk}], {'0' if kk == 0 else f'v[{A}:{A+3}]'}")
        if kk == 0:
            e("v_sub_f32_dpp v37, v36, v36 row_ror:8 row_mask:0xf bank_mask:0xf\nv_exp_f32 v37, v37")
    e("v_add_f32 v37, 1.0, v37\nv_rcp_f32 v37, v37")
    for r in range(16):
        e(f"v_mul_f32 v{AC+r}, v{AC+r}, v37")
    for tt in range(2):
        for r in range(4):
            e(f"v_add_f32_dpp v{40+4*tt+r}, v{AC+4*tt+r}, v{AC+4*tt+r} row_ror:8 row_mask:0xf bank_mask:0x3")
            e(f"v_add_f32_dpp v{40+4*tt+r}, v{AC+8+4*tt+r}, v{AC+8+4*tt+r} row_ror:8 row_mask:0xf bank_mask:0xc")
        e(f"ds_write_b128 v3, v[{40+4*tt}:{43+4*tt}] offset:{1024*tt}")
    e("s_waitcnt lgkmcnt(0)\ns_barrier\ns_cmp_eq_u32 s4, 0\ns_cbranch_scc1 L_o2\ns_cmp_eq_u32 s4, 3\ns_cbranch_scc1 L_fin")
    for w in range(4):
        e(f"ds_read_b128 v[{16+4*w}:{19+4*w}], v4 offset:{2048*w}")
    e("""s_waitcnt lgkmcnt(2)
v_pk_add_f32 v[16:17], v[16:17], v[20:21]
v_pk_add_f32 v[18:19], v[18:19], v[22:23]
s_waitcnt lgkmcnt(0)
v_pk_add_f32 v[24:25], v[24:25], v[28:29]
v_pk_add_f32 v[26:27], v[26:27], v[30:31]
v_pk_add_f32 v[16:17], v[16:17], v[24:25]
v_pk_add_f32 v[18:19], v[18:19], v[26:27]""")
    for r in range(4):
        e(f"v_min_u32 v{16+r}, -2, v{16+r}")
    e("buffer_store_dwordx4 v[16:19], v15, s[56:59], s65 offen sc1")
    stamp(7)
    e("s_branch L_fin\nL_o2:")
    gather_reduce(PART, psleep)
    e("v_add_f32 v16, v16, v50")
    rnd(16, 16)
    e("""v_add_f32 v16, v16, v51
v_cvt_pk_bf16_f32 v16, v16, v16
s_mov_b32 exec_lo, 0xffff
s_mov_b32 exec_hi, 0xffff
buffer_store_short v16, v13, s[48:51], s75 offen
s_mov_b64 exec, -1""")
    stamp(7)
    e("L_fin:")
    if diag:
        e("s_waitcnt vmcnt(0)\ns_memrealtime s[76:77]\ns_waitcnt lgkmcnt(0)\ns_getreg_b32 s77, hwreg(HW_REG_XCC_ID)")
        for i in range(8):
            e(f"v_mov_b32 v{16+i}, s{80+2*i}")
        e(f"v_mov_b32 v24, s76\nv_mov_b32 v25, s77\nv_mov_b32 v1, 0\ns_lshl_b32 s60, s2, 3\ns_add_u32 s60, s60, s3\ns_lshl_b32 s60, s60, 6\ns_add_u32 s60, s60, {STAMP}")
        e("s_mov_b64 exec, 1\nbuffer_store_dwordx4 v[16:19], v1, s[56:59], s60 offen\nbuffer_store_dwordx4 v[20:23], v1, s[56:59], s60 offen offset:16\nbuffer_store_dwordx2 v[24:25], v1, s[56:59], s60 offen offset:32")
    e("L_end:\ns_endpgm")
    e(f""".section .rodata,"a"
.p2align 6
.amdhsa_kernel {KN}
.amdhsa_next_free_vgpr 256
.amdhsa_next_free_sgpr 102
.amdhsa_accum_offset 256
.amdhsa_group_segment_fixed_size 0
.amdhsa_kernarg_size 96
.amdhsa_user_sgpr_count 2
.amdhsa_user_sgpr_kernarg_segment_ptr 1
.amdhsa_system_sgpr_workgroup_id_x 1
.amdhsa_float_denorm_mode_32 3
.end_amdhsa_kernel""")
    return top + e.text()


if __name__ == "__main__":
    kw = eval("dict(" + (sys.argv[2] if len(sys.argv) > 2 else "") + ")")
    open(sys.argv[1], "w").write(gen(**kw))


def report(T, pc):
    S = T[:, :4]; A = T[:, 4:]
    print("  start", pc(T[:, :, 0]), "| stream: B1", pc(S[:, :, 1]), "preB3", pc(S[:, :, 2]), "postB3", pc(S[:, :, 3]), "done", pc(S[:, :, 4]), "wgdone", pc(S[:, :, 4].max(1)), "opub", pc(S[:, 0, 5]))
    print("  aux: LN", pc(A[:, :, 1]), "B1", pc(A[:, :, 2]), "Qpub", pc(A[144:208, :, 3]), "Gpub", pc(A[:144, :, 3]), "flags", pc(A[:, 3, 4]), "q(nonO)", pc(A[144:, 3, 5]), "Dpub", pc(A[208:, :, 6]), "dgath", pc(A[:144, 0, 4]))
    print("  tail: B4", pc(A[:144, :, 5]), "ogath", pc(A[:144, :, 6]), "ppub", pc(A[:144, 1:3, 7]), "out", pc(A[:144, 0, 7]), "end", pc(T[:, :, 8]), flush=True)
```

```python
import sys, struct
sys.path.insert(0, "dev")
from asmlib import Asm

KN = "parallel_sum__sliding_block_cached__geglu_ffn__decode_kernel"
REF = "parallel_sum__sliding_block_cached__geglu_ffn__decode.s.ref"

XS, QS, HS, ML, CNT, RED, RED2, LDS_SZ = 110592, 119808, 120320, 124928, 124992, 125056, 129152, 137344
PROW = 26624
RR = 0x40000
OBUF, LSE, PART, DPART = RR, RR + 0x20000, RR + 0x24000, RR + 0x6C000
WS_SZ = 0x100000
STAMP = 0x200000
LIMIT = 400000


def f32(x):
    return "0x%08x" % struct.unpack("<I", struct.pack("<f", x))[0]


LOG2E = 1.4426950408889634


def gen(d=6, d2=6, diag=0, xpol="", pref=0, psleep=1):
    e = Asm()
    uid = [0]

    def stamp(i):
        if diag:
            e(f"s_memrealtime s[{80 + 2 * i}:{81 + 2 * i}]")

    def srd(b, lo, size):
        e(f"s_mov_b32 s{b}, s{lo}\ns_mov_b32 s{b+1}, s{lo+1}\ns_mov_b32 s{b+2}, {size}\ns_mov_b32 s{b+3}, 0x20000")

    def rnd(dst, src):
        e(f"v_cvt_pk_bf16_f32 v{dst}, v{src}, v{src}\nv_lshlrev_b32 v{dst}, 16, v{dst}")

    def poll(loads, regs, tmp, sleep, restore="-1", cmp=None):
        uid[0] += 1
        L = f"L_poll{uid[0]}"
        e(f"s_mov_b32 s70, {LIMIT}\n{L}:")
        e(loads)
        e("s_waitcnt vmcnt(0)")
        if cmp:
            e(cmp)
        else:
            r = list(regs)
            cur = r.pop(0)
            while r:
                if len(r) >= 2:
                    e(f"v_max3_u32 v{tmp}, v{cur}, v{r[0]}, v{r[1]}")
                    r = r[2:]
                else:
                    e(f"v_max_u32 v{tmp}, v{cur}, v{r[0]}")
                    r = r[1:]
                cur = tmp
            e(f"v_cmp_eq_u32 vcc, -1, v{cur}")
        e(f"s_and_b64 exec, exec, vcc\ns_cbranch_scc0 {L}_d\ns_sub_u32 s70, s70, 1\ns_cbranch_scc1 {L}_d")
        if sleep:
            e(f"s_sleep {sleep}")
        e(f"s_branch {L}\n{L}_d:\ns_mov_b64 exec, {restore}")

    def allred_g(v, t, op):
        e(f"v_mov_b32 v{t}, v{v}\nv_permlane16_swap_b32 v{v}, v{t}\n{op} v{v}, v{v}, v{t}")
        e(f"v_mov_b32 v{t}, v{v}\nv_permlane32_swap_b32 v{v}, v{t}\n{op} v{v}, v{v}, v{t}")

    hdr = [l.rstrip("\n") for l in open(REF) if l.startswith(";") and "@launch" not in l and "Override" not in l and "grid=ceil" not in l]
    top = "\n".join(hdr) + f"\n; @launch grid=(256,1,1) block=(512,1,1) lds={LDS_SZ}\n"
    e(f""".amdgcn_target "amdgcn-amd-amdhsa--gfx950"
.text
.globl {KN}
.p2align 8
.type {KN},@function
{KN}:""")
    e("s_cmp_ge_u32 s2, 256\ns_cbranch_scc1 L_end")
    e("s_load_dwordx16 s[16:31], s[0:1], 0\ns_load_dwordx8 s[32:39], s[0:1], 64")
    stamp(0)
    e("v_lshrrev_b32 v1, 6, v0\nv_and_b32 v0, 63, v0\nv_readfirstlane_b32 s3, v1")
    e("s_mul_i32 s8, s2, 57\ns_lshr_b32 s8, s8, 9\ns_mul_i32 s9, s8, 9\ns_sub_u32 s9, s2, s9")
    e("s_sub_u32 s10, s2, 208\ns_mul_i32 s11, s10, 86\ns_lshr_b32 s11, s11, 8\ns_mul_i32 s12, s11, 3\ns_sub_u32 s12, s10, s12")
    e("s_cmp_ge_u32 s3, 4\ns_cbranch_scc1 L_aux")

    VO, KD, KR, MK, VW1, VW2, Q, KF, AB, ACC, T, SP, MRUN, NEGM, LS, VV = 1, 2, 6, 10, 14, 15, 16, 32, 48, 64, 68, 84, 120, 121, 122, 128
    e("""v_lshrrev_b32 v1, 3, v0
v_and_b32 v2, 7, v0
v_and_b32 v3, 2, v1
s_and_b32 s5, s3, 1
s_lshl_b32 s5, s5, 2
v_or_b32 v3, s5, v3
v_xor_b32 v2, v2, v3
v_lshlrev_b32 v2, 4, v2
s_lshl_b32 m0, s3, 10
s_mov_b32 s43, 0x20000
s_cmp_ge_u32 s2, 208
s_cbranch_scc1 L_sD
s_cmp_ge_u32 s2, 144
s_cbranch_scc1 L_sQ
s_cmp_ge_u32 s2, 72
s_cselect_b32 s6, 72, 0
s_waitcnt lgkmcnt(0)
s_cselect_b32 s40, s30, s28
s_cselect_b32 s41, s31, s29
s_sub_u32 s6, s2, s6
s_movk_i32 s7, 9216""")
    e(f"s_mov_b32 s42, {576*9216}\ns_branch L_sP\nL_sQ:")
    e(f"s_sub_u32 s6, s2, 144\ns_movk_i32 s7, 8192\ns_mov_b32 s42, {576*8192}\ns_waitcnt lgkmcnt(0)\ns_mov_b32 s40, s22\ns_mov_b32 s41, s23")
    e("""L_sP:
s_lshl_b32 s60, s6, 7
s_mul_i32 s61, s3, s7
s_lshl_b32 s61, s61, 3
s_add_u32 s60, s60, s61
s_lshl_b32 s62, s7, 5
s_mov_b32 s63, s62
s_movk_i32 s64, 4096
s_movk_i32 s65, 4096
s_mov_b32 s66, 6
s_branch L_sW
L_sD:""")
    e(f"""s_mul_i32 s60, s11, {288*1152}
s_mul_i32 s61, s3, {8*1152}
s_add_u32 s60, s60, s61
s_mul_i32 s61, s12, 384
s_add_u32 s60, s60, s61
s_movk_i32 s62, 128
s_mov_b32 s63, {36864-256}
s_mov_b32 s64, 36864
s_mov_b32 s65, {4096-73728}
s_mov_b32 s66, 9
s_movk_i32 s7, 1152
s_mov_b32 s42, {4608*1152}
s_waitcnt lgkmcnt(0)
s_mov_b32 s40, s32
s_mov_b32 s41, s33
L_sW:
v_mad_u32_u24 v{VW1}, v1, s7, v2
L_w1:""")
    for k in range(3):
        e(f"s_waitcnt vmcnt({d-1})\nbuffer_load_dwordx4 v{VW1}, s[40:43], s60 offen nt lds")
        e(f"s_add_u32 s60, s60, s{62 if k < 2 else 63}\ns_add_u32 m0, m0, s{64 if k < 2 else 65}")
    e("s_sub_u32 s66, s66, 1\ns_cmp_lg_u32 s66, 0\ns_cbranch_scc1 L_w1")
    e("s_cmp_ge_u32 s2, 144\ns_cbranch_scc1 L_sV")
    srd(44, 24, 4096 * 1152)
    e(f"""s_movk_i32 s7, 1152
v_mad_u32_u24 v{VW2}, v1, s7, v2
s_mul_i32 s60, s8, {256*1152}
s_mul_i32 s61, s3, {8*1152}
s_add_u32 s60, s60, s61
s_lshl_b32 s61, s9, 7
s_add_u32 s60, s60, s61
s_mov_b32 s62, {32*1152}
s_mov_b32 s66, 8
L_w2:
s_waitcnt vmcnt({d-1})
buffer_load_dwordx4 v{VW2}, s[44:47], s60 offen nt lds
s_add_u32 s60, s60, s62
s_add_u32 m0, m0, s64
s_sub_u32 s66, s66, 1
s_cmp_lg_u32 s66, 0
s_cbranch_scc1 L_w2
L_sV:""")
    srd(48, 18, 0x10000000)
    srd(52, 20, 0x10000000)
    e(f"""s_lshr_b32 s60, s2, 1
s_lshl_b32 s60, s60, 21
s_and_b32 s61, s2, 1
s_lshl_b32 s61, s61, 18
s_add_u32 s60, s60, s61
s_lshl_b32 s61, s3, 12
s_add_u32 s60, s60, s61
s_add_u32 s60, s60, {6144*256}
s_lshl_b32 s67, s3, 14
v_lshlrev_b32 v{VO}, 4, v0""")

    work = {}

    def at(slot, fn):
        work.setdefault(slot, []).append(fn)

    def setup():
        e(f"v_lshrrev_b32 v{T}, 4, v0\nv_and_b32 v{T+1}, 15, v0\nv_lshlrev_b32 v{T+2}, 2, v{T}\nv_xor_b32 v{T+2}, v{T+2}, v{T+1}")
        e(f"v_lshlrev_b32 v{T+2}, 4, v{T+2}\nv_lshl_add_u32 v{KD}, v{T}, 8, v{T+2}")
        for r in range(1, 4):
            e(f"v_xor_b32 v{KD+r}, {16*r}, v{KD}")
        e(f"v_and_b32 v{T+2}, 3, v0\nv_lshlrev_b32 v{T+2}, 2, v{T+2}\nv_lshrrev_b32 v{T+3}, 2, v{T+1}\nv_or_b32 v{T+2}, v{T+2}, v{T+3}")
        e(f"v_lshl_add_u32 v{T+2}, v{T+2}, 8, s67\nv_xor_b32 v{T+3}, v{T}, v{T+1}\nv_lshl_add_u32 v{KR}, v{T+3}, 4, v{T+2}")
        for t in range(1, 4):
            e(f"v_xor_b32 v{KR+t}, {64*t}, v{KR}")
        e(f"v_and_b32 v{T+2}, 1, v0\nv_lshlrev_b32 v{T+2}, 4, v{T+2}\nv_mov_b32 v{T+3}, 0xffff\nv_lshlrev_b32 v{T+3}, v{T+2}, v{T+3}\nv_bfe_u32 v{T+2}, v0, 1, 2")
        for r in range(4):
            e(f"v_cmp_eq_u32 vcc, {r}, v{T+2}\nv_cndmask_b32 v{MK+r}, 0, v{T+3}, vcc")
        e(f"v_lshrrev_b32 v{T+2}, 3, v{T+1}\nv_lshlrev_b32 v{T+2}, 8, v{T+2}\nv_lshl_add_u32 v{T+2}, v{T}, 4, v{T+2}\nv_add_u32 v{VW1}, {QS}, v{T+2}")
        e(f"s_mov_b32 s68, 0xffff0000\ns_mov_b32 s69, {f32(128 ** -0.5)}\ns_mov_b32 s71, {f32(LOG2E)}")
        e(f"v_mov_b32 v{LS}, 0\nv_mov_b32 v{MRUN}, 0xff800000")
        for r in range(4):
            e(f"v_mov_b32 v{ACC+r}, 0")
        srd(56, 38, WS_SZ if not diag else 0x400000)

    at(d, setup)

    def sreg(c):
        return SP + 4 * (c if c < 8 else (8 if c == 8 else c - 9))

    def kread(c):
        def f():
            for t in range(4):
                e(f"ds_read_b128 v[{KF+4*t}:{KF+4*t+3}], v{KR+t} offset:{(c % 4) * 4096}")
        return f

    def kmma(c):
        def f():
            S = sreg(c)
            e("s_waitcnt lgkmcnt(0)")
            for t in range(4):
                e(f"v_mfma_f32_16x16x32_bf16 v[{S}:{S+3}], v[{KF+4*t}:{KF+4*t+3}], v[{Q+4*t}:{Q+4*t+3}], {'0' if t == 0 else f'v[{S}:{S+3}]'}")
        return f

    def kround(c):
        def f():
            S = sreg(c)
            for _ in range(2):
                e(f"v_cvt_pk_bf16_f32 v{T}, v{S}, v{S+1}\nv_cvt_pk_bf16_f32 v{T+1}, v{S+2}, v{S+3}")
                e(f"v_lshlrev_b32 v{S}, 16, v{T}\nv_and_b32 v{S+1}, s68, v{T}\nv_lshlrev_b32 v{S+2}, 16, v{T+1}\nv_and_b32 v{S+3}, s68, v{T+1}")
                if _ == 0:
                    for r in range(4):
                        e(f"v_mul_f32 v{S+r}, s69, v{S+r}")
            e(f"v_max3_f32 v{MRUN}, v{MRUN}, v{S}, v{S+1}\nv_max3_f32 v{MRUN}, v{MRUN}, v{S+2}, v{S+3}")
        return f

    def maxA():
        allred_g(MRUN, T, "v_max_f32")
        e(f"v_mul_f32 v{NEGM}, s71, v{MRUN}\nv_sub_f32 v{NEGM}, 0, v{NEGM}")

    def maxB():
        allred_g(MRUN, T, "v_max_f32")
        e(f"v_mul_f32 v{T+1}, s71, v{MRUN}\nv_add_f32 v{T+2}, v{NEGM}, v{T+1}\nv_sub_f32 v{NEGM}, 0, v{T+1}\nv_exp_f32 v{T+2}, -v{T+2}")
        e(f"v_mul_f32 v{LS}, v{LS}, v{T+2}\nv_mov_b32 v{T+3}, v{T+2}")
        e(f"v_mov_b32_dpp v{T+3}, v{T+2} row_ror:8 row_mask:0x3 bank_mask:0xc\nv_mov_b32_dpp v{T+3}, v{T+2} row_ror:8 row_mask:0xc bank_mask:0x3")
        for r in range(4):
            e(f"v_mul_f32 v{ACC+r}, v{ACC+r}, v{T+3}")

    def pexp(c):
        def f():
            S = sreg(c)
            for r in range(4):
                e(f"v_fma_f32 v{S+r}, v{S+r}, s71, v{NEGM}")
            for r in range(4):
                e(f"v_exp_f32 v{S+r}, v{S+r}")
            e(f"v_add_f32 v{T}, v{S}, v{S+1}\nv_add_f32 v{T+1}, v{S+2}, v{S+3}\nv_add_f32 v{LS}, v{LS}, v{T}\nv_add_f32 v{LS}, v{LS}, v{T+1}")
            for r in range(4):
                e(f"v_cvt_pk_bf16_f32 v{S+r}, v{S+r}, v{S+r}")
        return f

    def aprep(c, r):
        def f():
            for k in range(4):
                e(f"v_and_b32 v{AB+4*r+k}, v{sreg(c)+r}, v{MK+k}")
        return f

    def pv(c, r):
        def f():
            V = VV + 16 * (c % 8) + 4 * r
            e(f"v_mfma_f32_16x16x32_bf16 v[{ACC}:{ACC+3}], v[{AB+4*r}:{AB+4*r+3}], v[{V}:{V+3}], v[{ACC}:{ACC+3}]")
        return f

    def mlwrite():
        allred_g(LS, T, "v_add_f32")
        e(f"v_sub_f32 v{T+2}, 0, v{NEGM}\nv_mov_b32 v{T+3}, v{LS}")
        e(f"v_bfe_u32 v{T}, v0, 3, 1\nv_lshlrev_b32 v{T}, 5, v{T}\ns_lshl_b32 s63, s3, 3\ns_add_u32 s63, s63, {ML}\nv_add_u32 v{T}, s63, v{T}")
        e(f"ds_write_b64 v{T}, v[{T+2}:{T+3}]")
        e(f"s_lshl_b32 s63, s3, 10\ns_add_u32 s63, s63, {RED}\nv_add_u32 v{VW2}, s63, v{VO}")

    def dep(n):
        return d if n < 96 else d2

    landed = {}
    for n in range(128 + 64):
        top_done = (n - dep(n)) if n < 128 else min(127, n - d2)
        for m in range(top_done + 1):
            landed.setdefault(m, n)
    for c in range(16):
        n0 = landed[35 + 4 * c]
        at(n0, kread(c))
        at(n0 + 1, kmma(c))
        at(n0 + 2, kround(c))
    sA = landed[35 + 28] + 3
    at(sA, maxA)
    for j in range(8):
        s0 = sA + 1 + 3 * j
        at(s0, pexp(j))
        at(s0 + 1, aprep(j, 0)); at(s0 + 1, aprep(j, 1)); at(s0 + 1, pv(j, 0)); at(s0 + 1, pv(j, 1))
        at(s0 + 2, aprep(j, 2)); at(s0 + 2, aprep(j, 3)); at(s0 + 2, pv(j, 2)); at(s0 + 2, pv(j, 3))
        assert s0 + 2 < 96 + 4 * j
        if j < 7:
            assert s0 + 2 < landed[35 + 4 * (9 + j)] + 1
    sB = landed[95] + 3
    at(sB, maxB)
    pre = {}
    for j in range(8):
        at(sB + 1 + j, pexp(8 + j))
    at(sB + 9, mlwrite)
    last = 0
    for n in range(96, 128):
        j, r = (n - 96) // 4, n % 4
        s = max(landed[n], sB + 2 + j, last)
        last = s
        pre.setdefault(s, []).append((8 + j, r))
    nslots = max(max(work), last) + 1
    for n in range(nslots):
        todo = pre.get(n, [])
        assert len(todo) <= 4
        for (c, r) in todo:
            aprep(c, r)()
        if n < 128:
            if n < 32 or n >= 96:
                i = n if n < 32 else n - 64
                if i % 4 == 0:
                    e(f"s_add_u32 s61, s60, {(i // 4) * 16384}")
                e(f"s_waitcnt vmcnt({dep(n)-1})")
                if n == d - 1:
                    stamp(1)
                    e("s_barrier")
                V = VV + 4 * (i % 32)
                e(f"buffer_load_dwordx4 v[{V}:{V+3}], v{VO}, s[52:55], s61 offen offset:{(i % 4) * 1024} nt")
            else:
                i = n - 32
                if i % 4 == 0:
                    e(f"s_add_u32 s62, s60, {(i // 4) * 16384}\ns_add_u32 m0, s67, {((i // 4) % 4) * 4096}")
                e(f"s_waitcnt vmcnt({dep(n)-1})")
                e(f"buffer_load_dwordx4 v{KD + i % 4}, s[48:51], s62 offen offset:{(i % 4) * 1024} nt lds")
            if n == 31:
                stamp(2)
                e("s_barrier")
                stamp(3)
                for t in range(4):
                    e(f"ds_read_b128 v[{Q+4*t}:{Q+4*t+3}], v{VW1} offset:{64*t}")
        elif n - d2 <= 127:
            e(f"s_waitcnt vmcnt({127 - (n - d2)})")
        for (c, r) in todo:
            pv(c, r)()
        for fn in work.get(n, []):
            fn()
    e(f"ds_write_b128 v{VW2}, v[{ACC}:{ACC+3}]")
    stamp(4)
    e("s_waitcnt lgkmcnt(0)\ns_barrier\ns_cmp_lg_u32 s3, 0\ns_cbranch_scc1 L_fin")
    e(f"v_lshrrev_b32 v2, 5, v0\nv_lshlrev_b32 v3, 5, v2\nv_add_u32 v3, {ML}, v3")
    e("ds_read_b128 v[16:19], v3\nds_read_b128 v[20:23], v3 offset:16")
    for w in range(1, 4):
        e(f"ds_read_b128 v[{28+4*w}:{31+4*w}], v{VW2} offset:{1024*w}")
    e(f"""s_lshr_b32 s61, s2, 1
s_and_b32 s61, s61, 15
s_lshr_b32 s62, s2, 5
s_and_b32 s63, s2, 1
s_lshl_b32 s63, s63, 3
s_add_u32 s62, s62, s63
s_lshl_b32 s63, s61, 4
s_add_u32 s63, s63, s62
s_lshl_b32 s63, s63, 9
s_add_u32 s63, s63, {OBUF}
s_lshl_b32 s64, s61, 7
s_lshl_b32 s62, s62, 2
s_add_u32 s64, s64, s62
s_add_u32 s64, s64, {LSE}
v_and_b32 v4, 15, v0
v_lshlrev_b32 v4, 4, v4
v_lshl_add_u32 v4, v2, 8, v4
v_bfe_u32 v5, v0, 4, 1
v_lshl_add_u32 v4, v5, 3, v4
v_lshlrev_b32 v5, 6, v2
s_waitcnt lgkmcnt(3)
v_max3_f32 v24, v16, v18, v20
v_max_f32 v24, v24, v22
v_sub_f32 v16, v16, v24
v_sub_f32 v18, v18, v24
v_sub_f32 v20, v20, v24
v_sub_f32 v22, v22, v24
v_exp_f32 v16, v16
v_exp_f32 v18, v18
v_exp_f32 v20, v20
v_exp_f32 v22, v22
v_mul_f32 v25, v16, v17
v_fmac_f32 v25, v18, v19
v_fmac_f32 v25, v20, v21
v_fmac_f32 v25, v22, v23
v_rcp_f32 v26, v25
v_log_f32 v27, v25""")
    for r in range(4):
        e(f"v_mul_f32 v{ACC+r}, v{ACC+r}, v16")
    e("s_waitcnt lgkmcnt(0)")
    for w in range(1, 4):
        for r in range(4):
            e(f"v_fmac_f32 v{ACC+r}, v{28+4*w+r}, v{16+2*w}")
    for r in range(4):
        e(f"v_mul_f32 v{ACC+r}, v{ACC+r}, v26")
    e(f"""v_cvt_pk_bf16_f32 v28, v{ACC}, v{ACC+1}
v_cvt_pk_bf16_f32 v29, v{ACC+2}, v{ACC+3}
v_add_f32 v27, v27, v24
v_min_u32 v28, -2, v28
v_min_u32 v29, -2, v29
v_min_u32 v27, -2, v27
buffer_store_dwordx2 v[28:29], v4, s[56:59], s63 offen sc1
s_mov_b32 exec_lo, 1
s_mov_b32 exec_hi, 1
buffer_store_dword v27, v5, s[56:59], s64 offen sc1
s_mov_b64 exec, -1""")
    stamp(5)
    e("s_branch L_fin")

    XN, WF, OF, AC = 16, 52, 160, 192
    e("L_aux:\ns_sub_u32 s4, s3, 4\nv_mul_u32_u24 v1, 36, v0\ns_mul_i32 s5, s4, 2304\nv_lshlrev_b32 v2, 4, v0")
    e("s_add_u32 s13, s2, 64\ns_sub_u32 s14, s2, 144\ns_cmp_ge_u32 s2, 144\ns_cselect_b32 s13, s14, s13\ns_lshl_b32 s13, s13, 7")
    e("s_waitcnt lgkmcnt(0)")
    srd(40, 16, 9216)
    srd(56, 38, WS_SZ if not diag else 0x400000)
    srd(44, 36, 256)
    if pref:
        e(f"""s_cmp_lg_u32 s4, 2
s_cbranch_scc1 L_a0
s_getpc_b64 s[60:61]
L_pc:
s_sub_u32 s60, s60, L_pc-{KN}
s_subb_u32 s61, s61, 0
s_lshr_b32 s62, s2, 3
s_lshl_b32 s62, s62, 10
v_add_u32 v3, s62, v2
v_min_u32 v3, L_end-{KN}-12, v3
v_mov_b32 v5, s61
v_add_co_u32 v4, vcc, s60, v3
v_addc_co_u32 v5, vcc, 0, v5, vcc
global_load_dwordx4 v[28:31], v[4:5], off
L_a0:""")
    e("s_cmp_lg_u32 s4, 3\ns_cbranch_scc1 L_a1")
    e(f"v_mov_b32 v4, -1\nv_mov_b32 v5, -1\nv_mov_b32 v6, -1\nv_mov_b32 v7, -1\ns_mul_i32 s60, s2, 3072\ns_add_u32 s60, s60, {RR}")
    for k in range(3):
        e(f"buffer_store_dwordx4 v[4:7], v2, s[56:59], s60 offen offset:{1024*k} sc1")
    e(f"s_cmp_ge_u32 s2, 208\ns_cbranch_scc1 L_a1\nv_lshrrev_b32 v3, 3, v0\nv_mul_u32_u24 v3, {PROW}, v3\nv_and_b32 v8, 7, v0\nv_lshl_add_u32 v3, v8, 4, v3")
    e("buffer_store_dwordx4 v[4:7], v3, s[56:59], s13 offen sc1\nL_a1:")
    for k in range(3):
        e(f"buffer_load_dwordx3 v[{16+4*k}:{18+4*k}], v1, s[40:43], s5 offen offset:{12*k} {xpol}")
    e(f"v_mov_b32 v8, {CNT}\nv_mov_b32 v9, 0\nds_write_b32 v8, v9")
    e(f"s_mov_b32 s68, 0xffff0000\ns_mov_b32 s69, {f32(1/576)}\ns_add_u32 s5, s5, {XS}\nv_add_u32 v1, s5, v1")
    e("s_waitcnt vmcnt(0)\ns_cmp_lg_u32 s4, 3\ns_cbranch_scc1 L_a2")
    e("v_mov_b32 v8, 1\nv_mov_b32 v9, 0\ns_mov_b64 exec, 1\nbuffer_store_byte v8, v9, s[44:47], s2 offen sc1\ns_mov_b64 exec, -1\nL_a2:")
    raw = [16, 17, 18, 20, 21, 22, 24, 25, 26]

    def red32(v, t):
        for s in (8, 4, 2, 1):
            e(f"v_add_f32_dpp v{v}, v{v}, v{v} row_ror:{s} row_mask:0xf bank_mask:0xf")
        e(f"v_mov_b32 v{t}, v{v}\nv_permlane16_swap_b32 v{v}, v{t}\nv_add_f32 v{v}, v{v}, v{t}")

    for k in range(9):
        e(f"v_lshlrev_b32 v{28+2*k}, 16, v{raw[k]}\nv_and_b32 v{29+2*k}, s68, v{raw[k]}")
    e("v_pk_add_f32 v[46:47], v[28:29], v[30:31]")
    for k in range(2, 9):
        e(f"v_pk_add_f32 v[46:47], v[46:47], v[{28+2*k}:{29+2*k}]")
    e("v_add_f32 v46, v46, v47")
    red32(46, 47)
    e("v_mul_f32 v48, s69, v46\nv_sub_f32 v50, 0, v48\nv_sub_f32 v51, 0, v48")
    for k in range(9):
        e(f"v_pk_add_f32 v[8:9], v[{28+2*k}:{29+2*k}], v[50:51]")
        e("v_pk_mul_f32 v[46:47], v[8:9], v[8:9]" if k == 0 else "v_pk_fma_f32 v[46:47], v[8:9], v[8:9], v[46:47]")
    e("v_add_f32 v46, v46, v47")
    red32(46, 47)
    e("v_mul_f32 v46, s69, v46")
    rnd(46, 46)
    e(f"v_add_f32 v46, {f32(1e-5)}, v46")
    rnd(46, 46)
    e("v_sqrt_f32 v46, v46")
    rnd(46, 46)
    e("v_rcp_f32 v46, v46")
    rnd(50, 50)
    e("v_mov_b32 v51, v50\nv_mov_b32 v47, v46")
    for k in range(9):
        e(f"v_pk_add_f32 v[8:9], v[{28+2*k}:{29+2*k}], v[50:51]\nv_cvt_pk_bf16_f32 v9, v8, v9\nv_lshlrev_b32 v8, 16, v9\nv_and_b32 v9, s68, v9")
        e(f"v_pk_mul_f32 v[8:9], v[8:9], v[46:47]\nv_cvt_pk_bf16_f32 v{raw[k]}, v8, v9")
    for k in range(0, 8, 2):
        e(f"ds_write2_b32 v1, v{raw[k]}, v{raw[k+1]} offset0:{k} offset1:{k+1}")
    e(f"ds_write_b32 v1, v{raw[8]} offset:32")
    e("""v_lshrrev_b32 v10, 4, v0
v_and_b32 v11, 15, v0
v_bfe_u32 v8, v0, 2, 2
v_lshl_add_u32 v12, v10, 3, v8
v_lshlrev_b32 v12, 7, v12
v_and_b32 v9, 3, v0
v_lshl_add_u32 v12, v9, 3, v12
v_lshrrev_b32 v13, 1, v8
v_and_b32 v9, 1, v10
v_lshl_or_b32 v13, v9, 1, v13
v_lshl_add_u32 v12, v13, 5, v12
s_lshl_b32 s60, s4, 5
v_xor_b32 v3, s60, v12
v_add_u32 v4, 0x10000, v3
v_and_b32 v14, 7, v0""")
    e(f"v_mul_u32_u24 v5, 1152, v14\nv_lshrrev_b32 v8, 3, v11\nv_mul_u32_u24 v8, 576, v8\nv_lshl_add_u32 v8, v10, 4, v8\nv_add3_u32 v5, v5, v8, 0\nv_add_u32 v5, {XS}, v5")
    stamp(1)
    e("s_waitcnt lgkmcnt(0)\ns_barrier")
    stamp(2)

    def trread(kk):
        for hf in range(2):
            off = kk * 4096 + hf * 512
            e(f"ds_read_b64_tr_b16 v[{WF+4*kk+2*hf}:{WF+4*kk+2*hf+1}], v{3 if off < 65536 else 4} offset:{off % 65536}")

    for i in range(9):
        e(f"ds_read_b128 v[{XN+4*i}:{XN+4*i+3}], v5 offset:{64*i}")
    for kk in range(18):
        trread(kk)
    e("s_cmp_ge_u32 s2, 208\ns_cbranch_scc1 L_aD")
    e(f"v_mul_u32_u24 v6, {PROW}, v14\nv_lshl_add_u32 v6, v10, 3, v6\ns_lshl_b32 s60, s4, 5\ns_add_u32 s60, s60, s13")
    e("s_waitcnt lgkmcnt(0)")
    for i in range(9):
        for hf in range(2):
            kk = 9 * hf + i
            A = AC + 4 * hf
            e(f"v_mfma_f32_16x16x32_bf16 v[{A}:{A+3}], v[{WF+4*kk}:{WF+4*kk+3}], v[{XN+4*i}:{XN+4*i+3}], {'0' if i == 0 else f'v[{A}:{A+3}]'}")
    for r in range(4):
        e(f"v_add_f32_dpp v{AC+r}, v{AC+4+r}, v{AC+r} row_ror:8 row_mask:0xf bank_mask:0xf")
    e(f"""v_cvt_pk_bf16_f32 v8, v{AC}, v{AC+1}
v_cvt_pk_bf16_f32 v9, v{AC+2}, v{AC+3}
v_min_u32 v8, -2, v8
v_min_u32 v9, -2, v9
s_mov_b32 exec_lo, 0x00ff00ff
s_mov_b32 exec_hi, 0x00ff00ff
buffer_store_dwordx2 v[8:9], v6, s[56:59], s60 offen sc1
s_mov_b64 exec, -1""")
    stamp(3)
    e("s_cmp_ge_u32 s2, 144\ns_cbranch_scc1 L_aq")
    e(f"s_lshl_b32 s60, s4, 13\ns_add_u32 s60, s60, 73728\nv_add_u32 v3, s60, v12")
    for Tt in range(4):
        if Tt:
            e(f"v_xor_b32 v4, {32*Tt}, v3")
        for kk in range(2):
            for hf in range(2):
                R = OF + 8 * Tt + 4 * kk + 2 * hf
                e(f"ds_read_b64_tr_b16 v[{R}:{R+1}], v{4 if Tt else 3} offset:{kk*4096 + hf*512}")
    e("s_branch L_aq\nL_aD:")
    for kk in range(18, 27):
        trread(kk)
    e("L_aq:\ns_cmp_lg_u32 s4, 3\ns_cbranch_scc1 L_a3")
    e("v_lshlrev_b32 v6, 2, v0\ns_mov_b32 s61, 0x01010101")
    poll("buffer_load_dword v8, v6, s[44:47], 0 offen sc1", None, None, 4, cmp="v_cmp_ne_u32 vcc, s61, v8")
    stamp(4)
    e(f"s_lshr_b32 s60, s2, 5\ns_mul_i32 s60, s60, {PROW}\ns_lshr_b32 s61, s2, 1\ns_and_b32 s61, s61, 15\ns_lshl_b32 s61, s61, 9\ns_add_u32 s60, s60, s61\nv_lshlrev_b32 v6, 3, v0")
    poll("buffer_load_dwordx2 v[8:9], v6, s[56:59], s60 offen sc1", [8, 9], 7, 2)
    e(f"v_add_u32 v6, {QS}, v6\nds_write_b64 v6, v[8:9]")
    stamp(5)
    e("L_a3:\ns_waitcnt lgkmcnt(0)\ns_barrier")
    e("s_cmp_lt_u32 s2, 144\ns_cbranch_scc1 L_aO\ns_cmp_lt_u32 s2, 208\ns_cbranch_scc1 L_fin")

    e(f"""v_cmp_le_u32 vcc, 24, v0
v_mov_b32 v6, {PROW - 576}
v_cndmask_b32 v6, 0, v6, vcc
v_mul_u32_u24 v7, 24, v0
v_add_u32 v6, v6, v7
s_mul_i32 s60, s4, {2*PROW}
s_mul_i32 s61, s11, 576
s_add_u32 s60, s60, s61
s_add_u32 s60, s60, 8192
s_add_u32 s61, s60, 9216
s_mov_b32 s72, -1
s_mov_b32 s73, 0xffff
s_mov_b64 exec, s[72:73]""")
    G = [16, 17, 18, 20, 21, 22]
    U = [24, 25, 26, 28, 29, 30]
    poll("""buffer_load_dwordx3 v[16:18], v6, s[56:59], s60 offen sc1
buffer_load_dwordx3 v[20:22], v6, s[56:59], s60 offen offset:12 sc1
buffer_load_dwordx3 v[24:26], v6, s[56:59], s61 offen sc1
buffer_load_dwordx3 v[28:30], v6, s[56:59], s61 offen offset:12 sc1""", G + U, 8, 8, restore="s[72:73]")
    c0 = -2 * LOG2E * 0.7978845608028654
    e(f"v_mov_b32 v32, {f32(c0)}\nv_mov_b32 v33, {f32(c0 * 0.044715)}\ns_mul_i32 s60, s4, 1152\ns_add_u32 s60, s60, {HS}\nv_add_u32 v7, s60, v7")
    for k in range(6):
        e(f"""v_lshlrev_b32 v34, 16, v{G[k]}
v_and_b32 v35, s68, v{G[k]}
v_mul_f32 v36, v34, v34
v_mul_f32 v37, v35, v35
v_fma_f32 v36, v36, v33, v32
v_fma_f32 v37, v37, v33, v32
v_mul_f32 v36, v36, v34
v_mul_f32 v37, v37, v35
v_exp_f32 v36, v36
v_exp_f32 v37, v37
v_lshlrev_b32 v38, 16, v{U[k]}
v_add_f32 v36, 1.0, v36
v_add_f32 v37, 1.0, v37
v_rcp_f32 v36, v36
v_rcp_f32 v37, v37
v_and_b32 v39, s68, v{U[k]}
v_mul_f32 v34, v34, v36
v_mul_f32 v35, v35, v37
v_cvt_pk_bf16_f32 v35, v34, v35
v_lshlrev_b32 v34, 16, v35
v_and_b32 v35, s68, v35
v_mul_f32 v34, v34, v38
v_mul_f32 v35, v35, v39
v_cvt_pk_bf16_f32 v{40+k}, v34, v35""")
    for k in range(3):
        e(f"ds_write_b64 v7, v[{40+2*k}:{41+2*k}] offset:{8*k}")
    e(f"""s_mov_b64 exec, 1
v_mov_b32 v8, {CNT}
v_mov_b32 v9, 1
s_waitcnt lgkmcnt(0)
ds_add_u32 v8, v9
s_mov_b32 s70, {LIMIT*8}
L_spin:
ds_read_b32 v9, v8
s_waitcnt lgkmcnt(0)
v_readfirstlane_b32 s60, v9
s_cmp_ge_u32 s60, 4
s_cbranch_scc1 L_spind
s_sub_u32 s70, s70, 1
s_cbranch_scc1 L_spind
s_sleep 2
s_branch L_spin
L_spind:
s_mov_b64 exec, -1
v_mul_u32_u24 v5, 576, v14
v_lshl_add_u32 v5, v10, 4, v5
v_add_u32 v5, {HS}, v5""")
    for i in range(9):
        e(f"ds_read_b128 v[{XN+4*i}:{XN+4*i+3}], v5 offset:{64*i}")
    e(f"""v_lshlrev_b32 v6, 12, v14
v_lshl_add_u32 v6, v10, 4, v6
s_mul_i32 s60, s12, {3*32768}
s_lshr_b32 s61, s4, 1
s_lshl_b32 s61, s61, 11
s_add_u32 s60, s60, s61
s_and_b32 s61, s4, 1
s_lshl_b32 s61, s61, 6
s_add_u32 s60, s60, s61
s_lshl_b32 s61, s11, 7
s_add_u32 s60, s60, s61
s_add_u32 s60, s60, {DPART}
s_waitcnt lgkmcnt(0)""")
    for i in range(9):
        for sub in range(3):
            kk = 9 * sub + i
            A = AC + 4 * sub
            e(f"v_mfma_f32_16x16x32_bf16 v[{A}:{A+3}], v[{WF+4*kk}:{WF+4*kk+3}], v[{XN+4*i}:{XN+4*i+3}], {'0' if i == 0 else f'v[{A}:{A+3}]'}")
    for r in range(12):
        e(f"v_min_u32 v{AC+r}, -2, v{AC+r}")
    e("s_mov_b32 exec_lo, 0x00ff00ff\ns_mov_b32 exec_hi, 0x00ff00ff")
    for sub in range(3):
        e(f"buffer_store_dwordx4 v[{AC+4*sub}:{AC+4*sub+3}], v6, s[56:59], s60 offen sc1")
        if sub < 2:
            e("s_add_u32 s60, s60, 32768")
    e("s_mov_b64 exec, -1")
    stamp(6)
    e("s_branch L_fin")

    def gather_reduce(base, sleep):
        e(f"s_add_u32 s60, s74, {base}")
        poll("\n".join(f"buffer_load_dwordx2 v[{16+2*i}:{17+2*i}], v7, s[56:59], s60 offen offset:{512*i} sc1" for i in range(4)), list(range(16, 24)), 24, sleep)
        e("""v_pk_add_f32 v[16:17], v[16:17], v[18:19]
v_pk_add_f32 v[20:21], v[20:21], v[22:23]
v_pk_add_f32 v[16:17], v[16:17], v[20:21]
v_permlane32_swap_b32 v16, v17
v_add_f32 v16, v16, v17
v_mov_b32 v17, v16
v_permlane16_swap_b32 v16, v17
v_add_f32 v16, v16, v17""")
        rnd(16, 16)

    e(f"""L_aO:
v_lshlrev_b32 v5, 9, v11
v_lshl_add_u32 v5, v10, 4, v5
s_lshl_b32 s62, s8, 13
s_lshl_b32 s61, s4, 7
s_add_u32 s62, s62, s61
s_add_u32 s62, s62, {OBUF}
v_lshlrev_b32 v6, 2, v11
s_lshl_b32 s63, s8, 7
s_lshr_b32 s61, s4, 1
s_lshl_b32 s61, s61, 6
s_add_u32 s63, s63, s61
s_add_u32 s63, s63, {LSE}
s_lshl_b32 s61, s4, 11
s_add_u32 s61, s61, {RED2}
v_add_u32 v3, s61, v2
s_sub_u32 s64, s4, 1
s_lshl_b32 s61, s64, 10
s_add_u32 s61, s61, {RED2}
v_add_u32 v4, s61, v2
v_lshrrev_b32 v8, 3, v11
v_lshl_add_u32 v8, v14, 1, v8
v_lshlrev_b32 v8, 11, v8
v_lshl_add_u32 v15, v10, 4, v8
s_lshl_b32 s65, s9, 15
s_lshl_b32 s61, s8, 7
s_add_u32 s65, s65, s61
s_lshl_b32 s61, s64, 6
s_add_u32 s65, s65, s61
s_add_u32 s65, s65, {PART}
s_lshl_b32 s74, s9, 4
s_add_u32 s74, s74, s8
s_lshl_b32 s74, s74, 11
v_lshlrev_b32 v7, 3, v0
s_lshr_b32 s75, s8, 1
s_mul_i32 s75, s75, 1152
s_lshl_b32 s61, s9, 7
s_add_u32 s75, s75, s61
s_and_b32 s61, s8, 1
s_lshl_b32 s61, s61, 6
s_add_u32 s75, s75, s61
v_lshrrev_b32 v9, 5, v0
v_lshlrev_b32 v9, 1, v9
v_lshl_add_u32 v13, v11, 2, v9""")
    srd(48, 34, 9216)
    e("s_cmp_lg_u32 s4, 0\ns_cbranch_scc1 L_o1\nbuffer_load_ushort v50, v13, s[40:43], s75 offen")
    gather_reduce(DPART, 16)
    e("v_mov_b32 v51, v16\nv_lshlrev_b32 v50, 16, v50")
    stamp(4)
    e("L_o1:\ns_barrier")
    stamp(5)
    poll("""buffer_load_dwordx4 v[28:31], v5, s[56:59], s62 offen sc1
buffer_load_dwordx4 v[32:35], v5, s[56:59], s62 offen offset:64 sc1
buffer_load_dword v36, v6, s[56:59], s63 offen sc1""", list(range(28, 37)), 37, psleep)
    stamp(6)
    for kk in range(2):
        for Tt in range(4):
            A = AC + 4 * Tt
            R = OF + 8 * Tt + 4 * kk
            e(f"v_mfma_f32_16x16x32_bf16 v[{A}:{A+3}], v[{R}:{R+3}], v[{28+4*kk}:{31+4*kk}], {'0' if kk == 0 else f'v[{A}:{A+3}]'}")
        if kk == 0:
            e("v_sub_f32_dpp v37, v36, v36 row_ror:8 row_mask:0xf bank_mask:0xf\nv_exp_f32 v37, v37")
    e("v_add_f32 v37, 1.0, v37\nv_rcp_f32 v37, v37")
    for r in range(16):
        e(f"v_mul_f32 v{AC+r}, v{AC+r}, v37")
    for tt in range(2):
        for r in range(4):
            e(f"v_add_f32_dpp v{40+4*tt+r}, v{AC+4*tt+r}, v{AC+4*tt+r} row_ror:8 row_mask:0xf bank_mask:0x3")
            e(f"v_add_f32_dpp v{40+4*tt+r}, v{AC+8+4*tt+r}, v{AC+8+4*tt+r} row_ror:8 row_mask:0xf bank_mask:0xc")
        e(f"ds_write_b128 v3, v[{40+4*tt}:{43+4*tt}] offset:{1024*tt}")
    e("s_waitcnt lgkmcnt(0)\ns_barrier\ns_cmp_eq_u32 s4, 0\ns_cbranch_scc1 L_o2\ns_cmp_eq_u32 s4, 3\ns_cbranch_scc1 L_fin")
    for w in range(4):
        e(f"ds_read_b128 v[{16+4*w}:{19+4*w}], v4 offset:{2048*w}")
    e("""s_waitcnt lgkmcnt(2)
v_pk_add_f32 v[16:17], v[16:17], v[20:21]
v_pk_add_f32 v[18:19], v[18:19], v[22:23]
s_waitcnt lgkmcnt(0)
v_pk_add_f32 v[24:25], v[24:25], v[28:29]
v_pk_add_f32 v[26:27], v[26:27], v[30:31]
v_pk_add_f32 v[16:17], v[16:17], v[24:25]
v_pk_add_f32 v[18:19], v[18:19], v[26:27]""")
    for r in range(4):
        e(f"v_min_u32 v{16+r}, -2, v{16+r}")
    e("buffer_store_dwordx4 v[16:19], v15, s[56:59], s65 offen sc1")
    stamp(7)
    e("s_branch L_fin\nL_o2:")
    gather_reduce(PART, psleep)
    e("v_add_f32 v16, v16, v50")
    rnd(16, 16)
    e("""v_add_f32 v16, v16, v51
v_cvt_pk_bf16_f32 v16, v16, v16
s_mov_b32 exec_lo, 0xffff
s_mov_b32 exec_hi, 0xffff
buffer_store_short v16, v13, s[48:51], s75 offen
s_mov_b64 exec, -1""")
    stamp(7)
    e("L_fin:")
    if diag:
        e("s_waitcnt vmcnt(0)\ns_memrealtime s[76:77]\ns_waitcnt lgkmcnt(0)\ns_getreg_b32 s77, hwreg(HW_REG_XCC_ID)")
        for i in range(8):
            e(f"v_mov_b32 v{16+i}, s{80+2*i}")
        e(f"v_mov_b32 v24, s76\nv_mov_b32 v25, s77\nv_mov_b32 v1, 0\ns_lshl_b32 s60, s2, 3\ns_add_u32 s60, s60, s3\ns_lshl_b32 s60, s60, 6\ns_add_u32 s60, s60, {STAMP}")
        e("s_mov_b64 exec, 1\nbuffer_store_dwordx4 v[16:19], v1, s[56:59], s60 offen\nbuffer_store_dwordx4 v[20:23], v1, s[56:59], s60 offen offset:16\nbuffer_store_dwordx2 v[24:25], v1, s[56:59], s60 offen offset:32")
    e("L_end:\ns_endpgm")
    e(f""".section .rodata,"a"
.p2align 6
.amdhsa_kernel {KN}
.amdhsa_next_free_vgpr 256
.amdhsa_next_free_sgpr 102
.amdhsa_accum_offset 256
.amdhsa_group_segment_fixed_size 0
.amdhsa_kernarg_size 96
.amdhsa_user_sgpr_count 2
.amdhsa_user_sgpr_kernarg_segment_ptr 1
.amdhsa_system_sgpr_workgroup_id_x 1
.amdhsa_float_denorm_mode_32 3
.end_amdhsa_kernel""")
    return top + e.text()


if __name__ == "__main__":
    kw = eval("dict(" + (sys.argv[2] if len(sys.argv) > 2 else "") + ")")
    open(sys.argv[1], "w").write(gen(**kw))


def report(T, pc):
    S = T[:, :4]; A = T[:, 4:]
    print("  start", pc(T[:, :, 0]), "| stream: B1", pc(S[:, :, 1]), "preB3", pc(S[:, :, 2]), "postB3", pc(S[:, :, 3]), "done", pc(S[:, :, 4]), "wgdone", pc(S[:, :, 4].max(1)), "opub", pc(S[:, 0, 5]))
    print("  aux: LN", pc(A[:, :, 1]), "B1", pc(A[:, :, 2]), "Qpub", pc(A[144:208, :, 3]), "Gpub", pc(A[:144, :, 3]), "flags", pc(A[:, 3, 4]), "q(nonO)", pc(A[144:, 3, 5]), "Dpub", pc(A[208:, :, 6]), "dgath", pc(A[:144, 0, 4]))
    print("  tail: B4", pc(A[:144, :, 5]), "ogath", pc(A[:144, :, 6]), "ppub", pc(A[:144, 1:3, 7]), "out", pc(A[:144, 0, 7]), "end", pc(T[:, :, 8]), flush=True)
```

```python
import sys, struct
sys.path.insert(0, "dev")
from asmlib import Asm

KN = "parallel_sum__sliding_block_cached__geglu_ffn__decode_kernel"
REF = "parallel_sum__sliding_block_cached__geglu_ffn__decode.s.ref"

XS, QS, HS, ML, CNT, RED, RED2, LDS_SZ = 110592, 119808, 120320, 124928, 124992, 125056, 129152, 137344
PROW = 26624
RR = 0x40000
OBUF, LSE, PART, DPART = RR, RR + 0x20000, RR + 0x24000, RR + 0x6C000
WS_SZ = 0x100000
STAMP = 0x200000
LIMIT = 400000


def f32(x):
    return "0x%08x" % struct.unpack("<I", struct.pack("<f", x))[0]


LOG2E = 1.4426950408889634


def gen(d=6, d2=6, diag=0, xpol="", pref=0, psleep=1, touch=0):
    e = Asm()
    uid = [0]

    def stamp(i):
        if diag:
            e(f"s_memrealtime s[{80 + 2 * i}:{81 + 2 * i}]")

    def srd(b, lo, size):
        e(f"s_mov_b32 s{b}, s{lo}\ns_mov_b32 s{b+1}, s{lo+1}\ns_mov_b32 s{b+2}, {size}\ns_mov_b32 s{b+3}, 0x20000")

    def rnd(dst, src):
        e(f"v_cvt_pk_bf16_f32 v{dst}, v{src}, v{src}\nv_lshlrev_b32 v{dst}, 16, v{dst}")

    def poll(loads, regs, tmp, sleep, restore="-1", cmp=None):
        uid[0] += 1
        L = f"L_poll{uid[0]}"
        e(f"s_mov_b32 s70, {LIMIT}\n{L}:")
        e(loads)
        e("s_waitcnt vmcnt(0)")
        if cmp:
            e(cmp)
        else:
            r = list(regs)
            cur = r.pop(0)
            while r:
                if len(r) >= 2:
                    e(f"v_max3_u32 v{tmp}, v{cur}, v{r[0]}, v{r[1]}")
                    r = r[2:]
                else:
                    e(f"v_max_u32 v{tmp}, v{cur}, v{r[0]}")
                    r = r[1:]
                cur = tmp
            e(f"v_cmp_eq_u32 vcc, -1, v{cur}")
        e(f"s_and_b64 exec, exec, vcc\ns_cbranch_scc0 {L}_d\ns_sub_u32 s70, s70, 1\ns_cbranch_scc1 {L}_d")
        if sleep:
            e(f"s_sleep {sleep}")
        e(f"s_branch {L}\n{L}_d:\ns_mov_b64 exec, {restore}")

    def allred_g(v, t, op):
        e(f"v_mov_b32 v{t}, v{v}\nv_permlane16_swap_b32 v{v}, v{t}\n{op} v{v}, v{v}, v{t}")
        e(f"v_mov_b32 v{t}, v{v}\nv_permlane32_swap_b32 v{v}, v{t}\n{op} v{v}, v{v}, v{t}")

    hdr = [l.rstrip("\n") for l in open(REF) if l.startswith(";") and "@launch" not in l and "Override" not in l and "grid=ceil" not in l]
    top = "\n".join(hdr) + f"\n; @launch grid=(256,1,1) block=(512,1,1) lds={LDS_SZ}\n"
    e(f""".amdgcn_target "amdgcn-amd-amdhsa--gfx950"
.text
.globl {KN}
.p2align 8
.type {KN},@function
{KN}:""")
    e("s_cmp_ge_u32 s2, 256\ns_cbranch_scc1 L_end")
    e("s_load_dwordx16 s[16:31], s[0:1], 0\ns_load_dwordx8 s[32:39], s[0:1], 64")
    stamp(0)
    e("v_lshrrev_b32 v1, 6, v0\nv_and_b32 v0, 63, v0\nv_readfirstlane_b32 s3, v1")
    e("s_mul_i32 s8, s2, 57\ns_lshr_b32 s8, s8, 9\ns_mul_i32 s9, s8, 9\ns_sub_u32 s9, s2, s9")
    e("s_sub_u32 s10, s2, 208\ns_mul_i32 s11, s10, 86\ns_lshr_b32 s11, s11, 8\ns_mul_i32 s12, s11, 3\ns_sub_u32 s12, s10, s12")
    e("s_cmp_ge_u32 s3, 4\ns_cbranch_scc1 L_aux")

    VO, KD, KR, MK, VW1, VW2, Q, KF, AB, ACC, T, SP, MRUN, NEGM, LS, VV = 1, 2, 6, 10, 14, 15, 16, 32, 48, 64, 68, 84, 120, 121, 122, 128
    e("""v_lshrrev_b32 v1, 3, v0
v_and_b32 v2, 7, v0
v_and_b32 v3, 2, v1
s_and_b32 s5, s3, 1
s_lshl_b32 s5, s5, 2
v_or_b32 v3, s5, v3
v_xor_b32 v2, v2, v3
v_lshlrev_b32 v2, 4, v2
s_lshl_b32 m0, s3, 10
s_mov_b32 s43, 0x20000
s_cmp_ge_u32 s2, 208
s_cbranch_scc1 L_sD
s_cmp_ge_u32 s2, 144
s_cbranch_scc1 L_sQ
s_cmp_ge_u32 s2, 72
s_cselect_b32 s6, 72, 0
s_waitcnt lgkmcnt(0)
s_cselect_b32 s40, s30, s28
s_cselect_b32 s41, s31, s29
s_sub_u32 s6, s2, s6
s_movk_i32 s7, 9216""")
    e(f"s_mov_b32 s42, {576*9216}\ns_branch L_sP\nL_sQ:")
    e(f"s_sub_u32 s6, s2, 144\ns_movk_i32 s7, 8192\ns_mov_b32 s42, {576*8192}\ns_waitcnt lgkmcnt(0)\ns_mov_b32 s40, s22\ns_mov_b32 s41, s23")
    e("""L_sP:
s_lshl_b32 s60, s6, 7
s_mul_i32 s61, s3, s7
s_lshl_b32 s61, s61, 3
s_add_u32 s60, s60, s61
s_lshl_b32 s62, s7, 5
s_mov_b32 s63, s62
s_movk_i32 s64, 4096
s_movk_i32 s65, 4096
s_mov_b32 s66, 6
s_branch L_sW
L_sD:""")
    e(f"""s_mul_i32 s60, s11, {288*1152}
s_mul_i32 s61, s3, {8*1152}
s_add_u32 s60, s60, s61
s_mul_i32 s61, s12, 384
s_add_u32 s60, s60, s61
s_movk_i32 s62, 128
s_mov_b32 s63, {36864-256}
s_mov_b32 s64, 36864
s_mov_b32 s65, {4096-73728}
s_mov_b32 s66, 9
s_movk_i32 s7, 1152
s_mov_b32 s42, {4608*1152}
s_waitcnt lgkmcnt(0)
s_mov_b32 s40, s32
s_mov_b32 s41, s33
L_sW:
v_mad_u32_u24 v{VW1}, v1, s7, v2
L_w1:""")
    for k in range(3):
        e(f"s_waitcnt vmcnt({d-1})\nbuffer_load_dwordx4 v{VW1}, s[40:43], s60 offen nt lds")
        e(f"s_add_u32 s60, s60, s{62 if k < 2 else 63}\ns_add_u32 m0, m0, s{64 if k < 2 else 65}")
    e("s_sub_u32 s66, s66, 1\ns_cmp_lg_u32 s66, 0\ns_cbranch_scc1 L_w1")
    e("s_cmp_ge_u32 s2, 144\ns_cbranch_scc1 L_sV")
    srd(44, 24, 4096 * 1152)
    e(f"""s_movk_i32 s7, 1152
v_mad_u32_u24 v{VW2}, v1, s7, v2
s_mul_i32 s60, s8, {256*1152}
s_mul_i32 s61, s3, {8*1152}
s_add_u32 s60, s60, s61
s_lshl_b32 s61, s9, 7
s_add_u32 s60, s60, s61
s_mov_b32 s62, {32*1152}
s_mov_b32 s66, 8
L_w2:
s_waitcnt vmcnt({d-1})
buffer_load_dwordx4 v{VW2}, s[44:47], s60 offen nt lds
s_add_u32 s60, s60, s62
s_add_u32 m0, m0, s64
s_sub_u32 s66, s66, 1
s_cmp_lg_u32 s66, 0
s_cbranch_scc1 L_w2
L_sV:""")
    srd(48, 18, 0x10000000)
    srd(52, 20, 0x10000000)
    e(f"""s_lshr_b32 s60, s2, 1
s_lshl_b32 s60, s60, 21
s_and_b32 s61, s2, 1
s_lshl_b32 s61, s61, 18
s_add_u32 s60, s60, s61
s_lshl_b32 s61, s3, 12
s_add_u32 s60, s60, s61
s_add_u32 s60, s60, {6144*256}
s_lshl_b32 s67, s3, 14
v_lshlrev_b32 v{VO}, 4, v0""")

    work = {}

    def at(slot, fn):
        work.setdefault(slot, []).append(fn)

    def setup():
        e(f"v_lshrrev_b32 v{T}, 4, v0\nv_and_b32 v{T+1}, 15, v0\nv_lshlrev_b32 v{T+2}, 2, v{T}\nv_xor_b32 v{T+2}, v{T+2}, v{T+1}")
        e(f"v_lshlrev_b32 v{T+2}, 4, v{T+2}\nv_lshl_add_u32 v{KD}, v{T}, 8, v{T+2}")
        for r in range(1, 4):
            e(f"v_xor_b32 v{KD+r}, {16*r}, v{KD}")
        e(f"v_and_b32 v{T+2}, 3, v0\nv_lshlrev_b32 v{T+2}, 2, v{T+2}\nv_lshrrev_b32 v{T+3}, 2, v{T+1}\nv_or_b32 v{T+2}, v{T+2}, v{T+3}")
        e(f"v_lshl_add_u32 v{T+2}, v{T+2}, 8, s67\nv_xor_b32 v{T+3}, v{T}, v{T+1}\nv_lshl_add_u32 v{KR}, v{T+3}, 4, v{T+2}")
        for t in range(1, 4):
            e(f"v_xor_b32 v{KR+t}, {64*t}, v{KR}")
        e(f"v_and_b32 v{T+2}, 1, v0\nv_lshlrev_b32 v{T+2}, 4, v{T+2}\nv_mov_b32 v{T+3}, 0xffff\nv_lshlrev_b32 v{T+3}, v{T+2}, v{T+3}\nv_bfe_u32 v{T+2}, v0, 1, 2")
        for r in range(4):
            e(f"v_cmp_eq_u32 vcc, {r}, v{T+2}\nv_cndmask_b32 v{MK+r}, 0, v{T+3}, vcc")
        e(f"v_lshrrev_b32 v{T+2}, 3, v{T+1}\nv_lshlrev_b32 v{T+2}, 8, v{T+2}\nv_lshl_add_u32 v{T+2}, v{T}, 4, v{T+2}\nv_add_u32 v{VW1}, {QS}, v{T+2}")
        e(f"s_mov_b32 s68, 0xffff0000\ns_mov_b32 s69, {f32(128 ** -0.5)}\ns_mov_b32 s71, {f32(LOG2E)}")
        e(f"v_mov_b32 v{LS}, 0\nv_mov_b32 v{MRUN}, 0xff800000")
        for r in range(4):
            e(f"v_mov_b32 v{ACC+r}, 0")
        srd(56, 38, WS_SZ if not diag else 0x400000)

    at(d, setup)

    def sreg(c):
        return SP + 4 * (c if c < 8 else (8 if c == 8 else c - 9))

    def kread(c):
        def f():
            for t in range(4):
                e(f"ds_read_b128 v[{KF+4*t}:{KF+4*t+3}], v{KR+t} offset:{(c % 4) * 4096}")
        return f

    def kmma(c):
        def f():
            S = sreg(c)
            e("s_waitcnt lgkmcnt(0)")
            for t in range(4):
                e(f"v_mfma_f32_16x16x32_bf16 v[{S}:{S+3}], v[{KF+4*t}:{KF+4*t+3}], v[{Q+4*t}:{Q+4*t+3}], {'0' if t == 0 else f'v[{S}:{S+3}]'}")
        return f

    def kround(c):
        def f():
            S = sreg(c)
            for _ in range(2):
                e(f"v_cvt_pk_bf16_f32 v{T}, v{S}, v{S+1}\nv_cvt_pk_bf16_f32 v{T+1}, v{S+2}, v{S+3}")
                e(f"v_lshlrev_b32 v{S}, 16, v{T}\nv_and_b32 v{S+1}, s68, v{T}\nv_lshlrev_b32 v{S+2}, 16, v{T+1}\nv_and_b32 v{S+3}, s68, v{T+1}")
                if _ == 0:
                    for r in range(4):
                        e(f"v_mul_f32 v{S+r}, s69, v{S+r}")
            e(f"v_max3_f32 v{MRUN}, v{MRUN}, v{S}, v{S+1}\nv_max3_f32 v{MRUN}, v{MRUN}, v{S+2}, v{S+3}")
        return f

    def maxA():
        allred_g(MRUN, T, "v_max_f32")
        e(f"v_mul_f32 v{NEGM}, s71, v{MRUN}\nv_sub_f32 v{NEGM}, 0, v{NEGM}")

    def maxB():
        allred_g(MRUN, T, "v_max_f32")
        e(f"v_mul_f32 v{T+1}, s71, v{MRUN}\nv_add_f32 v{T+2}, v{NEGM}, v{T+1}\nv_sub_f32 v{NEGM}, 0, v{T+1}\nv_exp_f32 v{T+2}, -v{T+2}")
        e(f"v_mul_f32 v{LS}, v{LS}, v{T+2}\nv_mov_b32 v{T+3}, v{T+2}")
        e(f"v_mov_b32_dpp v{T+3}, v{T+2} row_ror:8 row_mask:0x3 bank_mask:0xc\nv_mov_b32_dpp v{T+3}, v{T+2} row_ror:8 row_mask:0xc bank_mask:0x3")
        for r in range(4):
            e(f"v_mul_f32 v{ACC+r}, v{ACC+r}, v{T+3}")

    def pexp(c):
        def f():
            S = sreg(c)
            for r in range(4):
                e(f"v_fma_f32 v{S+r}, v{S+r}, s71, v{NEGM}")
            for r in range(4):
                e(f"v_exp_f32 v{S+r}, v{S+r}")
            e(f"v_add_f32 v{T}, v{S}, v{S+1}\nv_add_f32 v{T+1}, v{S+2}, v{S+3}\nv_add_f32 v{LS}, v{LS}, v{T}\nv_add_f32 v{LS}, v{LS}, v{T+1}")
            for r in range(4):
                e(f"v_cvt_pk_bf16_f32 v{S+r}, v{S+r}, v{S+r}")
        return f

    def aprep(c, r):
        def f():
            for k in range(4):
                e(f"v_and_b32 v{AB+4*r+k}, v{sreg(c)+r}, v{MK+k}")
        return f

    def pv(c, r):
        def f():
            V = VV + 16 * (c % 8) + 4 * r
            e(f"v_mfma_f32_16x16x32_bf16 v[{ACC}:{ACC+3}], v[{AB+4*r}:{AB+4*r+3}], v[{V}:{V+3}], v[{ACC}:{ACC+3}]")
        return f

    def mlwrite():
        allred_g(LS, T, "v_add_f32")
        e(f"v_sub_f32 v{T+2}, 0, v{NEGM}\nv_mov_b32 v{T+3}, v{LS}")
        e(f"v_bfe_u32 v{T}, v0, 3, 1\nv_lshlrev_b32 v{T}, 5, v{T}\ns_lshl_b32 s63, s3, 3\ns_add_u32 s63, s63, {ML}\nv_add_u32 v{T}, s63, v{T}")
        e(f"ds_write_b64 v{T}, v[{T+2}:{T+3}]")
        e(f"s_lshl_b32 s63, s3, 10\ns_add_u32 s63, s63, {RED}\nv_add_u32 v{VW2}, s63, v{VO}")

    def dep(n):
        return d if n < 96 else d2

    landed = {}
    for n in range(128 + 64):
        top_done = (n - dep(n)) if n < 128 else min(127, n - d2)
        for m in range(top_done + 1):
            landed.setdefault(m, n)
    for c in range(16):
        n0 = landed[35 + 4 * c]
        at(n0, kread(c))
        at(n0 + 1, kmma(c))
        at(n0 + 2, kround(c))
    sA = landed[35 + 28] + 3
    at(sA, maxA)
    for j in range(8):
        s0 = sA + 1 + 3 * j
        at(s0, pexp(j))
        at(s0 + 1, aprep(j, 0)); at(s0 + 1, aprep(j, 1)); at(s0 + 1, pv(j, 0)); at(s0 + 1, pv(j, 1))
        at(s0 + 2, aprep(j, 2)); at(s0 + 2, aprep(j, 3)); at(s0 + 2, pv(j, 2)); at(s0 + 2, pv(j, 3))
        assert s0 + 2 < 96 + 4 * j
        if j < 7:
            assert s0 + 2 < landed[35 + 4 * (9 + j)] + 1
    sB = landed[95] + 3
    at(sB, maxB)
    pre = {}
    for j in range(8):
        at(sB + 1 + j, pexp(8 + j))
    at(sB + 9, mlwrite)
    last = 0
    for n in range(96, 128):
        j, r = (n - 96) // 4, n % 4
        s = max(landed[n], sB + 2 + j, last)
        last = s
        pre.setdefault(s, []).append((8 + j, r))
    nslots = max(max(work), last) + 1
    for n in range(nslots):
        todo = pre.get(n, [])
        assert len(todo) <= 4
        for (c, r) in todo:
            aprep(c, r)()
        if n < 128:
            if n < 32 or n >= 96:
                i = n if n < 32 else n - 64
                if i % 4 == 0:
                    e(f"s_add_u32 s61, s60, {(i // 4) * 16384}")
                e(f"s_waitcnt vmcnt({dep(n)-1})")
                if n == d - 1:
                    stamp(1)
                    e("s_barrier")
                V = VV + 4 * (i % 32)
                e(f"buffer_load_dwordx4 v[{V}:{V+3}], v{VO}, s[52:55], s61 offen offset:{(i % 4) * 1024} nt")
            else:
                i = n - 32
                if i % 4 == 0:
                    e(f"s_add_u32 s62, s60, {(i // 4) * 16384}\ns_add_u32 m0, s67, {((i // 4) % 4) * 4096}")
                e(f"s_waitcnt vmcnt({dep(n)-1})")
                e(f"buffer_load_dwordx4 v{KD + i % 4}, s[48:51], s62 offen offset:{(i % 4) * 1024} nt lds")
            if n == 31:
                stamp(2)
                e("s_barrier")
                stamp(3)
                for t in range(4):
                    e(f"ds_read_b128 v[{Q+4*t}:{Q+4*t+3}], v{VW1} offset:{64*t}")
        elif n - d2 <= 127:
            e(f"s_waitcnt vmcnt({127 - (n - d2)})")
        for (c, r) in todo:
            pv(c, r)()
        for fn in work.get(n, []):
            fn()
    e(f"ds_write_b128 v{VW2}, v[{ACC}:{ACC+3}]")
    stamp(4)
    e("s_waitcnt lgkmcnt(0)\ns_barrier\ns_cmp_lg_u32 s3, 0\ns_cbranch_scc1 L_fin")
    e(f"v_lshrrev_b32 v2, 5, v0\nv_lshlrev_b32 v3, 5, v2\nv_add_u32 v3, {ML}, v3")
    e("ds_read_b128 v[16:19], v3\nds_read_b128 v[20:23], v3 offset:16")
    for w in range(1, 4):
        e(f"ds_read_b128 v[{28+4*w}:{31+4*w}], v{VW2} offset:{1024*w}")
    e(f"""s_lshr_b32 s61, s2, 1
s_and_b32 s61, s61, 15
s_lshr_b32 s62, s2, 5
s_and_b32 s63, s2, 1
s_lshl_b32 s63, s63, 3
s_add_u32 s62, s62, s63
s_lshl_b32 s63, s61, 4
s_add_u32 s63, s63, s62
s_lshl_b32 s63, s63, 9
s_add_u32 s63, s63, {OBUF}
s_lshl_b32 s64, s61, 7
s_lshl_b32 s62, s62, 2
s_add_u32 s64, s64, s62
s_add_u32 s64, s64, {LSE}
v_and_b32 v4, 15, v0
v_lshlrev_b32 v4, 4, v4
v_lshl_add_u32 v4, v2, 8, v4
v_bfe_u32 v5, v0, 4, 1
v_lshl_add_u32 v4, v5, 3, v4
v_lshlrev_b32 v5, 6, v2
s_waitcnt lgkmcnt(3)
v_max3_f32 v24, v16, v18, v20
v_max_f32 v24, v24, v22
v_sub_f32 v16, v16, v24
v_sub_f32 v18, v18, v24
v_sub_f32 v20, v20, v24
v_sub_f32 v22, v22, v24
v_exp_f32 v16, v16
v_exp_f32 v18, v18
v_exp_f32 v20, v20
v_exp_f32 v22, v22
v_mul_f32 v25, v16, v17
v_fmac_f32 v25, v18, v19
v_fmac_f32 v25, v20, v21
v_fmac_f32 v25, v22, v23
v_rcp_f32 v26, v25
v_log_f32 v27, v25""")
    for r in range(4):
        e(f"v_mul_f32 v{ACC+r}, v{ACC+r}, v16")
    e("s_waitcnt lgkmcnt(0)")
    for w in range(1, 4):
        for r in range(4):
            e(f"v_fmac_f32 v{ACC+r}, v{28+4*w+r}, v{16+2*w}")
    for r in range(4):
        e(f"v_mul_f32 v{ACC+r}, v{ACC+r}, v26")
    e(f"""v_cvt_pk_bf16_f32 v28, v{ACC}, v{ACC+1}
v_cvt_pk_bf16_f32 v29, v{ACC+2}, v{ACC+3}
v_add_f32 v27, v27, v24
v_min_u32 v28, -2, v28
v_min_u32 v29, -2, v29
v_min_u32 v27, -2, v27
buffer_store_dwordx2 v[28:29], v4, s[56:59], s63 offen sc1
s_mov_b32 exec_lo, 1
s_mov_b32 exec_hi, 1
buffer_store_dword v27, v5, s[56:59], s64 offen sc1
s_mov_b64 exec, -1""")
    stamp(5)
    e("s_branch L_fin")

    XN, WF, OF, AC = 16, 52, 160, 192
    e("L_aux:\ns_sub_u32 s4, s3, 4\nv_mul_u32_u24 v1, 36, v0\ns_mul_i32 s5, s4, 2304\nv_lshlrev_b32 v2, 4, v0")
    e("s_add_u32 s13, s2, 64\ns_sub_u32 s14, s2, 144\ns_cmp_ge_u32 s2, 144\ns_cselect_b32 s13, s14, s13\ns_lshl_b32 s13, s13, 7")
    e("s_waitcnt lgkmcnt(0)")
    srd(40, 16, 9216)
    srd(56, 38, WS_SZ if not diag else 0x400000)
    srd(44, 36, 256)
    if touch:
        e("s_cmp_lg_u32 s4, 1\ns_cbranch_scc1 L_at")
        srd(48, 18, 0x10000000)
        srd(52, 20, 0x10000000)
        e(f"""s_lshr_b32 s60, s2, 1
s_lshl_b32 s60, s60, 21
s_and_b32 s61, s2, 1
s_lshl_b32 s61, s61, 18
s_add_u32 s60, s60, s61
s_add_u32 s60, s60, {6144*256}
v_mul_u32_u24 v3, {262144 // touch}, v0
s_mov_b64 exec, {hex((1 << touch) - 1) if touch < 64 else -1}
buffer_load_dword v60, v3, s[52:55], s60 offen nt
buffer_load_dword v61, v3, s[48:51], s60 offen nt
s_mov_b64 exec, 1""")
        srd(48, 24, 4096 * 1152)
        srd(52, 34, 9216)
        e(f"""s_mul_i32 s60, s8, {256*1152}
buffer_load_dword v62, v3, s[48:51], s60 offen nt
buffer_load_dword v63, v3, s[52:55], 0 offen
s_mov_b64 exec, -1
L_at:""")
    if pref:
        e(f"""s_cmp_lg_u32 s4, 2
s_cbranch_scc1 L_a0
s_getpc_b64 s[60:61]
L_pc:
s_sub_u32 s60, s60, L_pc-{KN}
s_subb_u32 s61, s61, 0
s_lshr_b32 s62, s2, 3
s_lshl_b32 s62, s62, 10
v_add_u32 v3, s62, v2
v_min_u32 v3, L_end-{KN}-12, v3
v_mov_b32 v5, s61
v_add_co_u32 v4, vcc, s60, v3
v_addc_co_u32 v5, vcc, 0, v5, vcc
global_load_dwordx4 v[28:31], v[4:5], off
L_a0:""")
    e("s_cmp_lg_u32 s4, 3\ns_cbranch_scc1 L_a1")
    e(f"v_mov_b32 v4, -1\nv_mov_b32 v5, -1\nv_mov_b32 v6, -1\nv_mov_b32 v7, -1\ns_mul_i32 s60, s2, 3072\ns_add_u32 s60, s60, {RR}")
    for k in range(3):
        e(f"buffer_store_dwordx4 v[4:7], v2, s[56:59], s60 offen offset:{1024*k} sc1")
    e(f"s_cmp_ge_u32 s2, 208\ns_cbranch_scc1 L_a1\nv_lshrrev_b32 v3, 3, v0\nv_mul_u32_u24 v3, {PROW}, v3\nv_and_b32 v8, 7, v0\nv_lshl_add_u32 v3, v8, 4, v3")
    e("buffer_store_dwordx4 v[4:7], v3, s[56:59], s13 offen sc1\nL_a1:")
    for k in range(3):
        e(f"buffer_load_dwordx3 v[{16+4*k}:{18+4*k}], v1, s[40:43], s5 offen offset:{12*k} {xpol}")
    e(f"v_mov_b32 v8, {CNT}\nv_mov_b32 v9, 0\nds_write_b32 v8, v9")
    e(f"s_mov_b32 s68, 0xffff0000\ns_mov_b32 s69, {f32(1/576)}\ns_add_u32 s5, s5, {XS}\nv_add_u32 v1, s5, v1")
    e("s_waitcnt vmcnt(0)\ns_cmp_lg_u32 s4, 3\ns_cbranch_scc1 L_a2")
    e("v_mov_b32 v8, 1\nv_mov_b32 v9, 0\ns_mov_b64 exec, 1\nbuffer_store_byte v8, v9, s[44:47], s2 offen sc1\ns_mov_b64 exec, -1\nL_a2:")
    raw = [16, 17, 18, 20, 21, 22, 24, 25, 26]

    def red32(v, t):
        for s in (8, 4, 2, 1):
            e(f"v_add_f32_dpp v{v}, v{v}, v{v} row_ror:{s} row_mask:0xf bank_mask:0xf")
        e(f"v_mov_b32 v{t}, v{v}\nv_permlane16_swap_b32 v{v}, v{t}\nv_add_f32 v{v}, v{v}, v{t}")

    for k in range(9):
        e(f"v_lshlrev_b32 v{28+2*k}, 16, v{raw[k]}\nv_and_b32 v{29+2*k}, s68, v{raw[k]}")
    e("v_pk_add_f32 v[46:47], v[28:29], v[30:31]")
    for k in range(2, 9):
        e(f"v_pk_add_f32 v[46:47], v[46:47], v[{28+2*k}:{29+2*k}]")
    e("v_add_f32 v46, v46, v47")
    red32(46, 47)
    e("v_mul_f32 v48, s69, v46\nv_sub_f32 v50, 0, v48\nv_sub_f32 v51, 0, v48")
    for k in range(9):
        e(f"v_pk_add_f32 v[8:9], v[{28+2*k}:{29+2*k}], v[50:51]")
        e("v_pk_mul_f32 v[46:47], v[8:9], v[8:9]" if k == 0 else "v_pk_fma_f32 v[46:47], v[8:9], v[8:9], v[46:47]")
    e("v_add_f32 v46, v46, v47")
    red32(46, 47)
    e("v_mul_f32 v46, s69, v46")
    rnd(46, 46)
    e(f"v_add_f32 v46, {f32(1e-5)}, v46")
    rnd(46, 46)
    e("v_sqrt_f32 v46, v46")
    rnd(46, 46)
    e("v_rcp_f32 v46, v46")
    rnd(50, 50)
    e("v_mov_b32 v51, v50\nv_mov_b32 v47, v46")
    for k in range(9):
        e(f"v_pk_add_f32 v[8:9], v[{28+2*k}:{29+2*k}], v[50:51]\nv_cvt_pk_bf16_f32 v9, v8, v9\nv_lshlrev_b32 v8, 16, v9\nv_and_b32 v9, s68, v9")
        e(f"v_pk_mul_f32 v[8:9], v[8:9], v[46:47]\nv_cvt_pk_bf16_f32 v{raw[k]}, v8, v9")
    for k in range(0, 8, 2):
        e(f"ds_write2_b32 v1, v{raw[k]}, v{raw[k+1]} offset0:{k} offset1:{k+1}")
    e(f"ds_write_b32 v1, v{raw[8]} offset:32")
    e("""v_lshrrev_b32 v10, 4, v0
v_and_b32 v11, 15, v0
v_bfe_u32 v8, v0, 2, 2
v_lshl_add_u32 v12, v10, 3, v8
v_lshlrev_b32 v12, 7, v12
v_and_b32 v9, 3, v0
v_lshl_add_u32 v12, v9, 3, v12
v_lshrrev_b32 v13, 1, v8
v_and_b32 v9, 1, v10
v_lshl_or_b32 v13, v9, 1, v13
v_lshl_add_u32 v12, v13, 5, v12
s_lshl_b32 s60, s4, 5
v_xor_b32 v3, s60, v12
v_add_u32 v4, 0x10000, v3
v_and_b32 v14, 7, v0""")
    e(f"v_mul_u32_u24 v5, 1152, v14\nv_lshrrev_b32 v8, 3, v11\nv_mul_u32_u24 v8, 576, v8\nv_lshl_add_u32 v8, v10, 4, v8\nv_add3_u32 v5, v5, v8, 0\nv_add_u32 v5, {XS}, v5")
    stamp(1)
    e("s_waitcnt lgkmcnt(0)\ns_barrier")
    stamp(2)

    def trread(kk):
        for hf in range(2):
            off = kk * 4096 + hf * 512
            e(f"ds_read_b64_tr_b16 v[{WF+4*kk+2*hf}:{WF+4*kk+2*hf+1}], v{3 if off < 65536 else 4} offset:{off % 65536}")

    for i in range(9):
        e(f"ds_read_b128 v[{XN+4*i}:{XN+4*i+3}], v5 offset:{64*i}")
    for kk in range(18):
        trread(kk)
    e("s_cmp_ge_u32 s2, 208\ns_cbranch_scc1 L_aD")
    e(f"v_mul_u32_u24 v6, {PROW}, v14\nv_lshl_add_u32 v6, v10, 3, v6\ns_lshl_b32 s60, s4, 5\ns_add_u32 s60, s60, s13")
    e("s_waitcnt lgkmcnt(0)")
    for i in range(9):
        for hf in range(2):
            kk = 9 * hf + i
            A = AC + 4 * hf
            e(f"v_mfma_f32_16x16x32_bf16 v[{A}:{A+3}], v[{WF+4*kk}:{WF+4*kk+3}], v[{XN+4*i}:{XN+4*i+3}], {'0' if i == 0 else f'v[{A}:{A+3}]'}")
    for r in range(4):
        e(f"v_add_f32_dpp v{AC+r}, v{AC+4+r}, v{AC+r} row_ror:8 row_mask:0xf bank_mask:0xf")
    e(f"""v_cvt_pk_bf16_f32 v8, v{AC}, v{AC+1}
v_cvt_pk_bf16_f32 v9, v{AC+2}, v{AC+3}
v_min_u32 v8, -2, v8
v_min_u32 v9, -2, v9
s_mov_b32 exec_lo, 0x00ff00ff
s_mov_b32 exec_hi, 0x00ff00ff
buffer_store_dwordx2 v[8:9], v6, s[56:59], s60 offen sc1
s_mov_b64 exec, -1""")
    stamp(3)
    e("s_cmp_ge_u32 s2, 144\ns_cbranch_scc1 L_aq")
    e(f"s_lshl_b32 s60, s4, 13\ns_add_u32 s60, s60, 73728\nv_add_u32 v3, s60, v12")
    for Tt in range(4):
        if Tt:
            e(f"v_xor_b32 v4, {32*Tt}, v3")
        for kk in range(2):
            for hf in range(2):
                R = OF + 8 * Tt + 4 * kk + 2 * hf
                e(f"ds_read_b64_tr_b16 v[{R}:{R+1}], v{4 if Tt else 3} offset:{kk*4096 + hf*512}")
    e("s_branch L_aq\nL_aD:")
    for kk in range(18, 27):
        trread(kk)
    e("L_aq:\ns_cmp_lg_u32 s4, 3\ns_cbranch_scc1 L_a3")
    e("v_lshlrev_b32 v6, 2, v0\ns_mov_b32 s61, 0x01010101")
    poll("buffer_load_dword v8, v6, s[44:47], 0 offen sc1", None, None, 4, cmp="v_cmp_ne_u32 vcc, s61, v8")
    stamp(4)
    e(f"s_lshr_b32 s60, s2, 5\ns_mul_i32 s60, s60, {PROW}\ns_lshr_b32 s61, s2, 1\ns_and_b32 s61, s61, 15\ns_lshl_b32 s61, s61, 9\ns_add_u32 s60, s60, s61\nv_lshlrev_b32 v6, 3, v0")
    poll("buffer_load_dwordx2 v[8:9], v6, s[56:59], s60 offen sc1", [8, 9], 7, 2)
    e(f"v_add_u32 v6, {QS}, v6\nds_write_b64 v6, v[8:9]")
    stamp(5)
    e("L_a3:\ns_waitcnt lgkmcnt(0)\ns_barrier")
    e("s_cmp_lt_u32 s2, 144\ns_cbranch_scc1 L_aO\ns_cmp_lt_u32 s2, 208\ns_cbranch_scc1 L_fin")

    e(f"""v_cmp_le_u32 vcc, 24, v0
v_mov_b32 v6, {PROW - 576}
v_cndmask_b32 v6, 0, v6, vcc
v_mul_u32_u24 v7, 24, v0
v_add_u32 v6, v6, v7
s_mul_i32 s60, s4, {2*PROW}
s_mul_i32 s61, s11, 576
s_add_u32 s60, s60, s61
s_add_u32 s60, s60, 8192
s_add_u32 s61, s60, 9216
s_mov_b32 s72, -1
s_mov_b32 s73, 0xffff
s_mov_b64 exec, s[72:73]""")
    G = [16, 17, 18, 20, 21, 22]
    U = [24, 25, 26, 28, 29, 30]
    poll("""buffer_load_dwordx3 v[16:18], v6, s[56:59], s60 offen sc1
buffer_load_dwordx3 v[20:22], v6, s[56:59], s60 offen offset:12 sc1
buffer_load_dwordx3 v[24:26], v6, s[56:59], s61 offen sc1
buffer_load_dwordx3 v[28:30], v6, s[56:59], s61 offen offset:12 sc1""", G + U, 8, 8, restore="s[72:73]")
    c0 = -2 * LOG2E * 0.7978845608028654
    e(f"v_mov_b32 v32, {f32(c0)}\nv_mov_b32 v33, {f32(c0 * 0.044715)}\ns_mul_i32 s60, s4, 1152\ns_add_u32 s60, s60, {HS}\nv_add_u32 v7, s60, v7")
    for k in range(6):
        e(f"""v_lshlrev_b32 v34, 16, v{G[k]}
v_and_b32 v35, s68, v{G[k]}
v_mul_f32 v36, v34, v34
v_mul_f32 v37, v35, v35
v_fma_f32 v36, v36, v33, v32
v_fma_f32 v37, v37, v33, v32
v_mul_f32 v36, v36, v34
v_mul_f32 v37, v37, v35
v_exp_f32 v36, v36
v_exp_f32 v37, v37
v_lshlrev_b32 v38, 16, v{U[k]}
v_add_f32 v36, 1.0, v36
v_add_f32 v37, 1.0, v37
v_rcp_f32 v36, v36
v_rcp_f32 v37, v37
v_and_b32 v39, s68, v{U[k]}
v_mul_f32 v34, v34, v36
v_mul_f32 v35, v35, v37
v_cvt_pk_bf16_f32 v35, v34, v35
v_lshlrev_b32 v34, 16, v35
v_and_b32 v35, s68, v35
v_mul_f32 v34, v34, v38
v_mul_f32 v35, v35, v39
v_cvt_pk_bf16_f32 v{40+k}, v34, v35""")
    for k in range(3):
        e(f"ds_write_b64 v7, v[{40+2*k}:{41+2*k}] offset:{8*k}")
    e(f"""s_mov_b64 exec, 1
v_mov_b32 v8, {CNT}
v_mov_b32 v9, 1
s_waitcnt lgkmcnt(0)
ds_add_u32 v8, v9
s_mov_b32 s70, {LIMIT*8}
L_spin:
ds_read_b32 v9, v8
s_waitcnt lgkmcnt(0)
v_readfirstlane_b32 s60, v9
s_cmp_ge_u32 s60, 4
s_cbranch_scc1 L_spind
s_sub_u32 s70, s70, 1
s_cbranch_scc1 L_spind
s_sleep 2
s_branch L_spin
L_spind:
s_mov_b64 exec, -1
v_mul_u32_u24 v5, 576, v14
v_lshl_add_u32 v5, v10, 4, v5
v_add_u32 v5, {HS}, v5""")
    for i in range(9):
        e(f"ds_read_b128 v[{XN+4*i}:{XN+4*i+3}], v5 offset:{64*i}")
    e(f"""v_lshlrev_b32 v6, 12, v14
v_lshl_add_u32 v6, v10, 4, v6
s_mul_i32 s60, s12, {3*32768}
s_lshr_b32 s61, s4, 1
s_lshl_b32 s61, s61, 11
s_add_u32 s60, s60, s61
s_and_b32 s61, s4, 1
s_lshl_b32 s61, s61, 6
s_add_u32 s60, s60, s61
s_lshl_b32 s61, s11, 7
s_add_u32 s60, s60, s61
s_add_u32 s60, s60, {DPART}
s_waitcnt lgkmcnt(0)""")
    for i in range(9):
        for sub in range(3):
            kk = 9 * sub + i
            A = AC + 4 * sub
            e(f"v_mfma_f32_16x16x32_bf16 v[{A}:{A+3}], v[{WF+4*kk}:{WF+4*kk+3}], v[{XN+4*i}:{XN+4*i+3}], {'0' if i == 0 else f'v[{A}:{A+3}]'}")
    for r in range(12):
        e(f"v_min_u32 v{AC+r}, -2, v{AC+r}")
    e("s_mov_b32 exec_lo, 0x00ff00ff\ns_mov_b32 exec_hi, 0x00ff00ff")
    for sub in range(3):
        e(f"buffer_store_dwordx4 v[{AC+4*sub}:{AC+4*sub+3}], v6, s[56:59], s60 offen sc1")
        if sub < 2:
            e("s_add_u32 s60, s60, 32768")
    e("s_mov_b64 exec, -1")
    stamp(6)
    e("s_branch L_fin")

    def gather_reduce(base, sleep):
        e(f"s_add_u32 s60, s74, {base}")
        poll("\n".join(f"buffer_load_dwordx2 v[{16+2*i}:{17+2*i}], v7, s[56:59], s60 offen offset:{512*i} sc1" for i in range(4)), list(range(16, 24)), 24, sleep)
        e("""v_pk_add_f32 v[16:17], v[16:17], v[18:19]
v_pk_add_f32 v[20:21], v[20:21], v[22:23]
v_pk_add_f32 v[16:17], v[16:17], v[20:21]
v_permlane32_swap_b32 v16, v17
v_add_f32 v16, v16, v17
v_mov_b32 v17, v16
v_permlane16_swap_b32 v16, v17
v_add_f32 v16, v16, v17""")
        rnd(16, 16)

    e(f"""L_aO:
v_lshlrev_b32 v5, 9, v11
v_lshl_add_u32 v5, v10, 4, v5
s_lshl_b32 s62, s8, 13
s_lshl_b32 s61, s4, 7
s_add_u32 s62, s62, s61
s_add_u32 s62, s62, {OBUF}
v_lshlrev_b32 v6, 2, v11
s_lshl_b32 s63, s8, 7
s_lshr_b32 s61, s4, 1
s_lshl_b32 s61, s61, 6
s_add_u32 s63, s63, s61
s_add_u32 s63, s63, {LSE}
s_lshl_b32 s61, s4, 11
s_add_u32 s61, s61, {RED2}
v_add_u32 v3, s61, v2
s_sub_u32 s64, s4, 1
s_lshl_b32 s61, s64, 10
s_add_u32 s61, s61, {RED2}
v_add_u32 v4, s61, v2
v_lshrrev_b32 v8, 3, v11
v_lshl_add_u32 v8, v14, 1, v8
v_lshlrev_b32 v8, 11, v8
v_lshl_add_u32 v15, v10, 4, v8
s_lshl_b32 s65, s9, 15
s_lshl_b32 s61, s8, 7
s_add_u32 s65, s65, s61
s_lshl_b32 s61, s64, 6
s_add_u32 s65, s65, s61
s_add_u32 s65, s65, {PART}
s_lshl_b32 s74, s9, 4
s_add_u32 s74, s74, s8
s_lshl_b32 s74, s74, 11
v_lshlrev_b32 v7, 3, v0
s_lshr_b32 s75, s8, 1
s_mul_i32 s75, s75, 1152
s_lshl_b32 s61, s9, 7
s_add_u32 s75, s75, s61
s_and_b32 s61, s8, 1
s_lshl_b32 s61, s61, 6
s_add_u32 s75, s75, s61
v_lshrrev_b32 v9, 5, v0
v_lshlrev_b32 v9, 1, v9
v_lshl_add_u32 v13, v11, 2, v9""")
    srd(48, 34, 9216)
    e("s_cmp_lg_u32 s4, 0\ns_cbranch_scc1 L_o1\nbuffer_load_ushort v50, v13, s[40:43], s75 offen")
    gather_reduce(DPART, 16)
    e("v_mov_b32 v51, v16\nv_lshlrev_b32 v50, 16, v50")
    stamp(4)
    e("L_o1:\ns_barrier")
    stamp(5)
    poll("""buffer_load_dwordx4 v[28:31], v5, s[56:59], s62 offen sc1
buffer_load_dwordx4 v[32:35], v5, s[56:59], s62 offen offset:64 sc1
buffer_load_dword v36, v6, s[56:59], s63 offen sc1""", list(range(28, 37)), 37, psleep)
    stamp(6)
    for kk in range(2):
        for Tt in range(4):
            A = AC + 4 * Tt
            R = OF + 8 * Tt + 4 * kk
            e(f"v_mfma_f32_16x16x32_bf16 v[{A}:{A+3}], v[{R}:{R+3}], v[{28+4*kk}:{31+4*kk}], {'0' if kk == 0 else f'v[{A}:{A+3}]'}")
        if kk == 0:
            e("v_sub_f32_dpp v37, v36, v36 row_ror:8 row_mask:0xf bank_mask:0xf\nv_exp_f32 v37, v37")
    e("v_add_f32 v37, 1.0, v37\nv_rcp_f32 v37, v37")
    for r in range(16):
        e(f"v_mul_f32 v{AC+r}, v{AC+r}, v37")
    for tt in range(2):
        for r in range(4):
            e(f"v_add_f32_dpp v{40+4*tt+r}, v{AC+4*tt+r}, v{AC+4*tt+r} row_ror:8 row_mask:0xf bank_mask:0x3")
            e(f"v_add_f32_dpp v{40+4*tt+r}, v{AC+8+4*tt+r}, v{AC+8+4*tt+r} row_ror:8 row_mask:0xf bank_mask:0xc")
        e(f"ds_write_b128 v3, v[{40+4*tt}:{43+4*tt}] offset:{1024*tt}")
    e("s_waitcnt lgkmcnt(0)\ns_barrier\ns_cmp_eq_u32 s4, 0\ns_cbranch_scc1 L_o2\ns_cmp_eq_u32 s4, 3\ns_cbranch_scc1 L_fin")
    for w in range(4):
        e(f"ds_read_b128 v[{16+4*w}:{19+4*w}], v4 offset:{2048*w}")
    e("""s_waitcnt lgkmcnt(2)
v_pk_add_f32 v[16:17], v[16:17], v[20:21]
v_pk_add_f32 v[18:19], v[18:19], v[22:23]
s_waitcnt lgkmcnt(0)
v_pk_add_f32 v[24:25], v[24:25], v[28:29]
v_pk_add_f32 v[26:27], v[26:27], v[30:31]
v_pk_add_f32 v[16:17], v[16:17], v[24:25]
v_pk_add_f32 v[18:19], v[18:19], v[26:27]""")
    for r in range(4):
        e(f"v_min_u32 v{16+r}, -2, v{16+r}")
    e("buffer_store_dwordx4 v[16:19], v15, s[56:59], s65 offen sc1")
    stamp(7)
    e("s_branch L_fin\nL_o2:")
    gather_reduce(PART, psleep)
    e("v_add_f32 v16, v16, v50")
    rnd(16, 16)
    e("""v_add_f32 v16, v16, v51
v_cvt_pk_bf16_f32 v16, v16, v16
s_mov_b32 exec_lo, 0xffff
s_mov_b32 exec_hi, 0xffff
buffer_store_short v16, v13, s[48:51], s75 offen
s_mov_b64 exec, -1""")
    stamp(7)
    e("L_fin:")
    if diag:
        e("s_waitcnt vmcnt(0)\ns_memrealtime s[76:77]\ns_waitcnt lgkmcnt(0)\ns_getreg_b32 s77, hwreg(HW_REG_XCC_ID)")
        for i in range(8):
            e(f"v_mov_b32 v{16+i}, s{80+2*i}")
        e(f"v_mov_b32 v24, s76\nv_mov_b32 v25, s77\nv_mov_b32 v1, 0\ns_lshl_b32 s60, s2, 3\ns_add_u32 s60, s60, s3\ns_lshl_b32 s60, s60, 6\ns_add_u32 s60, s60, {STAMP}")
        e("s_mov_b64 exec, 1\nbuffer_store_dwordx4 v[16:19], v1, s[56:59], s60 offen\nbuffer_store_dwordx4 v[20:23], v1, s[56:59], s60 offen offset:16\nbuffer_store_dwordx2 v[24:25], v1, s[56:59], s60 offen offset:32")
    e("L_end:\ns_endpgm")
    e(f""".section .rodata,"a"
.p2align 6
.amdhsa_kernel {KN}
.amdhsa_next_free_vgpr 256
.amdhsa_next_free_sgpr 102
.amdhsa_accum_offset 256
.amdhsa_group_segment_fixed_size 0
.amdhsa_kernarg_size 96
.amdhsa_user_sgpr_count 2
.amdhsa_user_sgpr_kernarg_segment_ptr 1
.amdhsa_system_sgpr_workgroup_id_x 1
.amdhsa_float_denorm_mode_32 3
.end_amdhsa_kernel""")
    return top + e.text()


if __name__ == "__main__":
    kw = eval("dict(" + (sys.argv[2] if len(sys.argv) > 2 else "") + ")")
    open(sys.argv[1], "w").write(gen(**kw))


def report(T, pc):
    S = T[:, :4]; A = T[:, 4:]
    print("  start", pc(T[:, :, 0]), "| stream: B1", pc(S[:, :, 1]), "preB3", pc(S[:, :, 2]), "postB3", pc(S[:, :, 3]), "done", pc(S[:, :, 4]), "wgdone", pc(S[:, :, 4].max(1)), "opub", pc(S[:, 0, 5]))
    print("  aux: LN", pc(A[:, :, 1]), "B1", pc(A[:, :, 2]), "Qpub", pc(A[144:208, :, 3]), "Gpub", pc(A[:144, :, 3]), "flags", pc(A[:, 3, 4]), "q(nonO)", pc(A[144:, 3, 5]), "Dpub", pc(A[208:, :, 6]), "dgath", pc(A[:144, 0, 4]))
    print("  tail: B4", pc(A[:144, :, 5]), "ogath", pc(A[:144, :, 6]), "ppub", pc(A[:144, 1:3, 7]), "out", pc(A[:144, 0, 7]), "end", pc(T[:, :, 8]), flush=True)
```

```python
import sys, struct
sys.path.insert(0, "dev")
from asmlib import Asm

KN = "parallel_sum__sliding_block_cached__geglu_ffn__decode_kernel"
REF = "parallel_sum__sliding_block_cached__geglu_ffn__decode.s.ref"

XS, QS, HS, ML, CNT, RED, RED2, LDS_SZ = 110592, 119808, 120320, 124928, 124992, 125056, 129152, 137344
PROW = 53248
PBUF, OBUF, PART, DPART = 0x1000, 0x70000, 0xA0000, 0xF0000
OSL = 768
WS_SZ = 0x180000
STAMP = 0x200000
LIMIT = 400000


def f32(x):
    return "0x%08x" % struct.unpack("<I", struct.pack("<f", x))[0]


LOG2E = 1.4426950408889634


def gen(d=6, d2=6, dq=16, diag=0, xpol="", pref=0, psleep=1, touch=0, R=6, probe=None):
    e = Asm()
    uid = [0]

    def stamp(i):
        if diag or (probe and probe[0] == i):
            e(f"s_memrealtime s[{80 + 2 * i}:{81 + 2 * i}]")

    def srd(b, lo, size):
        e(f"s_mov_b32 s{b}, s{lo}\ns_mov_b32 s{b+1}, s{lo+1}\ns_mov_b32 s{b+2}, {size}\ns_mov_b32 s{b+3}, 0x20000")

    def rnd(dst, src):
        e(f"v_cvt_pk_bf16_f32 v{dst}, v{src}, v{src}\nv_lshlrev_b32 v{dst}, 16, v{dst}")

    def poll(loads, regs, tmp, sleep, restore="-1", cmp=None):
        uid[0] += 1
        L = f"L_poll{uid[0]}"
        e(f"s_mov_b32 s70, {LIMIT}\n{L}:")
        e(loads)
        e("s_waitcnt vmcnt(0)")
        if cmp:
            e(cmp)
        else:
            r = list(regs)
            cur = r.pop(0)
            while r:
                if len(r) >= 2:
                    e(f"v_max3_u32 v{tmp}, v{cur}, v{r[0]}, v{r[1]}")
                    r = r[2:]
                else:
                    e(f"v_max_u32 v{tmp}, v{cur}, v{r[0]}")
                    r = r[1:]
                cur = tmp
            e(f"v_cmp_eq_u32 vcc, -1, v{cur}")
        e(f"s_and_b64 exec, exec, vcc\ns_cbranch_scc0 {L}_d\ns_sub_u32 s70, s70, 1\ns_cbranch_scc1 {L}_d")
        if sleep:
            e(f"s_sleep {sleep}")
        e(f"s_branch {L}\n{L}_d:\ns_mov_b64 exec, {restore}")

    def tagcmp(regs, tmp):
        out = [f"v_xor_b32 v{tmp}, s15, v{regs[0]}"]
        for r in regs[1:]:
            out.append(f"v_bitop3_b32 v{tmp}, v{r}, v{tmp}, s15 bitop3:0xde")
        out.append(f"v_and_b32 v{tmp}, 0xffff, v{tmp}\nv_cmp_ne_u32 vcc, 0, v{tmp}")
        return "\n".join(out)

    def kvbase(sd, st):
        e(f"""s_lshr_b32 s{sd}, s9, 1
s_lshl_b32 s{sd}, s{sd}, 4
s_add_u32 s{sd}, s{sd}, s8
s_lshl_b32 s{sd}, s{sd}, 21
s_and_b32 s{st}, s9, 1
s_lshl_b32 s{st}, s{st}, 18
s_add_u32 s{sd}, s{sd}, s{st}
s_add_u32 s{sd}, s{sd}, {6144*256}""")

    def allred_g(v, t, op):
        e(f"v_mov_b32 v{t}, v{v}\nv_permlane16_swap_b32 v{v}, v{t}\n{op} v{v}, v{v}, v{t}")
        e(f"v_mov_b32 v{t}, v{v}\nv_permlane32_swap_b32 v{v}, v{t}\n{op} v{v}, v{v}, v{t}")

    hdr = [l.rstrip("\n") for l in open(REF) if l.startswith(";") and "@launch" not in l and "Override" not in l and "grid=ceil" not in l]
    top = "\n".join(hdr) + f"\n; @launch grid=(256,1,1) block=(512,1,1) lds={LDS_SZ}\n"
    e(f""".amdgcn_target "amdgcn-amd-amdhsa--gfx950"
.text
.globl {KN}
.p2align 8
.type {KN},@function
{KN}:""")
    e("s_cmp_ge_u32 s2, 256\ns_cbranch_scc1 L_end")
    e("s_load_dwordx16 s[16:31], s[0:1], 0\ns_load_dwordx8 s[32:39], s[0:1], 64")
    stamp(0)
    e("v_lshrrev_b32 v1, 6, v0\nv_and_b32 v0, 63, v0\nv_readfirstlane_b32 s3, v1")
    e("s_and_b32 s8, s2, 15\ns_lshr_b32 s9, s2, 4")
    e("s_mov_b32 s11, s8\ns_sub_u32 s12, s9, 13\ns_lshl_b32 s10, s8, 2\ns_add_u32 s10, s10, s9\ns_sub_u32 s10, s10, 9")
    e("s_cmp_ge_u32 s3, 4\ns_cbranch_scc1 L_aux")

    VO, KD, KR, MK, VW1, VW2, Q, KF, AB, ACC, T, SP, MRUN, NEGM, LS, VV = 1, 2, 6, 10, 14, 15, 16, 32, 48, 64, 68, 84, 120, 121, 122, 128
    e("""v_lshrrev_b32 v1, 3, v0
v_and_b32 v2, 7, v0
v_and_b32 v3, 2, v1
s_and_b32 s5, s3, 1
s_lshl_b32 s5, s5, 2
v_or_b32 v3, s5, v3
v_xor_b32 v2, v2, v3
v_lshlrev_b32 v2, 4, v2
s_lshl_b32 m0, s3, 10
s_mov_b32 s43, 0x20000
s_cmp_ge_u32 s2, 208
s_cbranch_scc1 L_sD
s_cmp_ge_u32 s2, 144
s_cbranch_scc1 L_sQ
s_cmp_ge_u32 s2, 72
s_cselect_b32 s6, 72, 0
s_waitcnt lgkmcnt(0)
s_cselect_b32 s40, s30, s28
s_cselect_b32 s41, s31, s29
s_sub_u32 s6, s2, s6
s_movk_i32 s7, 9216""")
    e(f"s_mov_b32 s42, {576*9216}\ns_branch L_sP\nL_sQ:")
    e(f"""s_lshl_b32 s60, s10, 7
s_lshl_b32 s61, s3, 16
s_add_u32 s60, s60, s61
s_mov_b32 s42, {576*8192}
v_lshl_add_u32 v{VW1}, v1, 13, v2
s_mov_b32 s66, 18
s_waitcnt lgkmcnt(0)
s_mov_b32 s40, s22
s_mov_b32 s41, s23
L_wq:
s_waitcnt vmcnt({dq-1})
buffer_load_dwordx4 v{VW1}, s[40:43], s60 offen nt lds
s_add_u32 s60, s60, {32*8192}
s_add_u32 m0, m0, 4096
s_sub_u32 s66, s66, 1
s_cmp_lg_u32 s66, 0
s_cbranch_scc1 L_wq
s_branch L_sV""")
    e("""L_sP:
s_lshl_b32 s60, s6, 7
s_mul_i32 s61, s3, s7
s_lshl_b32 s61, s61, 3
s_add_u32 s60, s60, s61
s_lshl_b32 s62, s7, 5
s_mov_b32 s63, s62
s_movk_i32 s64, 4096
s_movk_i32 s65, 4096
s_mov_b32 s66, 6
s_branch L_sW
L_sD:""")
    e(f"""s_mul_i32 s60, s11, {288*1152}
s_mul_i32 s61, s3, {8*1152}
s_add_u32 s60, s60, s61
s_mul_i32 s61, s12, 384
s_add_u32 s60, s60, s61
s_movk_i32 s62, 128
s_mov_b32 s63, {36864-256}
s_mov_b32 s64, 36864
s_mov_b32 s65, {4096-73728}
s_mov_b32 s66, 9
s_movk_i32 s7, 1152
s_mov_b32 s42, {4608*1152}
s_waitcnt lgkmcnt(0)
s_mov_b32 s40, s32
s_mov_b32 s41, s33
L_sW:
v_mad_u32_u24 v{VW1}, v1, s7, v2
L_w1:""")
    for k in range(3):
        e(f"s_waitcnt vmcnt({d-1})\nbuffer_load_dwordx4 v{VW1}, s[40:43], s60 offen nt lds")
        e(f"s_add_u32 s60, s60, s{62 if k < 2 else 63}\ns_add_u32 m0, m0, s{64 if k < 2 else 65}")
    e("s_sub_u32 s66, s66, 1\ns_cmp_lg_u32 s66, 0\ns_cbranch_scc1 L_w1")
    e("s_cmp_ge_u32 s2, 144\ns_cbranch_scc1 L_sV")
    srd(44, 24, 4096 * 1152)
    e(f"""s_movk_i32 s7, 1152
v_mad_u32_u24 v{VW2}, v1, s7, v2
s_mul_i32 s60, s8, {256*1152}
s_mul_i32 s61, s3, {8*1152}
s_add_u32 s60, s60, s61
s_lshl_b32 s61, s9, 7
s_add_u32 s60, s60, s61
s_mov_b32 s62, {32*1152}
s_mov_b32 s66, 8
L_w2:
s_waitcnt vmcnt({d-1})
buffer_load_dwordx4 v{VW2}, s[44:47], s60 offen nt lds
s_add_u32 s60, s60, s62
s_add_u32 m0, m0, s64
s_sub_u32 s66, s66, 1
s_cmp_lg_u32 s66, 0
s_cbranch_scc1 L_w2
L_sV:""")
    srd(48, 18, 0x10000000)
    srd(52, 20, 0x10000000)
    kvbase(60, 61)
    e(f"""s_lshl_b32 s61, s3, 12
s_add_u32 s60, s60, s61
s_mul_i32 s67, s3, {R*4096}
v_lshlrev_b32 v{VO}, 4, v0""")

    work = {}

    def at(slot, fn):
        work.setdefault(slot, []).append(fn)

    def setup():
        e(f"v_lshrrev_b32 v{T}, 4, v0\nv_and_b32 v{T+1}, 15, v0\nv_lshlrev_b32 v{T+2}, 2, v{T}\nv_xor_b32 v{T+2}, v{T+2}, v{T+1}")
        e(f"v_lshlrev_b32 v{T+2}, 4, v{T+2}\nv_lshl_add_u32 v{KD}, v{T}, 8, v{T+2}")
        for r in range(1, 4):
            e(f"v_xor_b32 v{KD+r}, {16*r}, v{KD}")
        e(f"v_and_b32 v{T+2}, 3, v0\nv_lshlrev_b32 v{T+2}, 2, v{T+2}\nv_lshrrev_b32 v{T+3}, 2, v{T+1}\nv_or_b32 v{T+2}, v{T+2}, v{T+3}")
        e(f"v_lshl_add_u32 v{T+2}, v{T+2}, 8, s67\nv_xor_b32 v{T+3}, v{T}, v{T+1}\nv_lshl_add_u32 v{KR}, v{T+3}, 4, v{T+2}")
        for t in range(1, 4):
            e(f"v_xor_b32 v{KR+t}, {64*t}, v{KR}")
        e(f"v_and_b32 v{T+2}, 1, v0\nv_lshlrev_b32 v{T+2}, 4, v{T+2}\nv_mov_b32 v{T+3}, 0xffff\nv_lshlrev_b32 v{T+3}, v{T+2}, v{T+3}\nv_bfe_u32 v{T+2}, v0, 1, 2")
        for r in range(4):
            e(f"v_cmp_eq_u32 vcc, {r}, v{T+2}\nv_cndmask_b32 v{MK+r}, 0, v{T+3}, vcc")
        e(f"v_lshrrev_b32 v{T+2}, 3, v{T+1}\nv_lshlrev_b32 v{T+2}, 8, v{T+2}\nv_lshl_add_u32 v{T+2}, v{T}, 4, v{T+2}\nv_add_u32 v{VW1}, {QS}, v{T+2}")
        e(f"s_mov_b32 s68, 0xffff0000\ns_mov_b32 s69, {f32(128 ** -0.5)}\ns_mov_b32 s71, {f32(LOG2E)}")
        e(f"v_mov_b32 v{LS}, 0\nv_mov_b32 v{MRUN}, 0xff800000")
        for r in range(4):
            e(f"v_mov_b32 v{ACC+r}, 0")
        srd(56, 38, WS_SZ if not diag else 0x400000)

    at(d, setup)

    def sreg(c):
        return SP + 4 * (c if c < 8 else (8 if c == 8 else c - 9))

    def kread(c):
        def f():
            for t in range(4):
                e(f"ds_read_b128 v[{KF+4*t}:{KF+4*t+3}], v{KR+t} offset:{(c % R) * 4096}")
        return f

    def kmma(c):
        def f():
            S = sreg(c)
            e("s_waitcnt lgkmcnt(0)")
            for t in range(4):
                e(f"v_mfma_f32_16x16x32_bf16 v[{S}:{S+3}], v[{KF+4*t}:{KF+4*t+3}], v[{Q+4*t}:{Q+4*t+3}], {'0' if t == 0 else f'v[{S}:{S+3}]'}")
        return f

    def kround(c):
        def f():
            S = sreg(c)
            for _ in range(2):
                e(f"v_cvt_pk_bf16_f32 v{T}, v{S}, v{S+1}\nv_cvt_pk_bf16_f32 v{T+1}, v{S+2}, v{S+3}")
                e(f"v_lshlrev_b32 v{S}, 16, v{T}\nv_and_b32 v{S+1}, s68, v{T}\nv_lshlrev_b32 v{S+2}, 16, v{T+1}\nv_and_b32 v{S+3}, s68, v{T+1}")
                if _ == 0:
                    for r in range(4):
                        e(f"v_mul_f32 v{S+r}, s69, v{S+r}")
            e(f"v_max3_f32 v{MRUN}, v{MRUN}, v{S}, v{S+1}\nv_max3_f32 v{MRUN}, v{MRUN}, v{S+2}, v{S+3}")
        return f

    def maxA():
        allred_g(MRUN, T, "v_max_f32")
        e(f"v_mul_f32 v{NEGM}, s71, v{MRUN}\nv_sub_f32 v{NEGM}, 0, v{NEGM}")

    def maxB():
        allred_g(MRUN, T, "v_max_f32")
        e(f"v_mul_f32 v{T+1}, s71, v{MRUN}\nv_add_f32 v{T+2}, v{NEGM}, v{T+1}\nv_sub_f32 v{NEGM}, 0, v{T+1}\nv_exp_f32 v{T+2}, -v{T+2}")
        e(f"v_mul_f32 v{LS}, v{LS}, v{T+2}\nv_mov_b32 v{T+3}, v{T+2}")
        e(f"v_mov_b32_dpp v{T+3}, v{T+2} row_ror:8 row_mask:0x3 bank_mask:0xc\nv_mov_b32_dpp v{T+3}, v{T+2} row_ror:8 row_mask:0xc bank_mask:0x3")
        for r in range(4):
            e(f"v_mul_f32 v{ACC+r}, v{ACC+r}, v{T+3}")

    def pexp(c):
        def f():
            S = sreg(c)
            for r in range(4):
                e(f"v_fma_f32 v{S+r}, v{S+r}, s71, v{NEGM}")
            for r in range(4):
                e(f"v_exp_f32 v{S+r}, v{S+r}")
            e(f"v_add_f32 v{T}, v{S}, v{S+1}\nv_add_f32 v{T+1}, v{S+2}, v{S+3}\nv_add_f32 v{LS}, v{LS}, v{T}\nv_add_f32 v{LS}, v{LS}, v{T+1}")
            for r in range(4):
                e(f"v_cvt_pk_bf16_f32 v{S+r}, v{S+r}, v{S+r}")
        return f

    def aprep(c, r):
        def f():
            for k in range(4):
                e(f"v_and_b32 v{AB+4*r+k}, v{sreg(c)+r}, v{MK+k}")
        return f

    def pv(c, r):
        def f():
            V = VV + 16 * (c % 8) + 4 * r
            e(f"v_mfma_f32_16x16x32_bf16 v[{ACC}:{ACC+3}], v[{AB+4*r}:{AB+4*r+3}], v[{V}:{V+3}], v[{ACC}:{ACC+3}]")
        return f

    def mlwrite():
        allred_g(LS, T, "v_add_f32")
        e(f"v_sub_f32 v{T+2}, 0, v{NEGM}\nv_mov_b32 v{T+3}, v{LS}")
        e(f"v_bfe_u32 v{T}, v0, 3, 1\nv_lshlrev_b32 v{T}, 5, v{T}\ns_lshl_b32 s63, s3, 3\ns_add_u32 s63, s63, {ML}\nv_add_u32 v{T}, s63, v{T}")
        e(f"ds_write_b64 v{T}, v[{T+2}:{T+3}]")
        e(f"s_lshl_b32 s63, s3, 10\ns_add_u32 s63, s63, {RED}\nv_add_u32 v{VW2}, s63, v{VO}")

    def dep(n):
        return d if n < 96 else d2

    landed = {}
    for n in range(128 + 64):
        top_done = (n - dep(n)) if n < 128 else min(127, n - d2)
        for m in range(top_done + 1):
            landed.setdefault(m, n)
    qslot = 32 + 4 * R - 3

    def qread():
        stamp(6)
        e("s_barrier")
        stamp(7)
        for t in range(4):
            e(f"ds_read_b128 v[{Q+4*t}:{Q+4*t+3}], v{VW1} offset:{64*t}")

    at(qslot, qread)
    kslot = {}
    for c in range(16):
        n0 = kslot[c] = max(landed[35 + 4 * c], qslot + 2 * c)
        assert c + R >= 16 or n0 + 1 < 32 + 4 * (c + R)
        at(n0, kread(c))
        at(n0 + 1, kmma(c))
        at(n0 + 2, kround(c))
    sA = kslot[7] + 3
    at(sA, maxA)
    for j in range(8):
        s0 = sA + 1 + 3 * j
        at(s0, pexp(j))
        at(s0 + 1, aprep(j, 0)); at(s0 + 1, aprep(j, 1)); at(s0 + 1, pv(j, 0)); at(s0 + 1, pv(j, 1))
        at(s0 + 2, aprep(j, 2)); at(s0 + 2, aprep(j, 3)); at(s0 + 2, pv(j, 2)); at(s0 + 2, pv(j, 3))
        assert s0 + 2 < 96 + 4 * j
        if j < 7:
            assert s0 + 2 < kslot[9 + j] + 1
    sB = kslot[15] + 3
    at(sB, maxB)
    pre = {}
    for j in range(8):
        at(sB + 1 + j, pexp(8 + j))
    at(sB + 9, mlwrite)
    last = 0
    for n in range(96, 128):
        j, r = (n - 96) // 4, n % 4
        s = max(landed[n], sB + 2 + j, last)
        last = s
        pre.setdefault(s, []).append((8 + j, r))
    nslots = max(max(work), last) + 1
    for n in range(nslots):
        todo = pre.get(n, [])
        assert len(todo) <= 4
        for (c, r) in todo:
            aprep(c, r)()
        if n < 128:
            if n < 32 or n >= 96:
                i = n if n < 32 else n - 64
                if i % 4 == 0:
                    e(f"s_add_u32 s61, s60, {(i // 4) * 16384}")
                e(f"s_waitcnt vmcnt({dep(n)-1})")
                if n == d - 1:
                    stamp(1)
                    e("s_barrier")
                V = VV + 4 * (i % 32)
                e(f"buffer_load_dwordx4 v[{V}:{V+3}], v{VO}, s[52:55], s61 offen offset:{(i % 4) * 1024} nt")
            else:
                i = n - 32
                if i % 4 == 0:
                    e(f"s_add_u32 s62, s60, {(i // 4) * 16384}\ns_add_u32 m0, s67, {((i // 4) % R) * 4096}")
                e(f"s_waitcnt vmcnt({dep(n)-1})")
                e(f"buffer_load_dwordx4 v{KD + i % 4}, s[48:51], s62 offen offset:{(i % 4) * 1024} nt lds")
            if n == 31:
                stamp(2)
                e("s_barrier")
                stamp(3)
        elif n - d2 <= 127:
            e(f"s_waitcnt vmcnt({127 - (n - d2)})")
        for (c, r) in todo:
            pv(c, r)()
        for fn in work.get(n, []):
            fn()
    e(f"ds_write_b128 v{VW2}, v[{ACC}:{ACC+3}]")
    stamp(4)
    e("s_waitcnt lgkmcnt(0)\ns_barrier\ns_cmp_lg_u32 s3, 0\ns_cbranch_scc1 L_fin")
    e(f"v_lshrrev_b32 v2, 5, v0\nv_lshlrev_b32 v3, 5, v2\nv_add_u32 v3, {ML}, v3")
    e("ds_read_b128 v[16:19], v3\nds_read_b128 v[20:23], v3 offset:16")
    for w in range(1, 4):
        e(f"ds_read_b128 v[{28+4*w}:{31+4*w}], v{VW2} offset:{1024*w}")
    e(f"""s_lshr_b32 s62, s9, 1
s_and_b32 s63, s9, 1
s_lshl_b32 s63, s63, 3
s_add_u32 s62, s62, s63
s_lshl_b32 s63, s8, 4
s_add_u32 s63, s63, s62
s_mul_i32 s63, s63, {OSL}
s_add_u32 s63, s63, {OBUF}
v_and_b32 v4, 15, v0
v_lshlrev_b32 v4, 4, v4
v_lshl_add_u32 v4, v2, 8, v4
v_bfe_u32 v5, v0, 4, 1
v_lshl_add_u32 v4, v5, 3, v4
v_lshlrev_b32 v5, 2, v2
s_waitcnt lgkmcnt(3)
v_max3_f32 v24, v16, v18, v20
v_max_f32 v24, v24, v22
v_sub_f32 v16, v16, v24
v_sub_f32 v18, v18, v24
v_sub_f32 v20, v20, v24
v_sub_f32 v22, v22, v24
v_exp_f32 v16, v16
v_exp_f32 v18, v18
v_exp_f32 v20, v20
v_exp_f32 v22, v22
v_mul_f32 v25, v16, v17
v_fmac_f32 v25, v18, v19
v_fmac_f32 v25, v20, v21
v_fmac_f32 v25, v22, v23
v_rcp_f32 v26, v25
v_log_f32 v27, v25""")
    for r in range(4):
        e(f"v_mul_f32 v{ACC+r}, v{ACC+r}, v16")
    e("s_waitcnt lgkmcnt(0)")
    for w in range(1, 4):
        for r in range(4):
            e(f"v_fmac_f32 v{ACC+r}, v{28+4*w+r}, v{16+2*w}")
    for r in range(4):
        e(f"v_mul_f32 v{ACC+r}, v{ACC+r}, v26")
    e(f"""v_cvt_pk_bf16_f32 v28, v{ACC}, v{ACC+1}
v_cvt_pk_bf16_f32 v29, v{ACC+2}, v{ACC+3}
v_add_f32 v27, v27, v24
v_min_u32 v28, -2, v28
v_min_u32 v29, -2, v29
v_min_u32 v27, -2, v27
buffer_store_dwordx2 v[28:29], v4, s[56:59], s63 offen sc1
s_mov_b32 exec_lo, 1
s_mov_b32 exec_hi, 1
buffer_store_dword v27, v5, s[56:59], s63 offen offset:512 sc1
s_mov_b64 exec, -1""")
    stamp(5)
    e("s_branch L_fin")

    XN, WF, OF, AC = 16, 52, 160, 192
    e("L_aux:\ns_sub_u32 s4, s3, 4\nv_mul_u32_u24 v1, 36, v0\ns_mul_i32 s5, s4, 2304\nv_lshlrev_b32 v2, 4, v0")
    e(f"s_add_u32 s13, s2, 64\ns_cmp_ge_u32 s2, 144\ns_cselect_b32 s13, s10, s13\ns_lshl_b32 s13, s13, 8\ns_add_u32 s13, s13, {PBUF}")
    e("s_waitcnt lgkmcnt(0)")
    e("s_load_dword s14, s[38:39], 0")
    srd(40, 16, 9216)
    srd(56, 38, WS_SZ if not diag else 0x400000)
    if touch:
        e("s_cmp_lg_u32 s4, 1\ns_cbranch_scc1 L_at")
        srd(48, 18, 0x10000000)
        srd(52, 20, 0x10000000)
        kvbase(60, 61)
        e(f"""v_mul_u32_u24 v3, {262144 // touch}, v0
s_mov_b64 exec, {hex((1 << touch) - 1) if touch < 64 else -1}
buffer_load_dword v60, v3, s[52:55], s60 offen nt
buffer_load_dword v61, v3, s[48:51], s60 offen nt
s_mov_b64 exec, 1""")
        srd(48, 24, 4096 * 1152)
        srd(52, 34, 9216)
        e(f"""s_mul_i32 s60, s8, {256*1152}
buffer_load_dword v62, v3, s[48:51], s60 offen nt
buffer_load_dword v63, v3, s[52:55], 0 offen
s_mov_b64 exec, -1
L_at:""")
    if pref:
        e(f"""s_cmp_lg_u32 s4, 2
s_cbranch_scc1 L_a0
s_getpc_b64 s[60:61]
L_pc:
s_sub_u32 s60, s60, L_pc-{KN}
s_subb_u32 s61, s61, 0
s_lshr_b32 s62, s2, 3
s_lshl_b32 s62, s62, 10
v_add_u32 v3, s62, v2
v_min_u32 v3, L_end-{KN}-12, v3
v_mov_b32 v5, s61
v_add_co_u32 v4, vcc, s60, v3
v_addc_co_u32 v5, vcc, 0, v5, vcc
global_load_dwordx4 v[28:31], v[4:5], off
L_a0:""")
    for k in range(3):
        e(f"buffer_load_dwordx3 v[{16+4*k}:{18+4*k}], v1, s[40:43], s5 offen offset:{12*k} {xpol}")
    e(f"v_mov_b32 v8, {CNT}\nv_mov_b32 v9, 0\nds_write_b32 v8, v9")
    e(f"s_mov_b32 s68, 0xffff0000\ns_mov_b32 s69, {f32(1/576)}\ns_add_u32 s5, s5, {XS}\nv_add_u32 v1, s5, v1")
    e(f"""v_mov_b32 v4, -1
v_mov_b32 v5, -1
v_mov_b32 v6, -1
v_mov_b32 v7, -1
s_lshl_b32 s74, s9, 4
s_add_u32 s74, s74, s8
s_lshl_b32 s60, s74, 11
s_add_u32 s60, s60, {PART}
s_mul_i32 s61, s10, 3072
s_add_u32 s61, s61, {OBUF}
s_cmp_ge_u32 s2, 144
s_cselect_b32 s60, s61, s60
s_cselect_b32 s61, 3, 2
s_cmp_ge_u32 s2, 208
s_cselect_b32 s61, 0, s61
s_lshl_b32 s62, s4, 10
s_add_u32 s60, s60, s62
s_waitcnt vmcnt(0)
s_cmp_ge_u32 s4, s61
s_cbranch_scc1 L_a1
buffer_store_dwordx4 v[4:7], v2, s[56:59], s60 offen sc1
L_a1:""")
    raw = [16, 17, 18, 20, 21, 22, 24, 25, 26]

    def red32(v, t):
        for s in (8, 4, 2, 1):
            e(f"v_add_f32_dpp v{v}, v{v}, v{v} row_ror:{s} row_mask:0xf bank_mask:0xf")
        e(f"v_mov_b32 v{t}, v{v}\nv_permlane16_swap_b32 v{v}, v{t}\nv_add_f32 v{v}, v{v}, v{t}")

    for k in range(9):
        e(f"v_lshlrev_b32 v{28+2*k}, 16, v{raw[k]}\nv_and_b32 v{29+2*k}, s68, v{raw[k]}")
    e("v_pk_add_f32 v[46:47], v[28:29], v[30:31]")
    for k in range(2, 9):
        e(f"v_pk_add_f32 v[46:47], v[46:47], v[{28+2*k}:{29+2*k}]")
    e("v_add_f32 v46, v46, v47")
    red32(46, 47)
    e("v_mul_f32 v48, s69, v46\nv_sub_f32 v50, 0, v48\nv_sub_f32 v51, 0, v48")
    for k in range(9):
        e(f"v_pk_add_f32 v[8:9], v[{28+2*k}:{29+2*k}], v[50:51]")
        e("v_pk_mul_f32 v[46:47], v[8:9], v[8:9]" if k == 0 else "v_pk_fma_f32 v[46:47], v[8:9], v[8:9], v[46:47]")
    e("v_add_f32 v46, v46, v47")
    red32(46, 47)
    e("v_mul_f32 v46, s69, v46")
    rnd(46, 46)
    e(f"v_add_f32 v46, {f32(1e-5)}, v46")
    rnd(46, 46)
    e("v_sqrt_f32 v46, v46")
    rnd(46, 46)
    e("v_rcp_f32 v46, v46")
    rnd(50, 50)
    e("v_mov_b32 v51, v50\nv_mov_b32 v47, v46")
    for k in range(9):
        e(f"v_pk_add_f32 v[8:9], v[{28+2*k}:{29+2*k}], v[50:51]\nv_cvt_pk_bf16_f32 v9, v8, v9\nv_lshlrev_b32 v8, 16, v9\nv_and_b32 v9, s68, v9")
        e(f"v_pk_mul_f32 v[8:9], v[8:9], v[46:47]\nv_cvt_pk_bf16_f32 v{raw[k]}, v8, v9")
    for k in range(0, 8, 2):
        e(f"ds_write2_b32 v1, v{raw[k]}, v{raw[k+1]} offset0:{k} offset1:{k+1}")
    e(f"ds_write_b32 v1, v{raw[8]} offset:32")
    e("""v_lshrrev_b32 v10, 4, v0
v_and_b32 v11, 15, v0
v_bfe_u32 v8, v0, 2, 2
v_lshl_add_u32 v12, v10, 3, v8
v_lshlrev_b32 v12, 7, v12
v_and_b32 v9, 3, v0
v_lshl_add_u32 v12, v9, 3, v12
v_lshrrev_b32 v13, 1, v8
v_and_b32 v9, 1, v10
v_lshl_or_b32 v13, v9, 1, v13
v_lshl_add_u32 v12, v13, 5, v12
s_lshl_b32 s60, s4, 5
v_xor_b32 v3, s60, v12
v_add_u32 v4, 0x10000, v3
v_and_b32 v14, 7, v0""")
    e(f"v_mul_u32_u24 v5, 1152, v14\nv_lshrrev_b32 v8, 3, v11\nv_mul_u32_u24 v8, 576, v8\nv_lshl_add_u32 v8, v10, 4, v8\nv_add3_u32 v5, v5, v8, 0\nv_add_u32 v5, {XS}, v5")
    stamp(1)
    e("s_waitcnt vmcnt(0) lgkmcnt(0)\ns_add_u32 s14, s14, 1\ns_and_b32 s15, s14, 0xffff\ns_barrier")
    stamp(2)

    def trread(kk):
        for hf in range(2):
            off = kk * 4096 + hf * 512
            e(f"ds_read_b64_tr_b16 v[{WF+4*kk+2*hf}:{WF+4*kk+2*hf+1}], v{3 if off < 65536 else 4} offset:{off % 65536}")

    for i in range(9):
        e(f"ds_read_b128 v[{XN+4*i}:{XN+4*i+3}], v5 offset:{64*i}")
    for kk in range(18):
        trread(kk)
    e("s_cmp_ge_u32 s2, 208\ns_cbranch_scc1 L_aD")
    e(f"v_mul_u32_u24 v6, {PROW}, v14\nv_lshl_add_u32 v6, v10, 4, v6\ns_lshl_b32 s60, s4, 6\ns_add_u32 s60, s60, s13\nv_mov_b32 v7, s68")
    e("s_waitcnt lgkmcnt(0)")
    for i in range(9):
        for hf in range(2):
            kk = 9 * hf + i
            A = AC + 4 * hf
            e(f"v_mfma_f32_16x16x32_bf16 v[{A}:{A+3}], v[{WF+4*kk}:{WF+4*kk+3}], v[{XN+4*i}:{XN+4*i+3}], {'0' if i == 0 else f'v[{A}:{A+3}]'}")
    for r in range(4):
        e(f"v_add_f32_dpp v{AC+r}, v{AC+4+r}, v{AC+r} row_ror:8 row_mask:0xf bank_mask:0xf")
    e(f"""v_cvt_pk_bf16_f32 v8, v{AC}, v{AC+1}
v_cvt_pk_bf16_f32 v9, v{AC+2}, v{AC+3}
v_lshl_or_b32 v16, v8, 16, s15
v_and_or_b32 v17, v8, v7, s15
v_lshl_or_b32 v18, v9, 16, s15
v_and_or_b32 v19, v9, v7, s15
s_mov_b32 exec_lo, 0x00ff00ff
s_mov_b32 exec_hi, 0x00ff00ff
buffer_store_dwordx4 v[16:19], v6, s[56:59], s60 offen sc1
s_mov_b64 exec, -1""")
    stamp(3)
    e("s_cmp_ge_u32 s2, 144\ns_cbranch_scc1 L_aq")
    e(f"s_lshl_b32 s60, s4, 13\ns_add_u32 s60, s60, 73728\nv_add_u32 v3, s60, v12")
    for Tt in range(4):
        if Tt:
            e(f"v_xor_b32 v4, {32*Tt}, v3")
        for kk in range(2):
            for hf in range(2):
                R = OF + 8 * Tt + 4 * kk + 2 * hf
                e(f"ds_read_b64_tr_b16 v[{R}:{R+1}], v{4 if Tt else 3} offset:{kk*4096 + hf*512}")
    e("s_branch L_aq\nL_aD:")
    for kk in range(18, 27):
        trread(kk)
    e("L_aq:\ns_mov_b32 s71, 0x07060302\ns_waitcnt lgkmcnt(0)\ns_barrier\ns_cmp_lg_u32 s4, 3\ns_cbranch_scc1 L_a3")
    stamp(4)
    e(f"s_lshr_b32 s60, s9, 1\ns_mul_i32 s60, s60, {PROW}\ns_lshl_b32 s61, s8, 10\ns_add_u32 s60, s60, s61\ns_add_u32 s60, s60, {PBUF}\nv_lshlrev_b32 v6, 3, v0")
    poll("buffer_load_dwordx4 v[20:23], v2, s[56:59], s60 offen sc1", None, None, 2, cmp=tagcmp([20, 21, 22, 23], 7))
    e(f"v_perm_b32 v8, v21, v20, s71\nv_perm_b32 v9, v23, v22, s71\nv_add_u32 v6, {QS}, v6\nds_write_b64 v6, v[8:9]")
    stamp(5)
    e("L_a3:\ns_waitcnt lgkmcnt(0)\ns_barrier")
    e("s_cmp_lt_u32 s2, 144\ns_cbranch_scc1 L_aO\ns_cmp_lt_u32 s2, 208\ns_cbranch_scc1 L_fin")

    e(f"""v_cmp_le_u32 vcc, 24, v0
v_mov_b32 v6, {PROW - 1152}
v_cndmask_b32 v6, 0, v6, vcc
v_mul_u32_u24 v7, 24, v0
v_lshl_add_u32 v6, v7, 1, v6
s_mul_i32 s60, s4, {2*PROW}
s_mul_i32 s61, s11, 1152
s_add_u32 s60, s60, s61
s_add_u32 s60, s60, {PBUF + 16384}
s_add_u32 s61, s60, 18432
s_mov_b32 s72, -1
s_mov_b32 s73, 0xffff
s_mov_b64 exec, s[72:73]""")
    G, U = 208, 220
    poll("\n".join([f"buffer_load_dwordx4 v[{G+4*k}:{G+4*k+3}], v6, s[56:59], s60 offen offset:{16*k} sc1" for k in range(3)] +
                   [f"buffer_load_dwordx4 v[{U+4*k}:{U+4*k+3}], v6, s[56:59], s61 offen offset:{16*k} sc1" for k in range(3)]),
         None, None, 8, restore="s[72:73]", cmp=tagcmp(list(range(G, G + 24)), 8))
    c0 = -2 * LOG2E * 0.7978845608028654
    e(f"v_mov_b32 v32, {f32(c0)}\nv_mov_b32 v33, {f32(c0 * 0.044715)}\ns_mul_i32 s60, s4, 1152\ns_add_u32 s60, s60, {HS}\nv_add_u32 v7, s60, v7")
    for k in range(6):
        e(f"""v_and_b32 v34, s68, v{G+2*k}
v_and_b32 v35, s68, v{G+2*k+1}
v_mul_f32 v36, v34, v34
v_mul_f32 v37, v35, v35
v_fma_f32 v36, v36, v33, v32
v_fma_f32 v37, v37, v33, v32
v_mul_f32 v36, v36, v34
v_mul_f32 v37, v37, v35
v_exp_f32 v36, v36
v_exp_f32 v37, v37
v_and_b32 v38, s68, v{U+2*k}
v_add_f32 v36, 1.0, v36
v_add_f32 v37, 1.0, v37
v_rcp_f32 v36, v36
v_rcp_f32 v37, v37
v_and_b32 v39, s68, v{U+2*k+1}
v_mul_f32 v34, v34, v36
v_mul_f32 v35, v35, v37
v_cvt_pk_bf16_f32 v35, v34, v35
v_lshlrev_b32 v34, 16, v35
v_and_b32 v35, s68, v35
v_mul_f32 v34, v34, v38
v_mul_f32 v35, v35, v39
v_cvt_pk_bf16_f32 v{40+k}, v34, v35""")
    for k in range(3):
        e(f"ds_write_b64 v7, v[{40+2*k}:{41+2*k}] offset:{8*k}")
    e(f"""s_mov_b64 exec, 1
v_mov_b32 v8, {CNT}
v_mov_b32 v9, 1
s_waitcnt lgkmcnt(0)
ds_add_u32 v8, v9
s_mov_b32 s70, {LIMIT*8}
L_spin:
ds_read_b32 v9, v8
s_waitcnt lgkmcnt(0)
v_readfirstlane_b32 s60, v9
s_cmp_ge_u32 s60, 4
s_cbranch_scc1 L_spind
s_sub_u32 s70, s70, 1
s_cbranch_scc1 L_spind
s_sleep 2
s_branch L_spin
L_spind:
s_mov_b64 exec, -1
v_mul_u32_u24 v5, 576, v14
v_lshl_add_u32 v5, v10, 4, v5
v_add_u32 v5, {HS}, v5""")
    for i in range(9):
        e(f"ds_read_b128 v[{XN+4*i}:{XN+4*i+3}], v5 offset:{64*i}")
    e(f"""v_lshlrev_b32 v6, 13, v14
v_lshl_add_u32 v6, v10, 5, v6
v_mov_b32 v7, s68
s_mul_i32 s60, s12, {3*65536}
s_lshr_b32 s61, s4, 1
s_lshl_b32 s61, s61, 12
s_add_u32 s60, s60, s61
s_and_b32 s61, s4, 1
s_lshl_b32 s61, s61, 7
s_add_u32 s60, s60, s61
s_lshl_b32 s61, s11, 8
s_add_u32 s60, s60, s61
s_add_u32 s60, s60, {DPART}
s_waitcnt lgkmcnt(0)""")
    for i in range(9):
        for sub in range(3):
            kk = 9 * sub + i
            A = AC + 4 * sub
            e(f"v_mfma_f32_16x16x32_bf16 v[{A}:{A+3}], v[{WF+4*kk}:{WF+4*kk+3}], v[{XN+4*i}:{XN+4*i+3}], {'0' if i == 0 else f'v[{A}:{A+3}]'}")
    for r in range(12):
        e(f"v_and_or_b32 v{G+2*r}, v{AC+r}, v7, s15\nv_lshl_or_b32 v{G+2*r+1}, v{AC+r}, 16, s15")
    e("s_mov_b32 exec_lo, 0x00ff00ff\ns_mov_b32 exec_hi, 0x00ff00ff")
    for sub in range(3):
        e(f"buffer_store_dwordx4 v[{G+8*sub}:{G+8*sub+3}], v6, s[56:59], s60 offen sc1")
        e(f"buffer_store_dwordx4 v[{G+8*sub+4}:{G+8*sub+7}], v6, s[56:59], s60 offen offset:16 sc1")
        if sub < 2:
            e("s_add_u32 s60, s60, 65536")
    e("s_mov_b64 exec, -1")
    stamp(6)
    e("s_branch L_fin")

    def gather_reduce(base, sleep):
        if base == PART:
            poll("\n".join(f"buffer_load_dwordx2 v[{16+2*i}:{17+2*i}], v7, s[56:59], s74 offen offset:{512*i} sc1" for i in range(4)), list(range(16, 24)), 24, sleep)
        else:
            e(f"s_lshl_b32 s60, s74, 12\ns_add_u32 s60, s60, {DPART}\ns_lshl_b32 s74, s74, 11\ns_add_u32 s74, s74, {PART}")
            poll("\n".join(f"buffer_load_dwordx4 v[{28+4*i}:{31+4*i}], v2, s[56:59], s60 offen offset:{1024*i} sc1" for i in range(4)), None, None, sleep, cmp=tagcmp(list(range(28, 44)), 24))
            for i in range(8):
                e(f"v_perm_b32 v{16+i}, v{28+2*i}, v{29+2*i}, s71")
        e("""v_pk_add_f32 v[16:17], v[16:17], v[18:19]
v_pk_add_f32 v[20:21], v[20:21], v[22:23]
v_pk_add_f32 v[16:17], v[16:17], v[20:21]
v_permlane32_swap_b32 v16, v17
v_add_f32 v16, v16, v17
v_mov_b32 v17, v16
v_permlane16_swap_b32 v16, v17
v_add_f32 v16, v16, v17""")
        rnd(16, 16)

    e(f"""L_aO:
v_mul_u32_u24 v6, {OSL}, v11
v_lshl_add_u32 v5, v10, 4, v6
s_mul_i32 s63, s8, {16*OSL}
s_add_u32 s63, s63, {OBUF}
s_lshl_b32 s61, s4, 7
s_add_u32 s62, s63, s61
s_lshr_b32 s61, s4, 1
s_lshl_b32 s61, s61, 2
s_add_u32 s63, s63, s61
s_lshl_b32 s61, s4, 11
s_add_u32 s61, s61, {RED2}
v_add_u32 v3, s61, v2
s_sub_u32 s64, s4, 1
s_lshl_b32 s61, s64, 10
s_add_u32 s61, s61, {RED2}
v_add_u32 v4, s61, v2
v_lshrrev_b32 v8, 3, v11
v_lshl_add_u32 v8, v14, 1, v8
v_lshlrev_b32 v8, 11, v8
v_lshl_add_u32 v15, v10, 4, v8
s_lshl_b32 s65, s9, 15
s_lshl_b32 s61, s8, 7
s_add_u32 s65, s65, s61
s_lshl_b32 s61, s64, 6
s_add_u32 s65, s65, s61
s_add_u32 s65, s65, {PART}
v_lshlrev_b32 v7, 3, v0
s_lshr_b32 s75, s8, 1
s_mul_i32 s75, s75, 1152
s_lshl_b32 s61, s9, 7
s_add_u32 s75, s75, s61
s_and_b32 s61, s8, 1
s_lshl_b32 s61, s61, 6
s_add_u32 s75, s75, s61
v_lshrrev_b32 v9, 5, v0
v_lshlrev_b32 v9, 1, v9
v_lshl_add_u32 v13, v11, 2, v9""")
    srd(48, 34, 9216)
    e("s_cmp_lg_u32 s4, 0\ns_cbranch_scc1 L_o1\nbuffer_load_ushort v50, v13, s[40:43], s75 offen")
    gather_reduce(DPART, 16)
    e("v_mov_b32 v51, v16\nv_lshlrev_b32 v50, 16, v50")
    stamp(4)
    e("L_o1:\ns_barrier")
    stamp(5)
    poll("""buffer_load_dwordx4 v[28:31], v5, s[56:59], s62 offen sc1
buffer_load_dwordx4 v[32:35], v5, s[56:59], s62 offen offset:64 sc1
buffer_load_dword v36, v6, s[56:59], s63 offen offset:512 sc1""", list(range(28, 37)), 37, psleep)
    stamp(6)
    for kk in range(2):
        for Tt in range(4):
            A = AC + 4 * Tt
            R = OF + 8 * Tt + 4 * kk
            e(f"v_mfma_f32_16x16x32_bf16 v[{A}:{A+3}], v[{R}:{R+3}], v[{28+4*kk}:{31+4*kk}], {'0' if kk == 0 else f'v[{A}:{A+3}]'}")
        if kk == 0:
            e("v_sub_f32_dpp v37, v36, v36 row_ror:8 row_mask:0xf bank_mask:0xf\nv_exp_f32 v37, v37")
    e("v_add_f32 v37, 1.0, v37\nv_rcp_f32 v37, v37")
    for r in range(16):
        e(f"v_mul_f32 v{AC+r}, v{AC+r}, v37")
    for tt in range(2):
        for r in range(4):
            e(f"v_add_f32_dpp v{40+4*tt+r}, v{AC+4*tt+r}, v{AC+4*tt+r} row_ror:8 row_mask:0xf bank_mask:0x3")
            e(f"v_add_f32_dpp v{40+4*tt+r}, v{AC+8+4*tt+r}, v{AC+8+4*tt+r} row_ror:8 row_mask:0xf bank_mask:0xc")
        e(f"ds_write_b128 v3, v[{40+4*tt}:{43+4*tt}] offset:{1024*tt}")
    e("s_waitcnt lgkmcnt(0)\ns_barrier\ns_cmp_eq_u32 s4, 0\ns_cbranch_scc1 L_o2\ns_cmp_eq_u32 s4, 3\ns_cbranch_scc1 L_fin")
    for w in range(4):
        e(f"ds_read_b128 v[{16+4*w}:{19+4*w}], v4 offset:{2048*w}")
    e("""s_waitcnt lgkmcnt(2)
v_pk_add_f32 v[16:17], v[16:17], v[20:21]
v_pk_add_f32 v[18:19], v[18:19], v[22:23]
s_waitcnt lgkmcnt(0)
v_pk_add_f32 v[24:25], v[24:25], v[28:29]
v_pk_add_f32 v[26:27], v[26:27], v[30:31]
v_pk_add_f32 v[16:17], v[16:17], v[24:25]
v_pk_add_f32 v[18:19], v[18:19], v[26:27]""")
    for r in range(4):
        e(f"v_min_u32 v{16+r}, -2, v{16+r}")
    e("buffer_store_dwordx4 v[16:19], v15, s[56:59], s65 offen sc1")
    stamp(7)
    e("s_branch L_fin\nL_o2:")
    gather_reduce(PART, psleep)
    e("v_add_f32 v16, v16, v50")
    rnd(16, 16)
    e("""v_add_f32 v16, v16, v51
v_cvt_pk_bf16_f32 v16, v16, v16
s_mov_b32 exec_lo, 0xffff
s_mov_b32 exec_hi, 0xffff
buffer_store_short v16, v13, s[48:51], s75 offen
s_mov_b64 exec, 1
s_cmp_lg_u32 s2, 0
s_cbranch_scc1 L_o3
v_mov_b32 v17, s14
buffer_store_dword v17, v7, s[56:59], 0 offen
L_o3:
s_mov_b64 exec, -1""")
    stamp(7)
    if probe:
        if probe[1] is not None:
            e(f"s_and_b32 s60, s2, {probe[1]}\ns_cmp_lg_u32 s60, {probe[2]}\ns_cbranch_scc1 L_fin")
        e(f"L_probe:\ns_memrealtime s[76:77]\ns_waitcnt lgkmcnt(0)\ns_sub_u32 s60, s76, s{80 + 2 * probe[0]}\ns_cmp_lt_u32 s60, 5000\ns_cbranch_scc1 L_probe")
    e("L_fin:")
    if diag:
        e("s_waitcnt vmcnt(0)\ns_memrealtime s[76:77]\ns_waitcnt lgkmcnt(0)\ns_getreg_b32 s77, hwreg(HW_REG_XCC_ID)")
        for i in range(8):
            e(f"v_mov_b32 v{16+i}, s{80+2*i}")
        e(f"v_mov_b32 v24, s76\nv_mov_b32 v25, s77\nv_mov_b32 v1, 0\ns_lshl_b32 s60, s2, 3\ns_add_u32 s60, s60, s3\ns_lshl_b32 s60, s60, 6\ns_add_u32 s60, s60, {STAMP}")
        e("s_mov_b64 exec, 1\nbuffer_store_dwordx4 v[16:19], v1, s[56:59], s60 offen\nbuffer_store_dwordx4 v[20:23], v1, s[56:59], s60 offen offset:16\nbuffer_store_dwordx2 v[24:25], v1, s[56:59], s60 offen offset:32")
    e("L_end:\ns_endpgm")
    e(f""".section .rodata,"a"
.p2align 6
.amdhsa_kernel {KN}
.amdhsa_next_free_vgpr 256
.amdhsa_next_free_sgpr 102
.amdhsa_accum_offset 256
.amdhsa_group_segment_fixed_size 0
.amdhsa_kernarg_size 96
.amdhsa_user_sgpr_count 2
.amdhsa_user_sgpr_kernarg_segment_ptr 1
.amdhsa_system_sgpr_workgroup_id_x 1
.amdhsa_float_denorm_mode_32 3
.end_amdhsa_kernel""")
    return top + e.text()


if __name__ == "__main__":
    kw = eval("dict(" + (sys.argv[2] if len(sys.argv) > 2 else "") + ")")
    open(sys.argv[1], "w").write(gen(**kw))


def report(T, pc):
    S = T[:, :4]; A = T[:, 4:]
    print("  start", pc(T[:, :, 0]), "| stream: B1", pc(S[:, :, 1]), "preB2", pc(S[:, :, 2]), "B2wait", pc(S[:, :, 3] - S[:, :, 2]), "preB3", pc(S[:, :, 6]), "B3wait", pc(S[:, :, 7] - S[:, :, 6]), "done", pc(S[:, :, 4]), "wgdone", pc(S[:, :, 4].max(1)), "opub", pc(S[:, 0, 5]))
    print("  aux: LN", pc(A[:, :, 1]), "B1", pc(A[:, :, 2]), "Qpub", pc(A[144:208, :, 3]), "Gpub", pc(A[:144, :, 3]), "B2", pc(A[:, 3, 4]), "q(nonO)", pc(A[144:, 3, 5]), "Dpub", pc(A[208:, :, 6]), "dgath", pc(A[:144, 0, 4]))
    print("  tail: B4", pc(A[:144, :, 5]), "ogath", pc(A[:144, :, 6]), "ppub", pc(A[:144, 1:3, 7]), "out", pc(A[:144, 0, 7]), "end", pc(T[:, :, 8]))
    wd = S[:, :, 4].max(1)
    print("  wgdone by role GO/Q/D", wd[:144].mean().round(2), wd[144:208].mean().round(2), wd[208:].mean().round(2), "by w%8", [float(wd[i::8].mean().round(1)) for i in range(8)], flush=True)
```

```python
import sys, struct
sys.path.insert(0, "dev")
from asmlib import Asm

KN = "parallel_sum__sliding_block_cached__geglu_ffn__decode_kernel"
REF = "parallel_sum__sliding_block_cached__geglu_ffn__decode.s.ref"

XS, QS, HS, ML, CNT, RED, RED2, LDS_SZ = 110592, 119808, 120320, 124928, 124992, 125056, 129152, 137344
PROW = 53248
PBUF, OBUF, PART, DPART = 0x1000, 0x70000, 0xA0000, 0xF0000
OSL = 768
WS_SZ = 0x180000
STAMP = 0x200000
LIMIT = 400000


def f32(x):
    return "0x%08x" % struct.unpack("<I", struct.pack("<f", x))[0]


LOG2E = 1.4426950408889634


def gen(d=6, d2=6, dq=16, diag=0, xpol="", pref=0, psleep=1, touch=0, R=6, probe=None, abl="", kvpol="nt", wpol="nt", dummy=0, dpol="sc1"):
    e = Asm()
    uid = [0]

    def stamp(i):
        if diag or (probe and probe[0] == i):
            e(f"s_memrealtime s[{80 + 2 * i}:{81 + 2 * i}]")

    def srd(b, lo, size):
        e(f"s_mov_b32 s{b}, s{lo}\ns_mov_b32 s{b+1}, s{lo+1}\ns_mov_b32 s{b+2}, {size}\ns_mov_b32 s{b+3}, 0x20000")

    def rnd(dst, src):
        e(f"v_cvt_pk_bf16_f32 v{dst}, v{src}, v{src}\nv_lshlrev_b32 v{dst}, 16, v{dst}")

    def poll(loads, regs, tmp, sleep, restore="-1", cmp=None):
        uid[0] += 1
        L = f"L_poll{uid[0]}"
        e(f"s_mov_b32 s70, {0 if 'p' in abl else LIMIT}\n{L}:")
        if not ("g" in abl and cmp):
            e(loads)
        e("s_waitcnt vmcnt(0)")
        if cmp:
            e(cmp)
        else:
            r = list(regs)
            cur = r.pop(0)
            while r:
                if len(r) >= 2:
                    e(f"v_max3_u32 v{tmp}, v{cur}, v{r[0]}, v{r[1]}")
                    r = r[2:]
                else:
                    e(f"v_max_u32 v{tmp}, v{cur}, v{r[0]}")
                    r = r[1:]
                cur = tmp
            e(f"v_cmp_eq_u32 vcc, -1, v{cur}")
        e(f"s_and_b64 exec, exec, vcc\ns_cbranch_scc0 {L}_d\ns_sub_u32 s70, s70, 1\ns_cbranch_scc1 {L}_d")
        if sleep:
            e(f"s_sleep {sleep}")
        e(f"s_branch {L}\n{L}_d:\ns_mov_b64 exec, {restore}")

    def tagcmp(regs, tmp):
        out = [f"v_xor_b32 v{tmp}, s15, v{regs[0]}"]
        for r in regs[1:]:
            out.append(f"v_bitop3_b32 v{tmp}, v{r}, v{tmp}, s15 bitop3:0xde")
        out.append(f"v_and_b32 v{tmp}, 0xffff, v{tmp}\nv_cmp_ne_u32 vcc, 0, v{tmp}")
        return "\n".join(out)

    def kvbase(sd, st):
        e(f"""s_lshr_b32 s{sd}, s9, 1
s_lshl_b32 s{sd}, s{sd}, 4
s_add_u32 s{sd}, s{sd}, s8
s_lshl_b32 s{sd}, s{sd}, 21
s_and_b32 s{st}, s9, 1
s_lshl_b32 s{st}, s{st}, 18
s_add_u32 s{sd}, s{sd}, s{st}
s_add_u32 s{sd}, s{sd}, {6144*256}""")

    def allred_g(v, t, op):
        e(f"v_mov_b32 v{t}, v{v}\nv_permlane16_swap_b32 v{v}, v{t}\n{op} v{v}, v{v}, v{t}")
        e(f"v_mov_b32 v{t}, v{v}\nv_permlane32_swap_b32 v{v}, v{t}\n{op} v{v}, v{v}, v{t}")

    hdr = [l.rstrip("\n") for l in open(REF) if l.startswith(";") and "@launch" not in l and "Override" not in l and "grid=ceil" not in l]
    top = "\n".join(hdr) + f"\n; @launch grid=(256,1,1) block=(512,1,1) lds={LDS_SZ}\n"
    e(f""".amdgcn_target "amdgcn-amd-amdhsa--gfx950"
.text
.globl {KN}
.p2align 8
.type {KN},@function
{KN}:""")
    e("s_cmp_ge_u32 s2, 256\ns_cbranch_scc1 L_end")
    e("s_load_dwordx16 s[16:31], s[0:1], 0\ns_load_dwordx8 s[32:39], s[0:1], 64")
    stamp(0)
    e("v_lshrrev_b32 v1, 6, v0\nv_and_b32 v0, 63, v0\nv_readfirstlane_b32 s3, v1")
    e("s_and_b32 s8, s2, 15\ns_lshr_b32 s9, s2, 4")
    e("s_mov_b32 s11, s8\ns_sub_u32 s12, s9, 13\ns_lshl_b32 s10, s8, 2\ns_add_u32 s10, s10, s9\ns_sub_u32 s10, s10, 9")
    e("s_cmp_ge_u32 s3, 4\ns_cbranch_scc1 " + ("L_aux" if "a" not in abl else "L_end"))

    VO, KD, KR, MK, VW1, VW2, Q, KF, AB, ACC, T, SP, MRUN, NEGM, LS, VV = 1, 2, 6, 10, 14, 15, 16, 32, 48, 64, 68, 84, 120, 121, 122, 128
    e("""v_lshrrev_b32 v1, 3, v0
v_and_b32 v2, 7, v0
v_and_b32 v3, 2, v1
s_and_b32 s5, s3, 1
s_lshl_b32 s5, s5, 2
v_or_b32 v3, s5, v3
""" + ("" if "w" in abl else "v_xor_b32 v2, v2, v3") + """
v_lshlrev_b32 v2, 4, v2
s_lshl_b32 m0, s3, 10
s_mov_b32 s43, 0x20000
""" + ("s_waitcnt lgkmcnt(0)\ns_branch L_sV" if "W" in abl else "") + """
s_cmp_ge_u32 s2, 208
s_cbranch_scc1 L_sD
s_cmp_ge_u32 s2, 144
s_cbranch_scc1 L_sQ
s_cmp_ge_u32 s2, 72
s_cselect_b32 s6, 72, 0
s_waitcnt lgkmcnt(0)
s_cselect_b32 s40, s30, s28
s_cselect_b32 s41, s31, s29
s_sub_u32 s6, s2, s6
s_movk_i32 s7, 9216""")
    e(f"s_mov_b32 s42, {576*9216}\ns_branch L_sP\nL_sQ:")
    e(f"""s_lshl_b32 s60, s10, 7
s_lshl_b32 s61, s3, 16
s_add_u32 s60, s60, s61
s_mov_b32 s42, {576*8192}
v_lshl_add_u32 v{VW1}, v1, 13, v2
s_mov_b32 s66, 18
s_waitcnt lgkmcnt(0)
s_mov_b32 s40, s22
s_mov_b32 s41, s23
L_wq:
s_waitcnt vmcnt({dq-1})
buffer_load_dwordx4 v{VW1}, s[40:43], s60 offen {wpol} lds
s_add_u32 s60, s60, {32*8192}
s_add_u32 m0, m0, 4096
s_sub_u32 s66, s66, 1
s_cmp_lg_u32 s66, 0
s_cbranch_scc1 L_wq
s_branch L_sV""")
    e("""L_sP:
s_lshl_b32 s60, s6, 7
s_mul_i32 s61, s3, s7
s_lshl_b32 s61, s61, 3
s_add_u32 s60, s60, s61
s_lshl_b32 s62, s7, 5
s_mov_b32 s63, s62
s_movk_i32 s64, 4096
s_movk_i32 s65, 4096
s_mov_b32 s66, 6
s_branch L_sW
L_sD:""")
    e(f"""s_mul_i32 s60, s11, {288*1152}
s_mul_i32 s61, s3, {8*1152}
s_add_u32 s60, s60, s61
s_mul_i32 s61, s12, 384
s_add_u32 s60, s60, s61
s_movk_i32 s62, 128
s_mov_b32 s63, {36864-256}
s_mov_b32 s64, 36864
s_mov_b32 s65, {4096-73728}
s_mov_b32 s66, 9
s_movk_i32 s7, 1152
s_mov_b32 s42, {4608*1152}
s_waitcnt lgkmcnt(0)
s_mov_b32 s40, s32
s_mov_b32 s41, s33
L_sW:
v_mad_u32_u24 v{VW1}, v1, s7, v2
L_w1:""")
    for k in range(3):
        e(f"s_waitcnt vmcnt({d-1})\nbuffer_load_dwordx4 v{VW1}, s[40:43], s60 offen {wpol} lds")
        e(f"s_add_u32 s60, s60, s{62 if k < 2 else 63}\ns_add_u32 m0, m0, s{64 if k < 2 else 65}")
    e("s_sub_u32 s66, s66, 1\ns_cmp_lg_u32 s66, 0\ns_cbranch_scc1 L_w1")
    e("s_cmp_ge_u32 s2, 144\ns_cbranch_scc1 L_sV")
    srd(44, 24, 4096 * 1152)
    e(f"""s_movk_i32 s7, 1152
v_mad_u32_u24 v{VW2}, v1, s7, v2
s_mul_i32 s60, s8, {256*1152}
s_mul_i32 s61, s3, {8*1152}
s_add_u32 s60, s60, s61
s_lshl_b32 s61, s9, 7
s_add_u32 s60, s60, s61
s_mov_b32 s62, {32*1152}
s_mov_b32 s66, 8
L_w2:
s_waitcnt vmcnt({d-1})
buffer_load_dwordx4 v{VW2}, s[44:47], s60 offen {wpol} lds
s_add_u32 s60, s60, s62
s_add_u32 m0, m0, s64
s_sub_u32 s66, s66, 1
s_cmp_lg_u32 s66, 0
s_cbranch_scc1 L_w2
L_sV:""")
    srd(48, 18, 0x10000000)
    srd(52, 20, 0x10000000)
    kvbase(60, 61)
    e(f"""s_lshl_b32 s61, s3, 12
s_add_u32 s60, s60, s61
s_mul_i32 s67, s3, {R*4096}
v_lshlrev_b32 v{VO}, 4, v0""")

    work = {}

    def at(slot, fn):
        work.setdefault(slot, []).append(fn)

    def setup():
        e(f"v_lshrrev_b32 v{T}, 4, v0\nv_and_b32 v{T+1}, 15, v0\nv_lshlrev_b32 v{T+2}, 2, v{T}\nv_xor_b32 v{T+2}, v{T+2}, v{T+1}")
        e(f"v_lshlrev_b32 v{T+2}, 4, v{T+2}\nv_lshl_add_u32 v{KD}, v{T}, 8, v{T+2}")
        for r in range(1, 4):
            e(f"v_xor_b32 v{KD+r}, {16*r}, v{KD}")
        e(f"v_and_b32 v{T+2}, 3, v0\nv_lshlrev_b32 v{T+2}, 2, v{T+2}\nv_lshrrev_b32 v{T+3}, 2, v{T+1}\nv_or_b32 v{T+2}, v{T+2}, v{T+3}")
        e(f"v_lshl_add_u32 v{T+2}, v{T+2}, 8, s67\nv_xor_b32 v{T+3}, v{T}, v{T+1}\nv_lshl_add_u32 v{KR}, v{T+3}, 4, v{T+2}")
        for t in range(1, 4):
            e(f"v_xor_b32 v{KR+t}, {64*t}, v{KR}")
        e(f"v_and_b32 v{T+2}, 1, v0\nv_lshlrev_b32 v{T+2}, 4, v{T+2}\nv_mov_b32 v{T+3}, 0xffff\nv_lshlrev_b32 v{T+3}, v{T+2}, v{T+3}\nv_bfe_u32 v{T+2}, v0, 1, 2")
        for r in range(4):
            e(f"v_cmp_eq_u32 vcc, {r}, v{T+2}\nv_cndmask_b32 v{MK+r}, 0, v{T+3}, vcc")
        e(f"v_lshrrev_b32 v{T+2}, 3, v{T+1}\nv_lshlrev_b32 v{T+2}, 8, v{T+2}\nv_lshl_add_u32 v{T+2}, v{T}, 4, v{T+2}\nv_add_u32 v{VW1}, {QS}, v{T+2}")
        e(f"s_mov_b32 s68, 0xffff0000\ns_mov_b32 s69, {f32(128 ** -0.5)}\ns_mov_b32 s71, {f32(LOG2E)}")
        e(f"v_mov_b32 v{LS}, 0\nv_mov_b32 v{MRUN}, 0xff800000")
        for r in range(4):
            e(f"v_mov_b32 v{ACC+r}, 0")
        srd(56, 38, WS_SZ if not (diag or dummy) else 0x800000)

    at(d, setup)

    def sreg(c):
        return SP + 4 * (c if c < 8 else (8 if c == 8 else c - 9))

    def kread(c):
        def f():
            for t in range(4):
                e(f"ds_read_b128 v[{KF+4*t}:{KF+4*t+3}], v{KR+t} offset:{(c % R) * 4096}")
        return f

    def kmma(c):
        def f():
            S = sreg(c)
            e("s_waitcnt lgkmcnt(0)")
            for t in range(4):
                e(f"v_mfma_f32_16x16x32_bf16 v[{S}:{S+3}], v[{KF+4*t}:{KF+4*t+3}], v[{Q+4*t}:{Q+4*t+3}], {'0' if t == 0 else f'v[{S}:{S+3}]'}")
        return f

    def kround(c):
        def f():
            S = sreg(c)
            for _ in range(2):
                e(f"v_cvt_pk_bf16_f32 v{T}, v{S}, v{S+1}\nv_cvt_pk_bf16_f32 v{T+1}, v{S+2}, v{S+3}")
                e(f"v_lshlrev_b32 v{S}, 16, v{T}\nv_and_b32 v{S+1}, s68, v{T}\nv_lshlrev_b32 v{S+2}, 16, v{T+1}\nv_and_b32 v{S+3}, s68, v{T+1}")
                if _ == 0:
                    for r in range(4):
                        e(f"v_mul_f32 v{S+r}, s69, v{S+r}")
            e(f"v_max3_f32 v{MRUN}, v{MRUN}, v{S}, v{S+1}\nv_max3_f32 v{MRUN}, v{MRUN}, v{S+2}, v{S+3}")
        return f

    def maxA():
        allred_g(MRUN, T, "v_max_f32")
        e(f"v_mul_f32 v{NEGM}, s71, v{MRUN}\nv_sub_f32 v{NEGM}, 0, v{NEGM}")

    def maxB():
        allred_g(MRUN, T, "v_max_f32")
        e(f"v_mul_f32 v{T+1}, s71, v{MRUN}\nv_add_f32 v{T+2}, v{NEGM}, v{T+1}\nv_sub_f32 v{NEGM}, 0, v{T+1}\nv_exp_f32 v{T+2}, -v{T+2}")
        e(f"v_mul_f32 v{LS}, v{LS}, v{T+2}\nv_mov_b32 v{T+3}, v{T+2}")
        e(f"v_mov_b32_dpp v{T+3}, v{T+2} row_ror:8 row_mask:0x3 bank_mask:0xc\nv_mov_b32_dpp v{T+3}, v{T+2} row_ror:8 row_mask:0xc bank_mask:0x3")
        for r in range(4):
            e(f"v_mul_f32 v{ACC+r}, v{ACC+r}, v{T+3}")

    def pexp(c):
        def f():
            S = sreg(c)
            for r in range(4):
                e(f"v_fma_f32 v{S+r}, v{S+r}, s71, v{NEGM}")
            for r in range(4):
                e(f"v_exp_f32 v{S+r}, v{S+r}")
            e(f"v_add_f32 v{T}, v{S}, v{S+1}\nv_add_f32 v{T+1}, v{S+2}, v{S+3}\nv_add_f32 v{LS}, v{LS}, v{T}\nv_add_f32 v{LS}, v{LS}, v{T+1}")
            for r in range(4):
                e(f"v_cvt_pk_bf16_f32 v{S+r}, v{S+r}, v{S+r}")
        return f

    def aprep(c, r):
        def f():
            for k in range(4):
                e(f"v_and_b32 v{AB+4*r+k}, v{sreg(c)+r}, v{MK+k}")
        return f

    def pv(c, r):
        def f():
            V = VV + 16 * (c % 8) + 4 * r
            e(f"v_mfma_f32_16x16x32_bf16 v[{ACC}:{ACC+3}], v[{AB+4*r}:{AB+4*r+3}], v[{V}:{V+3}], v[{ACC}:{ACC+3}]")
        return f

    def mlwrite():
        allred_g(LS, T, "v_add_f32")
        e(f"v_sub_f32 v{T+2}, 0, v{NEGM}\nv_mov_b32 v{T+3}, v{LS}")
        e(f"v_bfe_u32 v{T}, v0, 3, 1\nv_lshlrev_b32 v{T}, 5, v{T}\ns_lshl_b32 s63, s3, 3\ns_add_u32 s63, s63, {ML}\nv_add_u32 v{T}, s63, v{T}")
        e(f"ds_write_b64 v{T}, v[{T+2}:{T+3}]")
        e(f"s_lshl_b32 s63, s3, 10\ns_add_u32 s63, s63, {RED}\nv_add_u32 v{VW2}, s63, v{VO}")

    def dep(n):
        return d if n < 96 else d2

    landed = {}
    for n in range(128 + 64):
        top_done = (n - dep(n)) if n < 128 else min(127, n - d2)
        for m in range(top_done + 1):
            landed.setdefault(m, n)
    qslot = 32 + 4 * R - 3

    def qread():
        stamp(6)
        e("s_barrier")
        stamp(7)
        for t in range(4):
            e(f"ds_read_b128 v[{Q+4*t}:{Q+4*t+3}], v{VW1} offset:{64*t}")

    at(qslot, qread)
    kslot = {}
    for c in range(16):
        n0 = kslot[c] = max(landed[35 + 4 * c], qslot + 2 * c)
        assert c + R >= 16 or n0 + 1 < 32 + 4 * (c + R)
        at(n0, kread(c))
        at(n0 + 1, kmma(c))
        at(n0 + 2, kround(c))
    sA = kslot[7] + 3
    at(sA, maxA)
    for j in range(8):
        s0 = sA + 1 + 3 * j
        at(s0, pexp(j))
        at(s0 + 1, aprep(j, 0)); at(s0 + 1, aprep(j, 1)); at(s0 + 1, pv(j, 0)); at(s0 + 1, pv(j, 1))
        at(s0 + 2, aprep(j, 2)); at(s0 + 2, aprep(j, 3)); at(s0 + 2, pv(j, 2)); at(s0 + 2, pv(j, 3))
        assert s0 + 2 < 96 + 4 * j
        if j < 7:
            assert s0 + 2 < kslot[9 + j] + 1
    sB = kslot[15] + 3
    at(sB, maxB)
    pre = {}
    for j in range(8):
        at(sB + 1 + j, pexp(8 + j))
    at(sB + 9, mlwrite)
    last = 0
    for n in range(96, 128):
        j, r = (n - 96) // 4, n % 4
        s = max(landed[n], sB + 2 + j, last)
        last = s
        pre.setdefault(s, []).append((8 + j, r))
    nslots = max(max(work), last) + 1
    for n in range(nslots):
        todo = pre.get(n, [])
        assert len(todo) <= 4
        if "c" in abl:
            todo = []
            work[n] = [f for f in work.get(n, []) if f in (setup, qread, mlwrite)]
        for (c, r) in todo:
            aprep(c, r)()
        if n < 128:
            if n < 32 or n >= 96:
                i = n if n < 32 else n - 64
                if i % 4 == 0:
                    e(f"s_add_u32 s61, s60, {(i // 4) * 16384}")
                e(f"s_waitcnt vmcnt({dep(n)-1})")
                if n == d - 1:
                    stamp(1)
                    e("s_barrier")
                V = VV + 4 * (i % 32)
                e(f"buffer_load_dwordx4 v[{V}:{V+3}], v{VO}, s[52:55], s61 offen offset:{(i % 4) * 1024} {kvpol}")
            else:
                i = n - 32
                if i % 4 == 0:
                    e(f"s_add_u32 s62, s60, {(i // 4) * 16384}\ns_add_u32 m0, s67, {((i // 4) % R) * 4096}")
                e(f"s_waitcnt vmcnt({dep(n)-1})")
                e(f"buffer_load_dwordx4 v{VO if 'k' in abl else KD + i % 4}, s[48:51], s62 offen offset:{(i % 4) * 1024} {kvpol} lds")
            if n == 31:
                stamp(2)
                e("s_barrier")
                stamp(3)
        elif n - d2 <= 127:
            e(f"s_waitcnt vmcnt({127 - (n - d2)})")
        for (c, r) in todo:
            pv(c, r)()
        for fn in work.get(n, []):
            fn()
    e(f"ds_write_b128 v{VW2}, v[{ACC}:{ACC+3}]")
    stamp(4)
    e("s_waitcnt lgkmcnt(0)\ns_barrier\ns_cmp_lg_u32 s3, 0\ns_cbranch_scc1 L_fin")
    e(f"v_lshrrev_b32 v2, 5, v0\nv_lshlrev_b32 v3, 5, v2\nv_add_u32 v3, {ML}, v3")
    e("ds_read_b128 v[16:19], v3\nds_read_b128 v[20:23], v3 offset:16")
    for w in range(1, 4):
        e(f"ds_read_b128 v[{28+4*w}:{31+4*w}], v{VW2} offset:{1024*w}")
    e(f"""s_lshr_b32 s62, s9, 1
s_and_b32 s63, s9, 1
s_lshl_b32 s63, s63, 3
s_add_u32 s62, s62, s63
s_lshl_b32 s63, s8, 4
s_add_u32 s63, s63, s62
s_mul_i32 s63, s63, {OSL}
s_add_u32 s63, s63, {OBUF}
v_and_b32 v4, 15, v0
v_lshlrev_b32 v4, 4, v4
v_lshl_add_u32 v4, v2, 8, v4
v_bfe_u32 v5, v0, 4, 1
v_lshl_add_u32 v4, v5, 3, v4
v_lshlrev_b32 v5, 2, v2
s_waitcnt lgkmcnt(3)
v_max3_f32 v24, v16, v18, v20
v_max_f32 v24, v24, v22
v_sub_f32 v16, v16, v24
v_sub_f32 v18, v18, v24
v_sub_f32 v20, v20, v24
v_sub_f32 v22, v22, v24
v_exp_f32 v16, v16
v_exp_f32 v18, v18
v_exp_f32 v20, v20
v_exp_f32 v22, v22
v_mul_f32 v25, v16, v17
v_fmac_f32 v25, v18, v19
v_fmac_f32 v25, v20, v21
v_fmac_f32 v25, v22, v23
v_rcp_f32 v26, v25
v_log_f32 v27, v25""")
    for r in range(4):
        e(f"v_mul_f32 v{ACC+r}, v{ACC+r}, v16")
    e("s_waitcnt lgkmcnt(0)")
    for w in range(1, 4):
        for r in range(4):
            e(f"v_fmac_f32 v{ACC+r}, v{28+4*w+r}, v{16+2*w}")
    for r in range(4):
        e(f"v_mul_f32 v{ACC+r}, v{ACC+r}, v26")
    e(f"""v_cvt_pk_bf16_f32 v28, v{ACC}, v{ACC+1}
v_cvt_pk_bf16_f32 v29, v{ACC+2}, v{ACC+3}
v_add_f32 v27, v27, v24
v_min_u32 v28, -2, v28
v_min_u32 v29, -2, v29
v_min_u32 v27, -2, v27
buffer_store_dwordx2 v[28:29], v4, s[56:59], s63 offen sc1
s_mov_b32 exec_lo, 1
s_mov_b32 exec_hi, 1
buffer_store_dword v27, v5, s[56:59], s63 offen offset:512 sc1
s_mov_b64 exec, -1""")
    stamp(5)
    e("s_branch L_fin")

    XN, WF, OF, AC = 16, 52, 160, 192
    e("L_aux:\ns_sub_u32 s4, s3, 4\nv_mul_u32_u24 v1, 36, v0\ns_mul_i32 s5, s4, 2304\nv_lshlrev_b32 v2, 4, v0")
    e(f"s_add_u32 s13, s2, 64\ns_cmp_ge_u32 s2, 144\ns_cselect_b32 s13, s10, s13\ns_lshl_b32 s13, s13, 8\ns_add_u32 s13, s13, {PBUF}")
    e("s_waitcnt lgkmcnt(0)")
    e("s_load_dword s14, s[38:39], 0" if "e" not in abl else "s_mov_b32 s14, 5")
    srd(40, 16, 9216)
    srd(56, 38, WS_SZ if not (diag or dummy) else 0x800000)
    if touch:
        e("s_cmp_lg_u32 s4, 1\ns_cbranch_scc1 L_at")
        srd(48, 18, 0x10000000)
        srd(52, 20, 0x10000000)
        kvbase(60, 61)
        e(f"""v_mul_u32_u24 v3, {262144 // touch}, v0
s_mov_b64 exec, {hex((1 << touch) - 1) if touch < 64 else -1}
buffer_load_dword v60, v3, s[52:55], s60 offen nt
buffer_load_dword v61, v3, s[48:51], s60 offen nt
s_mov_b64 exec, 1""")
        srd(48, 24, 4096 * 1152)
        srd(52, 34, 9216)
        e(f"""s_mul_i32 s60, s8, {256*1152}
buffer_load_dword v62, v3, s[48:51], s60 offen nt
buffer_load_dword v63, v3, s[52:55], 0 offen
s_mov_b64 exec, -1
L_at:""")
    if pref:
        e(f"""s_cmp_lg_u32 s4, 2
s_cbranch_scc1 L_a0
s_getpc_b64 s[60:61]
L_pc:
s_sub_u32 s60, s60, L_pc-{KN}
s_subb_u32 s61, s61, 0
s_lshr_b32 s62, s2, 3
s_lshl_b32 s62, s62, 10
v_add_u32 v3, s62, v2
v_min_u32 v3, L_end-{KN}-12, v3
v_mov_b32 v5, s61
v_add_co_u32 v4, vcc, s60, v3
v_addc_co_u32 v5, vcc, 0, v5, vcc
global_load_dwordx4 v[28:31], v[4:5], off
L_a0:""")
    for k in range(3 if "x" not in abl else 0):
        e(f"buffer_load_dwordx3 v[{16+4*k}:{18+4*k}], v1, s[40:43], s5 offen offset:{12*k} {xpol}")
    e(f"v_mov_b32 v8, {CNT}\nv_mov_b32 v9, 0\nds_write_b32 v8, v9")
    e(f"s_mov_b32 s68, 0xffff0000\ns_mov_b32 s69, {f32(1/576)}\ns_add_u32 s5, s5, {XS}\nv_add_u32 v1, s5, v1")
    e(f"""v_mov_b32 v4, -1
v_mov_b32 v5, -1
v_mov_b32 v6, -1
v_mov_b32 v7, -1
s_lshl_b32 s74, s9, 4
s_add_u32 s74, s74, s8
s_lshl_b32 s60, s74, 11
s_add_u32 s60, s60, {PART}
s_mul_i32 s61, s10, 3072
s_add_u32 s61, s61, {OBUF}
s_cmp_ge_u32 s2, 144
s_cselect_b32 s60, s61, s60
s_cselect_b32 s61, 3, 2
s_cmp_ge_u32 s2, 208
s_cselect_b32 s61, 0, s61
s_lshl_b32 s62, s4, 10
s_add_u32 s60, s60, s62
s_waitcnt vmcnt(0)
s_cmp_ge_u32 s4, s61
s_cbranch_scc1 L_a1
""" + ("" if "r" in abl else "buffer_store_dwordx4 v[4:7], v2, s[56:59], s60 offen sc1") + """
L_a1:""")
    raw = [16, 17, 18, 20, 21, 22, 24, 25, 26]

    def red32(v, t):
        for s in (8, 4, 2, 1):
            e(f"v_add_f32_dpp v{v}, v{v}, v{v} row_ror:{s} row_mask:0xf bank_mask:0xf")
        e(f"v_mov_b32 v{t}, v{v}\nv_permlane16_swap_b32 v{v}, v{t}\nv_add_f32 v{v}, v{v}, v{t}")

    for k in range(9):
        e(f"v_lshlrev_b32 v{28+2*k}, 16, v{raw[k]}\nv_and_b32 v{29+2*k}, s68, v{raw[k]}")
    e("v_pk_add_f32 v[46:47], v[28:29], v[30:31]")
    for k in range(2, 9):
        e(f"v_pk_add_f32 v[46:47], v[46:47], v[{28+2*k}:{29+2*k}]")
    e("v_add_f32 v46, v46, v47")
    red32(46, 47)
    e("v_mul_f32 v48, s69, v46\nv_sub_f32 v50, 0, v48\nv_sub_f32 v51, 0, v48")
    for k in range(9):
        e(f"v_pk_add_f32 v[8:9], v[{28+2*k}:{29+2*k}], v[50:51]")
        e("v_pk_mul_f32 v[46:47], v[8:9], v[8:9]" if k == 0 else "v_pk_fma_f32 v[46:47], v[8:9], v[8:9], v[46:47]")
    e("v_add_f32 v46, v46, v47")
    red32(46, 47)
    e("v_mul_f32 v46, s69, v46")
    rnd(46, 46)
    e(f"v_add_f32 v46, {f32(1e-5)}, v46")
    rnd(46, 46)
    e("v_sqrt_f32 v46, v46")
    rnd(46, 46)
    e("v_rcp_f32 v46, v46")
    rnd(50, 50)
    e("v_mov_b32 v51, v50\nv_mov_b32 v47, v46")
    for k in range(9):
        e(f"v_pk_add_f32 v[8:9], v[{28+2*k}:{29+2*k}], v[50:51]\nv_cvt_pk_bf16_f32 v9, v8, v9\nv_lshlrev_b32 v8, 16, v9\nv_and_b32 v9, s68, v9")
        e(f"v_pk_mul_f32 v[8:9], v[8:9], v[46:47]\nv_cvt_pk_bf16_f32 v{raw[k]}, v8, v9")
    for k in range(0, 8, 2):
        e(f"ds_write2_b32 v1, v{raw[k]}, v{raw[k+1]} offset0:{k} offset1:{k+1}")
    e(f"ds_write_b32 v1, v{raw[8]} offset:32")
    e("""v_lshrrev_b32 v10, 4, v0
v_and_b32 v11, 15, v0
v_bfe_u32 v8, v0, 2, 2
v_lshl_add_u32 v12, v10, 3, v8
v_lshlrev_b32 v12, 7, v12
v_and_b32 v9, 3, v0
v_lshl_add_u32 v12, v9, 3, v12
v_lshrrev_b32 v13, 1, v8
v_and_b32 v9, 1, v10
v_lshl_or_b32 v13, v9, 1, v13
v_lshl_add_u32 v12, v13, 5, v12
s_lshl_b32 s60, s4, 5
v_xor_b32 v3, s60, v12
v_add_u32 v4, 0x10000, v3
v_and_b32 v14, 7, v0""")
    e(f"v_mul_u32_u24 v5, 1152, v14\nv_lshrrev_b32 v8, 3, v11\nv_mul_u32_u24 v8, 576, v8\nv_lshl_add_u32 v8, v10, 4, v8\nv_add3_u32 v5, v5, v8, 0\nv_add_u32 v5, {XS}, v5")
    stamp(1)
    e("s_waitcnt vmcnt(0) lgkmcnt(0)\ns_add_u32 s14, s14, 1\ns_and_b32 s15, s14, 0xffff\ns_barrier")
    stamp(2)

    def trread(kk):
        for hf in range(2):
            off = kk * 4096 + hf * 512
            e(f"ds_read_b64_tr_b16 v[{WF+4*kk+2*hf}:{WF+4*kk+2*hf+1}], v{3 if off < 65536 else 4} offset:{off % 65536}")

    for i in range(9):
        e(f"ds_read_b128 v[{XN+4*i}:{XN+4*i+3}], v5 offset:{64*i}")
    for kk in range(18):
        trread(kk)
    e("s_cmp_ge_u32 s2, 208\ns_cbranch_scc1 L_aD")
    e(f"v_mul_u32_u24 v6, {PROW}, v14\nv_lshl_add_u32 v6, v10, 4, v6\ns_lshl_b32 s60, s4, 6\ns_add_u32 s60, s60, s13\nv_mov_b32 v7, s68")
    e("s_waitcnt lgkmcnt(0)")
    for i in range(9):
        for hf in range(2):
            kk = 9 * hf + i
            A = AC + 4 * hf
            e(f"v_mfma_f32_16x16x32_bf16 v[{A}:{A+3}], v[{WF+4*kk}:{WF+4*kk+3}], v[{XN+4*i}:{XN+4*i+3}], {'0' if i == 0 else f'v[{A}:{A+3}]'}")
    for r in range(4):
        e(f"v_add_f32_dpp v{AC+r}, v{AC+4+r}, v{AC+r} row_ror:8 row_mask:0xf bank_mask:0xf")
    e(f"""v_cvt_pk_bf16_f32 v8, v{AC}, v{AC+1}
v_cvt_pk_bf16_f32 v9, v{AC+2}, v{AC+3}
v_lshl_or_b32 v16, v8, 16, s15
v_and_or_b32 v17, v8, v7, s15
v_lshl_or_b32 v18, v9, 16, s15
v_and_or_b32 v19, v9, v7, s15
s_mov_b32 exec_lo, 0x00ff00ff
s_mov_b32 exec_hi, 0x00ff00ff
""" + ("" if "P" in abl else "buffer_store_dwordx4 v[16:19], v6, s[56:59], s60 offen sc1") + """
s_mov_b64 exec, -1""")
    stamp(3)
    e("s_cmp_ge_u32 s2, 144\ns_cbranch_scc1 L_aq")
    e(f"s_lshl_b32 s60, s4, 13\ns_add_u32 s60, s60, 73728\nv_add_u32 v3, s60, v12")
    for Tt in range(4):
        if Tt:
            e(f"v_xor_b32 v4, {32*Tt}, v3")
        for kk in range(2):
            for hf in range(2):
                R = OF + 8 * Tt + 4 * kk + 2 * hf
                e(f"ds_read_b64_tr_b16 v[{R}:{R+1}], v{4 if Tt else 3} offset:{kk*4096 + hf*512}")
    e("s_branch L_aq\nL_aD:")
    for kk in range(18, 27):
        trread(kk)
    e("L_aq:\ns_mov_b32 s71, 0x07060302\ns_waitcnt lgkmcnt(0)\ns_barrier\ns_cmp_lg_u32 s4, 3\ns_cbranch_scc1 L_a3")
    stamp(4)
    e(f"s_lshr_b32 s60, s9, 1\ns_mul_i32 s60, s60, {PROW}\ns_lshl_b32 s61, s8, 10\ns_add_u32 s60, s60, s61\ns_add_u32 s60, s60, {PBUF}\nv_lshlrev_b32 v6, 3, v0")
    poll("buffer_load_dwordx4 v[20:23], v2, s[56:59], s60 offen sc1", None, None, 2, cmp=tagcmp([20, 21, 22, 23], 7))
    e(f"v_perm_b32 v8, v21, v20, s71\nv_perm_b32 v9, v23, v22, s71\nv_add_u32 v6, {QS}, v6\nds_write_b64 v6, v[8:9]")
    stamp(5)
    e("L_a3:\ns_waitcnt lgkmcnt(0)\ns_barrier")
    if dummy:
        e("s_lshl_b32 s60, s2, 2\ns_add_u32 s60, s60, s4\ns_lshl_b32 s60, s60, 11\ns_add_u32 s60, s60, 0x400000\nv_lshlrev_b32 v6, 5, v0")
        if dummy == 1:
            e(f"buffer_store_dwordx4 v[16:19], v2, s[56:59], s60 offen {dpol}\nbuffer_store_dwordx4 v[16:19], v2, s[56:59], s60 offen offset:1024 {dpol}")
        elif dummy == 2:
            e(f"buffer_store_dwordx4 v[16:19], v6, s[56:59], s60 offen {dpol}\nbuffer_store_dwordx4 v[16:19], v6, s[56:59], s60 offen offset:16 {dpol}")
        else:
            e(f"buffer_load_dwordx4 v[240:243], v2, s[56:59], s60 offen {dpol}\nbuffer_load_dwordx4 v[244:247], v2, s[56:59], s60 offen offset:1024 {dpol}")
    e("s_cmp_lt_u32 s2, 144\ns_cbranch_scc1 L_aO\ns_cmp_lt_u32 s2, 208\ns_cbranch_scc1 L_fin")

    e(f"""v_cmp_le_u32 vcc, 24, v0
v_mov_b32 v6, {PROW - 1152}
v_cndmask_b32 v6, 0, v6, vcc
v_mul_u32_u24 v7, 24, v0
v_lshl_add_u32 v6, v7, 1, v6
s_mul_i32 s60, s4, {2*PROW}
s_mul_i32 s61, s11, 1152
s_add_u32 s60, s60, s61
s_add_u32 s60, s60, {PBUF + 16384}
s_add_u32 s61, s60, 18432
s_mov_b32 s72, -1
s_mov_b32 s73, 0xffff
s_mov_b64 exec, s[72:73]""")
    G, U = 208, 220
    poll("\n".join([f"buffer_load_dwordx4 v[{G+4*k}:{G+4*k+3}], v6, s[56:59], s60 offen offset:{16*k} sc1" for k in range(3)] +
                   [f"buffer_load_dwordx4 v[{U+4*k}:{U+4*k+3}], v6, s[56:59], s61 offen offset:{16*k} sc1" for k in range(3)]),
         None, None, 8, restore="s[72:73]", cmp=tagcmp(list(range(G, G + 24)), 8))
    c0 = -2 * LOG2E * 0.7978845608028654
    e(f"v_mov_b32 v32, {f32(c0)}\nv_mov_b32 v33, {f32(c0 * 0.044715)}\ns_mul_i32 s60, s4, 1152\ns_add_u32 s60, s60, {HS}\nv_add_u32 v7, s60, v7")
    for k in range(6):
        e(f"""v_and_b32 v34, s68, v{G+2*k}
v_and_b32 v35, s68, v{G+2*k+1}
v_mul_f32 v36, v34, v34
v_mul_f32 v37, v35, v35
v_fma_f32 v36, v36, v33, v32
v_fma_f32 v37, v37, v33, v32
v_mul_f32 v36, v36, v34
v_mul_f32 v37, v37, v35
v_exp_f32 v36, v36
v_exp_f32 v37, v37
v_and_b32 v38, s68, v{U+2*k}
v_add_f32 v36, 1.0, v36
v_add_f32 v37, 1.0, v37
v_rcp_f32 v36, v36
v_rcp_f32 v37, v37
v_and_b32 v39, s68, v{U+2*k+1}
v_mul_f32 v34, v34, v36
v_mul_f32 v35, v35, v37
v_cvt_pk_bf16_f32 v35, v34, v35
v_lshlrev_b32 v34, 16, v35
v_and_b32 v35, s68, v35
v_mul_f32 v34, v34, v38
v_mul_f32 v35, v35, v39
v_cvt_pk_bf16_f32 v{40+k}, v34, v35""")
    for k in range(3):
        e(f"ds_write_b64 v7, v[{40+2*k}:{41+2*k}] offset:{8*k}")
    e(f"""s_mov_b64 exec, 1
v_mov_b32 v8, {CNT}
v_mov_b32 v9, 1
s_waitcnt lgkmcnt(0)
ds_add_u32 v8, v9
s_mov_b32 s70, {LIMIT*8}
L_spin:
ds_read_b32 v9, v8
s_waitcnt lgkmcnt(0)
v_readfirstlane_b32 s60, v9
s_cmp_ge_u32 s60, 4
s_cbranch_scc1 L_spind
s_sub_u32 s70, s70, 1
s_cbranch_scc1 L_spind
s_sleep 2
s_branch L_spin
L_spind:
s_mov_b64 exec, -1
v_mul_u32_u24 v5, 576, v14
v_lshl_add_u32 v5, v10, 4, v5
v_add_u32 v5, {HS}, v5""")
    for i in range(9):
        e(f"ds_read_b128 v[{XN+4*i}:{XN+4*i+3}], v5 offset:{64*i}")
    e(f"""v_lshlrev_b32 v6, 13, v14
v_lshl_add_u32 v6, v10, 5, v6
v_mov_b32 v7, s68
s_mul_i32 s60, s12, {3*65536}
s_lshr_b32 s61, s4, 1
s_lshl_b32 s61, s61, 12
s_add_u32 s60, s60, s61
s_and_b32 s61, s4, 1
s_lshl_b32 s61, s61, 7
s_add_u32 s60, s60, s61
s_lshl_b32 s61, s11, 8
s_add_u32 s60, s60, s61
s_add_u32 s60, s60, {DPART}
s_waitcnt lgkmcnt(0)""")
    for i in range(9):
        for sub in range(3):
            kk = 9 * sub + i
            A = AC + 4 * sub
            e(f"v_mfma_f32_16x16x32_bf16 v[{A}:{A+3}], v[{WF+4*kk}:{WF+4*kk+3}], v[{XN+4*i}:{XN+4*i+3}], {'0' if i == 0 else f'v[{A}:{A+3}]'}")
    for r in range(12):
        e(f"v_and_or_b32 v{G+2*r}, v{AC+r}, v7, s15\nv_lshl_or_b32 v{G+2*r+1}, v{AC+r}, 16, s15")
    e("s_mov_b32 exec_lo, 0x00ff00ff\ns_mov_b32 exec_hi, 0x00ff00ff")
    for sub in range(3 if "D" not in abl else 0):
        e(f"buffer_store_dwordx4 v[{G+8*sub}:{G+8*sub+3}], v6, s[56:59], s60 offen sc1")
        e(f"buffer_store_dwordx4 v[{G+8*sub+4}:{G+8*sub+7}], v6, s[56:59], s60 offen offset:16 sc1")
        if sub < 2:
            e("s_add_u32 s60, s60, 65536")
    e("s_mov_b64 exec, -1")
    stamp(6)
    e("s_branch L_fin")

    def gather_reduce(base, sleep):
        if base == PART:
            poll("\n".join(f"buffer_load_dwordx2 v[{16+2*i}:{17+2*i}], v7, s[56:59], s74 offen offset:{512*i} sc1" for i in range(4)), list(range(16, 24)), 24, sleep)
        else:
            e(f"s_lshl_b32 s60, s74, 12\ns_add_u32 s60, s60, {DPART}\ns_lshl_b32 s74, s74, 11\ns_add_u32 s74, s74, {PART}")
            poll("\n".join(f"buffer_load_dwordx4 v[{28+4*i}:{31+4*i}], v2, s[56:59], s60 offen offset:{1024*i} sc1" for i in range(4)), None, None, sleep, cmp=tagcmp(list(range(28, 44)), 24))
            for i in range(8):
                e(f"v_perm_b32 v{16+i}, v{28+2*i}, v{29+2*i}, s71")
        e("""v_pk_add_f32 v[16:17], v[16:17], v[18:19]
v_pk_add_f32 v[20:21], v[20:21], v[22:23]
v_pk_add_f32 v[16:17], v[16:17], v[20:21]
v_permlane32_swap_b32 v16, v17
v_add_f32 v16, v16, v17
v_mov_b32 v17, v16
v_permlane16_swap_b32 v16, v17
v_add_f32 v16, v16, v17""")
        rnd(16, 16)

    e(f"""L_aO:
v_mul_u32_u24 v6, {OSL}, v11
v_lshl_add_u32 v5, v10, 4, v6
s_mul_i32 s63, s8, {16*OSL}
s_add_u32 s63, s63, {OBUF}
s_lshl_b32 s61, s4, 7
s_add_u32 s62, s63, s61
s_lshr_b32 s61, s4, 1
s_lshl_b32 s61, s61, 2
s_add_u32 s63, s63, s61
s_lshl_b32 s61, s4, 11
s_add_u32 s61, s61, {RED2}
v_add_u32 v3, s61, v2
s_sub_u32 s64, s4, 1
s_lshl_b32 s61, s64, 10
s_add_u32 s61, s61, {RED2}
v_add_u32 v4, s61, v2
v_lshrrev_b32 v8, 3, v11
v_lshl_add_u32 v8, v14, 1, v8
v_lshlrev_b32 v8, 11, v8
v_lshl_add_u32 v15, v10, 4, v8
s_lshl_b32 s65, s9, 15
s_lshl_b32 s61, s8, 7
s_add_u32 s65, s65, s61
s_lshl_b32 s61, s64, 6
s_add_u32 s65, s65, s61
s_add_u32 s65, s65, {PART}
v_lshlrev_b32 v7, 3, v0
s_lshr_b32 s75, s8, 1
s_mul_i32 s75, s75, 1152
s_lshl_b32 s61, s9, 7
s_add_u32 s75, s75, s61
s_and_b32 s61, s8, 1
s_lshl_b32 s61, s61, 6
s_add_u32 s75, s75, s61
v_lshrrev_b32 v9, 5, v0
v_lshlrev_b32 v9, 1, v9
v_lshl_add_u32 v13, v11, 2, v9""")
    srd(48, 34, 9216)
    e("s_cmp_lg_u32 s4, 0\ns_cbranch_scc1 L_o1\nbuffer_load_ushort v50, v13, s[40:43], s75 offen")
    gather_reduce(DPART, 16)
    e("v_mov_b32 v51, v16\nv_lshlrev_b32 v50, 16, v50")
    stamp(4)
    e("L_o1:\ns_barrier")
    stamp(5)
    poll("""buffer_load_dwordx4 v[28:31], v5, s[56:59], s62 offen sc1
buffer_load_dwordx4 v[32:35], v5, s[56:59], s62 offen offset:64 sc1
buffer_load_dword v36, v6, s[56:59], s63 offen offset:512 sc1""", list(range(28, 37)), 37, psleep)
    stamp(6)
    for kk in range(2):
        for Tt in range(4):
            A = AC + 4 * Tt
            R = OF + 8 * Tt + 4 * kk
            e(f"v_mfma_f32_16x16x32_bf16 v[{A}:{A+3}], v[{R}:{R+3}], v[{28+4*kk}:{31+4*kk}], {'0' if kk == 0 else f'v[{A}:{A+3}]'}")
        if kk == 0:
            e("v_sub_f32_dpp v37, v36, v36 row_ror:8 row_mask:0xf bank_mask:0xf\nv_exp_f32 v37, v37")
    e("v_add_f32 v37, 1.0, v37\nv_rcp_f32 v37, v37")
    for r in range(16):
        e(f"v_mul_f32 v{AC+r}, v{AC+r}, v37")
    for tt in range(2):
        for r in range(4):
            e(f"v_add_f32_dpp v{40+4*tt+r}, v{AC+4*tt+r}, v{AC+4*tt+r} row_ror:8 row_mask:0xf bank_mask:0x3")
            e(f"v_add_f32_dpp v{40+4*tt+r}, v{AC+8+4*tt+r}, v{AC+8+4*tt+r} row_ror:8 row_mask:0xf bank_mask:0xc")
        e(f"ds_write_b128 v3, v[{40+4*tt}:{43+4*tt}] offset:{1024*tt}")
    e("s_waitcnt lgkmcnt(0)\ns_barrier\ns_cmp_eq_u32 s4, 0\ns_cbranch_scc1 L_o2\ns_cmp_eq_u32 s4, 3\ns_cbranch_scc1 L_fin")
    for w in range(4):
        e(f"ds_read_b128 v[{16+4*w}:{19+4*w}], v4 offset:{2048*w}")
    e("""s_waitcnt lgkmcnt(2)
v_pk_add_f32 v[16:17], v[16:17], v[20:21]
v_pk_add_f32 v[18:19], v[18:19], v[22:23]
s_waitcnt lgkmcnt(0)
v_pk_add_f32 v[24:25], v[24:25], v[28:29]
v_pk_add_f32 v[26:27], v[26:27], v[30:31]
v_pk_add_f32 v[16:17], v[16:17], v[24:25]
v_pk_add_f32 v[18:19], v[18:19], v[26:27]""")
    for r in range(4):
        e(f"v_min_u32 v{16+r}, -2, v{16+r}")
    e("buffer_store_dwordx4 v[16:19], v15, s[56:59], s65 offen sc1")
    stamp(7)
    e("s_branch L_fin\nL_o2:")
    gather_reduce(PART, psleep)
    e("v_add_f32 v16, v16, v50")
    rnd(16, 16)
    e("""v_add_f32 v16, v16, v51
v_cvt_pk_bf16_f32 v16, v16, v16
s_mov_b32 exec_lo, 0xffff
s_mov_b32 exec_hi, 0xffff
buffer_store_short v16, v13, s[48:51], s75 offen
s_mov_b64 exec, 1
s_cmp_lg_u32 s2, 0
s_cbranch_scc1 L_o3
v_mov_b32 v17, s14
buffer_store_dword v17, v7, s[56:59], 0 offen
L_o3:
s_mov_b64 exec, -1""")
    stamp(7)
    if probe:
        if probe[1] is not None:
            e(f"s_and_b32 s60, s2, {probe[1]}\ns_cmp_lg_u32 s60, {probe[2]}\ns_cbranch_scc1 L_fin")
        e(f"L_probe:\ns_memrealtime s[76:77]\ns_waitcnt lgkmcnt(0)\ns_sub_u32 s60, s76, s{80 + 2 * probe[0]}\ns_cmp_lt_u32 s60, 5000\ns_cbranch_scc1 L_probe")
    e("L_fin:")
    if diag:
        e("s_waitcnt vmcnt(0)\ns_memrealtime s[76:77]\ns_waitcnt lgkmcnt(0)\ns_getreg_b32 s77, hwreg(HW_REG_XCC_ID)")
        for i in range(8):
            e(f"v_mov_b32 v{16+i}, s{80+2*i}")
        e(f"v_mov_b32 v24, s76\nv_mov_b32 v25, s77\nv_mov_b32 v1, 0\ns_lshl_b32 s60, s2, 3\ns_add_u32 s60, s60, s3\ns_lshl_b32 s60, s60, 6\ns_add_u32 s60, s60, {STAMP}")
        e("s_mov_b64 exec, 1\nbuffer_store_dwordx4 v[16:19], v1, s[56:59], s60 offen\nbuffer_store_dwordx4 v[20:23], v1, s[56:59], s60 offen offset:16\nbuffer_store_dwordx2 v[24:25], v1, s[56:59], s60 offen offset:32")
    e("L_end:\ns_endpgm")
    e(f""".section .rodata,"a"
.p2align 6
.amdhsa_kernel {KN}
.amdhsa_next_free_vgpr 256
.amdhsa_next_free_sgpr 102
.amdhsa_accum_offset 256
.amdhsa_group_segment_fixed_size 0
.amdhsa_kernarg_size 96
.amdhsa_user_sgpr_count 2
.amdhsa_user_sgpr_kernarg_segment_ptr 1
.amdhsa_system_sgpr_workgroup_id_x 1
.amdhsa_float_denorm_mode_32 3
.end_amdhsa_kernel""")
    return top + e.text()


if __name__ == "__main__":
    kw = eval("dict(" + (sys.argv[2] if len(sys.argv) > 2 else "") + ")")
    open(sys.argv[1], "w").write(gen(**kw))


def report(T, pc):
    S = T[:, :4]; A = T[:, 4:]
    print("  start", pc(T[:, :, 0]), "| stream: B1", pc(S[:, :, 1]), "preB2", pc(S[:, :, 2]), "B2wait", pc(S[:, :, 3] - S[:, :, 2]), "preB3", pc(S[:, :, 6]), "B3wait", pc(S[:, :, 7] - S[:, :, 6]), "done", pc(S[:, :, 4]), "wgdone", pc(S[:, :, 4].max(1)), "opub", pc(S[:, 0, 5]))
    print("  aux: LN", pc(A[:, :, 1]), "B1", pc(A[:, :, 2]), "Qpub", pc(A[144:208, :, 3]), "Gpub", pc(A[:144, :, 3]), "B2", pc(A[:, 3, 4]), "q(nonO)", pc(A[144:, 3, 5]), "Dpub", pc(A[208:, :, 6]), "dgath", pc(A[:144, 0, 4]))
    print("  tail: B4", pc(A[:144, :, 5]), "ogath", pc(A[:144, :, 6]), "ppub", pc(A[:144, 1:3, 7]), "out", pc(A[:144, 0, 7]), "end", pc(T[:, :, 8]))
    wd = S[:, :, 4].max(1)
    print("  wgdone by role GO/Q/D", wd[:144].mean().round(2), wd[144:208].mean().round(2), wd[208:].mean().round(2), "by w%8", [float(wd[i::8].mean().round(1)) for i in range(8)], flush=True)
```

```python
import sys, struct
sys.path.insert(0, "dev")
from asmlib import Asm

KN = "parallel_sum__sliding_block_cached__geglu_ffn__decode_kernel"
REF = "parallel_sum__sliding_block_cached__geglu_ffn__decode.s.ref"

XS, QS, HS, ML, CNT, RED, RED2, LDS_SZ = 110592, 119808, 120320, 124928, 124992, 125056, 129152, 137344
PBUF, OBUF, PART, DPART = 0x1000, 0x70000, 0xA0000, 0xF0000
OSL = 640
WS_SZ = 0x140000
QF = CNT + 4
STAMP = 0x200000
LIMIT = 400000


def f32(x):
    return "0x%08x" % struct.unpack("<I", struct.pack("<f", x))[0]


LOG2E = 1.4426950408889634


def gen(d=6, d2=6, dq=6, dsleep=40, diag=0, xpol="", pref=0, psleep=1, touch=0, R=6, probe=None, abl="", kvpol="nt", wpol="nt", dummy=0, dpol="sc1"):
    e = Asm()
    uid = [0]

    def stamp(i):
        if diag or (probe and probe[0] == i):
            e(f"s_memrealtime s[{80 + 2 * i}:{81 + 2 * i}]")

    def srd(b, lo, size):
        e(f"s_mov_b32 s{b}, s{lo}\ns_mov_b32 s{b+1}, s{lo+1}\ns_mov_b32 s{b+2}, {size}\ns_mov_b32 s{b+3}, 0x20000")

    def rnd(dst, src):
        e(f"v_cvt_pk_bf16_f32 v{dst}, v{src}, v{src}\nv_lshlrev_b32 v{dst}, 16, v{dst}")

    def poll(loads, regs, tmp, sleep, restore="-1", cmp=None, masked=True):
        uid[0] += 1
        L = f"L_poll{uid[0]}"
        e(f"s_mov_b32 s70, {0 if 'p' in abl else LIMIT}\n{L}:")
        if not ("g" in abl and cmp):
            e(loads)
        e("s_waitcnt vmcnt(0)")
        if cmp:
            e(cmp)
        else:
            r = list(regs)
            cur = r.pop(0)
            while r:
                if len(r) >= 2:
                    e(f"v_max3_u32 v{tmp}, v{cur}, v{r[0]}, v{r[1]}")
                    r = r[2:]
                else:
                    e(f"v_max_u32 v{tmp}, v{cur}, v{r[0]}")
                    r = r[1:]
                cur = tmp
            e(f"v_cmp_eq_u32 vcc, -1, v{cur}")
        e(f"s_and_b64 exec, exec, vcc\ns_cbranch_scc0 {L}_d" if masked else f"s_cbranch_vccz {L}_d")
        e(f"s_sub_u32 s70, s70, 1\ns_cbranch_scc1 {L}_d")
        if sleep:
            e(f"s_sleep {sleep}")
        e(f"s_branch {L}\n{L}_d:")
        if masked:
            e(f"s_mov_b64 exec, {restore}")

    def tagcmp(regs, tmp):
        out = [f"v_xor_b32 v{tmp}, s15, v{regs[0]}"]
        for r in regs[1:]:
            out.append(f"v_bitop3_b32 v{tmp}, v{r}, v{tmp}, s15 bitop3:0xde")
        out.append(f"v_and_b32 v{tmp}, 0xffff, v{tmp}\nv_cmp_ne_u32 vcc, 0, v{tmp}")
        return "\n".join(out)

    def kvbase(sd, st):
        e(f"""s_lshr_b32 s{sd}, s9, 1
s_lshl_b32 s{sd}, s{sd}, 4
s_add_u32 s{sd}, s{sd}, s8
s_lshl_b32 s{sd}, s{sd}, 21
s_and_b32 s{st}, s9, 1
s_lshl_b32 s{st}, s{st}, 18
s_add_u32 s{sd}, s{sd}, s{st}
s_add_u32 s{sd}, s{sd}, {6144*256}""")

    def allred_g(v, t, op):
        e(f"v_mov_b32 v{t}, v{v}\nv_permlane16_swap_b32 v{v}, v{t}\n{op} v{v}, v{v}, v{t}")
        e(f"v_mov_b32 v{t}, v{v}\nv_permlane32_swap_b32 v{v}, v{t}\n{op} v{v}, v{v}, v{t}")

    hdr = [l.rstrip("\n") for l in open(REF) if l.startswith(";") and "@launch" not in l and "Override" not in l and "grid=ceil" not in l]
    top = "\n".join(hdr) + f"\n; @launch grid=(256,1,1) block=(512,1,1) lds={LDS_SZ}\n"
    e(f""".amdgcn_target "amdgcn-amd-amdhsa--gfx950"
.text
.globl {KN}
.p2align 8
.type {KN},@function
{KN}:""")
    e("s_cmp_ge_u32 s2, 256\ns_cbranch_scc1 L_end")
    e("s_load_dwordx16 s[16:31], s[0:1], 0\ns_load_dwordx8 s[32:39], s[0:1], 64")
    stamp(0)
    e("v_lshrrev_b32 v1, 6, v0\nv_and_b32 v0, 63, v0\nv_readfirstlane_b32 s3, v1")
    e("s_and_b32 s8, s2, 15\ns_lshr_b32 s9, s2, 4")
    e("s_mov_b32 s11, s8\ns_sub_u32 s12, s9, 13\ns_lshl_b32 s10, s8, 2\ns_add_u32 s10, s10, s9\ns_sub_u32 s10, s10, 9")
    e("s_cmp_ge_u32 s3, 4\ns_cbranch_scc1 " + ("L_aux" if "a" not in abl else "L_end"))

    VO, KD, KR, MK, VW1, VW2, Q, KF, AB, ACC, T, SP, MRUN, NEGM, LS, VV = 1, 2, 6, 10, 14, 15, 16, 32, 48, 64, 68, 84, 120, 121, 122, 128
    e("""v_lshrrev_b32 v1, 3, v0
v_and_b32 v2, 7, v0
v_and_b32 v3, 2, v1
s_and_b32 s5, s3, 1
s_lshl_b32 s5, s5, 2
v_or_b32 v3, s5, v3
""" + ("" if "w" in abl else "v_xor_b32 v2, v2, v3") + """
v_lshlrev_b32 v2, 4, v2
s_lshl_b32 m0, s3, 10
s_mov_b32 s43, 0x20000
""" + ("s_waitcnt lgkmcnt(0)\ns_branch L_sV" if "W" in abl else "") + """
s_cmp_ge_u32 s2, 208
s_cbranch_scc1 L_sD
s_cmp_ge_u32 s2, 144
s_cbranch_scc1 L_sQ
s_cmp_ge_u32 s2, 72
s_cselect_b32 s6, 72, 0
s_waitcnt lgkmcnt(0)
s_cselect_b32 s40, s30, s28
s_cselect_b32 s41, s31, s29
s_sub_u32 s6, s2, s6
s_movk_i32 s7, 9216""")
    e(f"s_mov_b32 s42, {576*9216}\ns_branch L_sP\nL_sQ:")
    e(f"""s_lshl_b32 s60, s10, 7
s_lshl_b32 s61, s3, 16
s_add_u32 s60, s60, s61
s_mov_b32 s42, {576*8192}
v_lshl_add_u32 v{VW1}, v1, 13, v2
s_mov_b32 s66, 18
s_waitcnt lgkmcnt(0)
s_mov_b32 s40, s22
s_mov_b32 s41, s23
L_wq:
s_waitcnt vmcnt({dq-1})
buffer_load_dwordx4 v{VW1}, s[40:43], s60 offen {wpol} lds
s_add_u32 s60, s60, {32*8192}
s_add_u32 m0, m0, 4096
s_sub_u32 s66, s66, 1
s_cmp_lg_u32 s66, 0
s_cbranch_scc1 L_wq
s_branch L_sV""")
    e("""L_sP:
s_lshl_b32 s60, s6, 7
s_mul_i32 s61, s3, s7
s_lshl_b32 s61, s61, 3
s_add_u32 s60, s60, s61
s_lshl_b32 s62, s7, 5
s_mov_b32 s63, s62
s_movk_i32 s64, 4096
s_movk_i32 s65, 4096
s_mov_b32 s66, 6
s_branch L_sW
L_sD:""")
    e(f"""s_mul_i32 s60, s11, {288*1152}
s_mul_i32 s61, s3, {8*1152}
s_add_u32 s60, s60, s61
s_mul_i32 s61, s12, 384
s_add_u32 s60, s60, s61
s_movk_i32 s62, 128
s_mov_b32 s63, {36864-256}
s_mov_b32 s64, 36864
s_mov_b32 s65, {4096-73728}
s_mov_b32 s66, 9
s_movk_i32 s7, 1152
s_mov_b32 s42, {4608*1152}
s_waitcnt lgkmcnt(0)
s_mov_b32 s40, s32
s_mov_b32 s41, s33
L_sW:
v_mad_u32_u24 v{VW1}, v1, s7, v2
L_w1:""")
    for k in range(3):
        e(f"s_waitcnt vmcnt({d-1})\nbuffer_load_dwordx4 v{VW1}, s[40:43], s60 offen {wpol} lds")
        e(f"s_add_u32 s60, s60, s{62 if k < 2 else 63}\ns_add_u32 m0, m0, s{64 if k < 2 else 65}")
    e("s_sub_u32 s66, s66, 1\ns_cmp_lg_u32 s66, 0\ns_cbranch_scc1 L_w1")
    e("s_cmp_ge_u32 s2, 144\ns_cbranch_scc1 L_sV")
    srd(44, 24, 4096 * 1152)
    e(f"""s_movk_i32 s7, 1152
v_mad_u32_u24 v{VW2}, v1, s7, v2
s_mul_i32 s60, s8, {256*1152}
s_mul_i32 s61, s3, {8*1152}
s_add_u32 s60, s60, s61
s_lshl_b32 s61, s9, 7
s_add_u32 s60, s60, s61
s_mov_b32 s62, {32*1152}
s_mov_b32 s66, 8
L_w2:
s_waitcnt vmcnt({d-1})
buffer_load_dwordx4 v{VW2}, s[44:47], s60 offen {wpol} lds
s_add_u32 s60, s60, s62
s_add_u32 m0, m0, s64
s_sub_u32 s66, s66, 1
s_cmp_lg_u32 s66, 0
s_cbranch_scc1 L_w2
L_sV:""")
    srd(48, 18, 0x10000000)
    srd(52, 20, 0x10000000)
    kvbase(60, 61)
    e(f"""s_lshl_b32 s61, s3, 12
s_add_u32 s60, s60, s61
s_mul_i32 s67, s3, {R*4096}
v_lshlrev_b32 v{VO}, 4, v0""")

    work = {}

    def at(slot, fn):
        work.setdefault(slot, []).append(fn)

    def setup():
        e(f"v_lshrrev_b32 v{T}, 4, v0\nv_and_b32 v{T+1}, 15, v0\nv_lshlrev_b32 v{T+2}, 2, v{T}\nv_xor_b32 v{T+2}, v{T+2}, v{T+1}")
        e(f"v_lshlrev_b32 v{T+2}, 4, v{T+2}\nv_lshl_add_u32 v{KD}, v{T}, 8, v{T+2}")
        for r in range(1, 4):
            e(f"v_xor_b32 v{KD+r}, {16*r}, v{KD}")
        e(f"v_and_b32 v{T+2}, 3, v0\nv_lshlrev_b32 v{T+2}, 2, v{T+2}\nv_lshrrev_b32 v{T+3}, 2, v{T+1}\nv_or_b32 v{T+2}, v{T+2}, v{T+3}")
        e(f"v_lshl_add_u32 v{T+2}, v{T+2}, 8, s67\nv_xor_b32 v{T+3}, v{T}, v{T+1}\nv_lshl_add_u32 v{KR}, v{T+3}, 4, v{T+2}")
        for t in range(1, 4):
            e(f"v_xor_b32 v{KR+t}, {64*t}, v{KR}")
        e(f"v_and_b32 v{T+2}, 1, v0\nv_lshlrev_b32 v{T+2}, 4, v{T+2}\nv_mov_b32 v{T+3}, 0xffff\nv_lshlrev_b32 v{T+3}, v{T+2}, v{T+3}\nv_bfe_u32 v{T+2}, v0, 1, 2")
        for r in range(4):
            e(f"v_cmp_eq_u32 vcc, {r}, v{T+2}\nv_cndmask_b32 v{MK+r}, 0, v{T+3}, vcc")
        e(f"v_lshrrev_b32 v{T+2}, 3, v{T+1}\nv_lshlrev_b32 v{T+2}, 8, v{T+2}\nv_lshl_add_u32 v{T+2}, v{T}, 4, v{T+2}\nv_add_u32 v{VW1}, {QS}, v{T+2}")
        e(f"s_mov_b32 s68, 0xffff0000\ns_mov_b32 s69, {f32(128 ** -0.5)}\ns_mov_b32 s71, {f32(LOG2E)}")
        e(f"v_mov_b32 v{LS}, 0\nv_mov_b32 v{MRUN}, 0xff800000")
        for r in range(4):
            e(f"v_mov_b32 v{ACC+r}, 0")
        srd(56, 38, WS_SZ if not (diag or dummy) else 0x800000)

    at(d, setup)

    def sreg(c):
        return SP + 4 * (c if c < 8 else (8 if c == 8 else c - 9))

    def kread(c):
        def f():
            for t in range(4):
                e(f"ds_read_b128 v[{KF+4*t}:{KF+4*t+3}], v{KR+t} offset:{(c % R) * 4096}")
        return f

    def kmma(c):
        def f():
            S = sreg(c)
            e("s_waitcnt lgkmcnt(0)")
            for t in range(4):
                e(f"v_mfma_f32_16x16x32_bf16 v[{S}:{S+3}], v[{KF+4*t}:{KF+4*t+3}], v[{Q+4*t}:{Q+4*t+3}], {'0' if t == 0 else f'v[{S}:{S+3}]'}")
        return f

    def kround(c):
        def f():
            S = sreg(c)
            for _ in range(2):
                e(f"v_cvt_pk_bf16_f32 v{T}, v{S}, v{S+1}\nv_cvt_pk_bf16_f32 v{T+1}, v{S+2}, v{S+3}")
                e(f"v_lshlrev_b32 v{S}, 16, v{T}\nv_and_b32 v{S+1}, s68, v{T}\nv_lshlrev_b32 v{S+2}, 16, v{T+1}\nv_and_b32 v{S+3}, s68, v{T+1}")
                if _ == 0:
                    for r in range(4):
                        e(f"v_mul_f32 v{S+r}, s69, v{S+r}")
            e(f"v_max3_f32 v{MRUN}, v{MRUN}, v{S}, v{S+1}\nv_max3_f32 v{MRUN}, v{MRUN}, v{S+2}, v{S+3}")
        return f

    def maxA():
        allred_g(MRUN, T, "v_max_f32")
        e(f"v_mul_f32 v{NEGM}, s71, v{MRUN}\nv_sub_f32 v{NEGM}, 0, v{NEGM}")

    def maxB():
        allred_g(MRUN, T, "v_max_f32")
        e(f"v_mul_f32 v{T+1}, s71, v{MRUN}\nv_add_f32 v{T+2}, v{NEGM}, v{T+1}\nv_sub_f32 v{NEGM}, 0, v{T+1}\nv_exp_f32 v{T+2}, -v{T+2}")
        e(f"v_mul_f32 v{LS}, v{LS}, v{T+2}\nv_mov_b32 v{T+3}, v{T+2}")
        e(f"v_mov_b32_dpp v{T+3}, v{T+2} row_ror:8 row_mask:0x3 bank_mask:0xc\nv_mov_b32_dpp v{T+3}, v{T+2} row_ror:8 row_mask:0xc bank_mask:0x3")
        for r in range(4):
            e(f"v_mul_f32 v{ACC+r}, v{ACC+r}, v{T+3}")

    def pexp(c):
        def f():
            S = sreg(c)
            for r in range(4):
                e(f"v_fma_f32 v{S+r}, v{S+r}, s71, v{NEGM}")
            for r in range(4):
                e(f"v_exp_f32 v{S+r}, v{S+r}")
            e(f"v_add_f32 v{T}, v{S}, v{S+1}\nv_add_f32 v{T+1}, v{S+2}, v{S+3}\nv_add_f32 v{LS}, v{LS}, v{T}\nv_add_f32 v{LS}, v{LS}, v{T+1}")
            for r in range(4):
                e(f"v_cvt_pk_bf16_f32 v{S+r}, v{S+r}, v{S+r}")
        return f

    def aprep(c, r):
        def f():
            for k in range(4):
                e(f"v_and_b32 v{AB+4*r+k}, v{sreg(c)+r}, v{MK+k}")
        return f

    def pv(c, r):
        def f():
            V = VV + 16 * (c % 8) + 4 * r
            e(f"v_mfma_f32_16x16x32_bf16 v[{ACC}:{ACC+3}], v[{AB+4*r}:{AB+4*r+3}], v[{V}:{V+3}], v[{ACC}:{ACC+3}]")
        return f

    def mlwrite():
        allred_g(LS, T, "v_add_f32")
        e(f"v_sub_f32 v{T+2}, 0, v{NEGM}\nv_mov_b32 v{T+3}, v{LS}")
        e(f"v_bfe_u32 v{T}, v0, 3, 1\nv_lshlrev_b32 v{T}, 5, v{T}\ns_lshl_b32 s63, s3, 3\ns_add_u32 s63, s63, {ML}\nv_add_u32 v{T}, s63, v{T}")
        e(f"ds_write_b64 v{T}, v[{T+2}:{T+3}]")
        e(f"s_lshl_b32 s63, s3, 10\ns_add_u32 s63, s63, {RED}\nv_add_u32 v{VW2}, s63, v{VO}")
        e(f"""v_lshrrev_b32 v2, 5, v0
v_lshlrev_b32 v3, 5, v2
v_add_u32 v3, {ML}, v3
v_lshlrev_b32 v4, 3, v0
v_lshlrev_b32 v5, 2, v2
v_and_b32 v6, 1, v0
v_lshl_add_u32 v6, v2, 1, v6
v_bfe_u32 v7, v0, 1, 4
v_lshl_add_u32 v6, v6, 4, v7
v_lshlrev_b32 v6, 4, v6
v_add_u32 v6, {RED}, v6
s_lshr_b32 s62, s9, 1
s_and_b32 s63, s9, 1
s_lshl_b32 s63, s63, 3
s_add_u32 s62, s62, s63
s_lshl_b32 s63, s8, 4
s_add_u32 s63, s63, s62
s_mul_i32 s63, s63, {OSL}
s_add_u32 s63, s63, {OBUF}""")

    def dep(n):
        return d if n < 96 else d2

    landed = {}
    for n in range(128 + 64):
        top_done = (n - dep(n)) if n < 128 else min(127, n - d2)
        for m in range(top_done + 1):
            landed.setdefault(m, n)
    qslot = 32 + 4 * R - 3

    def qread():
        stamp(6)
        e(f"v_mov_b32 v{T}, {QF}\ns_mov_b32 s70, {0 if 'a' in abl else LIMIT*8}\nL_qw:\nds_read_b32 v{T+1}, v{T}")
        for t in range(4):
            e(f"ds_read_b128 v[{Q+4*t}:{Q+4*t+3}], v{VW1} offset:{64*t}")
        e(f"""s_waitcnt lgkmcnt(0)
v_readfirstlane_b32 s63, v{T+1}
s_cmp_lg_u32 s63, 0
s_cbranch_scc1 L_qd
s_sub_u32 s70, s70, 1
s_cbranch_scc1 L_qd
s_sleep 2
s_branch L_qw
L_qd:""")
        stamp(7)

    at(qslot, qread)
    kslot = {}
    for c in range(16):
        n0 = kslot[c] = max(landed[35 + 4 * c], qslot + 2 * c)
        assert c + R >= 16 or n0 + 1 < 32 + 4 * (c + R)
        at(n0, kread(c))
        at(n0 + 1, kmma(c))
        at(n0 + 2, kround(c))
    sA = kslot[7] + 3
    at(sA, maxA)
    for j in range(8):
        s0 = sA + 1 + 3 * j
        at(s0, pexp(j))
        at(s0 + 1, aprep(j, 0)); at(s0 + 1, aprep(j, 1)); at(s0 + 1, pv(j, 0)); at(s0 + 1, pv(j, 1))
        at(s0 + 2, aprep(j, 2)); at(s0 + 2, aprep(j, 3)); at(s0 + 2, pv(j, 2)); at(s0 + 2, pv(j, 3))
        assert s0 + 2 < 96 + 4 * j
        if j < 7:
            assert s0 + 2 < kslot[9 + j] + 1
    sB = kslot[15] + 3
    at(sB, maxB)
    pre = {}
    for j in range(8):
        at(sB + 1 + j, pexp(8 + j))
    at(sB + 9, mlwrite)
    last = 0
    for n in range(96, 128):
        j, r = (n - 96) // 4, n % 4
        s = max(landed[n], sB + 2 + j, last)
        last = s
        pre.setdefault(s, []).append((8 + j, r))
    nslots = max(max(work), last) + 1
    for n in range(nslots):
        todo = pre.get(n, [])
        assert len(todo) <= 4
        if "c" in abl:
            todo = []
            work[n] = [f for f in work.get(n, []) if f in (setup, qread, mlwrite)]
        for (c, r) in todo:
            aprep(c, r)()
        if n < 128:
            if n < 32 or n >= 96:
                i = n if n < 32 else n - 64
                if i % 4 == 0:
                    e(f"s_add_u32 s61, s60, {(i // 4) * 16384}")
                e(f"s_waitcnt vmcnt({dep(n)-1})")
                if n == d - 1:
                    stamp(1)
                    e("s_barrier")
                V = VV + 4 * (i % 32)
                e(f"buffer_load_dwordx4 v[{V}:{V+3}], v{VO}, s[52:55], s61 offen offset:{(i % 4) * 1024} {kvpol}")
            else:
                i = n - 32
                if i % 4 == 0:
                    e(f"s_add_u32 s62, s60, {(i // 4) * 16384}\ns_add_u32 m0, s67, {((i // 4) % R) * 4096}")
                e(f"s_waitcnt vmcnt({dep(n)-1})")
                e(f"buffer_load_dwordx4 v{VO if 'k' in abl else KD + i % 4}, s[48:51], s62 offen offset:{(i % 4) * 1024} {kvpol} lds")
            if n == 31:
                stamp(2)
                e("s_barrier")
                stamp(3)
        elif n - d2 <= 127:
            e(f"s_waitcnt vmcnt({127 - (n - d2)})")
        for (c, r) in todo:
            pv(c, r)()
        for fn in work.get(n, []):
            fn()
    e(f"ds_write_b128 v{VW2}, v[{ACC}:{ACC+3}]")
    stamp(4)
    e("s_waitcnt lgkmcnt(0)\ns_barrier\ns_cmp_lg_u32 s3, 0\ns_cbranch_scc1 L_fin")
    e(f"ds_read_b128 v[16:19], v3\nds_read_b128 v[20:23], v3 offset:16")
    for w in range(4):
        e(f"ds_read_b128 v[{28+4*w}:{31+4*w}], v6 offset:{1024*w}")
    e(f"""s_waitcnt lgkmcnt(4)
v_max3_f32 v24, v16, v18, v20
v_max_f32 v24, v24, v22
v_sub_f32 v16, v16, v24
v_sub_f32 v18, v18, v24
v_sub_f32 v20, v20, v24
v_sub_f32 v22, v22, v24
v_exp_f32 v16, v16
v_exp_f32 v18, v18
v_exp_f32 v20, v20
v_exp_f32 v22, v22
v_mul_f32 v25, v16, v17
v_fmac_f32 v25, v18, v19
v_fmac_f32 v25, v20, v21
v_fmac_f32 v25, v22, v23
v_rcp_f32 v26, v25
v_log_f32 v27, v25""")
    e("s_waitcnt lgkmcnt(0)")
    for r in range(4):
        e(f"v_mul_f32 v{ACC+r}, v{28+r}, v16")
    for w in range(1, 4):
        for r in range(4):
            e(f"v_fmac_f32 v{ACC+r}, v{28+4*w+r}, v{16+2*w}")
    for r in range(4):
        e(f"v_mul_f32 v{ACC+r}, v{ACC+r}, v26")
    e(f"""v_cvt_pk_bf16_f32 v28, v{ACC}, v{ACC+1}
v_cvt_pk_bf16_f32 v29, v{ACC+2}, v{ACC+3}
v_add_f32 v27, v27, v24
v_min_u32 v28, -2, v28
v_min_u32 v29, -2, v29
v_min_u32 v27, -2, v27
buffer_store_dwordx2 v[28:29], v4, s[56:59], s63 offen sc1
s_mov_b32 exec_lo, 1
s_mov_b32 exec_hi, 1
buffer_store_dword v27, v5, s[56:59], s63 offen offset:512 sc1
s_mov_b64 exec, -1""")
    stamp(5)
    e("s_branch L_fin")

    XN, WF, OF, AC = 16, 52, 160, 192
    e("L_aux:\ns_sub_u32 s4, s3, 4\nv_mul_u32_u24 v1, 36, v0\ns_mul_i32 s5, s4, 2304\nv_lshlrev_b32 v2, 4, v0")
    e(f"s_add_u32 s13, s2, 64\ns_cmp_ge_u32 s2, 144\ns_cselect_b32 s13, s10, s13\ns_lshl_b32 s13, s13, 11\ns_add_u32 s13, s13, {PBUF}")
    e("s_waitcnt lgkmcnt(0)")
    e("s_load_dword s14, s[38:39], 0" if "e" not in abl else "s_mov_b32 s14, 5")
    srd(40, 16, 9216)
    srd(56, 38, WS_SZ if not (diag or dummy) else 0x800000)
    if touch:
        e("s_cmp_lg_u32 s4, 1\ns_cbranch_scc1 L_at")
        srd(48, 18, 0x10000000)
        srd(52, 20, 0x10000000)
        kvbase(60, 61)
        e(f"""v_mul_u32_u24 v3, {262144 // touch}, v0
s_mov_b64 exec, {hex((1 << touch) - 1) if touch < 64 else -1}
buffer_load_dword v60, v3, s[52:55], s60 offen nt
buffer_load_dword v61, v3, s[48:51], s60 offen nt
s_mov_b64 exec, 1""")
        srd(48, 24, 4096 * 1152)
        srd(52, 34, 9216)
        e(f"""s_mul_i32 s60, s8, {256*1152}
buffer_load_dword v62, v3, s[48:51], s60 offen nt
buffer_load_dword v63, v3, s[52:55], 0 offen
s_mov_b64 exec, -1
L_at:""")
    if pref:
        e(f"""s_cmp_lg_u32 s4, 2
s_cbranch_scc1 L_a0
s_getpc_b64 s[60:61]
L_pc:
s_sub_u32 s60, s60, L_pc-{KN}
s_subb_u32 s61, s61, 0
s_lshr_b32 s62, s2, 3
s_lshl_b32 s62, s62, 10
v_add_u32 v3, s62, v2
v_min_u32 v3, L_end-{KN}-12, v3
v_mov_b32 v5, s61
v_add_co_u32 v4, vcc, s60, v3
v_addc_co_u32 v5, vcc, 0, v5, vcc
global_load_dwordx4 v[28:31], v[4:5], off
L_a0:""")
    for k in range(3 if "x" not in abl else 0):
        e(f"buffer_load_dwordx3 v[{16+4*k}:{18+4*k}], v1, s[40:43], s5 offen offset:{12*k} {xpol}")
    e(f"""s_sub_u32 s60, s2, 144
s_cmp_ge_u32 s60, 64
s_cbranch_scc1 L_a1
v_mov_b32 v4, -1
v_mov_b32 v5, -1
v_mov_b32 v6, -1
v_mov_b32 v7, -1
s_lshl_b32 s60, s10, 2
s_add_u32 s60, s60, s4
s_mul_i32 s60, s60, {OSL}
s_add_u32 s60, s60, {OBUF}
s_mov_b32 exec_hi, 0xff
""" + ("" if "r" in abl else "buffer_store_dwordx4 v[4:7], v2, s[56:59], s60 offen sc1") + """
s_mov_b32 exec_hi, -1
L_a1:""")
    e(f"v_mov_b32 v8, {CNT}\nv_mov_b32 v10, 0\nv_mov_b32 v11, 0\nds_write_b64 v8, v[10:11]")
    e(f"s_mov_b32 s68, 0xffff0000\ns_mov_b32 s69, {f32(1/576)}\ns_add_u32 s5, s5, {XS}\nv_add_u32 v1, s5, v1\ns_waitcnt vmcnt(0)")
    raw = [16, 17, 18, 20, 21, 22, 24, 25, 26]

    def red32(v, t):
        for s in (8, 4, 2, 1):
            e(f"v_add_f32_dpp v{v}, v{v}, v{v} row_ror:{s} row_mask:0xf bank_mask:0xf")
        e(f"v_mov_b32 v{t}, v{v}\nv_permlane16_swap_b32 v{v}, v{t}\nv_add_f32 v{v}, v{v}, v{t}")

    for k in range(9):
        e(f"v_lshlrev_b32 v{28+2*k}, 16, v{raw[k]}\nv_and_b32 v{29+2*k}, s68, v{raw[k]}")
    e("v_pk_add_f32 v[46:47], v[28:29], v[30:31]")
    for k in range(2, 9):
        e(f"v_pk_add_f32 v[46:47], v[46:47], v[{28+2*k}:{29+2*k}]")
    e("v_add_f32 v46, v46, v47")
    red32(46, 47)
    e("v_mul_f32 v48, s69, v46\nv_sub_f32 v50, 0, v48\nv_sub_f32 v51, 0, v48")
    for k in range(9):
        e(f"v_pk_add_f32 v[8:9], v[{28+2*k}:{29+2*k}], v[50:51]")
        e("v_pk_mul_f32 v[46:47], v[8:9], v[8:9]" if k == 0 else "v_pk_fma_f32 v[46:47], v[8:9], v[8:9], v[46:47]")
    e("v_add_f32 v46, v46, v47")
    red32(46, 47)
    e("v_mul_f32 v46, s69, v46")
    rnd(46, 46)
    e(f"v_add_f32 v46, {f32(1e-5)}, v46")
    rnd(46, 46)
    e("v_sqrt_f32 v46, v46")
    rnd(46, 46)
    e("v_rcp_f32 v46, v46")
    rnd(50, 50)
    e("v_mov_b32 v51, v50\nv_mov_b32 v47, v46")
    for k in range(9):
        e(f"v_pk_add_f32 v[8:9], v[{28+2*k}:{29+2*k}], v[50:51]\nv_cvt_pk_bf16_f32 v9, v8, v9\nv_lshlrev_b32 v8, 16, v9\nv_and_b32 v9, s68, v9")
        e(f"v_pk_mul_f32 v[8:9], v[8:9], v[46:47]\nv_cvt_pk_bf16_f32 v{raw[k]}, v8, v9")
    for k in range(0, 8, 2):
        e(f"ds_write2_b32 v1, v{raw[k]}, v{raw[k+1]} offset0:{k} offset1:{k+1}")
    e(f"ds_write_b32 v1, v{raw[8]} offset:32")
    e("""v_lshrrev_b32 v10, 4, v0
v_and_b32 v11, 15, v0
v_bfe_u32 v8, v0, 2, 2
v_lshl_add_u32 v12, v10, 3, v8
v_lshlrev_b32 v12, 7, v12
v_and_b32 v9, 3, v0
v_lshl_add_u32 v12, v9, 3, v12
v_lshrrev_b32 v13, 1, v8
v_and_b32 v9, 1, v10
v_lshl_or_b32 v13, v9, 1, v13
v_lshl_add_u32 v12, v13, 5, v12
s_lshl_b32 s60, s4, 5
v_xor_b32 v3, s60, v12
v_add_u32 v4, 0x10000, v3
v_and_b32 v14, 7, v0
v_and_b32 v8, 3, v0
v_bfe_u32 v15, v0, 2, 3
v_lshl_add_u32 v15, v8, 4, v15
v_lshlrev_b32 v15, 2, v15""")
    e(f"v_mul_u32_u24 v5, 1152, v14\nv_lshrrev_b32 v8, 3, v11\nv_mul_u32_u24 v8, 576, v8\nv_lshl_add_u32 v8, v10, 4, v8\nv_add3_u32 v5, v5, v8, 0\nv_add_u32 v5, {XS}, v5")
    stamp(1)
    e("s_waitcnt vmcnt(0) lgkmcnt(0)\ns_add_u32 s14, s14, 1\ns_and_b32 s15, s14, 0xffff\ns_and_b32 s6, s14, 0xff\ns_barrier")
    stamp(2)

    def trread(kk):
        for hf in range(2):
            off = kk * 4096 + hf * 512
            e(f"ds_read_b64_tr_b16 v[{WF+4*kk+2*hf}:{WF+4*kk+2*hf+1}], v{3 if off < 65536 else 4} offset:{off % 65536}")

    for i in range(9):
        e(f"ds_read_b128 v[{XN+4*i}:{XN+4*i+3}], v5 offset:{64*i}")
    for kk in range(18):
        trread(kk)
    e("s_cmp_ge_u32 s2, 208\ns_cbranch_scc1 L_aD")
    e("s_lshl_b32 s60, s4, 9\ns_add_u32 s60, s60, s13\nv_mov_b32 v7, s68")
    e("s_waitcnt lgkmcnt(0)")
    for i in range(9):
        for hf in range(2):
            kk = 9 * hf + i
            A = AC + 4 * hf
            e(f"v_mfma_f32_16x16x32_bf16 v[{A}:{A+3}], v[{WF+4*kk}:{WF+4*kk+3}], v[{XN+4*i}:{XN+4*i+3}], {'0' if i == 0 else f'v[{A}:{A+3}]'}")
    for r in range(4):
        e(f"v_add_f32_dpp v{AC+r}, v{AC+4+r}, v{AC+r} row_ror:8 row_mask:0xf bank_mask:0xf")
    e(f"""v_cvt_pk_bf16_f32 v8, v{AC}, v{AC+1}
v_cvt_pk_bf16_f32 v9, v{AC+2}, v{AC+3}
ds_bpermute_b32 v8, v15, v8
ds_bpermute_b32 v9, v15, v9
s_waitcnt lgkmcnt(0)
v_lshl_or_b32 v16, v8, 16, s15
v_and_or_b32 v17, v8, v7, s15
v_lshl_or_b32 v18, v9, 16, s15
v_and_or_b32 v19, v9, v7, s15
s_mov_b32 exec_hi, 0
""" + ("" if "P" in abl else "buffer_store_dwordx4 v[16:19], v2, s[56:59], s60 offen sc1") + """
s_mov_b32 exec_hi, -1""")
    stamp(3)
    e("s_cmp_ge_u32 s2, 144\ns_cbranch_scc1 L_aq")
    e(f"s_lshl_b32 s60, s4, 13\ns_add_u32 s60, s60, 73728\nv_add_u32 v3, s60, v12")
    for Tt in range(4):
        if Tt:
            e(f"v_xor_b32 v4, {32*Tt}, v3")
        for kk in range(2):
            for hf in range(2):
                R = OF + 8 * Tt + 4 * kk + 2 * hf
                e(f"ds_read_b64_tr_b16 v[{R}:{R+1}], v{4 if Tt else 3} offset:{kk*4096 + hf*512}")
    e("s_branch L_aq\nL_aD:")
    for kk in range(18, 27):
        trread(kk)
    e("L_aq:\ns_mov_b32 s71, 0x07060302\ns_waitcnt lgkmcnt(0)\ns_barrier\ns_cmp_lg_u32 s4, 3\ns_cbranch_scc1 L_a3")
    stamp(4)
    e(f"""s_lshr_b32 s60, s9, 1
s_lshl_b32 s60, s60, 6
s_lshl_b32 s61, s8, 13
s_add_u32 s60, s60, s61
s_add_u32 s60, s60, {PBUF}
v_lshrrev_b32 v6, 2, v0
v_lshlrev_b32 v6, 9, v6
v_and_b32 v7, 3, v0
v_lshl_add_u32 v6, v7, 4, v6""")
    poll("buffer_load_dwordx4 v[20:23], v6, s[56:59], s60 offen sc1", None, None, 4, cmp=tagcmp([20, 21, 22, 23], 7))
    e(f"""v_perm_b32 v8, v21, v20, s71
v_perm_b32 v9, v23, v22, s71
v_lshlrev_b32 v6, 3, v0
v_add_u32 v6, {QS}, v6
ds_write_b64 v6, v[8:9]
v_mov_b32 v6, {QF}
v_mov_b32 v7, 1
s_waitcnt lgkmcnt(0)
ds_write_b32 v6, v7""")
    stamp(5)
    e("L_a3:")
    if dummy:
        e("s_lshl_b32 s60, s2, 2\ns_add_u32 s60, s60, s4\ns_lshl_b32 s60, s60, 11\ns_add_u32 s60, s60, 0x400000\nv_lshlrev_b32 v6, 5, v0")
        if dummy == 1:
            e(f"buffer_store_dwordx4 v[16:19], v2, s[56:59], s60 offen {dpol}\nbuffer_store_dwordx4 v[16:19], v2, s[56:59], s60 offen offset:1024 {dpol}")
        elif dummy == 2:
            e(f"buffer_store_dwordx4 v[16:19], v6, s[56:59], s60 offen {dpol}\nbuffer_store_dwordx4 v[16:19], v6, s[56:59], s60 offen offset:16 {dpol}")
        else:
            e(f"buffer_load_dwordx4 v[240:243], v2, s[56:59], s60 offen {dpol}\nbuffer_load_dwordx4 v[244:247], v2, s[56:59], s60 offen offset:1024 {dpol}")
    e("s_cmp_lt_u32 s2, 144\ns_cbranch_scc1 L_aO\ns_cmp_lt_u32 s2, 208\ns_cbranch_scc1 L_fin")

    e(f"""s_mul_i32 s60, s11, 9216
s_mul_i32 s61, s4, 2304
s_add_u32 s60, s60, s61
s_add_u32 s60, s60, {PBUF + 131072}
s_add_u32 s61, s60, {288 * 512}
s_mov_b32 s72, -1
s_mov_b32 s73, 0xffff
s_mov_b64 exec, s[72:73]""")
    G, U = 208, 220
    poll("\n".join([f"buffer_load_dwordx4 v[{G+4*k}:{G+4*k+3}], v2, s[56:59], s60 offen offset:{768*k} sc1" for k in range(3)] +
                   [f"buffer_load_dwordx4 v[{U+4*k}:{U+4*k+3}], v2, s[56:59], s61 offen offset:{768*k} sc1" for k in range(3)]),
         None, None, 8, restore="s[72:73]", cmp=tagcmp(list(range(G, G + 24)), 8))
    c0 = -2 * LOG2E * 0.7978845608028654
    e(f"v_mov_b32 v32, {f32(c0)}\nv_mov_b32 v33, {f32(c0 * 0.044715)}\ns_mul_i32 s60, s4, 144")
    for k in range(6):
        e(f"""v_and_b32 v34, s68, v{G+2*k}
v_and_b32 v35, s68, v{G+2*k+1}
v_mul_f32 v36, v34, v34
v_mul_f32 v37, v35, v35
v_fma_f32 v36, v36, v33, v32
v_fma_f32 v37, v37, v33, v32
v_mul_f32 v36, v36, v34
v_mul_f32 v37, v37, v35
v_exp_f32 v36, v36
v_exp_f32 v37, v37
v_and_b32 v38, s68, v{U+2*k}
v_add_f32 v36, 1.0, v36
v_add_f32 v37, 1.0, v37
v_rcp_f32 v36, v36
v_rcp_f32 v37, v37
v_and_b32 v39, s68, v{U+2*k+1}
v_mul_f32 v34, v34, v36
v_mul_f32 v35, v35, v37
v_cvt_pk_bf16_f32 v35, v34, v35
v_lshlrev_b32 v34, 16, v35
v_and_b32 v35, s68, v35
v_mul_f32 v34, v34, v38
v_mul_f32 v35, v35, v39
v_cvt_pk_bf16_f32 v{40+k}, v34, v35""")
    for k in range(3):
        e(f"""v_add_u32 v34, s60, v0
v_bfe_u32 v35, v34, 2, 3
v_mul_u32_u24 v35, 576, v35
v_and_b32 v36, 3, v34
v_lshl_add_u32 v35, v36, 3, v35
v_and_b32 v34, 0xffe0, v34
v_add_u32 v35, v35, v34
v_add_u32 v35, {HS}, v35
ds_write_b64 v35, v[{40+2*k}:{41+2*k}]
s_add_u32 s60, s60, 48""")
    e(f"""s_mov_b64 exec, 1
v_mov_b32 v8, {CNT}
v_mov_b32 v9, 1
s_waitcnt lgkmcnt(0)
ds_add_u32 v8, v9
s_mov_b32 s70, {LIMIT*8}
L_spin:
ds_read_b32 v9, v8
s_waitcnt lgkmcnt(0)
v_readfirstlane_b32 s60, v9
s_cmp_ge_u32 s60, 4
s_cbranch_scc1 L_spind
s_sub_u32 s70, s70, 1
s_cbranch_scc1 L_spind
s_sleep 2
s_branch L_spin
L_spind:
s_mov_b64 exec, -1
v_mul_u32_u24 v5, 576, v14
v_lshl_add_u32 v5, v10, 4, v5
v_add_u32 v5, {HS}, v5""")
    for i in range(9):
        e(f"ds_read_b128 v[{XN+4*i}:{XN+4*i+3}], v5 offset:{64*i}")
    e(f"""v_lshrrev_b32 v6, 2, v0
v_lshlrev_b32 v6, 12, v6
v_and_b32 v7, 3, v0
v_lshl_add_u32 v6, v7, 4, v6
v_mov_b32 v7, 0xffffff00
s_mul_i32 s60, s12, {3*32768}
s_lshr_b32 s61, s4, 1
s_lshl_b32 s61, s61, 11
s_add_u32 s60, s60, s61
s_and_b32 s61, s4, 1
s_lshl_b32 s61, s61, 6
s_add_u32 s60, s60, s61
s_lshl_b32 s61, s11, 7
s_add_u32 s60, s60, s61
s_add_u32 s60, s60, {DPART}
s_waitcnt lgkmcnt(0)""")
    for i in range(9):
        for sub in range(3):
            kk = 9 * sub + i
            A = AC + 4 * sub
            e(f"v_mfma_f32_16x16x32_bf16 v[{A}:{A+3}], v[{WF+4*kk}:{WF+4*kk+3}], v[{XN+4*i}:{XN+4*i+3}], {'0' if i == 0 else f'v[{A}:{A+3}]'}")
    for r in range(12):
        e(f"v_and_or_b32 v{AC+r}, v{AC+r}, v7, s6\nds_bpermute_b32 v{G+r}, v15, v{AC+r}")
    e("s_mov_b32 exec_hi, 0\ns_waitcnt lgkmcnt(0)")
    for sub in range(3 if "D" not in abl else 0):
        e(f"buffer_store_dwordx4 v[{G+4*sub}:{G+4*sub+3}], v6, s[56:59], s60 offen sc1")
        if sub < 2:
            e("s_add_u32 s60, s60, 32768")
    e("s_mov_b32 exec_hi, -1")
    stamp(6)
    e("s_branch L_fin")

    def gather_reduce(base, sleep):
        chk = "\n".join(f"v_xor_b32 v{16+i}, s6, v{16+i}" for i in range(8))
        chk += "\nv_or3_b32 v24, v16, v17, v18\nv_or3_b32 v25, v19, v20, v21\nv_or3_b32 v24, v24, v22, v23\nv_bitop3_b32 v24, v24, v26, v25 bitop3:0xc8\nv_cmp_ne_u32 vcc, 0, v24"
        poll("\n".join(f"buffer_load_dwordx2 v[{16+2*i}:{17+2*i}], v7, s[56:59], s{base} offen offset:{512*i} sc1" for i in range(4)), None, None, sleep, cmp=chk, masked=False)
        e("""v_pk_add_f32 v[16:17], v[16:17], v[18:19]
v_pk_add_f32 v[20:21], v[20:21], v[22:23]
v_pk_add_f32 v[16:17], v[16:17], v[20:21]
v_permlane32_swap_b32 v16, v17
v_add_f32 v16, v16, v17
v_mov_b32 v17, v16
v_permlane16_swap_b32 v16, v17
v_add_f32 v16, v16, v17""")
        rnd(16, 16)

    e(f"""L_aO:
v_mul_u32_u24 v6, {OSL}, v11
v_lshl_add_u32 v5, v10, 4, v6
s_mul_i32 s63, s8, {16*OSL}
s_add_u32 s63, s63, {OBUF}
s_lshl_b32 s61, s4, 7
s_add_u32 s62, s63, s61
s_lshr_b32 s61, s4, 1
s_lshl_b32 s61, s61, 2
s_add_u32 s63, s63, s61
s_lshl_b32 s61, s4, 11
s_add_u32 s61, s61, {RED2}
v_add_u32 v3, s61, v2
s_sub_u32 s64, s4, 1
v_lshrrev_b32 v8, 3, v0
v_and_b32 v9, 1, v8
v_lshlrev_b32 v9, 3, v9
v_add_u32 v9, v9, v10
v_and_b32 v4, 3, v0
v_lshl_add_u32 v9, v4, 4, v9
v_lshlrev_b32 v9, 4, v9
v_bfe_u32 v4, v0, 2, 1
v_lshl_add_u32 v9, v4, 10, v9
s_lshl_b32 s61, s64, 6
s_add_u32 s61, s61, {RED2}
v_add_u32 v4, s61, v9
v_lshlrev_b32 v8, 11, v8
v_lshl_add_u32 v15, v14, 4, v8
s_lshl_b32 s65, s9, 15
s_lshl_b32 s61, s8, 7
s_add_u32 s65, s65, s61
s_lshl_b32 s61, s64, 14
s_add_u32 s65, s65, s61
s_add_u32 s65, s65, {PART}
s_lshl_b32 s74, s9, 4
s_add_u32 s74, s74, s8
s_lshl_b32 s74, s74, 11
s_add_u32 s73, s74, {DPART}
s_add_u32 s74, s74, {PART}
v_mov_b32 v26, 0xff
v_mov_b32 v12, 0xffffff00
v_lshlrev_b32 v7, 3, v0
s_lshr_b32 s75, s8, 1
s_mul_i32 s75, s75, 1152
s_lshl_b32 s61, s9, 7
s_add_u32 s75, s75, s61
s_and_b32 s61, s8, 1
s_lshl_b32 s61, s61, 6
s_add_u32 s75, s75, s61
v_lshrrev_b32 v9, 5, v0
v_lshlrev_b32 v9, 1, v9
v_lshl_add_u32 v13, v11, 2, v9""")
    srd(48, 34, 9216)
    e("s_cmp_lg_u32 s4, 0\ns_cbranch_scc1 L_o1\nbuffer_load_ushort v50, v13, s[40:43], s75 offen")
    e(f"s_sleep {dsleep}\ns_sleep {dsleep}\ns_sleep {dsleep}")
    gather_reduce(73, dsleep)
    e("v_mov_b32 v51, v16\nv_lshlrev_b32 v50, 16, v50")
    stamp(4)
    e("L_o1:\ns_barrier")
    stamp(5)
    poll("""buffer_load_dwordx4 v[28:31], v5, s[56:59], s62 offen sc1
buffer_load_dwordx4 v[32:35], v5, s[56:59], s62 offen offset:64 sc1
buffer_load_dword v36, v6, s[56:59], s63 offen offset:512 sc1""", list(range(28, 37)), 37, psleep)
    stamp(6)
    for kk in range(2):
        for Tt in range(4):
            A = AC + 4 * Tt
            R = OF + 8 * Tt + 4 * kk
            e(f"v_mfma_f32_16x16x32_bf16 v[{A}:{A+3}], v[{R}:{R+3}], v[{28+4*kk}:{31+4*kk}], {'0' if kk == 0 else f'v[{A}:{A+3}]'}")
        if kk == 0:
            e("v_sub_f32_dpp v37, v36, v36 row_ror:8 row_mask:0xf bank_mask:0xf\nv_exp_f32 v37, v37")
    e("v_add_f32 v37, 1.0, v37\nv_rcp_f32 v37, v37")
    for r in range(16):
        e(f"v_mul_f32 v{AC+r}, v{AC+r}, v37")
    for tt in range(2):
        for r in range(4):
            e(f"v_add_f32_dpp v{40+4*tt+r}, v{AC+4*tt+r}, v{AC+4*tt+r} row_ror:8 row_mask:0xf bank_mask:0x3")
            e(f"v_add_f32_dpp v{40+4*tt+r}, v{AC+8+4*tt+r}, v{AC+8+4*tt+r} row_ror:8 row_mask:0xf bank_mask:0xc")
        e(f"ds_write_b128 v3, v[{40+4*tt}:{43+4*tt}] offset:{1024*tt}")
    e("s_waitcnt lgkmcnt(0)\ns_barrier\ns_cmp_eq_u32 s4, 0\ns_cbranch_scc1 L_o2\ns_cmp_eq_u32 s4, 3\ns_cbranch_scc1 L_fin")
    for w in range(4):
        e(f"ds_read_b128 v[{16+4*w}:{19+4*w}], v4 offset:{2048*w}")
    e("""s_waitcnt lgkmcnt(2)
v_pk_add_f32 v[16:17], v[16:17], v[20:21]
v_pk_add_f32 v[18:19], v[18:19], v[22:23]
s_waitcnt lgkmcnt(0)
v_pk_add_f32 v[24:25], v[24:25], v[28:29]
v_pk_add_f32 v[26:27], v[26:27], v[30:31]
v_pk_add_f32 v[16:17], v[16:17], v[24:25]
v_pk_add_f32 v[18:19], v[18:19], v[26:27]""")
    for r in range(4):
        e(f"v_and_or_b32 v{16+r}, v{16+r}, v12, s6")
    e("buffer_store_dwordx4 v[16:19], v15, s[56:59], s65 offen sc1")
    stamp(7)
    e("s_branch L_fin\nL_o2:")
    gather_reduce(74, psleep)
    e("v_add_f32 v16, v16, v50")
    rnd(16, 16)
    e("""v_add_f32 v16, v16, v51
v_cvt_pk_bf16_f32 v16, v16, v16
s_mov_b32 exec_lo, 0xffff
s_mov_b32 exec_hi, 0xffff
buffer_store_short v16, v13, s[48:51], s75 offen
s_mov_b64 exec, 1
s_cmp_lg_u32 s2, 0
s_cbranch_scc1 L_o3
v_mov_b32 v17, s14
buffer_store_dword v17, v7, s[56:59], 0 offen
L_o3:
s_mov_b64 exec, -1""")
    stamp(7)
    if probe:
        if probe[1] is not None:
            e(f"s_and_b32 s60, s2, {probe[1]}\ns_cmp_lg_u32 s60, {probe[2]}\ns_cbranch_scc1 L_fin")
        e(f"L_probe:\ns_memrealtime s[76:77]\ns_waitcnt lgkmcnt(0)\ns_sub_u32 s60, s76, s{80 + 2 * probe[0]}\ns_cmp_lt_u32 s60, 5000\ns_cbranch_scc1 L_probe")
    e("L_fin:")
    if diag:
        e("s_waitcnt vmcnt(0)\ns_memrealtime s[76:77]\ns_waitcnt lgkmcnt(0)\ns_getreg_b32 s77, hwreg(HW_REG_XCC_ID)")
        for i in range(8):
            e(f"v_mov_b32 v{16+i}, s{80+2*i}")
        e(f"v_mov_b32 v24, s76\nv_mov_b32 v25, s77\nv_mov_b32 v1, 0\ns_lshl_b32 s60, s2, 3\ns_add_u32 s60, s60, s3\ns_lshl_b32 s60, s60, 6\ns_add_u32 s60, s60, {STAMP}")
        e("s_mov_b64 exec, 1\nbuffer_store_dwordx4 v[16:19], v1, s[56:59], s60 offen\nbuffer_store_dwordx4 v[20:23], v1, s[56:59], s60 offen offset:16\nbuffer_store_dwordx2 v[24:25], v1, s[56:59], s60 offen offset:32")
    e("L_end:\ns_endpgm")
    e(f""".section .rodata,"a"
.p2align 6
.amdhsa_kernel {KN}
.amdhsa_next_free_vgpr 256
.amdhsa_next_free_sgpr 102
.amdhsa_accum_offset 256
.amdhsa_group_segment_fixed_size 0
.amdhsa_kernarg_size 96
.amdhsa_user_sgpr_count 2
.amdhsa_user_sgpr_kernarg_segment_ptr 1
.amdhsa_system_sgpr_workgroup_id_x 1
.amdhsa_float_denorm_mode_32 3
.end_amdhsa_kernel""")
    return top + e.text()


if __name__ == "__main__":
    kw = eval("dict(" + (sys.argv[2] if len(sys.argv) > 2 else "") + ")")
    open(sys.argv[1], "w").write(gen(**kw))


def report(T, pc):
    S = T[:, :4]; A = T[:, 4:]
    print("  start", pc(T[:, :, 0]), "| stream: B1", pc(S[:, :, 1]), "preB2", pc(S[:, :, 2]), "B2wait", pc(S[:, :, 3] - S[:, :, 2]), "preB3", pc(S[:, :, 6]), "B3wait", pc(S[:, :, 7] - S[:, :, 6]), "done", pc(S[:, :, 4]), "wgdone", pc(S[:, :, 4].max(1)), "opub", pc(S[:, 0, 5]))
    print("  aux: LN", pc(A[:, :, 1]), "B1", pc(A[:, :, 2]), "Qpub", pc(A[144:208, :, 3]), "Gpub", pc(A[:144, :, 3]), "B2", pc(A[:, 3, 4]), "q(nonO)", pc(A[144:, 3, 5]), "Dpub", pc(A[208:, :, 6]), "dgath", pc(A[:144, 0, 4]))
    print("  tail: B4", pc(A[:144, :, 5]), "ogath", pc(A[:144, :, 6]), "ppub", pc(A[:144, 1:3, 7]), "out", pc(A[:144, 0, 7]), "end", pc(T[:, :, 8]))
    wd = S[:, :, 4].max(1)
    print("  wgdone by role GO/Q/D", wd[:144].mean().round(2), wd[144:208].mean().round(2), wd[208:].mean().round(2), "by w%8", [float(wd[i::8].mean().round(1)) for i in range(8)], flush=True)
```

```python
import sys, struct
sys.path.insert(0, "dev")
from asmlib import Asm

KN = "parallel_sum__sliding_block_cached__geglu_ffn__decode_kernel"
REF = "parallel_sum__sliding_block_cached__geglu_ffn__decode.s.ref"

XS, QS, HS, ML, CNT, RED, RED2, LDS_SZ = 110592, 119808, 120320, 124928, 124992, 125056, 129152, 137344
PBUF, OBUF, PART, DPART = 0x1000, 0x70000, 0xA0000, 0xF0000
OSL = 640
WS_SZ = 0x140000
QF = CNT + 4
STAMP = 0x200000
LIMIT = 400000


def f32(x):
    return "0x%08x" % struct.unpack("<I", struct.pack("<f", x))[0]


LOG2E = 1.4426950408889634


def gen(d=6, d2=6, dq=6, dsleep=40, stouch=0, diag=0, xpol="", pref=0, psleep=1, touch=0, R=6, probe=None, abl="", kvpol="nt", wpol="nt", dummy=0, dpol="sc1"):
    e = Asm()
    uid = [0]

    def stamp(i):
        if diag or (probe and probe[0] == i):
            e(f"s_memrealtime s[{80 + 2 * i}:{81 + 2 * i}]")

    def srd(b, lo, size):
        e(f"s_mov_b32 s{b}, s{lo}\ns_mov_b32 s{b+1}, s{lo+1}\ns_mov_b32 s{b+2}, {size}\ns_mov_b32 s{b+3}, 0x20000")

    def rnd(dst, src):
        e(f"v_cvt_pk_bf16_f32 v{dst}, v{src}, v{src}\nv_lshlrev_b32 v{dst}, 16, v{dst}")

    def poll(loads, regs, tmp, sleep, restore="-1", cmp=None, masked=True):
        uid[0] += 1
        L = f"L_poll{uid[0]}"
        e(f"s_mov_b32 s70, {0 if 'p' in abl else LIMIT}\n{L}:")
        if not ("g" in abl and cmp):
            e(loads)
        e("s_waitcnt vmcnt(0)")
        if cmp:
            e(cmp)
        else:
            r = list(regs)
            cur = r.pop(0)
            while r:
                if len(r) >= 2:
                    e(f"v_max3_u32 v{tmp}, v{cur}, v{r[0]}, v{r[1]}")
                    r = r[2:]
                else:
                    e(f"v_max_u32 v{tmp}, v{cur}, v{r[0]}")
                    r = r[1:]
                cur = tmp
            e(f"v_cmp_eq_u32 vcc, -1, v{cur}")
        e(f"s_and_b64 exec, exec, vcc\ns_cbranch_scc0 {L}_d" if masked else f"s_cbranch_vccz {L}_d")
        e(f"s_sub_u32 s70, s70, 1\ns_cbranch_scc1 {L}_d")
        if sleep:
            e(f"s_sleep {sleep}")
        e(f"s_branch {L}\n{L}_d:")
        if masked:
            e(f"s_mov_b64 exec, {restore}")

    def tagcmp(regs, tmp):
        out = [f"v_xor_b32 v{tmp}, s15, v{regs[0]}"]
        for r in regs[1:]:
            out.append(f"v_bitop3_b32 v{tmp}, v{r}, v{tmp}, s15 bitop3:0xde")
        out.append(f"v_and_b32 v{tmp}, 0xffff, v{tmp}\nv_cmp_ne_u32 vcc, 0, v{tmp}")
        return "\n".join(out)

    def kvbase(sd, st):
        e(f"""s_lshr_b32 s{sd}, s9, 1
s_lshl_b32 s{sd}, s{sd}, 4
s_add_u32 s{sd}, s{sd}, s8
s_lshl_b32 s{sd}, s{sd}, 21
s_and_b32 s{st}, s9, 1
s_lshl_b32 s{st}, s{st}, 18
s_add_u32 s{sd}, s{sd}, s{st}
s_add_u32 s{sd}, s{sd}, {6144*256}""")

    def allred_g(v, t, op):
        e(f"v_mov_b32 v{t}, v{v}\nv_permlane16_swap_b32 v{v}, v{t}\n{op} v{v}, v{v}, v{t}")
        e(f"v_mov_b32 v{t}, v{v}\nv_permlane32_swap_b32 v{v}, v{t}\n{op} v{v}, v{v}, v{t}")

    hdr = [l.rstrip("\n") for l in open(REF) if l.startswith(";") and "@launch" not in l and "Override" not in l and "grid=ceil" not in l]
    top = "\n".join(hdr) + f"\n; @launch grid=(256,1,1) block=(512,1,1) lds={LDS_SZ}\n"
    e(f""".amdgcn_target "amdgcn-amd-amdhsa--gfx950"
.text
.globl {KN}
.p2align 8
.type {KN},@function
{KN}:""")
    e("s_cmp_ge_u32 s2, 256\ns_cbranch_scc1 L_end")
    e("s_load_dwordx16 s[16:31], s[0:1], 0\ns_load_dwordx8 s[32:39], s[0:1], 64")
    stamp(0)
    e("v_lshrrev_b32 v1, 6, v0\nv_and_b32 v0, 63, v0\nv_readfirstlane_b32 s3, v1")
    e("s_and_b32 s8, s2, 15\ns_lshr_b32 s9, s2, 4")
    e("s_mov_b32 s11, s8\ns_sub_u32 s12, s9, 13\ns_lshl_b32 s10, s8, 2\ns_add_u32 s10, s10, s9\ns_sub_u32 s10, s10, 9")
    e("s_cmp_ge_u32 s3, 4\ns_cbranch_scc1 " + ("L_aux" if "a" not in abl else "L_end"))

    VO, KD, KR, MK, VW1, VW2, Q, KF, AB, ACC, T, SP, MRUN, NEGM, LS, VV = 1, 2, 6, 10, 14, 15, 16, 32, 48, 64, 68, 84, 120, 121, 122, 128
    e("""v_lshrrev_b32 v1, 3, v0
v_and_b32 v2, 7, v0
v_and_b32 v3, 2, v1
s_and_b32 s5, s3, 1
s_lshl_b32 s5, s5, 2
v_or_b32 v3, s5, v3
""" + ("" if "w" in abl else "v_xor_b32 v2, v2, v3") + """
v_lshlrev_b32 v2, 4, v2
s_lshl_b32 m0, s3, 10
s_mov_b32 s43, 0x20000
""" + ("s_waitcnt lgkmcnt(0)\ns_branch L_sV" if "W" in abl else "") + """
s_cmp_ge_u32 s2, 208
s_cbranch_scc1 L_sD
s_cmp_ge_u32 s2, 144
s_cbranch_scc1 L_sQ
s_cmp_ge_u32 s2, 72
s_cselect_b32 s6, 72, 0
s_waitcnt lgkmcnt(0)
s_cselect_b32 s40, s30, s28
s_cselect_b32 s41, s31, s29
s_sub_u32 s6, s2, s6
s_movk_i32 s7, 9216""")
    e(f"s_mov_b32 s42, {576*9216}\ns_branch L_sP\nL_sQ:")
    e(f"""s_lshl_b32 s60, s10, 7
s_lshl_b32 s61, s3, 16
s_add_u32 s60, s60, s61
s_mov_b32 s42, {576*8192}
v_lshl_add_u32 v{VW1}, v1, 13, v2
s_mov_b32 s66, 18
s_waitcnt lgkmcnt(0)
s_mov_b32 s40, s22
s_mov_b32 s41, s23
L_wq:
s_waitcnt vmcnt({dq-1})
buffer_load_dwordx4 v{VW1}, s[40:43], s60 offen {wpol} lds
s_add_u32 s60, s60, {32*8192}
s_add_u32 m0, m0, 4096
s_sub_u32 s66, s66, 1
s_cmp_lg_u32 s66, 0
s_cbranch_scc1 L_wq
s_branch L_sV""")
    e("""L_sP:
s_lshl_b32 s60, s6, 7
s_mul_i32 s61, s3, s7
s_lshl_b32 s61, s61, 3
s_add_u32 s60, s60, s61
s_lshl_b32 s62, s7, 5
s_mov_b32 s63, s62
s_movk_i32 s64, 4096
s_movk_i32 s65, 4096
s_mov_b32 s66, 6
s_branch L_sW
L_sD:""")
    e(f"""s_mul_i32 s60, s11, {288*1152}
s_mul_i32 s61, s3, {8*1152}
s_add_u32 s60, s60, s61
s_mul_i32 s61, s12, 384
s_add_u32 s60, s60, s61
s_movk_i32 s62, 128
s_mov_b32 s63, {36864-256}
s_mov_b32 s64, 36864
s_mov_b32 s65, {4096-73728}
s_mov_b32 s66, 9
s_movk_i32 s7, 1152
s_mov_b32 s42, {4608*1152}
s_waitcnt lgkmcnt(0)
s_mov_b32 s40, s32
s_mov_b32 s41, s33
L_sW:
v_mad_u32_u24 v{VW1}, v1, s7, v2
L_w1:""")
    for k in range(3):
        e(f"s_waitcnt vmcnt({d-1})\nbuffer_load_dwordx4 v{VW1}, s[40:43], s60 offen {wpol} lds")
        e(f"s_add_u32 s60, s60, s{62 if k < 2 else 63}\ns_add_u32 m0, m0, s{64 if k < 2 else 65}")
    e("s_sub_u32 s66, s66, 1\ns_cmp_lg_u32 s66, 0\ns_cbranch_scc1 L_w1")
    e("s_cmp_ge_u32 s2, 144\ns_cbranch_scc1 L_sV")
    srd(44, 24, 4096 * 1152)
    e(f"""s_movk_i32 s7, 1152
v_mad_u32_u24 v{VW2}, v1, s7, v2
s_mul_i32 s60, s8, {256*1152}
s_mul_i32 s61, s3, {8*1152}
s_add_u32 s60, s60, s61
s_lshl_b32 s61, s9, 7
s_add_u32 s60, s60, s61
s_mov_b32 s62, {32*1152}
s_mov_b32 s66, 8
L_w2:
s_waitcnt vmcnt({d-1})
buffer_load_dwordx4 v{VW2}, s[44:47], s60 offen {wpol} lds
s_add_u32 s60, s60, s62
s_add_u32 m0, m0, s64
s_sub_u32 s66, s66, 1
s_cmp_lg_u32 s66, 0
s_cbranch_scc1 L_w2
L_sV:""")
    srd(48, 18, 0x10000000)
    srd(52, 20, 0x10000000)
    kvbase(60, 61)
    e(f"""s_lshl_b32 s61, s3, 12
s_add_u32 s60, s60, s61
s_mul_i32 s67, s3, {R*4096}
v_lshlrev_b32 v{VO}, 4, v0""")

    work = {}

    def at(slot, fn):
        work.setdefault(slot, []).append(fn)

    def setup():
        e(f"v_lshrrev_b32 v{T}, 4, v0\nv_and_b32 v{T+1}, 15, v0\nv_lshlrev_b32 v{T+2}, 2, v{T}\nv_xor_b32 v{T+2}, v{T+2}, v{T+1}")
        e(f"v_lshlrev_b32 v{T+2}, 4, v{T+2}\nv_lshl_add_u32 v{KD}, v{T}, 8, v{T+2}")
        for r in range(1, 4):
            e(f"v_xor_b32 v{KD+r}, {16*r}, v{KD}")
        e(f"v_and_b32 v{T+2}, 3, v0\nv_lshlrev_b32 v{T+2}, 2, v{T+2}\nv_lshrrev_b32 v{T+3}, 2, v{T+1}\nv_or_b32 v{T+2}, v{T+2}, v{T+3}")
        e(f"v_lshl_add_u32 v{T+2}, v{T+2}, 8, s67\nv_xor_b32 v{T+3}, v{T}, v{T+1}\nv_lshl_add_u32 v{KR}, v{T+3}, 4, v{T+2}")
        for t in range(1, 4):
            e(f"v_xor_b32 v{KR+t}, {64*t}, v{KR}")
        e(f"v_and_b32 v{T+2}, 1, v0\nv_lshlrev_b32 v{T+2}, 4, v{T+2}\nv_mov_b32 v{T+3}, 0xffff\nv_lshlrev_b32 v{T+3}, v{T+2}, v{T+3}\nv_bfe_u32 v{T+2}, v0, 1, 2")
        for r in range(4):
            e(f"v_cmp_eq_u32 vcc, {r}, v{T+2}\nv_cndmask_b32 v{MK+r}, 0, v{T+3}, vcc")
        e(f"v_lshrrev_b32 v{T+2}, 3, v{T+1}\nv_lshlrev_b32 v{T+2}, 8, v{T+2}\nv_lshl_add_u32 v{T+2}, v{T}, 4, v{T+2}\nv_add_u32 v{VW1}, {QS}, v{T+2}")
        e(f"s_mov_b32 s68, 0xffff0000\ns_mov_b32 s69, {f32(128 ** -0.5)}\ns_mov_b32 s71, {f32(LOG2E)}")
        e(f"v_mov_b32 v{LS}, 0\nv_mov_b32 v{MRUN}, 0xff800000")
        for r in range(4):
            e(f"v_mov_b32 v{ACC+r}, 0")
        srd(56, 38, WS_SZ if not (diag or dummy) else 0x800000)

    at(d, setup)

    def sreg(c):
        return SP + 4 * (c if c < 8 else (8 if c == 8 else c - 9))

    def kread(c):
        def f():
            for t in range(4):
                e(f"ds_read_b128 v[{KF+4*t}:{KF+4*t+3}], v{KR+t} offset:{(c % R) * 4096}")
        return f

    def kmma(c):
        def f():
            S = sreg(c)
            e("s_waitcnt lgkmcnt(0)")
            for t in range(4):
                e(f"v_mfma_f32_16x16x32_bf16 v[{S}:{S+3}], v[{KF+4*t}:{KF+4*t+3}], v[{Q+4*t}:{Q+4*t+3}], {'0' if t == 0 else f'v[{S}:{S+3}]'}")
        return f

    def kround(c):
        def f():
            S = sreg(c)
            for _ in range(2):
                e(f"v_cvt_pk_bf16_f32 v{T}, v{S}, v{S+1}\nv_cvt_pk_bf16_f32 v{T+1}, v{S+2}, v{S+3}")
                e(f"v_lshlrev_b32 v{S}, 16, v{T}\nv_and_b32 v{S+1}, s68, v{T}\nv_lshlrev_b32 v{S+2}, 16, v{T+1}\nv_and_b32 v{S+3}, s68, v{T+1}")
                if _ == 0:
                    for r in range(4):
                        e(f"v_mul_f32 v{S+r}, s69, v{S+r}")
            e(f"v_max3_f32 v{MRUN}, v{MRUN}, v{S}, v{S+1}\nv_max3_f32 v{MRUN}, v{MRUN}, v{S+2}, v{S+3}")
        return f

    def maxA():
        allred_g(MRUN, T, "v_max_f32")
        e(f"v_mul_f32 v{NEGM}, s71, v{MRUN}\nv_sub_f32 v{NEGM}, 0, v{NEGM}")

    def maxB():
        allred_g(MRUN, T, "v_max_f32")
        e(f"v_mul_f32 v{T+1}, s71, v{MRUN}\nv_add_f32 v{T+2}, v{NEGM}, v{T+1}\nv_sub_f32 v{NEGM}, 0, v{T+1}\nv_exp_f32 v{T+2}, -v{T+2}")
        e(f"v_mul_f32 v{LS}, v{LS}, v{T+2}\nv_mov_b32 v{T+3}, v{T+2}")
        e(f"v_mov_b32_dpp v{T+3}, v{T+2} row_ror:8 row_mask:0x3 bank_mask:0xc\nv_mov_b32_dpp v{T+3}, v{T+2} row_ror:8 row_mask:0xc bank_mask:0x3")
        for r in range(4):
            e(f"v_mul_f32 v{ACC+r}, v{ACC+r}, v{T+3}")

    def pexp(c):
        def f():
            S = sreg(c)
            for r in range(4):
                e(f"v_fma_f32 v{S+r}, v{S+r}, s71, v{NEGM}")
            for r in range(4):
                e(f"v_exp_f32 v{S+r}, v{S+r}")
            e(f"v_add_f32 v{T}, v{S}, v{S+1}\nv_add_f32 v{T+1}, v{S+2}, v{S+3}\nv_add_f32 v{LS}, v{LS}, v{T}\nv_add_f32 v{LS}, v{LS}, v{T+1}")
            for r in range(4):
                e(f"v_cvt_pk_bf16_f32 v{S+r}, v{S+r}, v{S+r}")
        return f

    def aprep(c, r):
        def f():
            for k in range(4):
                e(f"v_and_b32 v{AB+4*r+k}, v{sreg(c)+r}, v{MK+k}")
        return f

    def pv(c, r):
        def f():
            V = VV + 16 * (c % 8) + 4 * r
            e(f"v_mfma_f32_16x16x32_bf16 v[{ACC}:{ACC+3}], v[{AB+4*r}:{AB+4*r+3}], v[{V}:{V+3}], v[{ACC}:{ACC+3}]")
        return f

    def mlwrite():
        allred_g(LS, T, "v_add_f32")
        e(f"v_sub_f32 v{T+2}, 0, v{NEGM}\nv_mov_b32 v{T+3}, v{LS}")
        e(f"v_bfe_u32 v{T}, v0, 3, 1\nv_lshlrev_b32 v{T}, 5, v{T}\ns_lshl_b32 s63, s3, 3\ns_add_u32 s63, s63, {ML}\nv_add_u32 v{T}, s63, v{T}")
        e(f"ds_write_b64 v{T}, v[{T+2}:{T+3}]")
        e(f"s_lshl_b32 s63, s3, 10\ns_add_u32 s63, s63, {RED}\nv_add_u32 v{VW2}, s63, v{VO}")
        e(f"""v_lshrrev_b32 v2, 5, v0
v_lshlrev_b32 v3, 5, v2
v_add_u32 v3, {ML}, v3
v_lshlrev_b32 v4, 3, v0
v_lshlrev_b32 v5, 2, v2
v_and_b32 v6, 1, v0
v_lshl_add_u32 v6, v2, 1, v6
v_bfe_u32 v7, v0, 1, 4
v_lshl_add_u32 v6, v6, 4, v7
v_lshlrev_b32 v6, 4, v6
v_add_u32 v6, {RED}, v6
s_lshr_b32 s62, s9, 1
s_and_b32 s63, s9, 1
s_lshl_b32 s63, s63, 3
s_add_u32 s62, s62, s63
s_lshl_b32 s63, s8, 4
s_add_u32 s63, s63, s62
s_mul_i32 s63, s63, {OSL}
s_add_u32 s63, s63, {OBUF}""")

    def dep(n):
        return d if n < 96 else d2

    landed = {}
    for n in range(128 + 64):
        top_done = (n - dep(n)) if n < 128 else min(127, n - d2)
        for m in range(top_done + 1):
            landed.setdefault(m, n)
    qslot = 32 + 4 * R - 3

    def qread():
        stamp(6)
        e(f"v_mov_b32 v{T}, {QF}\ns_mov_b32 s70, {0 if 'a' in abl else LIMIT*8}\nL_qw:\nds_read_b32 v{T+1}, v{T}")
        for t in range(4):
            e(f"ds_read_b128 v[{Q+4*t}:{Q+4*t+3}], v{VW1} offset:{64*t}")
        e(f"""s_waitcnt lgkmcnt(0)
v_readfirstlane_b32 s63, v{T+1}
s_cmp_lg_u32 s63, 0
s_cbranch_scc1 L_qd
s_sub_u32 s70, s70, 1
s_cbranch_scc1 L_qd
s_sleep 2
s_branch L_qw
L_qd:""")
        stamp(7)

    at(qslot, qread)
    kslot = {}
    for c in range(16):
        n0 = kslot[c] = max(landed[35 + 4 * c], qslot + 2 * c)
        assert c + R >= 16 or n0 + 1 < 32 + 4 * (c + R)
        at(n0, kread(c))
        at(n0 + 1, kmma(c))
        at(n0 + 2, kround(c))
    sA = kslot[7] + 3
    at(sA, maxA)
    for j in range(8):
        s0 = sA + 1 + 3 * j
        at(s0, pexp(j))
        at(s0 + 1, aprep(j, 0)); at(s0 + 1, aprep(j, 1)); at(s0 + 1, pv(j, 0)); at(s0 + 1, pv(j, 1))
        at(s0 + 2, aprep(j, 2)); at(s0 + 2, aprep(j, 3)); at(s0 + 2, pv(j, 2)); at(s0 + 2, pv(j, 3))
        assert s0 + 2 < 96 + 4 * j
        if j < 7:
            assert s0 + 2 < kslot[9 + j] + 1
    sB = kslot[15] + 3
    at(sB, maxB)
    pre = {}
    for j in range(8):
        at(sB + 1 + j, pexp(8 + j))
    at(sB + 9, mlwrite)
    last = 0
    for n in range(96, 128):
        j, r = (n - 96) // 4, n % 4
        s = max(landed[n], sB + 2 + j, last)
        last = s
        pre.setdefault(s, []).append((8 + j, r))
    nslots = max(max(work), last) + 1
    for n in range(nslots):
        todo = pre.get(n, [])
        assert len(todo) <= 4
        if "c" in abl:
            todo = []
            work[n] = [f for f in work.get(n, []) if f in (setup, qread, mlwrite)]
        for (c, r) in todo:
            aprep(c, r)()
        if n < 128:
            if n < 32 or n >= 96:
                i = n if n < 32 else n - 64
                if i % 4 == 0:
                    e(f"s_add_u32 s61, s60, {(i // 4) * 16384}")
                e(f"s_waitcnt vmcnt({dep(n)-1})")
                if n == d - 1:
                    stamp(1)
                    e("s_barrier")
                V = VV + 4 * (i % 32)
                e(f"buffer_load_dwordx4 v[{V}:{V+3}], v{VO}, s[52:55], s61 offen offset:{(i % 4) * 1024} {kvpol}")
            else:
                i = n - 32
                if i % 4 == 0:
                    e(f"s_add_u32 s62, s60, {(i // 4) * 16384}\ns_add_u32 m0, s67, {((i // 4) % R) * 4096}")
                e(f"s_waitcnt vmcnt({dep(n)-1})")
                e(f"buffer_load_dwordx4 v{VO if 'k' in abl else KD + i % 4}, s[48:51], s62 offen offset:{(i % 4) * 1024} {kvpol} lds")
            if n == 31:
                stamp(2)
                e("s_barrier")
                stamp(3)
        elif n - d2 <= 127:
            e(f"s_waitcnt vmcnt({127 - (n - d2)})")
        for (c, r) in todo:
            pv(c, r)()
        for fn in work.get(n, []):
            fn()
    e(f"ds_write_b128 v{VW2}, v[{ACC}:{ACC+3}]")
    stamp(4)
    e("s_waitcnt lgkmcnt(0)\ns_barrier\ns_cmp_lg_u32 s3, 0\ns_cbranch_scc1 L_fin")
    e(f"ds_read_b128 v[16:19], v3\nds_read_b128 v[20:23], v3 offset:16")
    for w in range(4):
        e(f"ds_read_b128 v[{28+4*w}:{31+4*w}], v6 offset:{1024*w}")
    e(f"""s_waitcnt lgkmcnt(4)
v_max3_f32 v24, v16, v18, v20
v_max_f32 v24, v24, v22
v_sub_f32 v16, v16, v24
v_sub_f32 v18, v18, v24
v_sub_f32 v20, v20, v24
v_sub_f32 v22, v22, v24
v_exp_f32 v16, v16
v_exp_f32 v18, v18
v_exp_f32 v20, v20
v_exp_f32 v22, v22
v_mul_f32 v25, v16, v17
v_fmac_f32 v25, v18, v19
v_fmac_f32 v25, v20, v21
v_fmac_f32 v25, v22, v23
v_rcp_f32 v26, v25
v_log_f32 v27, v25""")
    e("s_waitcnt lgkmcnt(0)")
    for r in range(4):
        e(f"v_mul_f32 v{ACC+r}, v{28+r}, v16")
    for w in range(1, 4):
        for r in range(4):
            e(f"v_fmac_f32 v{ACC+r}, v{28+4*w+r}, v{16+2*w}")
    for r in range(4):
        e(f"v_mul_f32 v{ACC+r}, v{ACC+r}, v26")
    e(f"""v_cvt_pk_bf16_f32 v28, v{ACC}, v{ACC+1}
v_cvt_pk_bf16_f32 v29, v{ACC+2}, v{ACC+3}
v_add_f32 v27, v27, v24
v_min_u32 v28, -2, v28
v_min_u32 v29, -2, v29
v_min_u32 v27, -2, v27
buffer_store_dwordx2 v[28:29], v4, s[56:59], s63 offen sc1
s_mov_b32 exec_lo, 1
s_mov_b32 exec_hi, 1
buffer_store_dword v27, v5, s[56:59], s63 offen offset:512 sc1
s_mov_b64 exec, -1""")
    stamp(5)
    e("s_branch L_fin")

    XN, WF, OF, AC = 16, 52, 160, 192
    e("L_aux:\ns_sub_u32 s4, s3, 4\nv_mul_u32_u24 v1, 36, v0\ns_mul_i32 s5, s4, 2304\nv_lshlrev_b32 v2, 4, v0")
    e(f"s_add_u32 s13, s2, 64\ns_cmp_ge_u32 s2, 144\ns_cselect_b32 s13, s10, s13\ns_lshl_b32 s13, s13, 11\ns_add_u32 s13, s13, {PBUF}")
    e("s_waitcnt lgkmcnt(0)")
    e("s_load_dword s14, s[38:39], 0" if "e" not in abl else "s_mov_b32 s14, 5")
    srd(40, 16, 9216)
    srd(56, 38, WS_SZ if not (diag or dummy) else 0x800000)
    if stouch:
        kvbase(60, 61)
        e("""s_add_u32 s62, s20, s60
s_addc_u32 s63, s21, 0
s_load_dword s96, s[62:63], 0
s_add_u32 s64, s18, s60
s_addc_u32 s65, s19, 0
s_load_dword s97, s[64:65], 0""")
        if stouch > 1:
            e("s_lshl_b32 s60, s4, 21\ns_min_u32 s60, s60, 0x47ff00")
            for i, p in enumerate((22, 24, 28, 30, 32)):
                e(f"s_add_u32 s62, s{p}, s60\ns_addc_u32 s63, s{p+1}, 0\ns_load_dword s{98 + i % 4}, s[62:63], 0")
            e("s_load_dword s99, s[34:35], 0")
    if touch:
        e("s_cmp_lg_u32 s4, 1\ns_cbranch_scc1 L_at")
        srd(48, 18, 0x10000000)
        srd(52, 20, 0x10000000)
        kvbase(60, 61)
        e(f"""v_mul_u32_u24 v3, {262144 // touch}, v0
s_mov_b64 exec, {hex((1 << touch) - 1) if touch < 64 else -1}
buffer_load_dword v60, v3, s[52:55], s60 offen nt
buffer_load_dword v61, v3, s[48:51], s60 offen nt
s_mov_b64 exec, 1""")
        srd(48, 24, 4096 * 1152)
        srd(52, 34, 9216)
        e(f"""s_mul_i32 s60, s8, {256*1152}
buffer_load_dword v62, v3, s[48:51], s60 offen nt
buffer_load_dword v63, v3, s[52:55], 0 offen
s_mov_b64 exec, -1
L_at:""")
    if pref:
        e(f"""s_cmp_lg_u32 s4, 2
s_cbranch_scc1 L_a0
s_getpc_b64 s[60:61]
L_pc:
s_sub_u32 s60, s60, L_pc-{KN}
s_subb_u32 s61, s61, 0
s_lshr_b32 s62, s2, 3
s_lshl_b32 s62, s62, 10
v_add_u32 v3, s62, v2
v_min_u32 v3, L_end-{KN}-12, v3
v_mov_b32 v5, s61
v_add_co_u32 v4, vcc, s60, v3
v_addc_co_u32 v5, vcc, 0, v5, vcc
global_load_dwordx4 v[28:31], v[4:5], off
L_a0:""")
    for k in range(3 if "x" not in abl else 0):
        e(f"buffer_load_dwordx3 v[{16+4*k}:{18+4*k}], v1, s[40:43], s5 offen offset:{12*k} {xpol}")
    e(f"""s_sub_u32 s60, s2, 144
s_cmp_ge_u32 s60, 64
s_cbranch_scc1 L_a1
v_mov_b32 v4, -1
v_mov_b32 v5, -1
v_mov_b32 v6, -1
v_mov_b32 v7, -1
s_lshl_b32 s60, s10, 2
s_add_u32 s60, s60, s4
s_mul_i32 s60, s60, {OSL}
s_add_u32 s60, s60, {OBUF}
s_mov_b32 exec_hi, 0xff
""" + ("" if "r" in abl else "buffer_store_dwordx4 v[4:7], v2, s[56:59], s60 offen sc1") + """
s_mov_b32 exec_hi, -1
L_a1:""")
    e(f"v_mov_b32 v8, {CNT}\nv_mov_b32 v10, 0\nv_mov_b32 v11, 0\nds_write_b64 v8, v[10:11]")
    e(f"s_mov_b32 s68, 0xffff0000\ns_mov_b32 s69, {f32(1/576)}\ns_add_u32 s5, s5, {XS}\nv_add_u32 v1, s5, v1\ns_waitcnt vmcnt(0)")
    raw = [16, 17, 18, 20, 21, 22, 24, 25, 26]

    def red32(v, t):
        for s in (8, 4, 2, 1):
            e(f"v_add_f32_dpp v{v}, v{v}, v{v} row_ror:{s} row_mask:0xf bank_mask:0xf")
        e(f"v_mov_b32 v{t}, v{v}\nv_permlane16_swap_b32 v{v}, v{t}\nv_add_f32 v{v}, v{v}, v{t}")

    for k in range(9):
        e(f"v_lshlrev_b32 v{28+2*k}, 16, v{raw[k]}\nv_and_b32 v{29+2*k}, s68, v{raw[k]}")
    e("v_pk_add_f32 v[46:47], v[28:29], v[30:31]")
    for k in range(2, 9):
        e(f"v_pk_add_f32 v[46:47], v[46:47], v[{28+2*k}:{29+2*k}]")
    e("v_add_f32 v46, v46, v47")
    red32(46, 47)
    e("v_mul_f32 v48, s69, v46\nv_sub_f32 v50, 0, v48\nv_sub_f32 v51, 0, v48")
    for k in range(9):
        e(f"v_pk_add_f32 v[8:9], v[{28+2*k}:{29+2*k}], v[50:51]")
        e("v_pk_mul_f32 v[46:47], v[8:9], v[8:9]" if k == 0 else "v_pk_fma_f32 v[46:47], v[8:9], v[8:9], v[46:47]")
    e("v_add_f32 v46, v46, v47")
    red32(46, 47)
    e("v_mul_f32 v46, s69, v46")
    rnd(46, 46)
    e(f"v_add_f32 v46, {f32(1e-5)}, v46")
    rnd(46, 46)
    e("v_sqrt_f32 v46, v46")
    rnd(46, 46)
    e("v_rcp_f32 v46, v46")
    rnd(50, 50)
    e("v_mov_b32 v51, v50\nv_mov_b32 v47, v46")
    for k in range(9):
        e(f"v_pk_add_f32 v[8:9], v[{28+2*k}:{29+2*k}], v[50:51]\nv_cvt_pk_bf16_f32 v9, v8, v9\nv_lshlrev_b32 v8, 16, v9\nv_and_b32 v9, s68, v9")
        e(f"v_pk_mul_f32 v[8:9], v[8:9], v[46:47]\nv_cvt_pk_bf16_f32 v{raw[k]}, v8, v9")
    for k in range(0, 8, 2):
        e(f"ds_write2_b32 v1, v{raw[k]}, v{raw[k+1]} offset0:{k} offset1:{k+1}")
    e(f"ds_write_b32 v1, v{raw[8]} offset:32")
    e("""v_lshrrev_b32 v10, 4, v0
v_and_b32 v11, 15, v0
v_bfe_u32 v8, v0, 2, 2
v_lshl_add_u32 v12, v10, 3, v8
v_lshlrev_b32 v12, 7, v12
v_and_b32 v9, 3, v0
v_lshl_add_u32 v12, v9, 3, v12
v_lshrrev_b32 v13, 1, v8
v_and_b32 v9, 1, v10
v_lshl_or_b32 v13, v9, 1, v13
v_lshl_add_u32 v12, v13, 5, v12
s_lshl_b32 s60, s4, 5
v_xor_b32 v3, s60, v12
v_add_u32 v4, 0x10000, v3
v_and_b32 v14, 7, v0
v_and_b32 v8, 3, v0
v_bfe_u32 v15, v0, 2, 3
v_lshl_add_u32 v15, v8, 4, v15
v_lshlrev_b32 v15, 2, v15""")
    e(f"v_mul_u32_u24 v5, 1152, v14\nv_lshrrev_b32 v8, 3, v11\nv_mul_u32_u24 v8, 576, v8\nv_lshl_add_u32 v8, v10, 4, v8\nv_add3_u32 v5, v5, v8, 0\nv_add_u32 v5, {XS}, v5")
    stamp(1)
    e("s_waitcnt vmcnt(0) lgkmcnt(0)\ns_add_u32 s14, s14, 1\ns_and_b32 s15, s14, 0xffff\ns_and_b32 s6, s14, 0xff\ns_barrier")
    stamp(2)

    def trread(kk):
        for hf in range(2):
            off = kk * 4096 + hf * 512
            e(f"ds_read_b64_tr_b16 v[{WF+4*kk+2*hf}:{WF+4*kk+2*hf+1}], v{3 if off < 65536 else 4} offset:{off % 65536}")

    for i in range(9):
        e(f"ds_read_b128 v[{XN+4*i}:{XN+4*i+3}], v5 offset:{64*i}")
    for kk in range(18):
        trread(kk)
    e("s_cmp_ge_u32 s2, 208\ns_cbranch_scc1 L_aD")
    e("s_lshl_b32 s60, s4, 9\ns_add_u32 s60, s60, s13\nv_mov_b32 v7, s68")
    e("s_waitcnt lgkmcnt(0)")
    for i in range(9):
        for hf in range(2):
            kk = 9 * hf + i
            A = AC + 4 * hf
            e(f"v_mfma_f32_16x16x32_bf16 v[{A}:{A+3}], v[{WF+4*kk}:{WF+4*kk+3}], v[{XN+4*i}:{XN+4*i+3}], {'0' if i == 0 else f'v[{A}:{A+3}]'}")
    for r in range(4):
        e(f"v_add_f32_dpp v{AC+r}, v{AC+4+r}, v{AC+r} row_ror:8 row_mask:0xf bank_mask:0xf")
    e(f"""v_cvt_pk_bf16_f32 v8, v{AC}, v{AC+1}
v_cvt_pk_bf16_f32 v9, v{AC+2}, v{AC+3}
ds_bpermute_b32 v8, v15, v8
ds_bpermute_b32 v9, v15, v9
s_waitcnt lgkmcnt(0)
v_lshl_or_b32 v16, v8, 16, s15
v_and_or_b32 v17, v8, v7, s15
v_lshl_or_b32 v18, v9, 16, s15
v_and_or_b32 v19, v9, v7, s15
s_mov_b32 exec_hi, 0
""" + ("" if "P" in abl else "buffer_store_dwordx4 v[16:19], v2, s[56:59], s60 offen sc1") + """
s_mov_b32 exec_hi, -1""")
    stamp(3)
    e("s_cmp_ge_u32 s2, 144\ns_cbranch_scc1 L_aq")
    e(f"s_lshl_b32 s60, s4, 13\ns_add_u32 s60, s60, 73728\nv_add_u32 v3, s60, v12")
    for Tt in range(4):
        if Tt:
            e(f"v_xor_b32 v4, {32*Tt}, v3")
        for kk in range(2):
            for hf in range(2):
                R = OF + 8 * Tt + 4 * kk + 2 * hf
                e(f"ds_read_b64_tr_b16 v[{R}:{R+1}], v{4 if Tt else 3} offset:{kk*4096 + hf*512}")
    e("s_branch L_aq\nL_aD:")
    for kk in range(18, 27):
        trread(kk)
    e("L_aq:\ns_mov_b32 s71, 0x07060302\ns_waitcnt lgkmcnt(0)\ns_barrier\ns_cmp_lg_u32 s4, 3\ns_cbranch_scc1 L_a3")
    stamp(4)
    e(f"""s_lshr_b32 s60, s9, 1
s_lshl_b32 s60, s60, 6
s_lshl_b32 s61, s8, 13
s_add_u32 s60, s60, s61
s_add_u32 s60, s60, {PBUF}
v_lshrrev_b32 v6, 2, v0
v_lshlrev_b32 v6, 9, v6
v_and_b32 v7, 3, v0
v_lshl_add_u32 v6, v7, 4, v6""")
    poll("buffer_load_dwordx4 v[20:23], v6, s[56:59], s60 offen sc1", None, None, 4, cmp=tagcmp([20, 21, 22, 23], 7))
    e(f"""v_perm_b32 v8, v21, v20, s71
v_perm_b32 v9, v23, v22, s71
v_lshlrev_b32 v6, 3, v0
v_add_u32 v6, {QS}, v6
ds_write_b64 v6, v[8:9]
v_mov_b32 v6, {QF}
v_mov_b32 v7, 1
s_waitcnt lgkmcnt(0)
ds_write_b32 v6, v7""")
    stamp(5)
    e("L_a3:")
    if dummy:
        e("s_lshl_b32 s60, s2, 2\ns_add_u32 s60, s60, s4\ns_lshl_b32 s60, s60, 11\ns_add_u32 s60, s60, 0x400000\nv_lshlrev_b32 v6, 5, v0")
        if dummy == 1:
            e(f"buffer_store_dwordx4 v[16:19], v2, s[56:59], s60 offen {dpol}\nbuffer_store_dwordx4 v[16:19], v2, s[56:59], s60 offen offset:1024 {dpol}")
        elif dummy == 2:
            e(f"buffer_store_dwordx4 v[16:19], v6, s[56:59], s60 offen {dpol}\nbuffer_store_dwordx4 v[16:19], v6, s[56:59], s60 offen offset:16 {dpol}")
        else:
            e(f"buffer_load_dwordx4 v[240:243], v2, s[56:59], s60 offen {dpol}\nbuffer_load_dwordx4 v[244:247], v2, s[56:59], s60 offen offset:1024 {dpol}")
    e("s_cmp_lt_u32 s2, 144\ns_cbranch_scc1 L_aO\ns_cmp_lt_u32 s2, 208\ns_cbranch_scc1 L_fin")

    e(f"""s_mul_i32 s60, s11, 9216
s_mul_i32 s61, s4, 2304
s_add_u32 s60, s60, s61
s_add_u32 s60, s60, {PBUF + 131072}
s_add_u32 s61, s60, {288 * 512}
s_mov_b32 s72, -1
s_mov_b32 s73, 0xffff
s_mov_b64 exec, s[72:73]""")
    G, U = 208, 220
    poll("\n".join([f"buffer_load_dwordx4 v[{G+4*k}:{G+4*k+3}], v2, s[56:59], s60 offen offset:{768*k} sc1" for k in range(3)] +
                   [f"buffer_load_dwordx4 v[{U+4*k}:{U+4*k+3}], v2, s[56:59], s61 offen offset:{768*k} sc1" for k in range(3)]),
         None, None, 8, restore="s[72:73]", cmp=tagcmp(list(range(G, G + 24)), 8))
    c0 = -2 * LOG2E * 0.7978845608028654
    e(f"v_mov_b32 v32, {f32(c0)}\nv_mov_b32 v33, {f32(c0 * 0.044715)}\ns_mul_i32 s60, s4, 144")
    for k in range(6):
        e(f"""v_and_b32 v34, s68, v{G+2*k}
v_and_b32 v35, s68, v{G+2*k+1}
v_mul_f32 v36, v34, v34
v_mul_f32 v37, v35, v35
v_fma_f32 v36, v36, v33, v32
v_fma_f32 v37, v37, v33, v32
v_mul_f32 v36, v36, v34
v_mul_f32 v37, v37, v35
v_exp_f32 v36, v36
v_exp_f32 v37, v37
v_and_b32 v38, s68, v{U+2*k}
v_add_f32 v36, 1.0, v36
v_add_f32 v37, 1.0, v37
v_rcp_f32 v36, v36
v_rcp_f32 v37, v37
v_and_b32 v39, s68, v{U+2*k+1}
v_mul_f32 v34, v34, v36
v_mul_f32 v35, v35, v37
v_cvt_pk_bf16_f32 v35, v34, v35
v_lshlrev_b32 v34, 16, v35
v_and_b32 v35, s68, v35
v_mul_f32 v34, v34, v38
v_mul_f32 v35, v35, v39
v_cvt_pk_bf16_f32 v{40+k}, v34, v35""")
    for k in range(3):
        e(f"""v_add_u32 v34, s60, v0
v_bfe_u32 v35, v34, 2, 3
v_mul_u32_u24 v35, 576, v35
v_and_b32 v36, 3, v34
v_lshl_add_u32 v35, v36, 3, v35
v_and_b32 v34, 0xffe0, v34
v_add_u32 v35, v35, v34
v_add_u32 v35, {HS}, v35
ds_write_b64 v35, v[{40+2*k}:{41+2*k}]
s_add_u32 s60, s60, 48""")
    e(f"""s_mov_b64 exec, 1
v_mov_b32 v8, {CNT}
v_mov_b32 v9, 1
s_waitcnt lgkmcnt(0)
ds_add_u32 v8, v9
s_mov_b32 s70, {LIMIT*8}
L_spin:
ds_read_b32 v9, v8
s_waitcnt lgkmcnt(0)
v_readfirstlane_b32 s60, v9
s_cmp_ge_u32 s60, 4
s_cbranch_scc1 L_spind
s_sub_u32 s70, s70, 1
s_cbranch_scc1 L_spind
s_sleep 2
s_branch L_spin
L_spind:
s_mov_b64 exec, -1
v_mul_u32_u24 v5, 576, v14
v_lshl_add_u32 v5, v10, 4, v5
v_add_u32 v5, {HS}, v5""")
    for i in range(9):
        e(f"ds_read_b128 v[{XN+4*i}:{XN+4*i+3}], v5 offset:{64*i}")
    e(f"""v_lshrrev_b32 v6, 2, v0
v_lshlrev_b32 v6, 12, v6
v_and_b32 v7, 3, v0
v_lshl_add_u32 v6, v7, 4, v6
v_mov_b32 v7, 0xffffff00
s_mul_i32 s60, s12, {3*32768}
s_lshr_b32 s61, s4, 1
s_lshl_b32 s61, s61, 11
s_add_u32 s60, s60, s61
s_and_b32 s61, s4, 1
s_lshl_b32 s61, s61, 6
s_add_u32 s60, s60, s61
s_lshl_b32 s61, s11, 7
s_add_u32 s60, s60, s61
s_add_u32 s60, s60, {DPART}
s_waitcnt lgkmcnt(0)""")
    for i in range(9):
        for sub in range(3):
            kk = 9 * sub + i
            A = AC + 4 * sub
            e(f"v_mfma_f32_16x16x32_bf16 v[{A}:{A+3}], v[{WF+4*kk}:{WF+4*kk+3}], v[{XN+4*i}:{XN+4*i+3}], {'0' if i == 0 else f'v[{A}:{A+3}]'}")
    for r in range(12):
        e(f"v_and_or_b32 v{AC+r}, v{AC+r}, v7, s6\nds_bpermute_b32 v{G+r}, v15, v{AC+r}")
    e("s_mov_b32 exec_hi, 0\ns_waitcnt lgkmcnt(0)")
    for sub in range(3 if "D" not in abl else 0):
        e(f"buffer_store_dwordx4 v[{G+4*sub}:{G+4*sub+3}], v6, s[56:59], s60 offen sc1")
        if sub < 2:
            e("s_add_u32 s60, s60, 32768")
    e("s_mov_b32 exec_hi, -1")
    stamp(6)
    e("s_branch L_fin")

    def gather_reduce(base, sleep):
        chk = "\n".join(f"v_xor_b32 v{16+i}, s6, v{16+i}" for i in range(8))
        chk += "\nv_or3_b32 v24, v16, v17, v18\nv_or3_b32 v25, v19, v20, v21\nv_or3_b32 v24, v24, v22, v23\nv_bitop3_b32 v24, v24, v26, v25 bitop3:0xc8\nv_cmp_ne_u32 vcc, 0, v24"
        poll("\n".join(f"buffer_load_dwordx2 v[{16+2*i}:{17+2*i}], v7, s[56:59], s{base} offen offset:{512*i} sc1" for i in range(4)), None, None, sleep, cmp=chk, masked=False)
        e("""v_pk_add_f32 v[16:17], v[16:17], v[18:19]
v_pk_add_f32 v[20:21], v[20:21], v[22:23]
v_pk_add_f32 v[16:17], v[16:17], v[20:21]
v_permlane32_swap_b32 v16, v17
v_add_f32 v16, v16, v17
v_mov_b32 v17, v16
v_permlane16_swap_b32 v16, v17
v_add_f32 v16, v16, v17""")
        rnd(16, 16)

    e(f"""L_aO:
v_mul_u32_u24 v6, {OSL}, v11
v_lshl_add_u32 v5, v10, 4, v6
s_mul_i32 s63, s8, {16*OSL}
s_add_u32 s63, s63, {OBUF}
s_lshl_b32 s61, s4, 7
s_add_u32 s62, s63, s61
s_lshr_b32 s61, s4, 1
s_lshl_b32 s61, s61, 2
s_add_u32 s63, s63, s61
s_lshl_b32 s61, s4, 11
s_add_u32 s61, s61, {RED2}
v_add_u32 v3, s61, v2
s_sub_u32 s64, s4, 1
v_lshrrev_b32 v8, 3, v0
v_and_b32 v9, 1, v8
v_lshlrev_b32 v9, 3, v9
v_add_u32 v9, v9, v10
v_and_b32 v4, 3, v0
v_lshl_add_u32 v9, v4, 4, v9
v_lshlrev_b32 v9, 4, v9
v_bfe_u32 v4, v0, 2, 1
v_lshl_add_u32 v9, v4, 10, v9
s_lshl_b32 s61, s64, 6
s_add_u32 s61, s61, {RED2}
v_add_u32 v4, s61, v9
v_lshlrev_b32 v8, 11, v8
v_lshl_add_u32 v15, v14, 4, v8
s_lshl_b32 s65, s9, 15
s_lshl_b32 s61, s8, 7
s_add_u32 s65, s65, s61
s_lshl_b32 s61, s64, 14
s_add_u32 s65, s65, s61
s_add_u32 s65, s65, {PART}
s_lshl_b32 s74, s9, 4
s_add_u32 s74, s74, s8
s_lshl_b32 s74, s74, 11
s_add_u32 s73, s74, {DPART}
s_add_u32 s74, s74, {PART}
v_mov_b32 v26, 0xff
v_mov_b32 v12, 0xffffff00
v_lshlrev_b32 v7, 3, v0
s_lshr_b32 s75, s8, 1
s_mul_i32 s75, s75, 1152
s_lshl_b32 s61, s9, 7
s_add_u32 s75, s75, s61
s_and_b32 s61, s8, 1
s_lshl_b32 s61, s61, 6
s_add_u32 s75, s75, s61
v_lshrrev_b32 v9, 5, v0
v_lshlrev_b32 v9, 1, v9
v_lshl_add_u32 v13, v11, 2, v9""")
    srd(48, 34, 9216)
    e("s_cmp_lg_u32 s4, 0\ns_cbranch_scc1 L_o1\nbuffer_load_ushort v50, v13, s[40:43], s75 offen")
    e(f"s_sleep {dsleep}\ns_sleep {dsleep}\ns_sleep {dsleep}")
    gather_reduce(73, dsleep)
    e("v_mov_b32 v51, v16\nv_lshlrev_b32 v50, 16, v50")
    stamp(4)
    e("L_o1:\ns_barrier")
    stamp(5)
    poll("""buffer_load_dwordx4 v[28:31], v5, s[56:59], s62 offen sc1
buffer_load_dwordx4 v[32:35], v5, s[56:59], s62 offen offset:64 sc1
buffer_load_dword v36, v6, s[56:59], s63 offen offset:512 sc1""", list(range(28, 37)), 37, psleep)
    stamp(6)
    for kk in range(2):
        for Tt in range(4):
            A = AC + 4 * Tt
            R = OF + 8 * Tt + 4 * kk
            e(f"v_mfma_f32_16x16x32_bf16 v[{A}:{A+3}], v[{R}:{R+3}], v[{28+4*kk}:{31+4*kk}], {'0' if kk == 0 else f'v[{A}:{A+3}]'}")
        if kk == 0:
            e("v_sub_f32_dpp v37, v36, v36 row_ror:8 row_mask:0xf bank_mask:0xf\nv_exp_f32 v37, v37")
    e("v_add_f32 v37, 1.0, v37\nv_rcp_f32 v37, v37")
    for r in range(16):
        e(f"v_mul_f32 v{AC+r}, v{AC+r}, v37")
    for tt in range(2):
        for r in range(4):
            e(f"v_add_f32_dpp v{40+4*tt+r}, v{AC+4*tt+r}, v{AC+4*tt+r} row_ror:8 row_mask:0xf bank_mask:0x3")
            e(f"v_add_f32_dpp v{40+4*tt+r}, v{AC+8+4*tt+r}, v{AC+8+4*tt+r} row_ror:8 row_mask:0xf bank_mask:0xc")
        e(f"ds_write_b128 v3, v[{40+4*tt}:{43+4*tt}] offset:{1024*tt}")
    e("s_waitcnt lgkmcnt(0)\ns_barrier\ns_cmp_eq_u32 s4, 0\ns_cbranch_scc1 L_o2\ns_cmp_eq_u32 s4, 3\ns_cbranch_scc1 L_fin")
    for w in range(4):
        e(f"ds_read_b128 v[{16+4*w}:{19+4*w}], v4 offset:{2048*w}")
    e("""s_waitcnt lgkmcnt(2)
v_pk_add_f32 v[16:17], v[16:17], v[20:21]
v_pk_add_f32 v[18:19], v[18:19], v[22:23]
s_waitcnt lgkmcnt(0)
v_pk_add_f32 v[24:25], v[24:25], v[28:29]
v_pk_add_f32 v[26:27], v[26:27], v[30:31]
v_pk_add_f32 v[16:17], v[16:17], v[24:25]
v_pk_add_f32 v[18:19], v[18:19], v[26:27]""")
    for r in range(4):
        e(f"v_and_or_b32 v{16+r}, v{16+r}, v12, s6")
    e("buffer_store_dwordx4 v[16:19], v15, s[56:59], s65 offen sc1")
    stamp(7)
    e("s_branch L_fin\nL_o2:")
    gather_reduce(74, psleep)
    e("v_add_f32 v16, v16, v50")
    rnd(16, 16)
    e("""v_add_f32 v16, v16, v51
v_cvt_pk_bf16_f32 v16, v16, v16
s_mov_b32 exec_lo, 0xffff
s_mov_b32 exec_hi, 0xffff
buffer_store_short v16, v13, s[48:51], s75 offen
s_mov_b64 exec, 1
s_cmp_lg_u32 s2, 0
s_cbranch_scc1 L_o3
v_mov_b32 v17, s14
buffer_store_dword v17, v7, s[56:59], 0 offen
L_o3:
s_mov_b64 exec, -1""")
    stamp(7)
    if probe:
        if probe[1] is not None:
            e(f"s_and_b32 s60, s2, {probe[1]}\ns_cmp_lg_u32 s60, {probe[2]}\ns_cbranch_scc1 L_fin")
        e(f"L_probe:\ns_memrealtime s[76:77]\ns_waitcnt lgkmcnt(0)\ns_sub_u32 s60, s76, s{80 + 2 * probe[0]}\ns_cmp_lt_u32 s60, 5000\ns_cbranch_scc1 L_probe")
    e("L_fin:")
    if diag:
        e("s_waitcnt vmcnt(0)\ns_memrealtime s[76:77]\ns_waitcnt lgkmcnt(0)\ns_getreg_b32 s77, hwreg(HW_REG_XCC_ID)")
        for i in range(8):
            e(f"v_mov_b32 v{16+i}, s{80+2*i}")
        e(f"v_mov_b32 v24, s76\nv_mov_b32 v25, s77\nv_mov_b32 v1, 0\ns_lshl_b32 s60, s2, 3\ns_add_u32 s60, s60, s3\ns_lshl_b32 s60, s60, 6\ns_add_u32 s60, s60, {STAMP}")
        e("s_mov_b64 exec, 1\nbuffer_store_dwordx4 v[16:19], v1, s[56:59], s60 offen\nbuffer_store_dwordx4 v[20:23], v1, s[56:59], s60 offen offset:16\nbuffer_store_dwordx2 v[24:25], v1, s[56:59], s60 offen offset:32")
    e("L_end:\ns_endpgm")
    e(f""".section .rodata,"a"
.p2align 6
.amdhsa_kernel {KN}
.amdhsa_next_free_vgpr 256
.amdhsa_next_free_sgpr 102
.amdhsa_accum_offset 256
.amdhsa_group_segment_fixed_size 0
.amdhsa_kernarg_size 96
.amdhsa_user_sgpr_count 2
.amdhsa_user_sgpr_kernarg_segment_ptr 1
.amdhsa_system_sgpr_workgroup_id_x 1
.amdhsa_float_denorm_mode_32 3
.end_amdhsa_kernel""")
    return top + e.text()


if __name__ == "__main__":
    kw = eval("dict(" + (sys.argv[2] if len(sys.argv) > 2 else "") + ")")
    open(sys.argv[1], "w").write(gen(**kw))


def report(T, pc):
    S = T[:, :4]; A = T[:, 4:]
    print("  start", pc(T[:, :, 0]), "| stream: B1", pc(S[:, :, 1]), "preB2", pc(S[:, :, 2]), "B2wait", pc(S[:, :, 3] - S[:, :, 2]), "preB3", pc(S[:, :, 6]), "B3wait", pc(S[:, :, 7] - S[:, :, 6]), "done", pc(S[:, :, 4]), "wgdone", pc(S[:, :, 4].max(1)), "opub", pc(S[:, 0, 5]))
    print("  aux: LN", pc(A[:, :, 1]), "B1", pc(A[:, :, 2]), "Qpub", pc(A[144:208, :, 3]), "Gpub", pc(A[:144, :, 3]), "B2", pc(A[:, 3, 4]), "q(nonO)", pc(A[144:, 3, 5]), "Dpub", pc(A[208:, :, 6]), "dgath", pc(A[:144, 0, 4]))
    print("  tail: B4", pc(A[:144, :, 5]), "ogath", pc(A[:144, :, 6]), "ppub", pc(A[:144, 1:3, 7]), "out", pc(A[:144, 0, 7]), "end", pc(T[:, :, 8]))
    wd = S[:, :, 4].max(1)
    print("  wgdone by role GO/Q/D", wd[:144].mean().round(2), wd[144:208].mean().round(2), wd[208:].mean().round(2), "by w%8", [float(wd[i::8].mean().round(1)) for i in range(8)], flush=True)
```

```python
import sys, struct
sys.path.insert(0, "dev")
from asmlib import Asm

KN = "parallel_sum__sliding_block_cached__geglu_ffn__decode_kernel"
REF = "parallel_sum__sliding_block_cached__geglu_ffn__decode.s.ref"

XS, QS, HS, ML, CNT, RED, RED2, LDS_SZ = 110592, 119808, 120320, 124928, 124992, 125056, 129152, 137344
PBUF, OBUF, PART, DPART = 0x1000, 0x70000, 0xA0000, 0xF0000
OSL = 640
WS_SZ = 0x140000
QF = CNT + 4
STAMP = 0x200000
LIMIT = 400000


def f32(x):
    return "0x%08x" % struct.unpack("<I", struct.pack("<f", x))[0]


LOG2E = 1.4426950408889634


def gen(d=6, d2=6, dq=6, dsleep=40, stouch=0, ktouch=None, vtouch=None, diag=0, xpol="", pref=0, psleep=1, touch=0, R=6, probe=None, abl="", kvpol="nt", wpol="nt", dummy=0, dpol="sc1"):
    e = Asm()
    uid = [0]

    def stamp(i):
        if diag or (probe and probe[0] == i):
            e(f"s_memrealtime s[{80 + 2 * i}:{81 + 2 * i}]")

    def srd(b, lo, size):
        e(f"s_mov_b32 s{b}, s{lo}\ns_mov_b32 s{b+1}, s{lo+1}\ns_mov_b32 s{b+2}, {size}\ns_mov_b32 s{b+3}, 0x20000")

    def rnd(dst, src):
        e(f"v_cvt_pk_bf16_f32 v{dst}, v{src}, v{src}\nv_lshlrev_b32 v{dst}, 16, v{dst}")

    def poll(loads, regs, tmp, sleep, restore="-1", cmp=None, masked=True):
        uid[0] += 1
        L = f"L_poll{uid[0]}"
        e(f"s_mov_b32 s70, {0 if 'p' in abl else LIMIT}\n{L}:")
        if not ("g" in abl and cmp):
            e(loads)
        e("s_waitcnt vmcnt(0)")
        if cmp:
            e(cmp)
        else:
            r = list(regs)
            cur = r.pop(0)
            while r:
                if len(r) >= 2:
                    e(f"v_max3_u32 v{tmp}, v{cur}, v{r[0]}, v{r[1]}")
                    r = r[2:]
                else:
                    e(f"v_max_u32 v{tmp}, v{cur}, v{r[0]}")
                    r = r[1:]
                cur = tmp
            e(f"v_cmp_eq_u32 vcc, -1, v{cur}")
        e(f"s_and_b64 exec, exec, vcc\ns_cbranch_scc0 {L}_d" if masked else f"s_cbranch_vccz {L}_d")
        e(f"s_sub_u32 s70, s70, 1\ns_cbranch_scc1 {L}_d")
        if sleep:
            e(f"s_sleep {sleep}")
        e(f"s_branch {L}\n{L}_d:")
        if masked:
            e(f"s_mov_b64 exec, {restore}")

    def tagcmp(regs, tmp):
        out = [f"v_xor_b32 v{tmp}, s15, v{regs[0]}"]
        for r in regs[1:]:
            out.append(f"v_bitop3_b32 v{tmp}, v{r}, v{tmp}, s15 bitop3:0xde")
        out.append(f"v_and_b32 v{tmp}, 0xffff, v{tmp}\nv_cmp_ne_u32 vcc, 0, v{tmp}")
        return "\n".join(out)

    def kvbase(sd, st):
        e(f"""s_lshr_b32 s{sd}, s9, 1
s_lshl_b32 s{sd}, s{sd}, 4
s_add_u32 s{sd}, s{sd}, s8
s_lshl_b32 s{sd}, s{sd}, 21
s_and_b32 s{st}, s9, 1
s_lshl_b32 s{st}, s{st}, 18
s_add_u32 s{sd}, s{sd}, s{st}
s_add_u32 s{sd}, s{sd}, {6144*256}""")

    def allred_g(v, t, op):
        e(f"v_mov_b32 v{t}, v{v}\nv_permlane16_swap_b32 v{v}, v{t}\n{op} v{v}, v{v}, v{t}")
        e(f"v_mov_b32 v{t}, v{v}\nv_permlane32_swap_b32 v{v}, v{t}\n{op} v{v}, v{v}, v{t}")

    hdr = [l.rstrip("\n") for l in open(REF) if l.startswith(";") and "@launch" not in l and "Override" not in l and "grid=ceil" not in l]
    top = "\n".join(hdr) + f"\n; @launch grid=(256,1,1) block=(512,1,1) lds={LDS_SZ}\n"
    e(f""".amdgcn_target "amdgcn-amd-amdhsa--gfx950"
.text
.globl {KN}
.p2align 8
.type {KN},@function
{KN}:""")
    e("s_cmp_ge_u32 s2, 256\ns_cbranch_scc1 L_end")
    e("s_load_dwordx16 s[16:31], s[0:1], 0\ns_load_dwordx8 s[32:39], s[0:1], 64")
    stamp(0)
    e("v_lshrrev_b32 v1, 6, v0\nv_and_b32 v0, 63, v0\nv_readfirstlane_b32 s3, v1")
    e("s_and_b32 s8, s2, 15\ns_lshr_b32 s9, s2, 4")
    e("s_mov_b32 s11, s8\ns_sub_u32 s12, s9, 13\ns_lshl_b32 s10, s8, 2\ns_add_u32 s10, s10, s9\ns_sub_u32 s10, s10, 9")
    e("s_cmp_ge_u32 s3, 4\ns_cbranch_scc1 " + ("L_aux" if "a" not in abl else "L_end"))

    VO, KD, KR, MK, VW1, VW2, Q, KF, AB, ACC, T, SP, MRUN, NEGM, LS, VV = 1, 2, 6, 10, 14, 15, 16, 32, 48, 64, 68, 84, 120, 121, 122, 128
    e("""v_lshrrev_b32 v1, 3, v0
v_and_b32 v2, 7, v0
v_and_b32 v3, 2, v1
s_and_b32 s5, s3, 1
s_lshl_b32 s5, s5, 2
v_or_b32 v3, s5, v3
""" + ("" if "w" in abl else "v_xor_b32 v2, v2, v3") + """
v_lshlrev_b32 v2, 4, v2
s_lshl_b32 m0, s3, 10
s_mov_b32 s43, 0x20000
""" + ("s_waitcnt lgkmcnt(0)\ns_branch L_sV" if "W" in abl else "") + """
s_cmp_ge_u32 s2, 208
s_cbranch_scc1 L_sD
s_cmp_ge_u32 s2, 144
s_cbranch_scc1 L_sQ
s_cmp_ge_u32 s2, 72
s_cselect_b32 s6, 72, 0
s_waitcnt lgkmcnt(0)
s_cselect_b32 s40, s30, s28
s_cselect_b32 s41, s31, s29
s_sub_u32 s6, s2, s6
s_movk_i32 s7, 9216""")
    e(f"s_mov_b32 s42, {576*9216}\ns_branch L_sP\nL_sQ:")
    e(f"""s_lshl_b32 s60, s10, 7
s_lshl_b32 s61, s3, 16
s_add_u32 s60, s60, s61
s_mov_b32 s42, {576*8192}
v_lshl_add_u32 v{VW1}, v1, 13, v2
s_mov_b32 s66, 18
s_waitcnt lgkmcnt(0)
s_mov_b32 s40, s22
s_mov_b32 s41, s23
L_wq:
s_waitcnt vmcnt({dq-1})
buffer_load_dwordx4 v{VW1}, s[40:43], s60 offen {wpol} lds
s_add_u32 s60, s60, {32*8192}
s_add_u32 m0, m0, 4096""")
    if vtouch is not None:
        e(f"s_cmp_lg_u32 s66, {10}\ns_cbranch_scc1 L_vt2")
        kvbase(74, 75)
        e("s_add_u32 s72, s20, s74\ns_addc_u32 s73, s21, 0\ns_load_dword s97, s[72:73], 0\nL_vt2:")
    e("""s_sub_u32 s66, s66, 1
s_cmp_lg_u32 s66, 0
s_cbranch_scc1 L_wq
s_branch L_sV""")
    e("""L_sP:
s_lshl_b32 s60, s6, 7
s_mul_i32 s61, s3, s7
s_lshl_b32 s61, s61, 3
s_add_u32 s60, s60, s61
s_lshl_b32 s62, s7, 5
s_mov_b32 s63, s62
s_movk_i32 s64, 4096
s_movk_i32 s65, 4096
s_mov_b32 s66, 6
s_branch L_sW
L_sD:""")
    e(f"""s_mul_i32 s60, s11, {288*1152}
s_mul_i32 s61, s3, {8*1152}
s_add_u32 s60, s60, s61
s_mul_i32 s61, s12, 384
s_add_u32 s60, s60, s61
s_movk_i32 s62, 128
s_mov_b32 s63, {36864-256}
s_mov_b32 s64, 36864
s_mov_b32 s65, {4096-73728}
s_mov_b32 s66, 9
s_movk_i32 s7, 1152
s_mov_b32 s42, {4608*1152}
s_waitcnt lgkmcnt(0)
s_mov_b32 s40, s32
s_mov_b32 s41, s33
L_sW:
v_mad_u32_u24 v{VW1}, v1, s7, v2
L_w1:""")
    for k in range(3):
        e(f"s_waitcnt vmcnt({d-1})\nbuffer_load_dwordx4 v{VW1}, s[40:43], s60 offen {wpol} lds")
        e(f"s_add_u32 s60, s60, s{62 if k < 2 else 63}\ns_add_u32 m0, m0, s{64 if k < 2 else 65}")
    if vtouch is not None:
        e(f"s_cmp_lg_u32 s66, {vtouch}\ns_cbranch_scc1 L_vt1")
        kvbase(74, 75)
        e("s_add_u32 s72, s20, s74\ns_addc_u32 s73, s21, 0\ns_load_dword s97, s[72:73], 0\nL_vt1:")
    e("s_sub_u32 s66, s66, 1\ns_cmp_lg_u32 s66, 0\ns_cbranch_scc1 L_w1")
    e("s_cmp_ge_u32 s2, 144\ns_cbranch_scc1 L_sV")
    srd(44, 24, 4096 * 1152)
    e(f"""s_movk_i32 s7, 1152
v_mad_u32_u24 v{VW2}, v1, s7, v2
s_mul_i32 s60, s8, {256*1152}
s_mul_i32 s61, s3, {8*1152}
s_add_u32 s60, s60, s61
s_lshl_b32 s61, s9, 7
s_add_u32 s60, s60, s61
s_mov_b32 s62, {32*1152}
s_mov_b32 s66, 8
L_w2:
s_waitcnt vmcnt({d-1})
buffer_load_dwordx4 v{VW2}, s[44:47], s60 offen {wpol} lds
s_add_u32 s60, s60, s62
s_add_u32 m0, m0, s64
s_sub_u32 s66, s66, 1
s_cmp_lg_u32 s66, 0
s_cbranch_scc1 L_w2
L_sV:""")
    srd(48, 18, 0x10000000)
    srd(52, 20, 0x10000000)
    kvbase(60, 61)
    e(f"""s_lshl_b32 s61, s3, 12
s_add_u32 s60, s60, s61
s_mul_i32 s67, s3, {R*4096}
v_lshlrev_b32 v{VO}, 4, v0""")

    work = {}

    def at(slot, fn):
        work.setdefault(slot, []).append(fn)

    def setup():
        e(f"v_lshrrev_b32 v{T}, 4, v0\nv_and_b32 v{T+1}, 15, v0\nv_lshlrev_b32 v{T+2}, 2, v{T}\nv_xor_b32 v{T+2}, v{T+2}, v{T+1}")
        e(f"v_lshlrev_b32 v{T+2}, 4, v{T+2}\nv_lshl_add_u32 v{KD}, v{T}, 8, v{T+2}")
        for r in range(1, 4):
            e(f"v_xor_b32 v{KD+r}, {16*r}, v{KD}")
        e(f"v_and_b32 v{T+2}, 3, v0\nv_lshlrev_b32 v{T+2}, 2, v{T+2}\nv_lshrrev_b32 v{T+3}, 2, v{T+1}\nv_or_b32 v{T+2}, v{T+2}, v{T+3}")
        e(f"v_lshl_add_u32 v{T+2}, v{T+2}, 8, s67\nv_xor_b32 v{T+3}, v{T}, v{T+1}\nv_lshl_add_u32 v{KR}, v{T+3}, 4, v{T+2}")
        for t in range(1, 4):
            e(f"v_xor_b32 v{KR+t}, {64*t}, v{KR}")
        e(f"v_and_b32 v{T+2}, 1, v0\nv_lshlrev_b32 v{T+2}, 4, v{T+2}\nv_mov_b32 v{T+3}, 0xffff\nv_lshlrev_b32 v{T+3}, v{T+2}, v{T+3}\nv_bfe_u32 v{T+2}, v0, 1, 2")
        for r in range(4):
            e(f"v_cmp_eq_u32 vcc, {r}, v{T+2}\nv_cndmask_b32 v{MK+r}, 0, v{T+3}, vcc")
        e(f"v_lshrrev_b32 v{T+2}, 3, v{T+1}\nv_lshlrev_b32 v{T+2}, 8, v{T+2}\nv_lshl_add_u32 v{T+2}, v{T}, 4, v{T+2}\nv_add_u32 v{VW1}, {QS}, v{T+2}")
        e(f"s_mov_b32 s68, 0xffff0000\ns_mov_b32 s69, {f32(128 ** -0.5)}\ns_mov_b32 s71, {f32(LOG2E)}")
        e(f"v_mov_b32 v{LS}, 0\nv_mov_b32 v{MRUN}, 0xff800000")
        for r in range(4):
            e(f"v_mov_b32 v{ACC+r}, 0")
        srd(56, 38, WS_SZ if not (diag or dummy) else 0x800000)

    at(d, setup)

    def ktouchf():
        e("s_add_u32 s72, s18, s60\ns_addc_u32 s73, s19, 0\ns_load_dword s96, s[72:73], 0")

    if ktouch is not None:
        at(ktouch, ktouchf)

    def sreg(c):
        return SP + 4 * (c if c < 8 else (8 if c == 8 else c - 9))

    def kread(c):
        def f():
            for t in range(4):
                e(f"ds_read_b128 v[{KF+4*t}:{KF+4*t+3}], v{KR+t} offset:{(c % R) * 4096}")
        return f

    def kmma(c):
        def f():
            S = sreg(c)
            e("s_waitcnt lgkmcnt(0)")
            for t in range(4):
                e(f"v_mfma_f32_16x16x32_bf16 v[{S}:{S+3}], v[{KF+4*t}:{KF+4*t+3}], v[{Q+4*t}:{Q+4*t+3}], {'0' if t == 0 else f'v[{S}:{S+3}]'}")
        return f

    def kround(c):
        def f():
            S = sreg(c)
            for _ in range(2):
                e(f"v_cvt_pk_bf16_f32 v{T}, v{S}, v{S+1}\nv_cvt_pk_bf16_f32 v{T+1}, v{S+2}, v{S+3}")
                e(f"v_lshlrev_b32 v{S}, 16, v{T}\nv_and_b32 v{S+1}, s68, v{T}\nv_lshlrev_b32 v{S+2}, 16, v{T+1}\nv_and_b32 v{S+3}, s68, v{T+1}")
                if _ == 0:
                    for r in range(4):
                        e(f"v_mul_f32 v{S+r}, s69, v{S+r}")
            e(f"v_max3_f32 v{MRUN}, v{MRUN}, v{S}, v{S+1}\nv_max3_f32 v{MRUN}, v{MRUN}, v{S+2}, v{S+3}")
        return f

    def maxA():
        allred_g(MRUN, T, "v_max_f32")
        e(f"v_mul_f32 v{NEGM}, s71, v{MRUN}\nv_sub_f32 v{NEGM}, 0, v{NEGM}")

    def maxB():
        allred_g(MRUN, T, "v_max_f32")
        e(f"v_mul_f32 v{T+1}, s71, v{MRUN}\nv_add_f32 v{T+2}, v{NEGM}, v{T+1}\nv_sub_f32 v{NEGM}, 0, v{T+1}\nv_exp_f32 v{T+2}, -v{T+2}")
        e(f"v_mul_f32 v{LS}, v{LS}, v{T+2}\nv_mov_b32 v{T+3}, v{T+2}")
        e(f"v_mov_b32_dpp v{T+3}, v{T+2} row_ror:8 row_mask:0x3 bank_mask:0xc\nv_mov_b32_dpp v{T+3}, v{T+2} row_ror:8 row_mask:0xc bank_mask:0x3")
        for r in range(4):
            e(f"v_mul_f32 v{ACC+r}, v{ACC+r}, v{T+3}")

    def pexp(c):
        def f():
            S = sreg(c)
            for r in range(4):
                e(f"v_fma_f32 v{S+r}, v{S+r}, s71, v{NEGM}")
            for r in range(4):
                e(f"v_exp_f32 v{S+r}, v{S+r}")
            e(f"v_add_f32 v{T}, v{S}, v{S+1}\nv_add_f32 v{T+1}, v{S+2}, v{S+3}\nv_add_f32 v{LS}, v{LS}, v{T}\nv_add_f32 v{LS}, v{LS}, v{T+1}")
            for r in range(4):
                e(f"v_cvt_pk_bf16_f32 v{S+r}, v{S+r}, v{S+r}")
        return f

    def aprep(c, r):
        def f():
            for k in range(4):
                e(f"v_and_b32 v{AB+4*r+k}, v{sreg(c)+r}, v{MK+k}")
        return f

    def pv(c, r):
        def f():
            V = VV + 16 * (c % 8) + 4 * r
            e(f"v_mfma_f32_16x16x32_bf16 v[{ACC}:{ACC+3}], v[{AB+4*r}:{AB+4*r+3}], v[{V}:{V+3}], v[{ACC}:{ACC+3}]")
        return f

    def mlwrite():
        allred_g(LS, T, "v_add_f32")
        e(f"v_sub_f32 v{T+2}, 0, v{NEGM}\nv_mov_b32 v{T+3}, v{LS}")
        e(f"v_bfe_u32 v{T}, v0, 3, 1\nv_lshlrev_b32 v{T}, 5, v{T}\ns_lshl_b32 s63, s3, 3\ns_add_u32 s63, s63, {ML}\nv_add_u32 v{T}, s63, v{T}")
        e(f"ds_write_b64 v{T}, v[{T+2}:{T+3}]")
        e(f"s_lshl_b32 s63, s3, 10\ns_add_u32 s63, s63, {RED}\nv_add_u32 v{VW2}, s63, v{VO}")
        e(f"""v_lshrrev_b32 v2, 5, v0
v_lshlrev_b32 v3, 5, v2
v_add_u32 v3, {ML}, v3
v_lshlrev_b32 v4, 3, v0
v_lshlrev_b32 v5, 2, v2
v_and_b32 v6, 1, v0
v_lshl_add_u32 v6, v2, 1, v6
v_bfe_u32 v7, v0, 1, 4
v_lshl_add_u32 v6, v6, 4, v7
v_lshlrev_b32 v6, 4, v6
v_add_u32 v6, {RED}, v6
s_lshr_b32 s62, s9, 1
s_and_b32 s63, s9, 1
s_lshl_b32 s63, s63, 3
s_add_u32 s62, s62, s63
s_lshl_b32 s63, s8, 4
s_add_u32 s63, s63, s62
s_mul_i32 s63, s63, {OSL}
s_add_u32 s63, s63, {OBUF}""")

    def dep(n):
        return d if n < 96 else d2

    landed = {}
    for n in range(128 + 64):
        top_done = (n - dep(n)) if n < 128 else min(127, n - d2)
        for m in range(top_done + 1):
            landed.setdefault(m, n)
    qslot = 32 + 4 * R - 3

    def qread():
        stamp(6)
        e(f"v_mov_b32 v{T}, {QF}\ns_mov_b32 s70, {0 if 'a' in abl else LIMIT*8}\nL_qw:\nds_read_b32 v{T+1}, v{T}")
        for t in range(4):
            e(f"ds_read_b128 v[{Q+4*t}:{Q+4*t+3}], v{VW1} offset:{64*t}")
        e(f"""s_waitcnt lgkmcnt(0)
v_readfirstlane_b32 s63, v{T+1}
s_cmp_lg_u32 s63, 0
s_cbranch_scc1 L_qd
s_sub_u32 s70, s70, 1
s_cbranch_scc1 L_qd
s_sleep 2
s_branch L_qw
L_qd:""")
        stamp(7)

    at(qslot, qread)
    kslot = {}
    for c in range(16):
        n0 = kslot[c] = max(landed[35 + 4 * c], qslot + 2 * c)
        assert c + R >= 16 or n0 + 1 < 32 + 4 * (c + R)
        at(n0, kread(c))
        at(n0 + 1, kmma(c))
        at(n0 + 2, kround(c))
    sA = kslot[7] + 3
    at(sA, maxA)
    for j in range(8):
        s0 = sA + 1 + 3 * j
        at(s0, pexp(j))
        at(s0 + 1, aprep(j, 0)); at(s0 + 1, aprep(j, 1)); at(s0 + 1, pv(j, 0)); at(s0 + 1, pv(j, 1))
        at(s0 + 2, aprep(j, 2)); at(s0 + 2, aprep(j, 3)); at(s0 + 2, pv(j, 2)); at(s0 + 2, pv(j, 3))
        assert s0 + 2 < 96 + 4 * j
        if j < 7:
            assert s0 + 2 < kslot[9 + j] + 1
    sB = kslot[15] + 3
    at(sB, maxB)
    pre = {}
    for j in range(8):
        at(sB + 1 + j, pexp(8 + j))
    at(sB + 9, mlwrite)
    last = 0
    for n in range(96, 128):
        j, r = (n - 96) // 4, n % 4
        s = max(landed[n], sB + 2 + j, last)
        last = s
        pre.setdefault(s, []).append((8 + j, r))
    nslots = max(max(work), last) + 1
    for n in range(nslots):
        todo = pre.get(n, [])
        assert len(todo) <= 4
        if "c" in abl:
            todo = []
            work[n] = [f for f in work.get(n, []) if f in (setup, qread, mlwrite)]
        for (c, r) in todo:
            aprep(c, r)()
        if n < 128:
            if n < 32 or n >= 96:
                i = n if n < 32 else n - 64
                if i % 4 == 0:
                    e(f"s_add_u32 s61, s60, {(i // 4) * 16384}")
                e(f"s_waitcnt vmcnt({dep(n)-1})")
                if n == d - 1:
                    stamp(1)
                    e("s_barrier")
                V = VV + 4 * (i % 32)
                e(f"buffer_load_dwordx4 v[{V}:{V+3}], v{VO}, s[52:55], s61 offen offset:{(i % 4) * 1024} {kvpol}")
            else:
                i = n - 32
                if i % 4 == 0:
                    e(f"s_add_u32 s62, s60, {(i // 4) * 16384}\ns_add_u32 m0, s67, {((i // 4) % R) * 4096}")
                e(f"s_waitcnt vmcnt({dep(n)-1})")
                e(f"buffer_load_dwordx4 v{VO if 'k' in abl else KD + i % 4}, s[48:51], s62 offen offset:{(i % 4) * 1024} {kvpol} lds")
            if n == 31:
                stamp(2)
                e("s_barrier")
                stamp(3)
        elif n - d2 <= 127:
            e(f"s_waitcnt vmcnt({127 - (n - d2)})")
        for (c, r) in todo:
            pv(c, r)()
        for fn in work.get(n, []):
            fn()
    e(f"ds_write_b128 v{VW2}, v[{ACC}:{ACC+3}]")
    stamp(4)
    e("s_waitcnt lgkmcnt(0)\ns_barrier\ns_cmp_lg_u32 s3, 0\ns_cbranch_scc1 L_fin")
    e(f"ds_read_b128 v[16:19], v3\nds_read_b128 v[20:23], v3 offset:16")
    for w in range(4):
        e(f"ds_read_b128 v[{28+4*w}:{31+4*w}], v6 offset:{1024*w}")
    e(f"""s_waitcnt lgkmcnt(4)
v_max3_f32 v24, v16, v18, v20
v_max_f32 v24, v24, v22
v_sub_f32 v16, v16, v24
v_sub_f32 v18, v18, v24
v_sub_f32 v20, v20, v24
v_sub_f32 v22, v22, v24
v_exp_f32 v16, v16
v_exp_f32 v18, v18
v_exp_f32 v20, v20
v_exp_f32 v22, v22
v_mul_f32 v25, v16, v17
v_fmac_f32 v25, v18, v19
v_fmac_f32 v25, v20, v21
v_fmac_f32 v25, v22, v23
v_rcp_f32 v26, v25
v_log_f32 v27, v25""")
    e("s_waitcnt lgkmcnt(0)")
    for r in range(4):
        e(f"v_mul_f32 v{ACC+r}, v{28+r}, v16")
    for w in range(1, 4):
        for r in range(4):
            e(f"v_fmac_f32 v{ACC+r}, v{28+4*w+r}, v{16+2*w}")
    for r in range(4):
        e(f"v_mul_f32 v{ACC+r}, v{ACC+r}, v26")
    e(f"""v_cvt_pk_bf16_f32 v28, v{ACC}, v{ACC+1}
v_cvt_pk_bf16_f32 v29, v{ACC+2}, v{ACC+3}
v_add_f32 v27, v27, v24
v_min_u32 v28, -2, v28
v_min_u32 v29, -2, v29
v_min_u32 v27, -2, v27
buffer_store_dwordx2 v[28:29], v4, s[56:59], s63 offen sc1
s_mov_b32 exec_lo, 1
s_mov_b32 exec_hi, 1
buffer_store_dword v27, v5, s[56:59], s63 offen offset:512 sc1
s_mov_b64 exec, -1""")
    stamp(5)
    e("s_branch L_fin")

    XN, WF, OF, AC = 16, 52, 160, 192
    e("L_aux:\ns_sub_u32 s4, s3, 4\nv_mul_u32_u24 v1, 36, v0\ns_mul_i32 s5, s4, 2304\nv_lshlrev_b32 v2, 4, v0")
    e(f"s_add_u32 s13, s2, 64\ns_cmp_ge_u32 s2, 144\ns_cselect_b32 s13, s10, s13\ns_lshl_b32 s13, s13, 11\ns_add_u32 s13, s13, {PBUF}")
    e("s_waitcnt lgkmcnt(0)")
    e("s_load_dword s14, s[38:39], 0" if "e" not in abl else "s_mov_b32 s14, 5")
    srd(40, 16, 9216)
    srd(56, 38, WS_SZ if not (diag or dummy) else 0x800000)
    if stouch:
        kvbase(60, 61)
        e("""s_add_u32 s62, s20, s60
s_addc_u32 s63, s21, 0
s_load_dword s96, s[62:63], 0
s_add_u32 s64, s18, s60
s_addc_u32 s65, s19, 0
s_load_dword s97, s[64:65], 0""")
        if stouch > 1:
            e("s_lshl_b32 s60, s4, 21\ns_min_u32 s60, s60, 0x47ff00")
            for i, p in enumerate((22, 24, 28, 30, 32)):
                e(f"s_add_u32 s62, s{p}, s60\ns_addc_u32 s63, s{p+1}, 0\ns_load_dword s{98 + i % 4}, s[62:63], 0")
            e("s_load_dword s99, s[34:35], 0")
    if touch:
        e("s_cmp_lg_u32 s4, 1\ns_cbranch_scc1 L_at")
        srd(48, 18, 0x10000000)
        srd(52, 20, 0x10000000)
        kvbase(60, 61)
        e(f"""v_mul_u32_u24 v3, {262144 // touch}, v0
s_mov_b64 exec, {hex((1 << touch) - 1) if touch < 64 else -1}
buffer_load_dword v60, v3, s[52:55], s60 offen nt
buffer_load_dword v61, v3, s[48:51], s60 offen nt
s_mov_b64 exec, 1""")
        srd(48, 24, 4096 * 1152)
        srd(52, 34, 9216)
        e(f"""s_mul_i32 s60, s8, {256*1152}
buffer_load_dword v62, v3, s[48:51], s60 offen nt
buffer_load_dword v63, v3, s[52:55], 0 offen
s_mov_b64 exec, -1
L_at:""")
    if pref:
        e(f"""s_cmp_lg_u32 s4, 2
s_cbranch_scc1 L_a0
s_getpc_b64 s[60:61]
L_pc:
s_sub_u32 s60, s60, L_pc-{KN}
s_subb_u32 s61, s61, 0
s_lshr_b32 s62, s2, 3
s_lshl_b32 s62, s62, 10
v_add_u32 v3, s62, v2
v_min_u32 v3, L_end-{KN}-12, v3
v_mov_b32 v5, s61
v_add_co_u32 v4, vcc, s60, v3
v_addc_co_u32 v5, vcc, 0, v5, vcc
global_load_dwordx4 v[28:31], v[4:5], off
L_a0:""")
    for k in range(3 if "x" not in abl else 0):
        e(f"buffer_load_dwordx3 v[{16+4*k}:{18+4*k}], v1, s[40:43], s5 offen offset:{12*k} {xpol}")
    e(f"""s_sub_u32 s60, s2, 144
s_cmp_ge_u32 s60, 64
s_cbranch_scc1 L_a1
v_mov_b32 v4, -1
v_mov_b32 v5, -1
v_mov_b32 v6, -1
v_mov_b32 v7, -1
s_lshl_b32 s60, s10, 2
s_add_u32 s60, s60, s4
s_mul_i32 s60, s60, {OSL}
s_add_u32 s60, s60, {OBUF}
s_mov_b32 exec_hi, 0xff
""" + ("" if "r" in abl else "buffer_store_dwordx4 v[4:7], v2, s[56:59], s60 offen sc1") + """
s_mov_b32 exec_hi, -1
L_a1:""")
    e(f"v_mov_b32 v8, {CNT}\nv_mov_b32 v10, 0\nv_mov_b32 v11, 0\nds_write_b64 v8, v[10:11]")
    e(f"s_mov_b32 s68, 0xffff0000\ns_mov_b32 s69, {f32(1/576)}\ns_add_u32 s5, s5, {XS}\nv_add_u32 v1, s5, v1\ns_waitcnt vmcnt(0)")
    raw = [16, 17, 18, 20, 21, 22, 24, 25, 26]

    def red32(v, t):
        for s in (8, 4, 2, 1):
            e(f"v_add_f32_dpp v{v}, v{v}, v{v} row_ror:{s} row_mask:0xf bank_mask:0xf")
        e(f"v_mov_b32 v{t}, v{v}\nv_permlane16_swap_b32 v{v}, v{t}\nv_add_f32 v{v}, v{v}, v{t}")

    for k in range(9):
        e(f"v_lshlrev_b32 v{28+2*k}, 16, v{raw[k]}\nv_and_b32 v{29+2*k}, s68, v{raw[k]}")
    e("v_pk_add_f32 v[46:47], v[28:29], v[30:31]")
    for k in range(2, 9):
        e(f"v_pk_add_f32 v[46:47], v[46:47], v[{28+2*k}:{29+2*k}]")
    e("v_add_f32 v46, v46, v47")
    red32(46, 47)
    e("v_mul_f32 v48, s69, v46\nv_sub_f32 v50, 0, v48\nv_sub_f32 v51, 0, v48")
    for k in range(9):
        e(f"v_pk_add_f32 v[8:9], v[{28+2*k}:{29+2*k}], v[50:51]")
        e("v_pk_mul_f32 v[46:47], v[8:9], v[8:9]" if k == 0 else "v_pk_fma_f32 v[46:47], v[8:9], v[8:9], v[46:47]")
    e("v_add_f32 v46, v46, v47")
    red32(46, 47)
    e("v_mul_f32 v46, s69, v46")
    rnd(46, 46)
    e(f"v_add_f32 v46, {f32(1e-5)}, v46")
    rnd(46, 46)
    e("v_sqrt_f32 v46, v46")
    rnd(46, 46)
    e("v_rcp_f32 v46, v46")
    rnd(50, 50)
    e("v_mov_b32 v51, v50\nv_mov_b32 v47, v46")
    for k in range(9):
        e(f"v_pk_add_f32 v[8:9], v[{28+2*k}:{29+2*k}], v[50:51]\nv_cvt_pk_bf16_f32 v9, v8, v9\nv_lshlrev_b32 v8, 16, v9\nv_and_b32 v9, s68, v9")
        e(f"v_pk_mul_f32 v[8:9], v[8:9], v[46:47]\nv_cvt_pk_bf16_f32 v{raw[k]}, v8, v9")
    for k in range(0, 8, 2):
        e(f"ds_write2_b32 v1, v{raw[k]}, v{raw[k+1]} offset0:{k} offset1:{k+1}")
    e(f"ds_write_b32 v1, v{raw[8]} offset:32")
    e("""v_lshrrev_b32 v10, 4, v0
v_and_b32 v11, 15, v0
v_bfe_u32 v8, v0, 2, 2
v_lshl_add_u32 v12, v10, 3, v8
v_lshlrev_b32 v12, 7, v12
v_and_b32 v9, 3, v0
v_lshl_add_u32 v12, v9, 3, v12
v_lshrrev_b32 v13, 1, v8
v_and_b32 v9, 1, v10
v_lshl_or_b32 v13, v9, 1, v13
v_lshl_add_u32 v12, v13, 5, v12
s_lshl_b32 s60, s4, 5
v_xor_b32 v3, s60, v12
v_add_u32 v4, 0x10000, v3
v_and_b32 v14, 7, v0
v_and_b32 v8, 3, v0
v_bfe_u32 v15, v0, 2, 3
v_lshl_add_u32 v15, v8, 4, v15
v_lshlrev_b32 v15, 2, v15""")
    e(f"v_mul_u32_u24 v5, 1152, v14\nv_lshrrev_b32 v8, 3, v11\nv_mul_u32_u24 v8, 576, v8\nv_lshl_add_u32 v8, v10, 4, v8\nv_add3_u32 v5, v5, v8, 0\nv_add_u32 v5, {XS}, v5")
    stamp(1)
    e("s_waitcnt vmcnt(0) lgkmcnt(0)\ns_add_u32 s14, s14, 1\ns_and_b32 s15, s14, 0xffff\ns_and_b32 s6, s14, 0xff\ns_barrier")
    stamp(2)

    def trread(kk):
        for hf in range(2):
            off = kk * 4096 + hf * 512
            e(f"ds_read_b64_tr_b16 v[{WF+4*kk+2*hf}:{WF+4*kk+2*hf+1}], v{3 if off < 65536 else 4} offset:{off % 65536}")

    for i in range(9):
        e(f"ds_read_b128 v[{XN+4*i}:{XN+4*i+3}], v5 offset:{64*i}")
    for kk in range(18):
        trread(kk)
    e("s_cmp_ge_u32 s2, 208\ns_cbranch_scc1 L_aD")
    e("s_lshl_b32 s60, s4, 9\ns_add_u32 s60, s60, s13\nv_mov_b32 v7, s68")
    e("s_waitcnt lgkmcnt(0)")
    for i in range(9):
        for hf in range(2):
            kk = 9 * hf + i
            A = AC + 4 * hf
            e(f"v_mfma_f32_16x16x32_bf16 v[{A}:{A+3}], v[{WF+4*kk}:{WF+4*kk+3}], v[{XN+4*i}:{XN+4*i+3}], {'0' if i == 0 else f'v[{A}:{A+3}]'}")
    for r in range(4):
        e(f"v_add_f32_dpp v{AC+r}, v{AC+4+r}, v{AC+r} row_ror:8 row_mask:0xf bank_mask:0xf")
    e(f"""v_cvt_pk_bf16_f32 v8, v{AC}, v{AC+1}
v_cvt_pk_bf16_f32 v9, v{AC+2}, v{AC+3}
ds_bpermute_b32 v8, v15, v8
ds_bpermute_b32 v9, v15, v9
s_waitcnt lgkmcnt(0)
v_lshl_or_b32 v16, v8, 16, s15
v_and_or_b32 v17, v8, v7, s15
v_lshl_or_b32 v18, v9, 16, s15
v_and_or_b32 v19, v9, v7, s15
s_mov_b32 exec_hi, 0
""" + ("" if "P" in abl else "buffer_store_dwordx4 v[16:19], v2, s[56:59], s60 offen sc1") + """
s_mov_b32 exec_hi, -1""")
    stamp(3)
    e("s_cmp_ge_u32 s2, 144\ns_cbranch_scc1 L_aq")
    e(f"s_lshl_b32 s60, s4, 13\ns_add_u32 s60, s60, 73728\nv_add_u32 v3, s60, v12")
    for Tt in range(4):
        if Tt:
            e(f"v_xor_b32 v4, {32*Tt}, v3")
        for kk in range(2):
            for hf in range(2):
                R = OF + 8 * Tt + 4 * kk + 2 * hf
                e(f"ds_read_b64_tr_b16 v[{R}:{R+1}], v{4 if Tt else 3} offset:{kk*4096 + hf*512}")
    e("s_branch L_aq\nL_aD:")
    for kk in range(18, 27):
        trread(kk)
    e("L_aq:\ns_mov_b32 s71, 0x07060302\ns_waitcnt lgkmcnt(0)\ns_barrier\ns_cmp_lg_u32 s4, 3\ns_cbranch_scc1 L_a3")
    stamp(4)
    e(f"""s_lshr_b32 s60, s9, 1
s_lshl_b32 s60, s60, 6
s_lshl_b32 s61, s8, 13
s_add_u32 s60, s60, s61
s_add_u32 s60, s60, {PBUF}
v_lshrrev_b32 v6, 2, v0
v_lshlrev_b32 v6, 9, v6
v_and_b32 v7, 3, v0
v_lshl_add_u32 v6, v7, 4, v6""")
    poll("buffer_load_dwordx4 v[20:23], v6, s[56:59], s60 offen sc1", None, None, 4, cmp=tagcmp([20, 21, 22, 23], 7))
    e(f"""v_perm_b32 v8, v21, v20, s71
v_perm_b32 v9, v23, v22, s71
v_lshlrev_b32 v6, 3, v0
v_add_u32 v6, {QS}, v6
ds_write_b64 v6, v[8:9]
v_mov_b32 v6, {QF}
v_mov_b32 v7, 1
s_waitcnt lgkmcnt(0)
ds_write_b32 v6, v7""")
    stamp(5)
    e("L_a3:")
    if dummy:
        e("s_lshl_b32 s60, s2, 2\ns_add_u32 s60, s60, s4\ns_lshl_b32 s60, s60, 11\ns_add_u32 s60, s60, 0x400000\nv_lshlrev_b32 v6, 5, v0")
        if dummy == 1:
            e(f"buffer_store_dwordx4 v[16:19], v2, s[56:59], s60 offen {dpol}\nbuffer_store_dwordx4 v[16:19], v2, s[56:59], s60 offen offset:1024 {dpol}")
        elif dummy == 2:
            e(f"buffer_store_dwordx4 v[16:19], v6, s[56:59], s60 offen {dpol}\nbuffer_store_dwordx4 v[16:19], v6, s[56:59], s60 offen offset:16 {dpol}")
        else:
            e(f"buffer_load_dwordx4 v[240:243], v2, s[56:59], s60 offen {dpol}\nbuffer_load_dwordx4 v[244:247], v2, s[56:59], s60 offen offset:1024 {dpol}")
    e("s_cmp_lt_u32 s2, 144\ns_cbranch_scc1 L_aO\ns_cmp_lt_u32 s2, 208\ns_cbranch_scc1 L_fin")

    e(f"""s_mul_i32 s60, s11, 9216
s_mul_i32 s61, s4, 2304
s_add_u32 s60, s60, s61
s_add_u32 s60, s60, {PBUF + 131072}
s_add_u32 s61, s60, {288 * 512}
s_mov_b32 s72, -1
s_mov_b32 s73, 0xffff
s_mov_b64 exec, s[72:73]""")
    G, U = 208, 220
    poll("\n".join([f"buffer_load_dwordx4 v[{G+4*k}:{G+4*k+3}], v2, s[56:59], s60 offen offset:{768*k} sc1" for k in range(3)] +
                   [f"buffer_load_dwordx4 v[{U+4*k}:{U+4*k+3}], v2, s[56:59], s61 offen offset:{768*k} sc1" for k in range(3)]),
         None, None, 8, restore="s[72:73]", cmp=tagcmp(list(range(G, G + 24)), 8))
    c0 = -2 * LOG2E * 0.7978845608028654
    e(f"v_mov_b32 v32, {f32(c0)}\nv_mov_b32 v33, {f32(c0 * 0.044715)}\ns_mul_i32 s60, s4, 144")
    for k in range(6):
        e(f"""v_and_b32 v34, s68, v{G+2*k}
v_and_b32 v35, s68, v{G+2*k+1}
v_mul_f32 v36, v34, v34
v_mul_f32 v37, v35, v35
v_fma_f32 v36, v36, v33, v32
v_fma_f32 v37, v37, v33, v32
v_mul_f32 v36, v36, v34
v_mul_f32 v37, v37, v35
v_exp_f32 v36, v36
v_exp_f32 v37, v37
v_and_b32 v38, s68, v{U+2*k}
v_add_f32 v36, 1.0, v36
v_add_f32 v37, 1.0, v37
v_rcp_f32 v36, v36
v_rcp_f32 v37, v37
v_and_b32 v39, s68, v{U+2*k+1}
v_mul_f32 v34, v34, v36
v_mul_f32 v35, v35, v37
v_cvt_pk_bf16_f32 v35, v34, v35
v_lshlrev_b32 v34, 16, v35
v_and_b32 v35, s68, v35
v_mul_f32 v34, v34, v38
v_mul_f32 v35, v35, v39
v_cvt_pk_bf16_f32 v{40+k}, v34, v35""")
    for k in range(3):
        e(f"""v_add_u32 v34, s60, v0
v_bfe_u32 v35, v34, 2, 3
v_mul_u32_u24 v35, 576, v35
v_and_b32 v36, 3, v34
v_lshl_add_u32 v35, v36, 3, v35
v_and_b32 v34, 0xffe0, v34
v_add_u32 v35, v35, v34
v_add_u32 v35, {HS}, v35
ds_write_b64 v35, v[{40+2*k}:{41+2*k}]
s_add_u32 s60, s60, 48""")
    e(f"""s_mov_b64 exec, 1
v_mov_b32 v8, {CNT}
v_mov_b32 v9, 1
s_waitcnt lgkmcnt(0)
ds_add_u32 v8, v9
s_mov_b32 s70, {LIMIT*8}
L_spin:
ds_read_b32 v9, v8
s_waitcnt lgkmcnt(0)
v_readfirstlane_b32 s60, v9
s_cmp_ge_u32 s60, 4
s_cbranch_scc1 L_spind
s_sub_u32 s70, s70, 1
s_cbranch_scc1 L_spind
s_sleep 2
s_branch L_spin
L_spind:
s_mov_b64 exec, -1
v_mul_u32_u24 v5, 576, v14
v_lshl_add_u32 v5, v10, 4, v5
v_add_u32 v5, {HS}, v5""")
    for i in range(9):
        e(f"ds_read_b128 v[{XN+4*i}:{XN+4*i+3}], v5 offset:{64*i}")
    e(f"""v_lshrrev_b32 v6, 2, v0
v_lshlrev_b32 v6, 12, v6
v_and_b32 v7, 3, v0
v_lshl_add_u32 v6, v7, 4, v6
v_mov_b32 v7, 0xffffff00
s_mul_i32 s60, s12, {3*32768}
s_lshr_b32 s61, s4, 1
s_lshl_b32 s61, s61, 11
s_add_u32 s60, s60, s61
s_and_b32 s61, s4, 1
s_lshl_b32 s61, s61, 6
s_add_u32 s60, s60, s61
s_lshl_b32 s61, s11, 7
s_add_u32 s60, s60, s61
s_add_u32 s60, s60, {DPART}
s_waitcnt lgkmcnt(0)""")
    for i in range(9):
        for sub in range(3):
            kk = 9 * sub + i
            A = AC + 4 * sub
            e(f"v_mfma_f32_16x16x32_bf16 v[{A}:{A+3}], v[{WF+4*kk}:{WF+4*kk+3}], v[{XN+4*i}:{XN+4*i+3}], {'0' if i == 0 else f'v[{A}:{A+3}]'}")
    for r in range(12):
        e(f"v_and_or_b32 v{AC+r}, v{AC+r}, v7, s6\nds_bpermute_b32 v{G+r}, v15, v{AC+r}")
    e("s_mov_b32 exec_hi, 0\ns_waitcnt lgkmcnt(0)")
    for sub in range(3 if "D" not in abl else 0):
        e(f"buffer_store_dwordx4 v[{G+4*sub}:{G+4*sub+3}], v6, s[56:59], s60 offen sc1")
        if sub < 2:
            e("s_add_u32 s60, s60, 32768")
    e("s_mov_b32 exec_hi, -1")
    stamp(6)
    e("s_branch L_fin")

    def gather_reduce(base, sleep):
        chk = "\n".join(f"v_xor_b32 v{16+i}, s6, v{16+i}" for i in range(8))
        chk += "\nv_or3_b32 v24, v16, v17, v18\nv_or3_b32 v25, v19, v20, v21\nv_or3_b32 v24, v24, v22, v23\nv_bitop3_b32 v24, v24, v26, v25 bitop3:0xc8\nv_cmp_ne_u32 vcc, 0, v24"
        poll("\n".join(f"buffer_load_dwordx2 v[{16+2*i}:{17+2*i}], v7, s[56:59], s{base} offen offset:{512*i} sc1" for i in range(4)), None, None, sleep, cmp=chk, masked=False)
        e("""v_pk_add_f32 v[16:17], v[16:17], v[18:19]
v_pk_add_f32 v[20:21], v[20:21], v[22:23]
v_pk_add_f32 v[16:17], v[16:17], v[20:21]
v_permlane32_swap_b32 v16, v17
v_add_f32 v16, v16, v17
v_mov_b32 v17, v16
v_permlane16_swap_b32 v16, v17
v_add_f32 v16, v16, v17""")
        rnd(16, 16)

    e(f"""L_aO:
v_mul_u32_u24 v6, {OSL}, v11
v_lshl_add_u32 v5, v10, 4, v6
s_mul_i32 s63, s8, {16*OSL}
s_add_u32 s63, s63, {OBUF}
s_lshl_b32 s61, s4, 7
s_add_u32 s62, s63, s61
s_lshr_b32 s61, s4, 1
s_lshl_b32 s61, s61, 2
s_add_u32 s63, s63, s61
s_lshl_b32 s61, s4, 11
s_add_u32 s61, s61, {RED2}
v_add_u32 v3, s61, v2
s_sub_u32 s64, s4, 1
v_lshrrev_b32 v8, 3, v0
v_and_b32 v9, 1, v8
v_lshlrev_b32 v9, 3, v9
v_add_u32 v9, v9, v10
v_and_b32 v4, 3, v0
v_lshl_add_u32 v9, v4, 4, v9
v_lshlrev_b32 v9, 4, v9
v_bfe_u32 v4, v0, 2, 1
v_lshl_add_u32 v9, v4, 10, v9
s_lshl_b32 s61, s64, 6
s_add_u32 s61, s61, {RED2}
v_add_u32 v4, s61, v9
v_lshlrev_b32 v8, 11, v8
v_lshl_add_u32 v15, v14, 4, v8
s_lshl_b32 s65, s9, 15
s_lshl_b32 s61, s8, 7
s_add_u32 s65, s65, s61
s_lshl_b32 s61, s64, 14
s_add_u32 s65, s65, s61
s_add_u32 s65, s65, {PART}
s_lshl_b32 s74, s9, 4
s_add_u32 s74, s74, s8
s_lshl_b32 s74, s74, 11
s_add_u32 s73, s74, {DPART}
s_add_u32 s74, s74, {PART}
v_mov_b32 v26, 0xff
v_mov_b32 v12, 0xffffff00
v_lshlrev_b32 v7, 3, v0
s_lshr_b32 s75, s8, 1
s_mul_i32 s75, s75, 1152
s_lshl_b32 s61, s9, 7
s_add_u32 s75, s75, s61
s_and_b32 s61, s8, 1
s_lshl_b32 s61, s61, 6
s_add_u32 s75, s75, s61
v_lshrrev_b32 v9, 5, v0
v_lshlrev_b32 v9, 1, v9
v_lshl_add_u32 v13, v11, 2, v9""")
    srd(48, 34, 9216)
    e("s_cmp_lg_u32 s4, 0\ns_cbranch_scc1 L_o1\nbuffer_load_ushort v50, v13, s[40:43], s75 offen")
    e(f"s_sleep {dsleep}\ns_sleep {dsleep}\ns_sleep {dsleep}")
    gather_reduce(73, dsleep)
    e("v_mov_b32 v51, v16\nv_lshlrev_b32 v50, 16, v50")
    stamp(4)
    e("L_o1:\ns_barrier")
    stamp(5)
    poll("""buffer_load_dwordx4 v[28:31], v5, s[56:59], s62 offen sc1
buffer_load_dwordx4 v[32:35], v5, s[56:59], s62 offen offset:64 sc1
buffer_load_dword v36, v6, s[56:59], s63 offen offset:512 sc1""", list(range(28, 37)), 37, psleep)
    stamp(6)
    for kk in range(2):
        for Tt in range(4):
            A = AC + 4 * Tt
            R = OF + 8 * Tt + 4 * kk
            e(f"v_mfma_f32_16x16x32_bf16 v[{A}:{A+3}], v[{R}:{R+3}], v[{28+4*kk}:{31+4*kk}], {'0' if kk == 0 else f'v[{A}:{A+3}]'}")
        if kk == 0:
            e("v_sub_f32_dpp v37, v36, v36 row_ror:8 row_mask:0xf bank_mask:0xf\nv_exp_f32 v37, v37")
    e("v_add_f32 v37, 1.0, v37\nv_rcp_f32 v37, v37")
    for r in range(16):
        e(f"v_mul_f32 v{AC+r}, v{AC+r}, v37")
    for tt in range(2):
        for r in range(4):
            e(f"v_add_f32_dpp v{40+4*tt+r}, v{AC+4*tt+r}, v{AC+4*tt+r} row_ror:8 row_mask:0xf bank_mask:0x3")
            e(f"v_add_f32_dpp v{40+4*tt+r}, v{AC+8+4*tt+r}, v{AC+8+4*tt+r} row_ror:8 row_mask:0xf bank_mask:0xc")
        e(f"ds_write_b128 v3, v[{40+4*tt}:{43+4*tt}] offset:{1024*tt}")
    e("s_waitcnt lgkmcnt(0)\ns_barrier\ns_cmp_eq_u32 s4, 0\ns_cbranch_scc1 L_o2\ns_cmp_eq_u32 s4, 3\ns_cbranch_scc1 L_fin")
    for w in range(4):
        e(f"ds_read_b128 v[{16+4*w}:{19+4*w}], v4 offset:{2048*w}")
    e("""s_waitcnt lgkmcnt(2)
v_pk_add_f32 v[16:17], v[16:17], v[20:21]
v_pk_add_f32 v[18:19], v[18:19], v[22:23]
s_waitcnt lgkmcnt(0)
v_pk_add_f32 v[24:25], v[24:25], v[28:29]
v_pk_add_f32 v[26:27], v[26:27], v[30:31]
v_pk_add_f32 v[16:17], v[16:17], v[24:25]
v_pk_add_f32 v[18:19], v[18:19], v[26:27]""")
    for r in range(4):
        e(f"v_and_or_b32 v{16+r}, v{16+r}, v12, s6")
    e("buffer_store_dwordx4 v[16:19], v15, s[56:59], s65 offen sc1")
    stamp(7)
    e("s_branch L_fin\nL_o2:")
    gather_reduce(74, psleep)
    e("v_add_f32 v16, v16, v50")
    rnd(16, 16)
    e("""v_add_f32 v16, v16, v51
v_cvt_pk_bf16_f32 v16, v16, v16
s_mov_b32 exec_lo, 0xffff
s_mov_b32 exec_hi, 0xffff
buffer_store_short v16, v13, s[48:51], s75 offen
s_mov_b64 exec, 1
s_cmp_lg_u32 s2, 0
s_cbranch_scc1 L_o3
v_mov_b32 v17, s14
buffer_store_dword v17, v7, s[56:59], 0 offen
L_o3:
s_mov_b64 exec, -1""")
    stamp(7)
    if probe:
        if probe[1] is not None:
            e(f"s_and_b32 s60, s2, {probe[1]}\ns_cmp_lg_u32 s60, {probe[2]}\ns_cbranch_scc1 L_fin")
        e(f"L_probe:\ns_memrealtime s[76:77]\ns_waitcnt lgkmcnt(0)\ns_sub_u32 s60, s76, s{80 + 2 * probe[0]}\ns_cmp_lt_u32 s60, 5000\ns_cbranch_scc1 L_probe")
    e("L_fin:")
    if diag:
        e("s_waitcnt vmcnt(0)\ns_memrealtime s[76:77]\ns_waitcnt lgkmcnt(0)\ns_getreg_b32 s77, hwreg(HW_REG_XCC_ID)")
        for i in range(8):
            e(f"v_mov_b32 v{16+i}, s{80+2*i}")
        e(f"v_mov_b32 v24, s76\nv_mov_b32 v25, s77\nv_mov_b32 v1, 0\ns_lshl_b32 s60, s2, 3\ns_add_u32 s60, s60, s3\ns_lshl_b32 s60, s60, 6\ns_add_u32 s60, s60, {STAMP}")
        e("s_mov_b64 exec, 1\nbuffer_store_dwordx4 v[16:19], v1, s[56:59], s60 offen\nbuffer_store_dwordx4 v[20:23], v1, s[56:59], s60 offen offset:16\nbuffer_store_dwordx2 v[24:25], v1, s[56:59], s60 offen offset:32")
    e("L_end:\ns_endpgm")
    e(f""".section .rodata,"a"
.p2align 6
.amdhsa_kernel {KN}
.amdhsa_next_free_vgpr 256
.amdhsa_next_free_sgpr 102
.amdhsa_accum_offset 256
.amdhsa_group_segment_fixed_size 0
.amdhsa_kernarg_size 96
.amdhsa_user_sgpr_count 2
.amdhsa_user_sgpr_kernarg_segment_ptr 1
.amdhsa_system_sgpr_workgroup_id_x 1
.amdhsa_float_denorm_mode_32 3
.end_amdhsa_kernel""")
    return top + e.text()


if __name__ == "__main__":
    kw = eval("dict(" + (sys.argv[2] if len(sys.argv) > 2 else "") + ")")
    open(sys.argv[1], "w").write(gen(**kw))


def report(T, pc):
    S = T[:, :4]; A = T[:, 4:]
    print("  start", pc(T[:, :, 0]), "| stream: B1", pc(S[:, :, 1]), "preB2", pc(S[:, :, 2]), "B2wait", pc(S[:, :, 3] - S[:, :, 2]), "preB3", pc(S[:, :, 6]), "B3wait", pc(S[:, :, 7] - S[:, :, 6]), "done", pc(S[:, :, 4]), "wgdone", pc(S[:, :, 4].max(1)), "opub", pc(S[:, 0, 5]))
    print("  aux: LN", pc(A[:, :, 1]), "B1", pc(A[:, :, 2]), "Qpub", pc(A[144:208, :, 3]), "Gpub", pc(A[:144, :, 3]), "B2", pc(A[:, 3, 4]), "q(nonO)", pc(A[144:, 3, 5]), "Dpub", pc(A[208:, :, 6]), "dgath", pc(A[:144, 0, 4]))
    print("  tail: B4", pc(A[:144, :, 5]), "ogath", pc(A[:144, :, 6]), "ppub", pc(A[:144, 1:3, 7]), "out", pc(A[:144, 0, 7]), "end", pc(T[:, :, 8]))
    wd = S[:, :, 4].max(1)
    print("  wgdone by role GO/Q/D", wd[:144].mean().round(2), wd[144:208].mean().round(2), wd[208:].mean().round(2), "by w%8", [float(wd[i::8].mean().round(1)) for i in range(8)], flush=True)
```

```python
import sys, struct
sys.path.insert(0, "dev")
from asmlib import Asm

KN = "parallel_sum__sliding_block_cached__geglu_ffn__decode_kernel"
REF = "parallel_sum__sliding_block_cached__geglu_ffn__decode.s.ref"

R = 6
RING = R * 4096
XS = 4 * RING
QS = XS + 9216
HS = QS + 512
ML = HS + 4608
CNT = ML + 64
QF = CNT + 4
OWN = CNT + 64
RED = OWN + 576
RED2 = RED + 4096
LDS_SZ = RED2 + 8192
PBUF, OBUF, PART = 0x1000, 0x70000, 0xA0000
OSL = 640
WS_SZ = PART + 144 * 4096
STAMP = 0x200000
LIMIT = 400000
LOG2E = 1.4426950408889634


def f32(x):
    return "0x%08x" % struct.unpack("<I", struct.pack("<f", x))[0]


def gen(d=6, d2=6, dw=None, sw2=96, diag=0, psleep=1, probe=None, abl="", late=None, pref=0, gmask=1, psleep2=None, b1d=0, auxfirst=1, split=1, dv=None, wmap=1, pst="sc1", rst="sc1", pld="sc1", fst="sc1", fld="sc1", old="sc1", xld=""):
    dw = dw or d
    e = Asm()
    uid = [0]
    wsz = WS_SZ if not diag else 0x400000

    def stamp(i):
        if diag or (probe and probe[0] == i):
            e(f"s_memrealtime s[{80 + 2 * i}:{81 + 2 * i}]")

    def srd(b, lo, size):
        e(f"s_mov_b32 s{b}, s{lo}\ns_mov_b32 s{b+1}, s{lo+1}\ns_mov_b32 s{b+2}, {size}\ns_mov_b32 s{b+3}, 0x20000")

    def rnd(dst, src):
        e(f"v_cvt_pk_bf16_f32 v{dst}, v{src}, v{src}\nv_lshlrev_b32 v{dst}, 16, v{dst}")

    def poll(loads, cmp, sleep, restore="-1", masked=True, first=None):
        uid[0] += 1
        L = f"L_poll{uid[0]}"
        if str(uid[0]) in abl:
            loads = "s_nop 0"
        e(f"s_mov_b32 s70, {0 if 'p' in abl else LIMIT}")
        if first:
            e(loads)
            first()
            e(f"s_branch {L}_w")
        e(f"{L}:")
        e(loads)
        e(f"{L}_w:\ns_waitcnt vmcnt(0)")
        e(cmp)
        e(f"s_and_b64 exec, exec, vcc\ns_cbranch_scc0 {L}_d" if masked else f"s_cbranch_vccz {L}_d")
        e(f"s_sub_u32 s70, s70, 1\ns_cbranch_scc1 {L}_d")
        if not masked and gmask:
            for h in ("lo", "hi"):
                e(f"s_and_b32 s60, vcc_{h}, 0x7f7f7f7f\ns_add_u32 s60, s60, 0x7f7f7f7f\ns_or_b32 s60, s60, vcc_{h}\ns_lshr_b32 s60, s60, 7\ns_and_b32 s60, s60, 0x01010101\ns_mul_i32 exec_{h}, s60, 255")
        if sleep:
            e(f"s_sleep {sleep}")
        e(f"s_branch {L}\n{L}_d:")
        if masked or gmask:
            e(f"s_mov_b64 exec, {restore}")

    def sentcmp(regs, tmp):
        r = list(regs)
        out = []
        cur = r.pop(0)
        while r:
            out.append(f"v_max3_u32 v{tmp}, v{cur}, v{r[0]}, v{r[1]}")
            r = r[2:]
            cur = tmp
        out.append(f"v_cmp_eq_u32 vcc, -1, v{cur}")
        return "\n".join(out)

    def tagcmp(regs, tmp):
        out = [f"v_xor_b32 v{tmp}, s15, v{regs[0]}"]
        for r in regs[1:]:
            out.append(f"v_bitop3_b32 v{tmp}, v{r}, v{tmp}, s15 bitop3:0xde")
        out.append(f"v_and_b32 v{tmp}, 0xffff, v{tmp}\nv_cmp_ne_u32 vcc, 0, v{tmp}")
        return "\n".join(out)

    def allred_g(v, t, op):
        e(f"v_mov_b32 v{t}, v{v}\nv_permlane16_swap_b32 v{v}, v{t}\n{op} v{v}, v{v}, v{t}")
        e(f"v_mov_b32 v{t}, v{v}\nv_permlane32_swap_b32 v{v}, v{t}\n{op} v{v}, v{v}, v{t}")

    def mfma(D, A, B, first):
        e(f"v_mfma_f32_16x16x32_bf16 v[{D}:{D+3}], v[{A}:{A+3}], v[{B}:{B+3}], {'0' if first else f'v[{D}:{D+3}]'}")

    hdr = [l.rstrip("\n") for l in open(REF) if l.startswith(";") and "@launch" not in l and "Override" not in l and "grid=ceil" not in l]
    top = "\n".join(hdr) + f"\n; @launch grid=(256,1,1) block=(512,1,1) lds={LDS_SZ}\n"
    e(f""".amdgcn_target "amdgcn-amd-amdhsa--gfx950"
.text
.globl {KN}
.p2align 8
.type {KN},@function
{KN}:""")
    e("s_cmp_ge_u32 s2, 256\ns_cbranch_scc1 L_end")
    e("s_load_dwordx16 s[16:31], s[0:1], 0\ns_load_dwordx8 s[32:39], s[0:1], 64")
    if wmap == 2:
        e("s_lshr_b32 s5, s2, 4\ns_and_b32 s6, s2, 15\ns_lshl_b32 s6, s6, 4\ns_or_b32 s2, s5, s6")
    if wmap == 3:
        e("s_lshr_b32 s5, s2, 4\ns_and_b32 s5, s5, 1\ns_lshl_b32 s5, s5, 2\ns_xor_b32 s2, s2, s5")
    if wmap == 1:
        e("s_lshr_b32 s5, s2, 4\ns_add_u32 s6, s2, s5\ns_and_b32 s6, s6, 15\ns_andn2_b32 s2, s2, 15\ns_or_b32 s2, s2, s6")
    stamp(0)
    e("v_lshrrev_b32 v1, 6, v0\nv_and_b32 v0, 63, v0\nv_readfirstlane_b32 s3, v1")
    if auxfirst:
        e("s_xor_b32 s3, s3, 4")
    e("s_and_b32 s8, s2, 15\ns_lshr_b32 s9, s2, 4\ns_sub_u32 s12, s9, 13\ns_lshl_b32 s10, s8, 2\ns_add_u32 s10, s10, s9\ns_sub_u32 s10, s10, 9")
    e("s_cmp_ge_u32 s3, 4\ns_cbranch_scc1 " + ("L_aux" if "a" not in abl else "L_end"))

    VO, KD, KR, MK, VW1, VW2, Q, KF, AB, ACC, T, SP, MRUN, NEGM, LS, VT2, VV = 1, 2, 6, 10, 14, 15, 16, 32, 48, 64, 68, 84, 120, 121, 122, 123, 128
    e(f"""v_lshrrev_b32 v1, 3, v0
v_and_b32 v2, 7, v0
v_and_b32 v3, 2, v1
s_and_b32 s5, s3, 1
s_lshl_b32 s5, s5, 2
v_or_b32 v3, s5, v3
v_xor_b32 v2, v2, v3
v_lshlrev_b32 v2, 4, v2
s_lshl_b32 m0, s3, 10
s_mov_b32 s43, 0x20000
s_lshl_b32 s60, s2, 7
s_cmp_ge_u32 s2, 72
s_cselect_b32 s5, 9216, 0
s_sub_u32 s60, s60, s5
s_lshl_b32 s5, s10, 7
s_movk_i32 s7, 9216
s_mov_b32 s42, {576*9216}
s_cmp_ge_u32 s2, 144
s_cselect_b32 s60, s5, s60
s_cselect_b32 s7, 8192, s7
s_cselect_b32 s42, {576*8192}, s42
s_mul_i32 s5, s8, {288*1152}
s_mul_i32 s6, s12, 384
s_add_u32 s5, s5, s6
s_lshl_b32 s62, s7, 5
s_movk_i32 s64, 4096
s_cmp_ge_u32 s2, 208
s_cselect_b32 s60, s5, s60
s_cselect_b32 s7, 1152, s7
s_cselect_b32 s42, {4608*1152}, s42
s_cselect_b32 s63, {36864-256}, s62
s_cselect_b32 s62, 128, s62
s_cselect_b32 s65, {4096-49152}, s64
s_cselect_b32 s64, 24576, s64
s_mul_i32 s5, s3, s7
s_lshl_b32 s5, s5, 3
s_add_u32 s60, s60, s5
v_mad_u32_u24 v{VW1}, v1, s7, v2
s_mov_b32 s66, 5
s_cmp_ge_u32 s2, 72
s_waitcnt lgkmcnt(0)
s_cselect_b64 s[40:41], s[30:31], s[28:29]
s_cmp_ge_u32 s2, 144
s_cselect_b64 s[40:41], s[22:23], s[40:41]
s_cmp_ge_u32 s2, 208
s_cselect_b64 s[40:41], s[32:33], s[40:41]
L_w1:""")
    for k in range(3):
        e(f"s_waitcnt vmcnt({dw-1})\nbuffer_load_dwordx4 v{VW1}, s[40:43], s60 offen nt lds")
        e(f"s_add_u32 s60, s60, s{62 if k < 2 else 63}\ns_add_u32 m0, m0, s{64 if k < 2 else 65}")
    e("s_sub_u32 s66, s66, 1\ns_cbranch_scc0 L_w1")
    srd(52, 20, 0x10000000)
    e(f"""s_mov_b32 s72, s60
s_lshr_b32 s60, s9, 1
s_lshl_b32 s60, s60, 4
s_add_u32 s60, s60, s8
s_lshl_b32 s60, s60, 21
s_and_b32 s61, s9, 1
s_lshl_b32 s61, s61, {14 if split else 18}
s_add_u32 s60, s60, s61
s_lshl_b32 s61, s3, 12
s_add_u32 s60, s60, s61
s_add_u32 s60, s60, {6144*256}
v_mul_u32_u24 v{VT2}, 1152, v1
v_add_u32 v{VT2}, v{VT2}, v2
v_lshlrev_b32 v{VO}, 4, v0""")

    work = {}

    def at(slot, fn):
        work.setdefault(slot, []).append(fn)

    def setup():
        srd(48, 18, 0x10000000)
        srd(56, 38, wsz)
        e(f"""s_mul_i32 s67, s3, {RING}
s_mul_i32 s5, s8, {256*1152}
s_mul_i32 s6, s3, {8*1152}
s_add_u32 s5, s5, s6
s_lshl_b32 s6, s9, 7
s_add_u32 s5, s5, s6
s_mov_b32 s46, {4096*1152}
s_mov_b32 s47, 0x20000
s_cmp_ge_u32 s2, 208
s_cselect_b32 s72, s72, s5
s_cselect_b32 s73, s62, {32*1152}
s_cselect_b32 s74, s63, {32*1152}
s_cselect_b64 s[44:45], s[32:33], s[24:25]
s_cselect_b32 s46, s42, s46""")
        e(f"v_lshrrev_b32 v{T}, 4, v0\nv_and_b32 v{T+1}, 15, v0\nv_lshlrev_b32 v{T+2}, 2, v{T}\nv_xor_b32 v{T+2}, v{T+2}, v{T+1}")
        e(f"v_lshlrev_b32 v{T+2}, 4, v{T+2}\nv_lshl_add_u32 v{KD}, v{T}, 8, v{T+2}")
        for r in range(1, 4):
            e(f"v_xor_b32 v{KD+r}, {16*r}, v{KD}")
        e(f"v_and_b32 v{T+2}, 3, v0\nv_lshlrev_b32 v{T+2}, 2, v{T+2}\nv_lshrrev_b32 v{T+3}, 2, v{T+1}\nv_or_b32 v{T+2}, v{T+2}, v{T+3}")
        e(f"v_lshl_add_u32 v{T+2}, v{T+2}, 8, s67\nv_xor_b32 v{T+3}, v{T}, v{T+1}\nv_lshl_add_u32 v{KR}, v{T+3}, 4, v{T+2}")
        for t in range(1, 4):
            e(f"v_xor_b32 v{KR+t}, {64*t}, v{KR}")
        e(f"v_and_b32 v{T+2}, 1, v0\nv_lshlrev_b32 v{T+2}, 4, v{T+2}\nv_mov_b32 v{T+3}, 0xffff\nv_lshlrev_b32 v{T+3}, v{T+2}, v{T+3}\nv_bfe_u32 v{T+2}, v0, 1, 2")
        for r in range(4):
            e(f"v_cmp_eq_u32 vcc, {r}, v{T+2}\nv_cndmask_b32 v{MK+r}, 0, v{T+3}, vcc")
        e(f"v_lshrrev_b32 v{T+2}, 3, v{T+1}\nv_lshlrev_b32 v{T+2}, 8, v{T+2}\nv_lshl_add_u32 v{T+2}, v{T}, 4, v{T+2}\nv_add_u32 v{VW1}, {QS}, v{T+2}")
        e(f"s_mov_b32 s68, 0xffff0000\ns_mov_b32 s69, {f32(128 ** -0.5)}\ns_mov_b32 s71, {f32(LOG2E)}")
        e(f"v_mov_b32 v{LS}, 0\nv_mov_b32 v{MRUN}, 0xff800000")
        for r in range(4):
            e(f"v_mov_b32 v{ACC+r}, 0")

    at(d, setup)

    def sreg(c):
        return SP + 4 * (c if c < 8 else (8 if c == 8 else c - 9))

    def kread(c):
        def f():
            for t in range(4):
                e(f"ds_read_b128 v[{KF+4*t}:{KF+4*t+3}], v{KR+t} offset:{(c % R) * 4096}")
        return f

    def kmma(c):
        def f():
            e("s_waitcnt lgkmcnt(0)")
            for t in range(4):
                mfma(sreg(c), KF + 4 * t, Q + 4 * t, t == 0)
        return f

    def kround(c):
        def f():
            S = sreg(c)
            for k in range(2):
                e(f"v_cvt_pk_bf16_f32 v{T}, v{S}, v{S+1}\nv_cvt_pk_bf16_f32 v{T+1}, v{S+2}, v{S+3}")
                e(f"v_lshlrev_b32 v{S}, 16, v{T}\nv_and_b32 v{S+1}, s68, v{T}\nv_lshlrev_b32 v{S+2}, 16, v{T+1}\nv_and_b32 v{S+3}, s68, v{T+1}")
                if k == 0:
                    for r in range(4):
                        e(f"v_mul_f32 v{S+r}, s69, v{S+r}")
            e(f"v_max3_f32 v{MRUN}, v{MRUN}, v{S}, v{S+1}\nv_max3_f32 v{MRUN}, v{MRUN}, v{S+2}, v{S+3}")
        return f

    def maxA():
        allred_g(MRUN, T, "v_max_f32")
        e(f"v_mul_f32 v{NEGM}, s71, v{MRUN}\nv_sub_f32 v{NEGM}, 0, v{NEGM}")

    def maxB():
        allred_g(MRUN, T, "v_max_f32")
        e(f"v_mul_f32 v{T+1}, s71, v{MRUN}\nv_add_f32 v{T+2}, v{NEGM}, v{T+1}\nv_sub_f32 v{NEGM}, 0, v{T+1}\nv_exp_f32 v{T+2}, -v{T+2}")
        e(f"v_mul_f32 v{LS}, v{LS}, v{T+2}\nv_mov_b32 v{T+3}, v{T+2}")
        e(f"v_mov_b32_dpp v{T+3}, v{T+2} row_ror:8 row_mask:0x3 bank_mask:0xc\nv_mov_b32_dpp v{T+3}, v{T+2} row_ror:8 row_mask:0xc bank_mask:0x3")
        for r in range(4):
            e(f"v_mul_f32 v{ACC+r}, v{ACC+r}, v{T+3}")

    def pexp(c):
        def f():
            S = sreg(c)
            for r in range(4):
                e(f"v_fma_f32 v{S+r}, v{S+r}, s71, v{NEGM}")
            for r in range(4):
                e(f"v_exp_f32 v{S+r}, v{S+r}")
            e(f"v_add_f32 v{T}, v{S}, v{S+1}\nv_add_f32 v{T+1}, v{S+2}, v{S+3}\nv_add_f32 v{LS}, v{LS}, v{T}\nv_add_f32 v{LS}, v{LS}, v{T+1}")
            for r in range(4):
                e(f"v_cvt_pk_bf16_f32 v{S+r}, v{S+r}, v{S+r}")
        return f

    def aprep(c, r):
        def f():
            for k in range(4):
                e(f"v_and_b32 v{AB+4*r+k}, v{sreg(c)+r}, v{MK+k}")
        return f

    def pv(c, r):
        def f():
            mfma(ACC, AB + 4 * r, VV + 16 * (c % 8) + 4 * r, False)
        return f

    def mlwrite():
        allred_g(LS, T, "v_add_f32")
        e(f"v_sub_f32 v{T+2}, 0, v{NEGM}\nv_mov_b32 v{T+3}, v{LS}")
        e(f"v_bfe_u32 v{T}, v0, 3, 1\nv_lshlrev_b32 v{T}, 5, v{T}\ns_lshl_b32 s63, s3, 3\ns_add_u32 s63, s63, {ML}\nv_add_u32 v{T}, s63, v{T}")
        e(f"ds_write_b64 v{T}, v[{T+2}:{T+3}]")
        e(f"""s_lshl_b32 s63, s3, 10
s_add_u32 s63, s63, {RED}
v_add_u32 v{VW2}, s63, v{VO}
v_lshrrev_b32 v2, 5, v0
v_lshlrev_b32 v3, 5, v2
v_add_u32 v3, {ML}, v3
v_lshlrev_b32 v4, 3, v0
v_lshlrev_b32 v5, 2, v2
v_and_b32 v6, 1, v0
v_lshl_add_u32 v6, v2, 1, v6
v_bfe_u32 v7, v0, 1, 4
v_lshl_add_u32 v6, v6, 4, v7
v_lshlrev_b32 v6, 4, v6
v_add_u32 v6, {RED}, v6
v_add_u32 v7, {OWN}, v4
v_add_u32 v8, {OWN + 512}, v5
s_lshr_b32 s62, s9, 1
s_and_b32 s63, s9, 1
s_lshl_b32 s63, s63, 3
s_add_u32 s62, s62, s63
s_lshl_b32 s63, s8, 4
s_add_u32 s63, s63, s62
s_mul_i32 s63, s63, {OSL}
s_add_u32 s63, s63, {OBUF}""")

    def qread():
        stamp(6)
        e(f"v_mov_b32 v{T}, {QF}\ns_mov_b32 s70, {0 if 'a' in abl else LIMIT*8}\nL_qw:\nds_read_b32 v{T+1}, v{T}")
        for t in range(4):
            e(f"ds_read_b128 v[{Q+4*t}:{Q+4*t+3}], v{VW1} offset:{64*t}")
        e(f"""s_waitcnt lgkmcnt(0)
v_readfirstlane_b32 s63, v{T+1}
s_cmp_lg_u32 s63, 0
s_cbranch_scc1 L_qd
s_sub_u32 s70, s70, 1
s_cbranch_scc1 L_qd
s_sleep 2
s_branch L_qw
L_qd:""")
        stamp(7)

    def dep(n):
        if dv and d <= n < 32:
            return dv
        return d if n < sw2 else d2

    landed = {}
    for n in range(128 + 64):
        for m in range(min(127, n - dep(n)) + 1):
            landed.setdefault(m, n)
    qslot = 32 + 4 * R - 3
    at(qslot, qread)
    kslot = {}
    for c in range(16):
        n0 = kslot[c] = max(landed[35 + 4 * c], qslot + 2 * c)
        assert c + R >= 16 or n0 + 1 < 32 + 4 * (c + R)
        at(n0, kread(c))
        at(n0 + 1, kmma(c))
        at(n0 + 2, kround(c))
    assert kslot[15] + 1 < 128
    sA = kslot[7] + 3
    at(sA, maxA)
    for j in range(8):
        s0 = sA + 1 + 3 * j
        at(s0, pexp(j))
        at(s0 + 1, aprep(j, 0)); at(s0 + 1, aprep(j, 1)); at(s0 + 1, pv(j, 0)); at(s0 + 1, pv(j, 1))
        at(s0 + 2, aprep(j, 2)); at(s0 + 2, aprep(j, 3)); at(s0 + 2, pv(j, 2)); at(s0 + 2, pv(j, 3))
        assert s0 + 2 < 96 + 4 * j
        if j < 7:
            assert s0 + 2 < kslot[9 + j] + 1
    sB = kslot[15] + 3
    at(sB, maxB)
    pre = {}
    for j in range(8):
        at(sB + 1 + j, pexp(8 + j))
    at(sB + 9, mlwrite)
    last = 0
    for n in range(96, 128):
        j, r = (n - 96) // 4, n % 4
        s = max(landed[n], sB + 2 + j, last)
        last = s
        pre.setdefault(s, []).append((8 + j, r))
    nslots = max(max(work), last) + 1

    def t2load(j):
        e(f"buffer_load_dwordx4 v{VT2}, s[44:47], s72 offen nt lds")
        if j < 8:
            e(f"s_add_u32 s72, s72, s{74 if j % 3 == 2 else 73}\ns_add_u32 m0, m0, 1024")

    t2n = [0]

    def slot(n, t2):
        todo = pre.get(n, [])
        assert len(todo) <= 4
        for (c, r) in todo:
            aprep(c, r)()
        if n < 32 or 96 <= n < 128:
            i = n if n < 32 else n - 64
            if i % 4 == 0:
                e(f"s_add_u32 s61, s60, {(i // 4) * (32768 if split else 16384)}")
            e(f"s_waitcnt vmcnt({dep(n)-1})")
            if n == d - 1 + b1d:
                stamp(1)
                e("s_barrier")
                stamp(3)
            V = VV + 4 * (i % 32)
            e(f"buffer_load_dwordx4 v[{V}:{V+3}], v{VO}, s[52:55], s61 offen offset:{(i % 4) * 1024} nt")
            if n == 31:
                stamp(2)
                e("s_barrier")
        elif n < 96:
            i = n - 32
            if i % 4 == 0:
                e(f"s_add_u32 s62, s60, {(i // 4) * (32768 if split else 16384)}\ns_add_u32 m0, s67, {((i // 4) % R) * 4096}")
            e(f"s_waitcnt vmcnt({dep(n)-1})")
            e(f"buffer_load_dwordx4 v{KD + i % 4}, s[48:51], s62 offen offset:{(i % 4) * 1024} nt lds")
        else:
            if n - d2 <= 127:
                e(f"s_waitcnt vmcnt({127 - (n - d2) + (t2n[0] if t2 else 0)})")
            left = nslots - 1 - n
            if t2 and left > 0:
                for _ in range(-(-(8 - t2n[0]) // left)):
                    t2load(t2n[0])
                    t2n[0] += 1
        for (c, r) in todo:
            pv(c, r)()
        for fn in work.get(n, []):
            fn()

    for n in range(128):
        slot(n, False)
    e("s_mov_b32 m0, s67\ns_sub_u32 s5, s2, 144\ns_cmp_lt_u32 s5, 64\ns_cbranch_scc1 L_tq")
    for n in range(128, nslots):
        slot(n, True)
    assert t2n[0] == 8
    e("s_branch L_tj\nL_tq:")
    for n in range(128, nslots):
        slot(n, False)
    e("L_tj:")
    if late is not None:
        e(f"s_cmp_lg_u32 s2, {late}\ns_cbranch_scc1 L_nl\ns_sleep 127\ns_sleep 127\nL_nl:")
    e(f"ds_write_b128 v{VW2}, v[{ACC}:{ACC+3}]")
    stamp(4)
    e("s_cmp_lt_u32 s2, 208\ns_cbranch_scc1 L_t9")
    t2load(8)
    e("L_t9:\ns_waitcnt lgkmcnt(0)\ns_barrier\ns_cmp_eq_u32 s3, 0\ns_cbranch_scc1 L_comb\ns_waitcnt vmcnt(0)")
    stamp(5)
    e("s_barrier\ns_barrier\ns_branch L_fin\nL_comb:")
    e("ds_read_b128 v[16:19], v3\nds_read_b128 v[20:23], v3 offset:16")
    for w in range(4):
        e(f"ds_read_b128 v[{28+4*w}:{31+4*w}], v6 offset:{1024*w}")
    e("""s_waitcnt lgkmcnt(4)
v_max3_f32 v24, v16, v18, v20
v_max_f32 v24, v24, v22
v_sub_f32 v16, v16, v24
v_sub_f32 v18, v18, v24
v_sub_f32 v20, v20, v24
v_sub_f32 v22, v22, v24
v_exp_f32 v16, v16
v_exp_f32 v18, v18
v_exp_f32 v20, v20
v_exp_f32 v22, v22
v_mul_f32 v25, v16, v17
v_fmac_f32 v25, v18, v19
v_fmac_f32 v25, v20, v21
v_fmac_f32 v25, v22, v23
v_rcp_f32 v26, v25
v_log_f32 v27, v25
s_waitcnt lgkmcnt(0)""")
    for r in range(4):
        e(f"v_mul_f32 v{ACC+r}, v{28+r}, v16")
    for w in range(1, 4):
        for r in range(4):
            e(f"v_fmac_f32 v{ACC+r}, v{28+4*w+r}, v{16+2*w}")
    for r in range(4):
        e(f"v_mul_f32 v{ACC+r}, v{ACC+r}, v26")
    e(f"""v_cvt_pk_bf16_f32 v28, v{ACC}, v{ACC+1}
v_cvt_pk_bf16_f32 v29, v{ACC+2}, v{ACC+3}
v_add_f32 v27, v27, v24
v_min_u32 v28, -2, v28
v_min_u32 v29, -2, v29
v_min_u32 v27, -2, v27
buffer_store_dwordx2 v[28:29], v4, s[56:59], s63 offen sc1
ds_write_b64 v7, v[28:29]
s_mov_b32 exec_lo, 1
s_mov_b32 exec_hi, 1
buffer_store_dword v27, v5, s[56:59], s63 offen offset:512 sc1
ds_write_b32 v8, v27
s_mov_b64 exec, -1""")
    stamp(5)
    e("s_waitcnt vmcnt(2) lgkmcnt(0)\ns_barrier\ns_barrier\ns_branch L_fin")

    XN, WF, OF, AC, G, U = 16, 52, 160, 192, 208, 220
    e("L_aux:\ns_sub_u32 s4, s3, 4\nv_mul_u32_u24 v1, 36, v0\ns_mul_i32 s5, s4, 2304\nv_lshlrev_b32 v2, 4, v0")
    e("s_movk_i32 s42, 9216\ns_mov_b32 s43, 0x20000\ns_waitcnt lgkmcnt(0)\ns_mov_b64 s[40:41], s[16:17]")
    for k in range(3):
        e(f"buffer_load_dwordx3 v[{16+4*k}:{18+4*k}], v1, s[40:43], s5 offen offset:{12*k} {xld}")
    e("s_load_dword s14, s[38:39], 0")
    srd(56, 38, wsz)
    if pref:
        e(f"""s_cmp_lg_u32 s4, 2
s_cbranch_scc1 L_a0
s_getpc_b64 s[60:61]
L_pc:
s_sub_u32 s60, s60, L_pc-{KN}
s_subb_u32 s61, s61, 0
s_lshr_b32 s62, s2, 3
s_lshl_b32 s62, s62, 10
v_add_u32 v3, s62, v2
v_min_u32 v3, L_end-{KN}-12, v3
v_mov_b32 v5, s61
v_add_co_u32 v4, vcc, s60, v3
v_addc_co_u32 v5, vcc, 0, v5, vcc
global_load_dwordx4 v[28:31], v[4:5], off
L_a0:""")
    e(f"""s_add_u32 s13, s2, 64
s_cmp_ge_u32 s2, 144
s_cselect_b32 s13, s10, s13
s_lshl_b32 s13, s13, 11
s_add_u32 s13, s13, {PBUF}
s_sub_u32 s60, s2, 144
s_cmp_ge_u32 s60, 64
s_cbranch_scc1 L_a1
v_mov_b32 v4, -1
v_mov_b32 v5, -1
v_mov_b32 v6, -1
v_mov_b32 v7, -1
s_lshl_b32 s60, s10, 2
s_add_u32 s60, s60, s4
s_mul_i32 s60, s60, {OSL}
s_add_u32 s60, s60, {OBUF}
s_mov_b32 exec_hi, 0xff
{"" if "r" in abl else "buffer_store_dwordx4 v[4:7], v2, s[56:59], s60 offen " + rst}
s_mov_b32 exec_hi, -1
L_a1:
v_mov_b32 v8, {CNT}
v_mov_b32 v10, 0
v_mov_b32 v11, 0
ds_write_b64 v8, v[10:11]
s_mov_b32 s68, 0xffff0000
s_mov_b32 s69, {f32(1/576)}
s_add_u32 s5, s5, {XS}
v_add_u32 v1, s5, v1""")
    e(f"""v_lshrrev_b32 v10, 4, v0
v_and_b32 v11, 15, v0
v_bfe_u32 v8, v0, 2, 2
v_lshl_add_u32 v12, v10, 3, v8
v_lshlrev_b32 v12, 7, v12
v_and_b32 v9, 3, v0
v_lshl_add_u32 v12, v9, 3, v12
v_lshrrev_b32 v13, 1, v8
v_and_b32 v8, 1, v10
v_lshl_or_b32 v13, v8, 1, v13
v_lshl_add_u32 v12, v13, 5, v12
s_lshl_b32 s60, s4, 5
v_xor_b32 v3, s60, v12
v_add_u32 v4, 0x10000, v3
v_and_b32 v14, 7, v0
v_bfe_u32 v15, v0, 2, 3
v_lshl_add_u32 v15, v9, 4, v15
v_lshlrev_b32 v15, 2, v15
v_mul_u32_u24 v5, 1152, v14
v_lshrrev_b32 v8, 3, v11
v_mul_u32_u24 v8, 576, v8
v_lshl_add_u32 v8, v10, 4, v8
v_add_u32 v5, v5, v8
v_add_u32 v5, {XS}, v5
s_mov_b32 s71, 0x07060302
s_waitcnt vmcnt(0)""")
    raw = [16, 17, 18, 20, 21, 22, 24, 25, 26]

    def red32(v, t):
        for s in (8, 4, 2, 1):
            e(f"v_add_f32_dpp v{v}, v{v}, v{v} row_ror:{s} row_mask:0xf bank_mask:0xf")
        e(f"v_mov_b32 v{t}, v{v}\nv_permlane16_swap_b32 v{v}, v{t}\nv_add_f32 v{v}, v{v}, v{t}")

    for k in range(9):
        e(f"v_lshlrev_b32 v{28+2*k}, 16, v{raw[k]}\nv_and_b32 v{29+2*k}, s68, v{raw[k]}")
    e("v_pk_add_f32 v[46:47], v[28:29], v[30:31]")
    for k in range(2, 9):
        e(f"v_pk_add_f32 v[46:47], v[46:47], v[{28+2*k}:{29+2*k}]")
    e("v_add_f32 v46, v46, v47")
    red32(46, 47)
    e("v_mul_f32 v48, s69, v46\nv_sub_f32 v50, 0, v48\nv_sub_f32 v51, 0, v48")
    for k in range(9):
        e(f"v_pk_add_f32 v[8:9], v[{28+2*k}:{29+2*k}], v[50:51]")
        e("v_pk_mul_f32 v[46:47], v[8:9], v[8:9]" if k == 0 else "v_pk_fma_f32 v[46:47], v[8:9], v[8:9], v[46:47]")
    e("v_add_f32 v46, v46, v47")
    red32(46, 47)
    e("v_mul_f32 v46, s69, v46")
    rnd(46, 46)
    e(f"v_add_f32 v46, {f32(1e-5)}, v46")
    rnd(46, 46)
    e("v_sqrt_f32 v46, v46")
    rnd(46, 46)
    e("v_rcp_f32 v46, v46")
    rnd(50, 50)
    e("v_mov_b32 v51, v50\nv_mov_b32 v47, v46")
    for k in range(9):
        e(f"v_pk_add_f32 v[8:9], v[{28+2*k}:{29+2*k}], v[50:51]\nv_cvt_pk_bf16_f32 v9, v8, v9\nv_lshlrev_b32 v8, 16, v9\nv_and_b32 v9, s68, v9")
        e(f"v_pk_mul_f32 v[8:9], v[8:9], v[46:47]\nv_cvt_pk_bf16_f32 v{raw[k]}, v8, v9")
    for k in range(0, 8, 2):
        e(f"ds_write2_b32 v1, v{raw[k]}, v{raw[k+1]} offset0:{k} offset1:{k+1}")
    e(f"ds_write_b32 v1, v{raw[8]} offset:32")
    stamp(1)
    e("s_waitcnt lgkmcnt(0)\ns_add_u32 s14, s14, 1\ns_and_b32 s15, s14, 0xffff\ns_and_b32 s6, s14, 0xff\ns_barrier")
    stamp(2)
    for i in range(9):
        e(f"ds_read_b128 v[{XN+4*i}:{XN+4*i+3}], v5 offset:{64*i}")
    for kk in range(18):
        for hf in range(2):
            off = kk * 4096 + hf * 512
            e(f"ds_read_b64_tr_b16 v[{WF+4*kk+2*hf}:{WF+4*kk+2*hf+1}], v{3 if off < 65536 else 4} offset:{off % 65536}")
    e("s_lshl_b32 s60, s4, 9\ns_add_u32 s60, s60, s13\nv_mov_b32 v7, s68\ns_waitcnt lgkmcnt(0)")
    e("s_cmp_ge_u32 s2, 208\ns_cbranch_scc1 L_aq")
    for i in range(9):
        for hf in range(2):
            mfma(AC + 4 * hf, WF + 4 * (9 * hf + i), XN + 4 * i, i == 0)
    for r in range(4):
        e(f"v_add_f32_dpp v{AC+r}, v{AC+4+r}, v{AC+r} row_ror:8 row_mask:0xf bank_mask:0xf")
    e(f"""v_cvt_pk_bf16_f32 v8, v{AC}, v{AC+1}
v_cvt_pk_bf16_f32 v9, v{AC+2}, v{AC+3}
ds_bpermute_b32 v8, v15, v8
ds_bpermute_b32 v9, v15, v9
s_waitcnt lgkmcnt(0)
v_lshl_or_b32 v16, v8, 16, s15
v_and_or_b32 v17, v8, v7, s15
v_lshl_or_b32 v18, v9, 16, s15
v_and_or_b32 v19, v9, v7, s15
s_mov_b32 exec_hi, 0
""" + ("" if "P" in abl else "buffer_store_dwordx4 v[16:19], v2, s[56:59], s60 offen " + pst) + """
s_mov_b32 exec_hi, -1""")
    stamp(3)
    e("L_aq:\ns_barrier\ns_cmp_lg_u32 s4, 3\ns_cbranch_scc1 L_a3")
    e(f"""s_lshr_b32 s60, s9, 1
s_lshl_b32 s60, s60, 6
s_lshl_b32 s61, s8, 13
s_add_u32 s60, s60, s61
s_add_u32 s60, s60, {PBUF}
v_lshrrev_b32 v6, 2, v0
v_lshlrev_b32 v6, 9, v6
v_and_b32 v7, 3, v0
v_lshl_add_u32 v6, v7, 4, v6""")
    poll("buffer_load_dwordx4 v[20:23], v6, s[56:59], s60 offen " + pld, tagcmp([20, 21, 22, 23], 7), 4)
    e(f"""v_perm_b32 v8, v21, v20, s71
v_perm_b32 v9, v23, v22, s71
v_lshlrev_b32 v6, 3, v0
v_add_u32 v6, {QS}, v6
ds_write_b64 v6, v[8:9]
v_mov_b32 v6, {QF}
v_mov_b32 v7, 1
s_waitcnt lgkmcnt(0)
ds_write_b32 v6, v7
L_a3:
s_cmp_lt_u32 s2, 144
s_cbranch_scc1 L_aO
s_cmp_lt_u32 s2, 208
s_cbranch_scc1 L_fin""")

    e(f"""s_mul_i32 s60, s8, 9216
s_mul_i32 s61, s4, 2304
s_add_u32 s60, s60, s61
s_add_u32 s60, s60, {PBUF + 131072}
s_add_u32 s61, s60, {288 * 512}
s_mov_b32 s72, -1
s_mov_b32 s73, 0xffff
s_mov_b64 exec, s[72:73]""")
    poll("\n".join([f"buffer_load_dwordx4 v[{G+4*k}:{G+4*k+3}], v2, s[56:59], s60 offen offset:{768*k} {pld}" for k in range(3)] +
                   [f"buffer_load_dwordx4 v[{U+4*k}:{U+4*k+3}], v2, s[56:59], s61 offen offset:{768*k} {pld}" for k in range(3)]),
         tagcmp(list(range(G, G + 24)), 8), 8, restore="s[72:73]")
    c0 = -2 * LOG2E * 0.7978845608028654
    e(f"v_mov_b32 v32, {f32(c0)}\nv_mov_b32 v33, {f32(c0 * 0.044715)}\ns_mul_i32 s60, s4, 144")
    for k in range(6):
        e(f"""v_and_b32 v34, s68, v{G+2*k}
v_and_b32 v35, s68, v{G+2*k+1}
v_mul_f32 v36, v34, v34
v_mul_f32 v37, v35, v35
v_fma_f32 v36, v36, v33, v32
v_fma_f32 v37, v37, v33, v32
v_mul_f32 v36, v36, v34
v_mul_f32 v37, v37, v35
v_exp_f32 v36, v36
v_exp_f32 v37, v37
v_and_b32 v38, s68, v{U+2*k}
v_add_f32 v36, 1.0, v36
v_add_f32 v37, 1.0, v37
v_rcp_f32 v36, v36
v_rcp_f32 v37, v37
v_and_b32 v39, s68, v{U+2*k+1}
v_mul_f32 v34, v34, v36
v_mul_f32 v35, v35, v37
v_cvt_pk_bf16_f32 v35, v34, v35
v_lshlrev_b32 v34, 16, v35
v_and_b32 v35, s68, v35
v_mul_f32 v34, v34, v38
v_mul_f32 v35, v35, v39
v_cvt_pk_bf16_f32 v{40+k}, v34, v35""")
    for k in range(3):
        e(f"""v_add_u32 v34, s60, v0
v_bfe_u32 v35, v34, 2, 3
v_mul_u32_u24 v35, 576, v35
v_and_b32 v36, 3, v34
v_lshl_add_u32 v35, v36, 3, v35
v_and_b32 v34, 0xffe0, v34
v_add_u32 v35, v35, v34
v_add_u32 v35, {HS}, v35
ds_write_b64 v35, v[{40+2*k}:{41+2*k}]
s_add_u32 s60, s60, 48""")
    e(f"""s_mov_b64 exec, 1
v_mov_b32 v8, {CNT}
v_mov_b32 v9, 1
s_waitcnt lgkmcnt(0)
ds_add_u32 v8, v9
s_mov_b32 s70, {LIMIT*8}
L_spin:
ds_read_b32 v9, v8
s_waitcnt lgkmcnt(0)
v_readfirstlane_b32 s60, v9
s_cmp_ge_u32 s60, 4
s_cbranch_scc1 L_spind
s_sub_u32 s70, s70, 1
s_cbranch_scc1 L_spind
s_sleep 2
s_branch L_spin
L_spind:
s_mov_b64 exec, -1
v_mul_u32_u24 v5, 576, v14
v_lshl_add_u32 v5, v10, 4, v5
v_add_u32 v5, {HS}, v5""")
    for i in range(9):
        e(f"ds_read_b128 v[{XN+4*i}:{XN+4*i+3}], v5 offset:{64*i}")
    e(f"""v_lshrrev_b32 v6, 2, v0
v_lshlrev_b32 v6, 13, v6
v_and_b32 v7, 3, v0
v_lshl_add_u32 v6, v7, 4, v6
v_mov_b32 v7, 0xffffff00
v_mul_u32_u24 v4, {RING - 1024}, v10
v_add_u32 v4, v4, v3
s_mul_i32 s60, s12, {3*65536}
s_lshr_b32 s61, s4, 1
s_lshl_b32 s61, s61, 12
s_add_u32 s60, s60, s61
s_and_b32 s61, s4, 1
s_lshl_b32 s61, s61, 6
s_add_u32 s60, s60, s61
s_lshl_b32 s61, s8, 7
s_add_u32 s60, s60, s61
s_add_u32 s60, s60, {PART + 2048}
s_add_u32 s61, s60, 65536
s_add_u32 s62, s60, 131072
s_waitcnt lgkmcnt(0)""")
    for i in range(6):
        for sub in range(3):
            mfma(AC + 4 * sub, WF + 4 * (6 * sub + i), XN + 4 * i, i == 0)
    stamp(4)
    e("s_barrier\ns_barrier")
    for j in range(9):
        for hf in range(2):
            e(f"ds_read_b64_tr_b16 v[{WF+4*j+2*hf}:{WF+4*j+2*hf+1}], v4 offset:{j*1024 + hf*512}")
    for j in range(9):
        if j % 3 == 0:
            e(f"s_waitcnt lgkmcnt({12 - 2 * j})")
        mfma(AC + 4 * (j % 3), WF + 4 * j, XN + 4 * (6 + j // 3), False)
    for r in range(12):
        e(f"v_and_or_b32 v{AC+r}, v{AC+r}, v7, s6\nds_bpermute_b32 v{G+r}, v15, v{AC+r}")
    e("s_mov_b32 exec_hi, 0")
    for sub in range(3):
        e(f"s_waitcnt lgkmcnt({8 - 4 * sub})\nbuffer_store_dwordx4 v[{G+4*sub}:{G+4*sub+3}], v6, s[56:59], s{60+sub} offen {fst}")
    e("s_mov_b32 exec_hi, -1")
    stamp(7)
    e("s_branch L_fin")

    e(f"""L_aO:
v_mul_u32_u24 v6, {OSL}, v11
v_lshl_add_u32 v5, v10, 4, v6
s_mul_i32 s63, s8, {16*OSL}
s_add_u32 s63, s63, {OBUF}
s_lshl_b32 s61, s4, 7
s_add_u32 s62, s63, s61
s_add_u32 s61, s61, {OWN}
v_lshl_add_u32 v48, v10, 4, s61
s_lshr_b32 s61, s4, 1
s_lshl_b32 s61, s61, 2
s_add_u32 s63, s63, s61
s_add_u32 s61, s61, {OWN + 512}
v_mov_b32 v49, s61
s_lshl_b32 s61, s4, 11
v_mul_u32_u24 v8, {RING - 1024}, v10
v_add3_u32 v52, v8, v12, s61
v_xor_b32 v53, 32, v52
v_xor_b32 v54, 64, v52
v_xor_b32 v55, 0x60, v52
s_add_u32 s61, s61, {RED2}
v_add_u32 v3, s61, v2
s_sub_u32 s64, s4, 1
v_lshrrev_b32 v8, 3, v0
v_and_b32 v9, 1, v8
v_lshlrev_b32 v9, 3, v9
v_add_u32 v9, v9, v10
v_and_b32 v4, 3, v0
v_lshl_add_u32 v9, v4, 4, v9
v_lshlrev_b32 v9, 4, v9
v_bfe_u32 v4, v0, 2, 1
v_lshl_add_u32 v9, v4, 10, v9
s_lshl_b32 s61, s64, 6
s_add_u32 s61, s61, {RED2}
v_add_u32 v4, s61, v9
v_lshlrev_b32 v9, 12, v8
v_lshl_add_u32 v15, v14, 4, v9
s_lshl_b32 s65, s9, 16
s_lshl_b32 s61, s8, 7
s_add_u32 s65, s65, s61
s_lshl_b32 s61, s64, 15
s_add_u32 s65, s65, s61
s_add_u32 s65, s65, {PART}
s_and_b32 s64, s4, 1
s_lshl_b32 s74, s2, 12
s_lshl_b32 s61, s64, 6
s_add_u32 s74, s74, s61
s_add_u32 s74, s74, {PART}
v_lshlrev_b32 v7, 7, v8
v_lshl_add_u32 v7, v14, 3, v7
v_mov_b32 v26, 0xff
v_mov_b32 v12, 0xffffff00
s_lshr_b32 s75, s8, 1
s_mul_i32 s75, s75, 1152
s_lshl_b32 s61, s9, 7
s_add_u32 s75, s75, s61
s_and_b32 s61, s8, 1
s_lshl_b32 s61, s61, 6
s_add_u32 s75, s75, s61
s_lshl_b32 s61, s64, 5
s_add_u32 s75, s75, s61
v_and_b32 v9, 1, v10
v_lshlrev_b32 v9, 1, v9
v_lshl_add_u32 v13, v14, 2, v9
buffer_load_ushort v50, v13, s[40:43], s75 offen
s_lshr_b32 s61, s9, 1
s_and_b32 s60, s9, 1
s_lshl_b32 s60, s60, 3
s_add_u32 s61, s61, s60
s_lshl_b32 s72, 0x10001, s61
s_mov_b32 s73, s72""")
    srd(48, 34, 9216)
    e("s_waitcnt vmcnt(0)\nv_lshlrev_b32 v50, 16, v50\ns_andn2_b64 exec, exec, s[72:73]\ns_barrier")
    stamp(5)

    def ofirst():
        e("s_mov_b64 exec, -1\ns_barrier")
        stamp(4)
        for kk in range(2):
            for Tt in range(4):
                for hf in range(2):
                    Rg = OF + 8 * Tt + 4 * kk + 2 * hf
                    e(f"ds_read_b64_tr_b16 v[{Rg}:{Rg+1}], v{52+Tt} offset:{kk*1024 + hf*512}")
        e("s_mov_b64 exec, s[72:73]\nds_read_b128 v[28:31], v48\nds_read_b128 v[32:35], v48 offset:64\nds_read_b32 v36, v49\ns_not_b64 exec, exec")

    poll("""buffer_load_dwordx4 v[28:31], v5, s[56:59], s62 offen sc1
buffer_load_dwordx4 v[32:35], v5, s[56:59], s62 offen offset:64 sc1
buffer_load_dword v36, v6, s[56:59], s63 offen offset:512 sc1""".replace("sc1", old), sentcmp(range(28, 37), 37), psleep, first=ofirst)
    e("s_waitcnt lgkmcnt(0)")
    stamp(6)
    for kk in range(2):
        for Tt in range(4):
            mfma(AC + 4 * Tt, OF + 8 * Tt + 4 * kk, 28 + 4 * kk, kk == 0)
        if kk == 0:
            e("v_sub_f32_dpp v37, v36, v36 row_ror:8 row_mask:0xf bank_mask:0xf\nv_exp_f32 v37, v37")
    e("v_add_f32 v37, 1.0, v37\nv_rcp_f32 v37, v37")
    for r in range(16):
        e(f"v_mul_f32 v{AC+r}, v{AC+r}, v37")
    for tt in range(2):
        for r in range(4):
            e(f"v_add_f32_dpp v{40+4*tt+r}, v{AC+4*tt+r}, v{AC+4*tt+r} row_ror:8 row_mask:0xf bank_mask:0x3")
            e(f"v_add_f32_dpp v{40+4*tt+r}, v{AC+8+4*tt+r}, v{AC+8+4*tt+r} row_ror:8 row_mask:0xf bank_mask:0xc")
        e(f"ds_write_b128 v3, v[{40+4*tt}:{43+4*tt}] offset:{1024*tt}")
    e("s_waitcnt lgkmcnt(0)\ns_barrier\ns_sub_u32 s60, s4, 1\ns_cmp_ge_u32 s60, 2\ns_cbranch_scc1 L_o2")
    for w in range(4):
        e(f"ds_read_b128 v[{16+4*w}:{19+4*w}], v4 offset:{2048*w}")
    e("""s_waitcnt lgkmcnt(2)
v_pk_add_f32 v[16:17], v[16:17], v[20:21]
v_pk_add_f32 v[18:19], v[18:19], v[22:23]
s_waitcnt lgkmcnt(0)
v_pk_add_f32 v[24:25], v[24:25], v[28:29]
v_pk_add_f32 v[26:27], v[26:27], v[30:31]
v_pk_add_f32 v[16:17], v[16:17], v[24:25]
v_pk_add_f32 v[18:19], v[18:19], v[26:27]""")
    for r in range(4):
        e(f"v_and_or_b32 v{16+r}, v{16+r}, v12, s6")
    e("buffer_store_dwordx4 v[16:19], v15, s[56:59], s65 offen " + fst)
    stamp(7)
    e("s_branch L_fin\nL_o2:")
    chk = "\n".join(f"v_xor_b32 v{16+i}, s6, v{16+i}" for i in range(8))
    chk += "\nv_or3_b32 v24, v16, v17, v18\nv_or3_b32 v25, v19, v20, v21\nv_or3_b32 v24, v24, v22, v23\nv_bitop3_b32 v24, v24, v26, v25 bitop3:0xc8\nv_cmp_ne_u32 vcc, 0, v24"
    poll("\n".join(f"buffer_load_dwordx2 v[{16+2*i}:{17+2*i}], v7, s[56:59], s74 offen offset:{1024*i} {fld}" for i in range(4)), chk, psleep if psleep2 is None else psleep2, masked=False)
    e("""v_pk_add_f32 v[16:17], v[16:17], v[18:19]
v_pk_add_f32 v[20:21], v[20:21], v[22:23]
v_permlane32_swap_b32 v16, v20
v_permlane32_swap_b32 v17, v21
v_pk_add_f32 v[16:17], v[16:17], v[20:21]
v_permlane16_swap_b32 v16, v17
v_add_f32 v16, v16, v17
v_add_f32_dpp v16, v16, v16 row_ror:8 row_mask:0xf bank_mask:0xf""")
    rnd(16, 16)
    e("v_add_f32 v17, v16, v50")
    rnd(17, 17)
    e("""v_permlane32_swap_b32 v16, v18
v_add_f32 v17, v17, v18
v_cvt_pk_bf16_f32 v17, v17, v17
s_mov_b32 exec_lo, 0x00ff00ff
s_mov_b32 exec_hi, 0
buffer_store_short v17, v13, s[48:51], s75 offen
s_mov_b64 exec, 1
s_add_u32 s60, s2, s4
s_cmp_lg_u32 s60, 0
s_cbranch_scc1 L_o3
v_mov_b32 v19, s14
buffer_store_dword v19, v7, s[56:59], 0 offen
L_o3:
s_mov_b64 exec, -1""")
    stamp(7)
    if probe:
        if probe[1] is not None:
            e(f"s_and_b32 s60, s2, {probe[1]}\ns_cmp_lg_u32 s60, {probe[2]}\ns_cbranch_scc1 L_fin")
        e(f"L_probe:\ns_memrealtime s[76:77]\ns_waitcnt lgkmcnt(0)\ns_sub_u32 s60, s76, s{80 + 2 * probe[0]}\ns_cmp_lt_u32 s60, 5000\ns_cbranch_scc1 L_probe")
    e("L_fin:")
    if diag:
        e("s_cmp_lt_u32 s3, 4\ns_cbranch_scc1 L_dg\ns_sub_u32 s60, s2, 144\ns_cmp_lt_u32 s60, 64\ns_cbranch_scc1 L_end\nL_dg:")
        e("s_waitcnt vmcnt(0)\ns_memrealtime s[76:77]\ns_waitcnt lgkmcnt(0)\ns_getreg_b32 s77, hwreg(HW_REG_HW_ID)")
        for i in range(8):
            e(f"v_mov_b32 v{16+i}, s{80+2*i}")
        e(f"v_mov_b32 v24, s76\nv_mov_b32 v25, s77\nv_mov_b32 v1, 0\ns_lshl_b32 s60, s2, 3\ns_add_u32 s60, s60, s3\ns_lshl_b32 s60, s60, 6\ns_add_u32 s60, s60, {STAMP}")
        e("s_mov_b64 exec, 1\nbuffer_store_dwordx4 v[16:19], v1, s[56:59], s60 offen\nbuffer_store_dwordx4 v[20:23], v1, s[56:59], s60 offen offset:16\nbuffer_store_dwordx2 v[24:25], v1, s[56:59], s60 offen offset:32")
    e("L_end:\ns_endpgm")
    e(f""".section .rodata,"a"
.p2align 6
.amdhsa_kernel {KN}
.amdhsa_next_free_vgpr 256
.amdhsa_next_free_sgpr 102
.amdhsa_accum_offset 256
.amdhsa_group_segment_fixed_size 0
.amdhsa_kernarg_size 96
.amdhsa_user_sgpr_count 2
.amdhsa_user_sgpr_kernarg_segment_ptr 1
.amdhsa_system_sgpr_workgroup_id_x 1
.amdhsa_float_denorm_mode_32 3
.end_amdhsa_kernel""")
    return top + e.text()


def summary(T, cfg):
    import numpy as np
    S = T[:, :4]; A = T[:144, 4:]; D = T[208:, 4:]
    wd = S[:, :, 4].max(1); m = wd.max()
    r = dict(startmax=S[:, :, 0].max(), B1med=float(np.median(S[:, :, 1])), B1max=S[:, :, 1].max(), b1wmean=(S[:, :, 3].max(1) - S[:, :, 1].max(1)).mean(), b1wmax=(S[:, :, 3].max(1) - S[:, :, 1].max(1)).max(), B2max=S[:, :, 2].max(), qwait=(S[:, :, 7] - S[:, :, 6]).max(),
             GO=wd[:144].mean(), Q=wd[144:208].mean(), D=wd[208:].mean(), xcdspread=max(wd[i::8].mean() for i in range(8)) - wd.mean(),
             pairmax=wd.reshape(8, 2, 16).mean(1).max(), p90=float(np.percentile(wd, 90)), p97=float(np.percentile(wd, 97)), meandone=wd.mean(), maxdone=m, opub=S[:, 0, 5].max() - m, t2=S[:, 1:, 5].max() - m, t2dur=(S[:144, 1:, 5].max(1) - wd[:144]).mean())
    if "a" not in cfg.get("abl", ""):
        r.update(LNmed=float(np.median(A[:, :, 1])), LNmax=A[:, :, 1].max(), dearly=D[:, :, 4].max(), dpub=D[:, :, 7].max() - m, ogath=A[:, :, 6].max() - m, ppub=A[:, 1:3, 7].max() - m, out=A[:, ::3, 7].max() - m, end=A[:, :, 8].max())
    return r


if __name__ == "__main__":
    kw = eval("dict(" + (sys.argv[2] if len(sys.argv) > 2 else "") + ")")
    open(sys.argv[1], "w").write(gen(**kw))
```

```python
import sys, struct
sys.path.insert(0, "dev")
from asmlib import Asm

KN = "parallel_sum__sliding_block_cached__geglu_ffn__decode_kernel"
REF = "parallel_sum__sliding_block_cached__geglu_ffn__decode.s.ref"

R = 6
RING = R * 4096
XS = 4 * RING
QS = XS + 9216
HS = QS + 512
ML = HS + 4608
CNT = ML + 64
QF = CNT + 4
LB = CNT + 64
RED = LB + 128
GB = RED + 4096
GST = 528
LDS_SZ = GB + 16 * GST
XID = 0x400
PBUF, OBUF, PART = 0x1000, 0x70000, 0xA0000
OSL = 640
WS_SZ = PART + 144 * 4096
STAMP = 0x200000
LIMIT = 400000
LOG2E = 1.4426950408889634


def f32(x):
    return "0x%08x" % struct.unpack("<I", struct.pack("<f", x))[0]


def gen(d=6, d2=6, dw=None, sw2=96, diag=0, psleep=1, probe=None, abl="", late=None, pref=0, gmask=1, psleep2=None, b1d=0, auxfirst=1, split=1, dv=None, dvend=32, wmap=0, pld="sc1", fst="sc1", fld="sc1", old="sc1", xld="", loc="pro", bperm=1, force=None):
    dw = dw or d
    e = Asm()
    uid = [0]
    uid2 = [0]
    wsz = WS_SZ if not diag else 0x400000

    def stamp(i):
        if diag or (probe and probe[0] == i):
            e(f"s_memrealtime s[{80 + 2 * i}:{81 + 2 * i}]")

    def srd(b, lo, size):
        e(f"s_mov_b32 s{b}, s{lo}\ns_mov_b32 s{b+1}, s{lo+1}\ns_mov_b32 s{b+2}, {size}\ns_mov_b32 s{b+3}, 0x20000")

    def rnd(dst, src):
        e(f"v_cvt_pk_bf16_f32 v{dst}, v{src}, v{src}\nv_lshlrev_b32 v{dst}, 16, v{dst}")

    def poll(loads, cmp, sleep, restore="-1", masked=True, first=None):
        uid[0] += 1
        L = f"L_poll{uid[0]}"
        if str(uid[0]) in abl:
            loads = "s_nop 0"
        e(f"s_mov_b32 s70, {0 if 'p' in abl else LIMIT}")
        if first:
            e(loads)
            first()
            e(f"s_branch {L}_w")
        e(f"{L}:")
        e(loads)
        e(f"{L}_w:\ns_waitcnt vmcnt(0)")
        e(cmp)
        e(f"s_and_b64 exec, exec, vcc\ns_cbranch_scc0 {L}_d" if masked else f"s_cbranch_vccz {L}_d")
        e(f"s_sub_u32 s70, s70, 1\ns_cbranch_scc1 {L}_d")
        if not masked and gmask:
            for h in ("lo", "hi"):
                e(f"s_and_b32 s60, vcc_{h}, 0x7f7f7f7f\ns_add_u32 s60, s60, 0x7f7f7f7f\ns_or_b32 s60, s60, vcc_{h}\ns_lshr_b32 s60, s60, 7\ns_and_b32 s60, s60, 0x01010101\ns_mul_i32 exec_{h}, s60, 255")
        if sleep:
            e(f"s_sleep {sleep}")
        e(f"s_branch {L}\n{L}_d:")
        if masked or gmask:
            e(f"s_mov_b64 exec, {restore}")

    def dual(stores, sreg_, kind):
        if kind not in loc:
            e(stores.replace("POL", "sc1"))
            return
        uid2[0] += 1
        L = f"L_dual{uid2[0]}"
        e(f"s_cmp_eq_u32 s{sreg_}, 2\ns_cbranch_scc0 {L}")
        e(stores.replace("POL", ""))
        e(f"s_branch {L}_d\n{L}:")
        e(stores.replace("POL", "sc1"))
        e(f"{L}_d:")

    def xidcheck(v):
        e(f"v_cmp_ne_u32 vcc, s78, v{v}\ns_cmp_eq_u32 vcc_lo, 0\ns_cselect_b32 s7, 2, 1")
        if force is not None:
            e(f"s_mov_b32 s7, {force}")

    def sentcmp(regs, tmp):
        r = list(regs)
        out = []
        cur = r.pop(0)
        while r:
            out.append(f"v_max3_u32 v{tmp}, v{cur}, v{r[0]}, v{r[1]}" if len(r) > 1 else f"v_max_u32 v{tmp}, v{cur}, v{r[0]}")
            r = r[2:]
            cur = tmp
        out.append(f"v_cmp_eq_u32 vcc, -1, v{cur}")
        return "\n".join(out)

    def tagcmp(regs, tmp):
        out = [f"v_xor_b32 v{tmp}, s15, v{regs[0]}"]
        for r in regs[1:]:
            out.append(f"v_bitop3_b32 v{tmp}, v{r}, v{tmp}, s15 bitop3:0xde")
        out.append(f"v_and_b32 v{tmp}, 0xffff, v{tmp}\nv_cmp_ne_u32 vcc, 0, v{tmp}")
        return "\n".join(out)

    def allred_g(v, t, op):
        e(f"v_mov_b32 v{t}, v{v}\nv_permlane16_swap_b32 v{v}, v{t}\n{op} v{v}, v{v}, v{t}")
        e(f"v_mov_b32 v{t}, v{v}\nv_permlane32_swap_b32 v{v}, v{t}\n{op} v{v}, v{v}, v{t}")

    def mfma(D, A, B, first):
        e(f"v_mfma_f32_16x16x32_bf16 v[{D}:{D+3}], v[{A}:{A+3}], v[{B}:{B+3}], {'0' if first else f'v[{D}:{D+3}]'}")

    hdr = [l.rstrip("\n") for l in open(REF) if l.startswith(";") and "@launch" not in l and "Override" not in l and "grid=ceil" not in l]
    top = "\n".join(hdr) + f"\n; @launch grid=(256,1,1) block=(512,1,1) lds={LDS_SZ}\n"
    e(f""".amdgcn_target "amdgcn-amd-amdhsa--gfx950"
.text
.globl {KN}
.p2align 8
.type {KN},@function
{KN}:""")
    e("s_cmp_ge_u32 s2, 256\ns_cbranch_scc1 L_end")
    e("s_load_dwordx16 s[16:31], s[0:1], 0\ns_load_dwordx8 s[32:39], s[0:1], 64")
    if wmap == 2:
        e("s_lshr_b32 s5, s2, 4\ns_and_b32 s6, s2, 15\ns_lshl_b32 s6, s6, 4\ns_or_b32 s2, s5, s6")
    if wmap == 3:
        e("s_lshr_b32 s5, s2, 4\ns_and_b32 s5, s5, 1\ns_lshl_b32 s5, s5, 2\ns_xor_b32 s2, s2, s5")
    if wmap == 1:
        e("s_lshr_b32 s5, s2, 4\ns_add_u32 s6, s2, s5\ns_and_b32 s6, s6, 15\ns_andn2_b32 s2, s2, 15\ns_or_b32 s2, s2, s6")
    stamp(0)
    e("v_lshrrev_b32 v1, 6, v0\nv_and_b32 v0, 63, v0\nv_readfirstlane_b32 s3, v1")
    if auxfirst:
        e("s_xor_b32 s3, s3, 4")
    e("s_and_b32 s8, s2, 15\ns_lshr_b32 s9, s2, 4\ns_sub_u32 s12, s9, 13\ns_lshl_b32 s10, s8, 2\ns_add_u32 s10, s10, s9\ns_sub_u32 s10, s10, 9")
    e("s_and_b32 s5, s2, 7\ns_bfe_u32 s6, s2, 0x10003\ns_lshl_b32 s11, s5, 1\ns_add_u32 s11, s11, s6\ns_mul_i32 s79, s5, 9\ns_add_u32 s79, s79, s9")
    e("s_cmp_ge_u32 s3, 4\ns_cbranch_scc1 " + ("L_aux" if "a" not in abl else "L_end"))

    VO, KD, KR, MK, VW1, VW2, Q, KF, AB, ACC, T, SP, MRUN, NEGM, LS, VT2, VV = 1, 2, 6, 10, 14, 15, 16, 32, 48, 64, 68, 84, 120, 121, 122, 123, 128
    e(f"""v_lshrrev_b32 v1, 3, v0
v_and_b32 v2, 7, v0
v_and_b32 v3, 2, v1
s_and_b32 s5, s3, 1
s_lshl_b32 s5, s5, 2
v_or_b32 v3, s5, v3
v_xor_b32 v2, v2, v3
v_lshlrev_b32 v2, 4, v2
s_lshl_b32 m0, s3, 10
s_mov_b32 s43, 0x20000
s_lshl_b32 s60, s79, 7
s_lshl_b32 s5, s10, 7
s_movk_i32 s7, 9216
s_mov_b32 s42, {576*9216}
s_cmp_ge_u32 s2, 144
s_cselect_b32 s60, s5, s60
s_cselect_b32 s7, 8192, s7
s_cselect_b32 s42, {576*8192}, s42
s_mul_i32 s5, s11, {288*1152}
s_mul_i32 s6, s12, 384
s_add_u32 s5, s5, s6
s_lshl_b32 s62, s7, 5
s_movk_i32 s64, 4096
s_cmp_ge_u32 s2, 208
s_cselect_b32 s60, s5, s60
s_cselect_b32 s7, 1152, s7
s_cselect_b32 s42, {4608*1152}, s42
s_cselect_b32 s63, {36864-256}, s62
s_cselect_b32 s62, 128, s62
s_cselect_b32 s65, {4096-49152}, s64
s_cselect_b32 s64, 24576, s64
s_mul_i32 s5, s3, s7
s_lshl_b32 s5, s5, 3
s_add_u32 s60, s60, s5
v_mad_u32_u24 v{VW1}, v1, s7, v2
s_mov_b32 s66, 5
s_bitcmp1_b32 s2, 3
s_waitcnt lgkmcnt(0)
s_cselect_b64 s[40:41], s[30:31], s[28:29]
s_cmp_ge_u32 s2, 144
s_cselect_b64 s[40:41], s[22:23], s[40:41]
s_cmp_ge_u32 s2, 208
s_cselect_b64 s[40:41], s[32:33], s[40:41]
L_w1:""")
    for k in range(3):
        e(f"s_waitcnt vmcnt({dw-1})\nbuffer_load_dwordx4 v{VW1}, s[40:43], s60 offen nt lds")
        e(f"s_add_u32 s60, s60, s{62 if k < 2 else 63}\ns_add_u32 m0, m0, s{64 if k < 2 else 65}")
    e("s_sub_u32 s66, s66, 1\ns_cbranch_scc0 L_w1")
    srd(52, 20, 0x10000000)
    e(f"""s_mov_b32 s72, s60
s_lshr_b32 s60, s9, 1
s_lshl_b32 s60, s60, 4
s_add_u32 s60, s60, s8
s_lshl_b32 s60, s60, 21
s_and_b32 s61, s9, 1
s_lshl_b32 s61, s61, {14 if split else 18}
s_add_u32 s60, s60, s61
s_lshl_b32 s61, s3, 12
s_add_u32 s60, s60, s61
s_add_u32 s60, s60, {6144*256}
v_mul_u32_u24 v{VT2}, 1152, v1
v_add_u32 v{VT2}, v{VT2}, v2
v_lshlrev_b32 v{VO}, 4, v0""")

    work = {}

    def at(slot, fn):
        work.setdefault(slot, []).append(fn)

    def setup():
        srd(48, 18, 0x10000000)
        srd(56, 38, wsz)
        e(f"""s_mul_i32 s67, s3, {RING}
s_mul_i32 s5, s8, {256*1152}
s_mul_i32 s6, s3, {8*1152}
s_add_u32 s5, s5, s6
s_lshl_b32 s6, s9, 7
s_add_u32 s5, s5, s6
s_mov_b32 s46, {4096*1152}
s_mov_b32 s47, 0x20000
s_cmp_ge_u32 s2, 208
s_cselect_b32 s72, s72, s5
s_cselect_b32 s73, s62, {32*1152}
s_cselect_b32 s74, s63, {32*1152}
s_cselect_b64 s[44:45], s[32:33], s[24:25]
s_cselect_b32 s46, s42, s46""")
        e(f"v_lshrrev_b32 v{T}, 4, v0\nv_and_b32 v{T+1}, 15, v0\nv_lshlrev_b32 v{T+2}, 2, v{T}\nv_xor_b32 v{T+2}, v{T+2}, v{T+1}")
        e(f"v_lshlrev_b32 v{T+2}, 4, v{T+2}\nv_lshl_add_u32 v{KD}, v{T}, 8, v{T+2}")
        for r in range(1, 4):
            e(f"v_xor_b32 v{KD+r}, {16*r}, v{KD}")
        e(f"v_and_b32 v{T+2}, 3, v0\nv_lshlrev_b32 v{T+2}, 2, v{T+2}\nv_lshrrev_b32 v{T+3}, 2, v{T+1}\nv_or_b32 v{T+2}, v{T+2}, v{T+3}")
        e(f"v_lshl_add_u32 v{T+2}, v{T+2}, 8, s67\nv_xor_b32 v{T+3}, v{T}, v{T+1}\nv_lshl_add_u32 v{KR}, v{T+3}, 4, v{T+2}")
        for t in range(1, 4):
            e(f"v_xor_b32 v{KR+t}, {64*t}, v{KR}")
        e(f"v_and_b32 v{T+2}, 1, v0\nv_lshlrev_b32 v{T+2}, 4, v{T+2}\nv_mov_b32 v{T+3}, 0xffff\nv_lshlrev_b32 v{T+3}, v{T+2}, v{T+3}\nv_bfe_u32 v{T+2}, v0, 1, 2")
        for r in range(4):
            e(f"v_cmp_eq_u32 vcc, {r}, v{T+2}\nv_cndmask_b32 v{MK+r}, 0, v{T+3}, vcc")
        e(f"v_lshrrev_b32 v{T+2}, 3, v{T+1}\nv_lshlrev_b32 v{T+2}, 8, v{T+2}\nv_lshl_add_u32 v{T+2}, v{T}, 4, v{T+2}\nv_add_u32 v{VW1}, {QS}, v{T+2}")
        e(f"s_mov_b32 s68, 0xffff0000\ns_mov_b32 s69, {f32(128 ** -0.5)}\ns_mov_b32 s71, {f32(LOG2E)}")
        e(f"v_mov_b32 v{LS}, 0\nv_mov_b32 v{MRUN}, 0xff800000")
        for r in range(4):
            e(f"v_mov_b32 v{ACC+r}, 0")

    at(d, setup)

    def sreg(c):
        return SP + 4 * (c if c < 8 else (8 if c == 8 else c - 9))

    def kread(c):
        def f():
            for t in range(4):
                e(f"ds_read_b128 v[{KF+4*t}:{KF+4*t+3}], v{KR+t} offset:{(c % R) * 4096}")
        return f

    def kmma(c):
        def f():
            e("s_waitcnt lgkmcnt(0)")
            for t in range(4):
                mfma(sreg(c), KF + 4 * t, Q + 4 * t, t == 0)
        return f

    def kround(c):
        def f():
            S = sreg(c)
            for k in range(2):
                e(f"v_cvt_pk_bf16_f32 v{T}, v{S}, v{S+1}\nv_cvt_pk_bf16_f32 v{T+1}, v{S+2}, v{S+3}")
                e(f"v_lshlrev_b32 v{S}, 16, v{T}\nv_and_b32 v{S+1}, s68, v{T}\nv_lshlrev_b32 v{S+2}, 16, v{T+1}\nv_and_b32 v{S+3}, s68, v{T+1}")
                if k == 0:
                    for r in range(4):
                        e(f"v_mul_f32 v{S+r}, s69, v{S+r}")
            e(f"v_max3_f32 v{MRUN}, v{MRUN}, v{S}, v{S+1}\nv_max3_f32 v{MRUN}, v{MRUN}, v{S+2}, v{S+3}")
        return f

    def maxA():
        allred_g(MRUN, T, "v_max_f32")
        e(f"v_mul_f32 v{NEGM}, s71, v{MRUN}\nv_sub_f32 v{NEGM}, 0, v{NEGM}")

    def maxB():
        allred_g(MRUN, T, "v_max_f32")
        e(f"v_mul_f32 v{T+1}, s71, v{MRUN}\nv_add_f32 v{T+2}, v{NEGM}, v{T+1}\nv_sub_f32 v{NEGM}, 0, v{T+1}\nv_exp_f32 v{T+2}, -v{T+2}")
        e(f"v_mul_f32 v{LS}, v{LS}, v{T+2}\nv_mov_b32 v{T+3}, v{T+2}")
        e(f"v_mov_b32_dpp v{T+3}, v{T+2} row_ror:8 row_mask:0x3 bank_mask:0xc\nv_mov_b32_dpp v{T+3}, v{T+2} row_ror:8 row_mask:0xc bank_mask:0x3")
        for r in range(4):
            e(f"v_mul_f32 v{ACC+r}, v{ACC+r}, v{T+3}")

    def pexp(c):
        def f():
            S = sreg(c)
            for r in range(4):
                e(f"v_fma_f32 v{S+r}, v{S+r}, s71, v{NEGM}")
            for r in range(4):
                e(f"v_exp_f32 v{S+r}, v{S+r}")
            e(f"v_add_f32 v{T}, v{S}, v{S+1}\nv_add_f32 v{T+1}, v{S+2}, v{S+3}\nv_add_f32 v{LS}, v{LS}, v{T}\nv_add_f32 v{LS}, v{LS}, v{T+1}")
            for r in range(4):
                e(f"v_cvt_pk_bf16_f32 v{S+r}, v{S+r}, v{S+r}")
        return f

    def aprep(c, r):
        def f():
            for k in range(4):
                e(f"v_and_b32 v{AB+4*r+k}, v{sreg(c)+r}, v{MK+k}")
        return f

    def pv(c, r):
        def f():
            mfma(ACC, AB + 4 * r, VV + 16 * (c % 8) + 4 * r, False)
        return f

    def mlwrite():
        allred_g(LS, T, "v_add_f32")
        e(f"v_sub_f32 v{T+2}, 0, v{NEGM}\nv_mov_b32 v{T+3}, v{LS}")
        e(f"v_bfe_u32 v{T}, v0, 3, 1\nv_lshlrev_b32 v{T}, 5, v{T}\ns_lshl_b32 s63, s3, 3\ns_add_u32 s63, s63, {ML}\nv_add_u32 v{T}, s63, v{T}")
        e(f"ds_write_b64 v{T}, v[{T+2}:{T+3}]")
        e(f"""s_lshl_b32 s63, s3, 10
s_add_u32 s63, s63, {RED}
v_add_u32 v{VW2}, s63, v{VO}
v_lshrrev_b32 v2, 5, v0
v_lshlrev_b32 v3, 5, v2
v_add_u32 v3, {ML}, v3
v_lshlrev_b32 v4, 3, v0
v_lshlrev_b32 v5, 2, v2
v_and_b32 v6, 1, v0
v_lshl_add_u32 v6, v2, 1, v6
v_bfe_u32 v7, v0, 1, 4
v_lshl_add_u32 v6, v6, 4, v7
v_lshlrev_b32 v6, 4, v6
v_add_u32 v6, {RED}, v6
s_lshr_b32 s62, s9, 1
s_and_b32 s63, s9, 1
s_lshl_b32 s63, s63, 3
s_add_u32 s62, s62, s63
s_mul_i32 s63, s62, {GST}
s_add_u32 s63, s63, {GB}
v_add_u32 v7, s63, v4
s_lshl_b32 s63, s62, 3
s_add_u32 s63, s63, {LB}
v_add_u32 v8, s63, v5
s_lshl_b32 s63, s8, 4
s_add_u32 s63, s63, s62
s_mul_i32 s63, s63, {OSL}
s_add_u32 s63, s63, {OBUF}""")

    def qread():
        stamp(6)
        e(f"v_mov_b32 v{T}, {QF}\ns_mov_b32 s70, {0 if 'a' in abl else LIMIT*8}\nL_qw:\nds_read_b32 v{T+1}, v{T}")
        for t in range(4):
            e(f"ds_read_b128 v[{Q+4*t}:{Q+4*t+3}], v{VW1} offset:{64*t}")
        e(f"""s_waitcnt lgkmcnt(0)
v_readfirstlane_b32 s13, v{T+1}
s_cmp_lg_u32 s13, 0
s_cbranch_scc1 L_qd
s_sub_u32 s70, s70, 1
s_cbranch_scc1 L_qd
s_sleep 2
s_branch L_qw
L_qd:""")
        stamp(7)

    def dep(n):
        if dv and d <= n < dvend:
            return dv
        return d if n < sw2 else d2

    landed = {}
    for n in range(128 + 64):
        for m in range(min(127, n - dep(n)) + 1):
            landed.setdefault(m, n)
    qslot = 32 + 4 * R - 3
    at(qslot, qread)
    kslot = {}
    for c in range(16):
        n0 = kslot[c] = max(landed[35 + 4 * c], qslot + 2 * c)
        assert c + R >= 16 or n0 + 1 < 32 + 4 * (c + R)
        at(n0, kread(c))
        at(n0 + 1, kmma(c))
        at(n0 + 2, kround(c))
    assert kslot[15] + 1 < 128
    sA = kslot[7] + 3
    at(sA, maxA)
    for j in range(8):
        s0 = sA + 1 + 3 * j
        at(s0, pexp(j))
        at(s0 + 1, aprep(j, 0)); at(s0 + 1, aprep(j, 1)); at(s0 + 1, pv(j, 0)); at(s0 + 1, pv(j, 1))
        at(s0 + 2, aprep(j, 2)); at(s0 + 2, aprep(j, 3)); at(s0 + 2, pv(j, 2)); at(s0 + 2, pv(j, 3))
        assert s0 + 2 < 96 + 4 * j
        if j < 7:
            assert s0 + 2 < kslot[9 + j] + 1
    sB = kslot[15] + 3
    at(sB, maxB)
    pre = {}
    for j in range(8):
        at(sB + 1 + j, pexp(8 + j))
    at(sB + 9, mlwrite)
    last = 0
    for n in range(96, 128):
        j, r = (n - 96) // 4, n % 4
        s = max(landed[n], sB + 2 + j, last)
        last = s
        pre.setdefault(s, []).append((8 + j, r))
    nslots = max(max(work), last) + 1

    def t2load(j):
        e(f"buffer_load_dwordx4 v{VT2}, s[44:47], s72 offen nt lds")
        if j < 8:
            e(f"s_add_u32 s72, s72, s{74 if j % 3 == 2 else 73}\ns_add_u32 m0, m0, 1024")

    t2n = [0]

    def slot(n, t2):
        todo = pre.get(n, [])
        assert len(todo) <= 4
        for (c, r) in todo:
            aprep(c, r)()
        if n < 32 or 96 <= n < 128:
            i = n if n < 32 else n - 64
            if i % 4 == 0:
                e(f"s_add_u32 s61, s60, {(i // 4) * (32768 if split else 16384)}")
            e(f"s_waitcnt vmcnt({dep(n)-1})")
            if n == d - 1 + b1d:
                stamp(1)
                e("s_barrier")
                stamp(3)
            V = VV + 4 * (i % 32)
            e(f"buffer_load_dwordx4 v[{V}:{V+3}], v{VO}, s[52:55], s61 offen offset:{(i % 4) * 1024} nt")
            if n == 31:
                stamp(2)
                e("s_barrier")
        elif n < 96:
            i = n - 32
            if i % 4 == 0:
                e(f"s_add_u32 s62, s60, {(i // 4) * (32768 if split else 16384)}\ns_add_u32 m0, s67, {((i // 4) % R) * 4096}")
            e(f"s_waitcnt vmcnt({dep(n)-1})")
            e(f"buffer_load_dwordx4 v{KD + i % 4}, s[48:51], s62 offen offset:{(i % 4) * 1024} nt lds")
        else:
            if n - d2 <= 127:
                e(f"s_waitcnt vmcnt({127 - (n - d2) + (t2n[0] if t2 else 0)})")
            left = nslots - 1 - n
            if t2 and left > 0:
                for _ in range(-(-(8 - t2n[0]) // left)):
                    t2load(t2n[0])
                    t2n[0] += 1
        for (c, r) in todo:
            pv(c, r)()
        for fn in work.get(n, []):
            fn()

    for n in range(128):
        slot(n, False)
    e("s_mov_b32 m0, s67\ns_sub_u32 s5, s2, 144\ns_cmp_lt_u32 s5, 64\ns_cbranch_scc1 L_tq")
    for n in range(128, nslots):
        slot(n, True)
    assert t2n[0] == 8
    e("s_branch L_tj\nL_tq:")
    for n in range(128, nslots):
        slot(n, False)
    e("L_tj:")
    if late is not None:
        e(f"s_cmp_lg_u32 s2, {late}\ns_cbranch_scc1 L_nl\ns_sleep 127\ns_sleep 127\nL_nl:")
    e(f"ds_write_b128 v{VW2}, v[{ACC}:{ACC+3}]")
    stamp(4)
    e("s_cmp_lt_u32 s2, 208\ns_cbranch_scc1 L_t9")
    t2load(8)
    e("L_t9:\ns_waitcnt lgkmcnt(0)\ns_barrier\ns_cmp_eq_u32 s3, 0\ns_cbranch_scc1 L_comb\ns_waitcnt vmcnt(0)")
    stamp(5)
    e("s_barrier\ns_barrier\ns_branch L_fin\nL_comb:")
    e("ds_read_b128 v[16:19], v3\nds_read_b128 v[20:23], v3 offset:16")
    for w in range(4):
        e(f"ds_read_b128 v[{28+4*w}:{31+4*w}], v6 offset:{1024*w}")
    e("""s_waitcnt lgkmcnt(4)
v_max3_f32 v24, v16, v18, v20
v_max_f32 v24, v24, v22
v_sub_f32 v16, v16, v24
v_sub_f32 v18, v18, v24
v_sub_f32 v20, v20, v24
v_sub_f32 v22, v22, v24
v_exp_f32 v16, v16
v_exp_f32 v18, v18
v_exp_f32 v20, v20
v_exp_f32 v22, v22
v_mul_f32 v25, v16, v17
v_fmac_f32 v25, v18, v19
v_fmac_f32 v25, v20, v21
v_fmac_f32 v25, v22, v23
v_rcp_f32 v26, v25
v_log_f32 v27, v25
s_waitcnt lgkmcnt(0)""")
    for r in range(4):
        e(f"v_mul_f32 v{ACC+r}, v{28+r}, v16")
    for w in range(1, 4):
        for r in range(4):
            e(f"v_fmac_f32 v{ACC+r}, v{28+4*w+r}, v{16+2*w}")
    for r in range(4):
        e(f"v_mul_f32 v{ACC+r}, v{ACC+r}, v26")
    e(f"""v_cvt_pk_bf16_f32 v28, v{ACC}, v{ACC+1}
v_cvt_pk_bf16_f32 v29, v{ACC+2}, v{ACC+3}
v_add_f32 v27, v27, v24
v_min_u32 v28, -2, v28
v_min_u32 v29, -2, v29
v_min_u32 v27, -2, v27
""")
    dual("""buffer_store_dwordx2 v[28:29], v4, s[56:59], s63 offen POL
s_mov_b32 exec_lo, 1
s_mov_b32 exec_hi, 1
buffer_store_dword v27, v5, s[56:59], s63 offen offset:512 POL""", 13, "o")
    e("ds_write_b32 v8, v27\ns_mov_b64 exec, -1\nds_write_b64 v7, v[28:29]")
    stamp(5)
    e("s_waitcnt vmcnt(2) lgkmcnt(0)\ns_barrier\ns_barrier\ns_branch L_fin")

    XN, WF, OF, AC, G, U = 16, 52, 160, 192, 208, 220
    e("L_aux:\ns_sub_u32 s4, s3, 4\nv_mul_u32_u24 v1, 36, v0\ns_mul_i32 s5, s4, 2304\nv_lshlrev_b32 v2, 4, v0")
    e("s_movk_i32 s42, 9216\ns_mov_b32 s43, 0x20000\ns_waitcnt lgkmcnt(0)\ns_mov_b64 s[40:41], s[16:17]")
    for k in range(3):
        e(f"buffer_load_dwordx3 v[{16+4*k}:{18+4*k}], v1, s[40:43], s5 offen offset:{12*k} {xld}")
    e("s_load_dword s14, s[38:39], 0")
    srd(56, 38, wsz)
    if pref:
        e(f"""s_cmp_lg_u32 s4, 2
s_cbranch_scc1 L_a0
s_getpc_b64 s[60:61]
L_pc:
s_sub_u32 s60, s60, L_pc-{KN}
s_subb_u32 s61, s61, 0
s_lshr_b32 s62, s2, 3
s_lshl_b32 s62, s62, 10
v_add_u32 v3, s62, v2
v_min_u32 v3, L_end-{KN}-12, v3
v_mov_b32 v5, s61
v_add_co_u32 v4, vcc, s60, v3
v_addc_co_u32 v5, vcc, 0, v5, vcc
global_load_dwordx4 v[28:31], v[4:5], off
L_a0:""")
    e(f"""s_add_u32 s13, s79, 64
s_bitcmp1_b32 s2, 3
s_cselect_b32 s60, 72, 0
s_add_u32 s13, s13, s60
s_cmp_ge_u32 s2, 144
s_cselect_b32 s13, s10, s13
s_lshl_b32 s13, s13, 11
s_add_u32 s13, s13, {PBUF}
s_getreg_b32 s78, hwreg(HW_REG_XCC_ID, 0, 4)
s_lshl_b32 s78, s78, 16
s_and_b32 s77, s2, 7
s_lshl_b32 s77, s77, 7
s_add_u32 s77, s77, {XID}
v_mov_b32 v8, {CNT}
v_mov_b32 v10, 0
v_mov_b32 v11, 0
ds_write_b64 v8, v[10:11]
s_mov_b32 s68, 0xffff0000
s_mov_b32 s69, {f32(1/576)}
s_add_u32 s5, s5, {XS}
v_add_u32 v1, s5, v1""")
    e(f"""v_lshrrev_b32 v10, 4, v0
v_and_b32 v11, 15, v0
v_bfe_u32 v8, v0, 2, 2
v_lshl_add_u32 v12, v10, 3, v8
v_lshlrev_b32 v12, 7, v12
v_and_b32 v9, 3, v0
v_lshl_add_u32 v12, v9, 3, v12
v_lshrrev_b32 v13, 1, v8
v_and_b32 v8, 1, v10
v_lshl_or_b32 v13, v8, 1, v13
v_lshl_add_u32 v12, v13, 5, v12
s_lshl_b32 s60, s4, 5
v_xor_b32 v3, s60, v12
v_add_u32 v4, 0x10000, v3
v_and_b32 v14, 7, v0
v_bfe_u32 v15, v0, 2, 3
v_lshl_add_u32 v15, v9, 4, v15
v_lshlrev_b32 v15, 2, v15
v_mul_u32_u24 v5, 1152, v14
v_lshrrev_b32 v8, 3, v11
v_mul_u32_u24 v8, 576, v8
v_lshl_add_u32 v8, v10, 4, v8
v_add_u32 v5, v5, v8
v_add_u32 v5, {XS}, v5
s_mov_b32 s71, 0x07060302
v_and_b32 v57, 31, v0
v_lshlrev_b32 v57, 2, v57
s_waitcnt lgkmcnt(0)
s_add_u32 s14, s14, 1
s_and_b32 s15, s14, 0xffff
s_and_b32 s6, s14, 0xff
s_andn2_b32 s60, s14, 0xf0000
s_or_b32 s78, s78, s60
s_cmp_lg_u32 s4, 0
s_cbranch_scc1 L_a1
s_lshr_b32 s60, s2, 3
s_lshl_b32 s60, s60, 2
s_add_u32 s60, s60, s77
v_mov_b32 v8, s78
s_mov_b64 exec, 1
buffer_store_dword v8, v57, s[56:59], s60 offen
s_mov_b64 exec, -1
s_waitcnt vmcnt(1)
s_branch L_a2
L_a1:
s_waitcnt vmcnt(0)
L_a2:""")
    raw = [16, 17, 18, 20, 21, 22, 24, 25, 26]

    def red32(v, t):
        for s in (8, 4, 2, 1):
            e(f"v_add_f32_dpp v{v}, v{v}, v{v} row_ror:{s} row_mask:0xf bank_mask:0xf")
        e(f"v_mov_b32 v{t}, v{v}\nv_permlane16_swap_b32 v{v}, v{t}\nv_add_f32 v{v}, v{v}, v{t}")

    for k in range(9):
        e(f"v_lshlrev_b32 v{28+2*k}, 16, v{raw[k]}\nv_and_b32 v{29+2*k}, s68, v{raw[k]}")
    e("v_pk_add_f32 v[46:47], v[28:29], v[30:31]")
    for k in range(2, 9):
        e(f"v_pk_add_f32 v[46:47], v[46:47], v[{28+2*k}:{29+2*k}]")
    e("v_add_f32 v46, v46, v47")
    red32(46, 47)
    e("v_mul_f32 v48, s69, v46\nv_sub_f32 v50, 0, v48\nv_sub_f32 v51, 0, v48")
    for k in range(9):
        e(f"v_pk_add_f32 v[8:9], v[{28+2*k}:{29+2*k}], v[50:51]")
        e("v_pk_mul_f32 v[46:47], v[8:9], v[8:9]" if k == 0 else "v_pk_fma_f32 v[46:47], v[8:9], v[8:9], v[46:47]")
    e("v_add_f32 v46, v46, v47")
    red32(46, 47)
    e("v_mul_f32 v46, s69, v46")
    rnd(46, 46)
    e(f"v_add_f32 v46, {f32(1e-5)}, v46")
    rnd(46, 46)
    e("v_sqrt_f32 v46, v46")
    rnd(46, 46)
    e("v_rcp_f32 v46, v46")
    rnd(50, 50)
    e("v_mov_b32 v51, v50\nv_mov_b32 v47, v46")
    for k in range(9):
        e(f"v_pk_add_f32 v[8:9], v[{28+2*k}:{29+2*k}], v[50:51]\nv_cvt_pk_bf16_f32 v9, v8, v9\nv_lshlrev_b32 v8, 16, v9\nv_and_b32 v9, s68, v9")
        e(f"v_pk_mul_f32 v[8:9], v[8:9], v[46:47]\nv_cvt_pk_bf16_f32 v{raw[k]}, v8, v9")
    for k in range(0, 8, 2):
        e(f"ds_write2_b32 v1, v{raw[k]}, v{raw[k+1]} offset0:{k} offset1:{k+1}")
    e(f"ds_write_b32 v1, v{raw[8]} offset:32")
    stamp(1)
    e(f"""v_mov_b32 v{G}, -1
v_mov_b32 v{G+1}, -1
v_mov_b32 v{G+2}, -1
v_mov_b32 v{G+3}, -1
s_lshl_b32 s61, s10, 2
s_add_u32 s61, s61, s4
s_mul_i32 s61, s61, {OSL}
s_add_u32 s61, s61, {OBUF}
v_mov_b32 v1, v57
s_waitcnt lgkmcnt(0)
s_barrier
buffer_load_dword v{G+4}, v1, s[56:59], s77 offen sc1""")
    stamp(2)
    for i in range(9):
        e(f"ds_read_b128 v[{XN+4*i}:{XN+4*i+3}], v5 offset:{64*i}")
    for kk in range(18):
        for hf in range(2):
            off = kk * 4096 + hf * 512
            e(f"ds_read_b64_tr_b16 v[{WF+4*kk+2*hf}:{WF+4*kk+2*hf+1}], v{3 if off < 65536 else 4} offset:{off % 65536}")
    e("s_lshl_b32 s60, s4, 9\ns_add_u32 s60, s60, s13\nv_mov_b32 v7, s68\ns_waitcnt lgkmcnt(0)")
    e("s_cmp_ge_u32 s2, 208\ns_cbranch_scc1 L_aq")
    for i in range(9):
        for hf in range(2):
            mfma(AC + 4 * hf, WF + 4 * (9 * hf + i), XN + 4 * i, i == 0)
    for r in range(4):
        e(f"v_add_f32_dpp v{AC+r}, v{AC+4+r}, v{AC+r} row_ror:8 row_mask:0xf bank_mask:0xf")
    e(f"""v_cvt_pk_bf16_f32 v8, v{AC}, v{AC+1}
v_cvt_pk_bf16_f32 v9, v{AC+2}, v{AC+3}
ds_bpermute_b32 v8, v15, v8
ds_bpermute_b32 v9, v15, v9
s_waitcnt lgkmcnt(0)
v_lshl_or_b32 v16, v8, 16, s15
v_and_or_b32 v17, v8, v7, s15
v_lshl_or_b32 v18, v9, 16, s15
v_and_or_b32 v19, v9, v7, s15
s_waitcnt vmcnt(0)""")
    xidcheck(G + 4)
    e("s_cmp_lt_u32 s2, 144\ns_cbranch_scc1 L_a4\ns_mov_b32 exec_hi, 0xff")
    dual(f"buffer_store_dwordx4 v[{G}:{G+3}], v2, s[56:59], s61 offen POL", 7, "r")
    e("s_waitcnt vmcnt(0)\nL_a4:\ns_mov_b32 exec_hi, 0")
    dual("buffer_store_dwordx4 v[16:19], v2, s[56:59], s60 offen POL", 7, "p")
    e("s_mov_b32 exec_hi, -1")
    stamp(3)
    e("L_aq:\ns_barrier\ns_cmp_lg_u32 s4, 3\ns_cbranch_scc1 L_a3")
    e(f"""s_lshr_b32 s60, s9, 1
s_lshl_b32 s60, s60, 6
s_lshl_b32 s61, s8, 13
s_add_u32 s60, s60, s61
s_add_u32 s60, s60, {PBUF}
v_lshrrev_b32 v6, 2, v0
v_lshlrev_b32 v6, 9, v6
v_and_b32 v7, 3, v0
v_lshl_add_u32 v6, v7, 4, v6""")
    e("buffer_load_dword v24, v1, s[56:59], s77 offen sc1")
    poll("buffer_load_dwordx4 v[20:23], v6, s[56:59], s60 offen " + pld, tagcmp([20, 21, 22, 23], 7), 4)
    xidcheck(24)
    e(f"""v_perm_b32 v8, v21, v20, s71
v_perm_b32 v9, v23, v22, s71
v_lshlrev_b32 v6, 3, v0
v_add_u32 v6, {QS}, v6
ds_write_b64 v6, v[8:9]
v_mov_b32 v6, {QF}
v_mov_b32 v7, s7
s_waitcnt lgkmcnt(0)
ds_write_b32 v6, v7
L_a3:
v_mul_u32_u24 v4, {RING - 1024}, v10
v_add_u32 v4, v4, v3
v_mov_b32 v12, 0xffffff00
v_lshrrev_b32 v3, 3, v0
v_lshlrev_b32 v3, 14, v3
v_lshl_add_u32 v3, v14, 4, v3
s_lshl_b32 s65, s4, 12
s_and_b32 s64, s4, 1
s_lshl_b32 s61, s8, 7
s_add_u32 s65, s65, s61
s_add_u32 s65, s65, {PART}
s_cmp_lt_u32 s2, 144
s_cbranch_scc1 L_aO
s_cmp_lt_u32 s2, 208
s_cbranch_scc1 L_fin""")

    e(f"""s_mul_i32 s60, s11, 9216
s_mul_i32 s61, s4, 2304
s_add_u32 s60, s60, s61
s_add_u32 s60, s60, {PBUF + 131072}
s_add_u32 s61, s60, {288 * 512}
s_mov_b32 s72, -1
s_mov_b32 s73, 0xffff
s_mov_b64 exec, s[72:73]""")
    poll("\n".join([f"buffer_load_dwordx4 v[{G+4*k}:{G+4*k+3}], v2, s[56:59], s60 offen offset:{768*k} {pld}" for k in range(3)] +
                   [f"buffer_load_dwordx4 v[{U+4*k}:{U+4*k+3}], v2, s[56:59], s61 offen offset:{768*k} {pld}" for k in range(3)]),
         tagcmp(list(range(G, G + 24)), 8), 8, restore="s[72:73]")
    c0 = -2 * LOG2E * 0.7978845608028654
    e(f"v_mov_b32 v32, {f32(c0)}\nv_mov_b32 v33, {f32(c0 * 0.044715)}\ns_mul_i32 s60, s4, 144")
    for k in range(6):
        e(f"""v_and_b32 v34, s68, v{G+2*k}
v_and_b32 v35, s68, v{G+2*k+1}
v_mul_f32 v36, v34, v34
v_mul_f32 v37, v35, v35
v_fma_f32 v36, v36, v33, v32
v_fma_f32 v37, v37, v33, v32
v_mul_f32 v36, v36, v34
v_mul_f32 v37, v37, v35
v_exp_f32 v36, v36
v_exp_f32 v37, v37
v_and_b32 v38, s68, v{U+2*k}
v_add_f32 v36, 1.0, v36
v_add_f32 v37, 1.0, v37
v_rcp_f32 v36, v36
v_rcp_f32 v37, v37
v_and_b32 v39, s68, v{U+2*k+1}
v_mul_f32 v34, v34, v36
v_mul_f32 v35, v35, v37
v_cvt_pk_bf16_f32 v35, v34, v35
v_lshlrev_b32 v34, 16, v35
v_and_b32 v35, s68, v35
v_mul_f32 v34, v34, v38
v_mul_f32 v35, v35, v39
v_cvt_pk_bf16_f32 v{40+k}, v34, v35""")
    for k in range(3):
        e(f"""v_add_u32 v34, s60, v0
v_bfe_u32 v35, v34, 2, 3
v_mul_u32_u24 v35, 576, v35
v_and_b32 v36, 3, v34
v_lshl_add_u32 v35, v36, 3, v35
v_and_b32 v34, 0xffe0, v34
v_add_u32 v35, v35, v34
v_add_u32 v35, {HS}, v35
ds_write_b64 v35, v[{40+2*k}:{41+2*k}]
s_add_u32 s60, s60, 48""")
    e(f"""s_mov_b64 exec, 1
v_mov_b32 v8, {CNT}
v_mov_b32 v9, 1
s_waitcnt lgkmcnt(0)
ds_add_u32 v8, v9
s_mov_b32 s70, {LIMIT*8}
L_spin:
ds_read_b32 v9, v8
s_waitcnt lgkmcnt(0)
v_readfirstlane_b32 s60, v9
s_cmp_ge_u32 s60, 4
s_cbranch_scc1 L_spind
s_sub_u32 s70, s70, 1
s_cbranch_scc1 L_spind
s_sleep 2
s_branch L_spin
L_spind:
s_mov_b64 exec, -1
v_mul_u32_u24 v5, 576, v14
v_lshl_add_u32 v5, v10, 4, v5
v_add_u32 v5, {HS}, v5""")
    for i in range(9):
        e(f"ds_read_b128 v[{XN+4*i}:{XN+4*i+3}], v5 offset:{64*i}")
    e(f"""s_mul_i32 s60, s12, {3*65536}
s_add_u32 s60, s60, s65
s_add_u32 s60, s60, 2048
s_add_u32 s61, s60, 65536
s_add_u32 s62, s60, 131072
s_waitcnt lgkmcnt(0)""")
    for i in range(6):
        for sub in range(3):
            mfma(AC + 4 * sub, WF + 4 * (6 * sub + i), XN + 4 * i, i == 0)
    stamp(4)
    e("s_barrier\ns_barrier")
    for j in range(9):
        for hf in range(2):
            e(f"ds_read_b64_tr_b16 v[{WF+4*j+2*hf}:{WF+4*j+2*hf+1}], v4 offset:{j*1024 + hf*512}")
    for j in range(9):
        if j % 3 == 0:
            e(f"s_waitcnt lgkmcnt({12 - 2 * j})")
        mfma(AC + 4 * (j % 3), WF + 4 * j, XN + 4 * (6 + j // 3), False)

    def publish(n, src, soffs):
        for r in range(4 * n):
            e(f"v_and_or_b32 v{src+r}, v{src+r}, v12, s6")
            if bperm:
                e(f"ds_bpermute_b32 v{G+r}, v15, v{src+r}")
        e("s_mov_b32 exec_hi, 0" if bperm else "s_mov_b32 exec_lo, 0x00ff00ff\ns_mov_b32 exec_hi, 0x00ff00ff")
        for k in range(n):
            if bperm:
                e(f"s_waitcnt lgkmcnt({4 * (n - 1 - k)})")
            b = (G if bperm else src) + 4 * k
            e(f"buffer_store_dwordx4 v[{b}:{b+3}], v3, s[56:59], s{soffs[k]} offen {fst}")
        e("s_mov_b64 exec, -1")

    publish(3, AC, (60, 61, 62))
    stamp(7)
    e("s_branch L_fin")

    e(f"""L_aO:
s_lshl_b32 s61, s9, 16
s_add_u32 s65, s65, s61
v_mul_u32_u24 v6, {OSL}, v10
v_lshl_add_u32 v5, v11, 4, v6
s_lshl_b32 s62, s8, 2
s_add_u32 s62, s62, s4
s_mul_i32 s62, s62, {4*OSL}
s_add_u32 s62, s62, {OBUF}
s_mul_i32 s61, s4, {4*GST}
s_add_u32 s61, s61, {GB}
v_mul_u32_u24 v48, {GST}, v10
v_lshl_add_u32 v48, v11, 4, v48
v_add_u32 v48, s61, v48
s_lshl_b32 s61, s4, 5
s_add_u32 s61, s61, {LB}
v_lshl_add_u32 v49, v10, 3, s61
v_mul_u32_u24 v46, {GST}, v11
v_lshl_add_u32 v46, v10, 4, v46
v_add_u32 v46, {GB}, v46
v_lshlrev_b32 v47, 3, v11
v_add_u32 v47, {LB}, v47
s_lshl_b32 s74, s2, 12
s_lshl_b32 s61, s64, 6
s_add_u32 s74, s74, s61
s_add_u32 s74, s74, {PART}
v_lshrrev_b32 v8, 3, v0
v_lshlrev_b32 v7, 7, v8
v_lshl_add_u32 v7, v14, 3, v7
v_mov_b32 v26, 0xff
s_lshr_b32 s75, s8, 2
s_lshl_b32 s75, s75, 1
s_add_u32 s75, s75, s64
s_mul_i32 s75, s75, 1152
s_lshl_b32 s61, s9, 7
s_add_u32 s75, s75, s61
s_and_b32 s61, s8, 3
s_lshl_b32 s61, s61, 5
s_add_u32 s75, s75, s61
v_and_b32 v9, 1, v10
v_lshlrev_b32 v9, 1, v9
v_lshl_add_u32 v13, v14, 2, v9
buffer_load_ushort v50, v13, s[40:43], s75 offen
s_lshr_b32 s61, s9, 1
s_and_b32 s60, s9, 1
s_lshl_b32 s60, s60, 3
s_add_u32 s61, s61, s60
s_lshl_b32 s60, s4, 2
s_sub_u32 s61, s61, s60
v_cmp_ne_u32 s[72:73], s61, v10""")
    srd(48, 34, 9216)
    e("s_waitcnt vmcnt(0)\nv_lshlrev_b32 v50, 16, v50\ns_mov_b64 exec, s[72:73]\ns_barrier")
    stamp(5)

    def ofirst():
        e("s_mov_b64 exec, -1\ns_barrier")
        stamp(4)
        for ks in range(8):
            for hf in range(2):
                e(f"ds_read_b64_tr_b16 v[{OF+4*ks+2*hf}:{OF+4*ks+2*hf+1}], v4 offset:{ks*1024 + hf*512}")
        e("s_mov_b64 exec, s[72:73]")

    poll("""buffer_load_dwordx4 v[28:31], v5, s[56:59], s62 offen sc1
buffer_load_dwordx4 v[32:35], v5, s[56:59], s62 offen offset:256 sc1
buffer_load_dwordx2 v[36:37], v6, s[56:59], s62 offen offset:512 sc1""".replace("sc1", old), sentcmp(range(28, 38), 38), psleep, first=ofirst, restore="s[72:73]")
    e("ds_write_b128 v48, v[28:31]\nds_write_b128 v48, v[32:35] offset:256\nds_write_b64 v49, v[36:37]\ns_mov_b64 exec, -1")
    stamp(6)
    e("s_waitcnt lgkmcnt(0)\ns_barrier\nds_read_b64 v[36:37], v47")
    order = [0, 4, 1, 5, 2, 6, 3, 7]
    for ks in order:
        e(f"ds_read_b128 v[{WF+4*ks}:{WF+4*ks+3}], v46 offset:{64*ks}")
    e("""s_waitcnt lgkmcnt(8)
v_sub_f32_dpp v38, v36, v36 row_ror:8 row_mask:0xf bank_mask:0xf
v_sub_f32_dpp v39, v37, v37 row_ror:8 row_mask:0xf bank_mask:0xf""")
    fill = ["v_exp_f32 v38, v38", "v_exp_f32 v39, v39", "v_add_f32 v38, 1.0, v38", "v_add_f32 v39, 1.0, v39", "v_rcp_f32 v38, v38", "v_rcp_f32 v39, v39"]
    for i, ks in enumerate(order):
        e(f"s_waitcnt lgkmcnt({7 - i})")
        mfma(AC + 4 * (ks // 4), OF + 4 * ks, WF + 4 * ks, ks % 4 == 0)
        if i < len(fill):
            e(fill[i])
    for r in range(4):
        e(f"v_mul_f32 v{AC+r}, v{AC+r}, v38")
    for r in range(4):
        e(f"v_fmac_f32 v{AC+r}, v{AC+4+r}, v39")
    for r in range(4):
        e(f"v_add_f32_dpp v{AC+r}, v{AC+r}, v{AC+r} row_ror:8 row_mask:0xf bank_mask:0xf")
    publish(1, AC, (65,))
    stamp(3)
    e("s_cmp_ge_u32 s4, 2\ns_cbranch_scc1 L_fin")
    chk = "\n".join(f"v_xor_b32 v{16+i}, s6, v{16+i}" for i in range(8))
    chk += "\nv_or3_b32 v24, v16, v17, v18\nv_or3_b32 v25, v19, v20, v21\nv_or3_b32 v24, v24, v22, v23\nv_bitop3_b32 v24, v24, v26, v25 bitop3:0xc8\nv_cmp_ne_u32 vcc, 0, v24"
    poll("\n".join(f"buffer_load_dwordx2 v[{16+2*i}:{17+2*i}], v7, s[56:59], s74 offen offset:{1024*i} {fld}" for i in range(4)), chk, psleep if psleep2 is None else psleep2, masked=False)
    e("""v_pk_add_f32 v[16:17], v[16:17], v[18:19]
v_pk_add_f32 v[20:21], v[20:21], v[22:23]
v_permlane32_swap_b32 v16, v20
v_permlane32_swap_b32 v17, v21
v_pk_add_f32 v[16:17], v[16:17], v[20:21]
v_permlane16_swap_b32 v16, v17
v_add_f32 v16, v16, v17
v_add_f32_dpp v16, v16, v16 row_ror:8 row_mask:0xf bank_mask:0xf""")
    rnd(16, 16)
    e("v_add_f32 v17, v16, v50")
    rnd(17, 17)
    e("""v_permlane32_swap_b32 v16, v18
v_add_f32 v17, v17, v18
v_cvt_pk_bf16_f32 v17, v17, v17
s_mov_b32 exec_lo, 0x00ff00ff
s_mov_b32 exec_hi, 0
buffer_store_short v17, v13, s[48:51], s75 offen
s_mov_b64 exec, 1
s_add_u32 s60, s2, s4
s_cmp_lg_u32 s60, 0
s_cbranch_scc1 L_o3
v_mov_b32 v19, s14
buffer_store_dword v19, v7, s[56:59], 0 offen
L_o3:
s_mov_b64 exec, -1""")
    stamp(7)
    if probe:
        if probe[1] is not None:
            e(f"s_and_b32 s60, s2, {probe[1]}\ns_cmp_lg_u32 s60, {probe[2]}\ns_cbranch_scc1 L_fin")
        e(f"L_probe:\ns_memrealtime s[76:77]\ns_waitcnt lgkmcnt(0)\ns_sub_u32 s60, s76, s{80 + 2 * probe[0]}\ns_cmp_lt_u32 s60, 5000\ns_cbranch_scc1 L_probe")
    e("L_fin:")
    if diag:
        e("s_cmp_lt_u32 s3, 4\ns_cbranch_scc1 L_dg\ns_sub_u32 s60, s2, 144\ns_cmp_lt_u32 s60, 64\ns_cbranch_scc1 L_end\nL_dg:")
        e("s_waitcnt vmcnt(0)\ns_memrealtime s[76:77]\ns_waitcnt lgkmcnt(0)\ns_getreg_b32 s77, hwreg(HW_REG_HW_ID)")
        for i in range(8):
            e(f"v_mov_b32 v{16+i}, s{80+2*i}")
        e(f"v_mov_b32 v24, s76\nv_mov_b32 v25, s77\nv_mov_b32 v1, 0\ns_lshl_b32 s60, s2, 3\ns_add_u32 s60, s60, s3\ns_lshl_b32 s60, s60, 6\ns_add_u32 s60, s60, {STAMP}")
        e("s_mov_b64 exec, 1\nbuffer_store_dwordx4 v[16:19], v1, s[56:59], s60 offen\nbuffer_store_dwordx4 v[20:23], v1, s[56:59], s60 offen offset:16\nbuffer_store_dwordx2 v[24:25], v1, s[56:59], s60 offen offset:32")
    e("L_end:\ns_endpgm")
    e(f""".section .rodata,"a"
.p2align 6
.amdhsa_kernel {KN}
.amdhsa_next_free_vgpr 256
.amdhsa_next_free_sgpr 102
.amdhsa_accum_offset 256
.amdhsa_group_segment_fixed_size 0
.amdhsa_kernarg_size 96
.amdhsa_user_sgpr_count 2
.amdhsa_user_sgpr_kernarg_segment_ptr 1
.amdhsa_system_sgpr_workgroup_id_x 1
.amdhsa_float_denorm_mode_32 3
.end_amdhsa_kernel""")
    return top + e.text()


def summary(T, cfg):
    import numpy as np
    S = T[:, :4]; A = T[:144, 4:]; D = T[208:, 4:]
    wd = S[:, :, 4].max(1); m = wd.max()
    r = dict(startmax=S[:, :, 0].max(), B1med=float(np.median(S[:, :, 1])), B1max=S[:, :, 1].max(), b1wmean=(S[:, :, 3].max(1) - S[:, :, 1].max(1)).mean(), b1wmax=(S[:, :, 3].max(1) - S[:, :, 1].max(1)).max(), B2max=S[:, :, 2].max(), qwait=(S[:, :, 7] - S[:, :, 6]).max(),
             GO=wd[:144].mean(), Q=wd[144:208].mean(), D=wd[208:].mean(), xcdspread=max(wd[i::8].mean() for i in range(8)) - wd.mean(),
             pairmax=wd.reshape(8, 2, 16).mean(1).max(), p90=float(np.percentile(wd, 90)), p97=float(np.percentile(wd, 97)), meandone=wd.mean(), maxdone=m, opub=S[:, 0, 5].max() - m, t2=S[:, 1:, 5].max() - m, t2dur=(S[:144, 1:, 5].max(1) - wd[:144]).mean())
    if "a" not in cfg.get("abl", ""):
        r.update(LNmed=float(np.median(A[:, :, 1])), LNmax=A[:, :, 1].max(), dearly=D[:, :, 4].max(), dpub=D[:, :, 7].max() - m, ogath=A[:, :, 6].max() - m, ppub=A[:, :, 3].max() - m, out=A[:, :2, 7].max() - m, end=A[:, :, 8].max())
    return r


if __name__ == "__main__":
    kw = eval("dict(" + (sys.argv[2] if len(sys.argv) > 2 else "") + ")")
    open(sys.argv[1], "w").write(gen(**kw))
```

```python
import sys, struct
sys.path.insert(0, "dev")
from asmlib import Asm

KN = "parallel_sum__sliding_block_cached__geglu_ffn__decode_kernel"
REF = "parallel_sum__sliding_block_cached__geglu_ffn__decode.s.ref"

R = 6
RING = R * 4096
XS = 4 * RING
QS = XS + 9216
HS = QS + 512
ML = HS + 4608
CNT = ML + 64
QF = CNT + 4
C1 = CNT + 8
LB = CNT + 64
RED = LB + 128
GB = RED + 4096
GST = 528
LDS_SZ = GB + 16 * GST
XID = 0x400
PBUF, OBUF, PART = 0x1000, 0x70000, 0xA0000
OSL = 640
WS_SZ = PART + 144 * 4096
STAMP = 0x200000
LIMIT = 400000
LOG2E = 1.4426950408889634


def f32(x):
    return "0x%08x" % struct.unpack("<I", struct.pack("<f", x))[0]


def gen(d=6, d2=7, dw=None, sw2=96, diag=0, psleep=1, probe=None, abl="", late=None, pref=0, gmask=1, psleep2=None, b1d=0, auxfirst=1, split=1, dv=None, dvend=32, wmap=0, pld="sc1", fst="sc1", fld="sc1", old="sc1", xld="", loc="pro", bperm=1, force=None, mix=(18, 1), d3=10, k3=0, pat=(5,), pat0=0, bits="wwCsCCC", xs=3, tries=3, vt=None, kt=None, tvec=0, segs=((12, 9, 3), (14, 9, 1)), gsleep=8):
    dw = dw or d
    e = Asm()
    pos = {ch: [i for i, x in enumerate(bits) if x == ch] for ch in "wsC"}

    def coff(c):
        return sum(((c >> k) & 1) << p for k, p in enumerate(pos["C"])) * 4096 + {0: 0, 1: (c & 1) << 13, 2: (c & 3) << 12, 3: ((c & 1) << 13) | ((c >> 1 & 1) << (12 + pos["s"][0])), 4: (c >> 1 & 1) << 13}[xs]

    uid = [0]
    uid2 = [0]
    wsz = WS_SZ if not diag else 0x400000

    def stamp(i):
        if diag or (probe and probe[0] == i):
            e(f"s_memrealtime s[{80 + 2 * i}:{81 + 2 * i}]")

    def srd(b, lo, size):
        e(f"s_mov_b32 s{b}, s{lo}\ns_mov_b32 s{b+1}, s{lo+1}\ns_mov_b32 s{b+2}, {size}\ns_mov_b32 s{b+3}, 0x20000")

    def rnd(dst, src):
        e(f"v_cvt_pk_bf16_f32 v{dst}, v{src}, v{src}\nv_lshlrev_b32 v{dst}, 16, v{dst}")

    def poll(loads, cmp, sleep, restore="-1", masked=True, first=None):
        uid[0] += 1
        L = f"L_poll{uid[0]}"
        if str(uid[0]) in abl:
            loads = "s_nop 0"
        e(f"s_mov_b32 s70, {0 if 'p' in abl else LIMIT}")
        if first:
            e(loads)
            first()
            e(f"s_branch {L}_w")
        e(f"{L}:")
        e(loads)
        e(f"{L}_w:\ns_waitcnt vmcnt(0)")
        e(cmp)
        e(f"s_and_b64 exec, exec, vcc\ns_cbranch_scc0 {L}_d" if masked else f"s_cbranch_vccz {L}_d")
        e(f"s_sub_u32 s70, s70, 1\ns_cbranch_scc1 {L}_d")
        if not masked and gmask:
            for h in ("lo", "hi"):
                e(f"s_and_b32 s60, vcc_{h}, 0x7f7f7f7f\ns_add_u32 s60, s60, 0x7f7f7f7f\ns_or_b32 s60, s60, vcc_{h}\ns_lshr_b32 s60, s60, 7\ns_and_b32 s60, s60, 0x01010101\ns_mul_i32 exec_{h}, s60, 255")
        if sleep:
            e(f"s_sleep {sleep}")
        e(f"s_branch {L}\n{L}_d:")
        if masked or gmask:
            e(f"s_mov_b64 exec, {restore}")

    def dual(stores, sreg_, kind):
        if kind not in loc:
            e(stores.replace("POL", "sc1"))
            return
        uid2[0] += 1
        L = f"L_dual{uid2[0]}"
        e(f"s_cmp_eq_u32 s{sreg_}, 2\ns_cbranch_scc0 {L}")
        e(stores.replace("POL", ""))
        e(f"s_branch {L}_d\n{L}:")
        e(stores.replace("POL", "sc1"))
        e(f"{L}_d:")

    def xidcheck(v):
        e(f"v_cmp_ne_u32 vcc, s78, v{v}\ns_cmp_eq_u32 vcc_lo, 0\ns_cselect_b32 s7, 2, 1")
        if force is not None:
            e(f"s_mov_b32 s7, {force}")

    def ldsarrive(addr, va):
        e(f"s_mov_b64 exec, 1\nv_mov_b32 v{va}, {addr}\nv_mov_b32 v{va+1}, 1\nds_add_u32 v{va}, v{va+1}")

    def ldsspin(va, count, name):
        e(f"""s_mov_b32 s70, {LIMIT*8}
{name}:
ds_read_b32 v{va+1}, v{va}
s_waitcnt lgkmcnt(0)
v_readfirstlane_b32 s60, v{va+1}
s_cmp_ge_u32 s60, {count}
s_cbranch_scc1 {name}d
s_sub_u32 s70, s70, 1
s_cbranch_scc1 {name}d
s_sleep 2
s_branch {name}
{name}d:
s_mov_b64 exec, -1""")

    def sentcmp(regs, tmp):
        r = list(regs)
        out = []
        cur = r.pop(0)
        while r:
            out.append(f"v_max3_u32 v{tmp}, v{cur}, v{r[0]}, v{r[1]}" if len(r) > 1 else f"v_max_u32 v{tmp}, v{cur}, v{r[0]}")
            r = r[2:]
            cur = tmp
        out.append(f"v_cmp_eq_u32 vcc, -1, v{cur}")
        return "\n".join(out)

    def tagcmp(regs, tmp):
        out = [f"v_xor_b32 v{tmp}, s15, v{regs[0]}"]
        for r in regs[1:]:
            out.append(f"v_bitop3_b32 v{tmp}, v{r}, v{tmp}, s15 bitop3:0xde")
        out.append(f"v_and_b32 v{tmp}, 0xffff, v{tmp}\nv_cmp_ne_u32 vcc, 0, v{tmp}")
        return "\n".join(out)

    def allred_g(v, t, op):
        e(f"v_mov_b32 v{t}, v{v}\nv_permlane16_swap_b32 v{v}, v{t}\n{op} v{v}, v{v}, v{t}")
        e(f"v_mov_b32 v{t}, v{v}\nv_permlane32_swap_b32 v{v}, v{t}\n{op} v{v}, v{v}, v{t}")

    def mfma(D, A, B, first):
        e(f"v_mfma_f32_16x16x32_bf16 v[{D}:{D+3}], v[{A}:{A+3}], v[{B}:{B+3}], {'0' if first else f'v[{D}:{D+3}]'}")

    hdr = [l.rstrip("\n") for l in open(REF) if l.startswith(";") and "@launch" not in l and "Override" not in l and "grid=ceil" not in l]
    top = "\n".join(hdr) + f"\n; @launch grid=(256,1,1) block=(512,1,1) lds={LDS_SZ}\n"
    e(f""".amdgcn_target "amdgcn-amd-amdhsa--gfx950"
.text
.globl {KN}
.p2align 8
.type {KN},@function
{KN}:""")
    e("s_cmp_ge_u32 s2, 256\ns_cbranch_scc1 L_end")
    e("s_load_dwordx16 s[16:31], s[0:1], 0\ns_load_dwordx8 s[32:39], s[0:1], 64")
    if wmap == 2:
        e("s_lshr_b32 s5, s2, 4\ns_and_b32 s6, s2, 15\ns_lshl_b32 s6, s6, 4\ns_or_b32 s2, s5, s6")
    if wmap == 3:
        e("s_lshr_b32 s5, s2, 4\ns_and_b32 s5, s5, 1\ns_lshl_b32 s5, s5, 2\ns_xor_b32 s2, s2, s5")
    if wmap == 1:
        e("s_lshr_b32 s5, s2, 4\ns_add_u32 s6, s2, s5\ns_and_b32 s6, s6, 15\ns_andn2_b32 s2, s2, 15\ns_or_b32 s2, s2, s6")
    stamp(0)
    e("v_lshrrev_b32 v1, 6, v0\nv_and_b32 v0, 63, v0\nv_readfirstlane_b32 s3, v1")
    if auxfirst:
        e("s_xor_b32 s3, s3, 4")
    e("s_and_b32 s8, s2, 15\ns_lshr_b32 s9, s2, 4\ns_sub_u32 s12, s9, 13\ns_lshl_b32 s10, s8, 2\ns_add_u32 s10, s10, s9\ns_sub_u32 s10, s10, 9")
    e("s_and_b32 s5, s2, 7\ns_bfe_u32 s6, s2, 0x10003\ns_lshl_b32 s11, s5, 1\ns_add_u32 s11, s11, s6\ns_mul_i32 s79, s5, 9\ns_add_u32 s79, s79, s9")
    e("s_cmp_ge_u32 s3, 4\ns_cbranch_scc1 " + ("L_aux" if "a" not in abl else "L_end"))

    VO, KD, KR, MK, VW1, VW2, Q, KF, AB, ACC, T, SP, MRUN, NEGM, LS, VT2, VV = 1, 2, 6, 10, 14, 15, 16, 32, 48, 64, 68, 84, 120, 121, 122, 123, 128
    e(f"""v_lshrrev_b32 v1, 3, v0
v_and_b32 v2, 7, v0
v_and_b32 v3, 2, v1
s_and_b32 s5, s3, 1
s_lshl_b32 s5, s5, 2
v_or_b32 v3, s5, v3
v_xor_b32 v2, v2, v3
v_lshlrev_b32 v2, 4, v2
s_lshl_b32 m0, s3, 10
s_mov_b32 s43, 0x20000
s_lshl_b32 s60, s79, 7
s_lshl_b32 s5, s10, 7
s_movk_i32 s7, 9216
s_mov_b32 s42, {576*9216}
s_cmp_ge_u32 s2, 144
s_cselect_b32 s60, s5, s60
s_cselect_b32 s7, 8192, s7
s_cselect_b32 s42, {576*8192}, s42
s_mul_i32 s5, s11, {288*1152}
s_mul_i32 s6, s12, 384
s_add_u32 s5, s5, s6
s_lshl_b32 s62, s7, 5
s_movk_i32 s64, 4096
s_cmp_ge_u32 s2, 208
s_cselect_b32 s60, s5, s60
s_cselect_b32 s7, 1152, s7
s_cselect_b32 s42, {4608*1152}, s42
s_cselect_b32 s63, {36864-256}, s62
s_cselect_b32 s62, 128, s62
s_cselect_b32 s65, {4096-49152}, s64
s_cselect_b32 s64, 24576, s64
s_mul_i32 s5, s3, s7
s_lshl_b32 s5, s5, 3
s_add_u32 s72, s60, s5
v_mad_u32_u24 v{VW1}, v1, s7, v2
s_bitcmp1_b32 s2, 3
s_waitcnt lgkmcnt(0)
s_cselect_b64 s[40:41], s[30:31], s[28:29]
s_cmp_ge_u32 s2, 144
s_cselect_b64 s[40:41], s[22:23], s[40:41]
s_cmp_ge_u32 s2, 208
s_cselect_b64 s[40:41], s[32:33], s[40:41]
""")

    def vsetup():
        srd(52, 20, 0x10000000)
        e(f"""s_lshr_b32 s60, s9, 1
s_lshl_b32 s60, s60, 4
s_add_u32 s60, s60, s8
s_lshl_b32 s60, s60, 21
s_and_b32 s61, s9, 1
s_lshl_b32 s61, s61, {12 + pos["s"][0]}
s_add_u32 s60, s60, s61
s_and_b32 s61, s3, 1
s_lshl_b32 s61, s61, {12 + pos["w"][0]}
s_add_u32 s60, s60, s61
s_lshr_b32 s61, s3, 1
s_lshl_b32 s61, s61, {12 + pos["w"][1]}
s_add_u32 s60, s60, s61
s_add_u32 s60, s60, {6144*256}
v_mul_u32_u24 v{VT2}, 1152, v1
v_add_u32 v{VT2}, v{VT2}, v2
v_lshlrev_b32 v{VO}, 4, v0""")

    work = {}

    def at(slot, fn):
        work.setdefault(slot, []).append(fn)

    def setup():
        srd(48, 18, 0x10000000)
        srd(56, 38, wsz)
        e(f"""s_mul_i32 s67, s3, {RING}
s_mul_i32 s5, s8, {256*1152}
s_mul_i32 s6, s3, {8*1152}
s_add_u32 s5, s5, s6
s_lshl_b32 s6, s9, 7
s_add_u32 s5, s5, s6
s_mov_b32 s46, {4096*1152}
s_mov_b32 s47, 0x20000
s_cmp_ge_u32 s2, 208
s_cselect_b32 s72, s72, s5
s_cselect_b32 s73, s62, {32*1152}
s_cselect_b32 s74, s63, {32*1152}
s_cselect_b64 s[44:45], s[32:33], s[24:25]
s_cselect_b32 s46, s42, s46""")
        e(f"v_lshrrev_b32 v{T}, 4, v0\nv_and_b32 v{T+1}, 15, v0\nv_lshlrev_b32 v{T+2}, 2, v{T}\nv_xor_b32 v{T+2}, v{T+2}, v{T+1}")
        e(f"v_lshlrev_b32 v{T+2}, 4, v{T+2}\nv_lshl_add_u32 v{KD}, v{T}, 8, v{T+2}")
        for r in range(1, 4):
            e(f"v_xor_b32 v{KD+r}, {16*r}, v{KD}")
        e(f"v_and_b32 v{T+2}, 3, v0\nv_lshlrev_b32 v{T+2}, 2, v{T+2}\nv_lshrrev_b32 v{T+3}, 2, v{T+1}\nv_or_b32 v{T+2}, v{T+2}, v{T+3}")
        e(f"v_lshl_add_u32 v{T+2}, v{T+2}, 8, s67\nv_xor_b32 v{T+3}, v{T}, v{T+1}\nv_lshl_add_u32 v{KR}, v{T+3}, 4, v{T+2}")
        for t in range(1, 4):
            e(f"v_xor_b32 v{KR+t}, {64*t}, v{KR}")
        e(f"v_and_b32 v{T+2}, 1, v0\nv_lshlrev_b32 v{T+2}, 4, v{T+2}\nv_mov_b32 v{T+3}, 0xffff\nv_lshlrev_b32 v{T+3}, v{T+2}, v{T+3}\nv_bfe_u32 v{T+2}, v0, 1, 2")
        for r in range(4):
            e(f"v_cmp_eq_u32 vcc, {r}, v{T+2}\nv_cndmask_b32 v{MK+r}, 0, v{T+3}, vcc")
        e(f"v_lshrrev_b32 v{T+2}, 3, v{T+1}\nv_lshlrev_b32 v{T+2}, 8, v{T+2}\nv_lshl_add_u32 v{T+2}, v{T}, 4, v{T+2}\nv_add_u32 v{VW1}, {QS}, v{T+2}")
        e(f"s_mov_b32 s68, 0xffff0000\ns_mov_b32 s69, {f32(128 ** -0.5)}\ns_mov_b32 s71, {f32(LOG2E)}")
        e(f"v_mov_b32 v{LS}, 0\nv_mov_b32 v{MRUN}, 0xff800000")
        for r in range(4):
            e(f"v_mov_b32 v{ACC+r}, 0")


    def sreg(c):
        return SP + 4 * (c if c < 8 else (8 if c == 8 else c - 9))

    def kread(c):
        def f():
            for t in range(4):
                e(f"ds_read_b128 v[{KF+4*t}:{KF+4*t+3}], v{KR+t} offset:{(c % R) * 4096}")
        return f

    def kmma(c):
        def f():
            e("s_waitcnt lgkmcnt(0)")
            for t in range(4):
                mfma(sreg(c), KF + 4 * t, Q + 4 * t, t == 0)
        return f

    def kround(c):
        def f():
            S = sreg(c)
            for k in range(2):
                e(f"v_cvt_pk_bf16_f32 v{T}, v{S}, v{S+1}\nv_cvt_pk_bf16_f32 v{T+1}, v{S+2}, v{S+3}")
                e(f"v_lshlrev_b32 v{S}, 16, v{T}\nv_and_b32 v{S+1}, s68, v{T}\nv_lshlrev_b32 v{S+2}, 16, v{T+1}\nv_and_b32 v{S+3}, s68, v{T+1}")
                if k == 0:
                    for r in range(4):
                        e(f"v_mul_f32 v{S+r}, s69, v{S+r}")
            e(f"v_max3_f32 v{MRUN}, v{MRUN}, v{S}, v{S+1}\nv_max3_f32 v{MRUN}, v{MRUN}, v{S+2}, v{S+3}")
        return f

    def maxA():
        allred_g(MRUN, T, "v_max_f32")
        e(f"v_mul_f32 v{NEGM}, s71, v{MRUN}\nv_sub_f32 v{NEGM}, 0, v{NEGM}")

    def maxB():
        allred_g(MRUN, T, "v_max_f32")
        e(f"v_mul_f32 v{T+1}, s71, v{MRUN}\nv_add_f32 v{T+2}, v{NEGM}, v{T+1}\nv_sub_f32 v{NEGM}, 0, v{T+1}\nv_exp_f32 v{T+2}, -v{T+2}")
        e(f"v_mul_f32 v{LS}, v{LS}, v{T+2}\nv_mov_b32 v{T+3}, v{T+2}")
        e(f"v_mov_b32_dpp v{T+3}, v{T+2} row_ror:8 row_mask:0x3 bank_mask:0xc\nv_mov_b32_dpp v{T+3}, v{T+2} row_ror:8 row_mask:0xc bank_mask:0x3")
        for r in range(4):
            e(f"v_mul_f32 v{ACC+r}, v{ACC+r}, v{T+3}")

    def pexp(c):
        def f():
            S = sreg(c)
            for r in range(4):
                e(f"v_fma_f32 v{S+r}, v{S+r}, s71, v{NEGM}")
            for r in range(4):
                e(f"v_exp_f32 v{S+r}, v{S+r}")
            e(f"v_add_f32 v{T}, v{S}, v{S+1}\nv_add_f32 v{T+1}, v{S+2}, v{S+3}\nv_add_f32 v{LS}, v{LS}, v{T}\nv_add_f32 v{LS}, v{LS}, v{T+1}")
            for r in range(4):
                e(f"v_cvt_pk_bf16_f32 v{S+r}, v{S+r}, v{S+r}")
        return f

    def aprep(c, r):
        def f():
            for k in range(4):
                e(f"v_and_b32 v{AB+4*r+k}, v{sreg(c)+r}, v{MK+k}")
        return f

    def pv(c, r):
        def f():
            mfma(ACC, AB + 4 * r, VV + 16 * (c % 8) + 4 * r, False)
        return f

    def mlwrite():
        allred_g(LS, T, "v_add_f32")
        e(f"v_sub_f32 v{T+2}, 0, v{NEGM}\nv_mov_b32 v{T+3}, v{LS}")
        e(f"v_bfe_u32 v{T}, v0, 3, 1\nv_lshlrev_b32 v{T}, 5, v{T}\ns_lshl_b32 s63, s3, 3\ns_add_u32 s63, s63, {ML}\nv_add_u32 v{T}, s63, v{T}")
        e(f"ds_write_b64 v{T}, v[{T+2}:{T+3}]")
        e(f"""s_lshl_b32 s63, s3, 10
s_add_u32 s63, s63, {RED}
v_add_u32 v{VW2}, s63, v{VO}
v_lshrrev_b32 v2, 5, v0
v_lshlrev_b32 v3, 5, v2
v_add_u32 v3, {ML}, v3
v_lshlrev_b32 v4, 3, v0
v_lshlrev_b32 v5, 2, v2
v_and_b32 v6, 1, v0
v_lshl_add_u32 v6, v2, 1, v6
v_bfe_u32 v7, v0, 1, 4
v_lshl_add_u32 v6, v6, 4, v7
v_lshlrev_b32 v6, 4, v6
v_add_u32 v6, {RED}, v6
s_lshr_b32 s62, s9, 1
s_and_b32 s63, s9, 1
s_lshl_b32 s63, s63, 3
s_add_u32 s62, s62, s63
s_mul_i32 s63, s62, {GST}
s_add_u32 s63, s63, {GB}
v_add_u32 v7, s63, v4
s_lshl_b32 s63, s62, 3
s_add_u32 s63, s63, {LB}
v_add_u32 v8, s63, v5
s_lshl_b32 s63, s8, 4
s_add_u32 s63, s63, s62
s_mul_i32 s63, s63, {OSL}
s_add_u32 s63, s63, {OBUF}""")

    def qread():
        stamp(6)
        e(f"v_mov_b32 v{T}, {QF}\ns_mov_b32 s70, {0 if 'a' in abl else LIMIT*8}\nL_qw:\nds_read_b32 v{T+1}, v{T}")
        for t in range(4):
            e(f"ds_read_b128 v[{Q+4*t}:{Q+4*t+3}], v{VW1} offset:{64*t}")
        e(f"""s_waitcnt lgkmcnt(0)
v_readfirstlane_b32 s13, v{T+1}
s_cmp_lg_u32 s13, 0
s_cbranch_scc1 L_qd
s_sub_u32 s70, s70, 1
s_cbranch_scc1 L_qd
s_sleep 2
s_branch L_qw
L_qd:""")
        stamp(7)

    def dep(n):
        if pat and pat0 <= n < sw2:
            return pat[n % len(pat)]
        return d if n < sw2 else d2

    landed = {}
    for n in range(128 + 64):
        for m in range(min(127, n - dep(n)) + 1):
            landed.setdefault(m, n)
    qslot = 32 + 4 * R - 3
    at(qslot, qread)
    kslot = {}
    for c in range(16):
        n0 = kslot[c] = max(landed[35 + 4 * c], qslot + 2 * c)
        assert c + R >= 16 or n0 + 1 < 32 + 4 * (c + R)
        at(n0, kread(c))
        at(n0 + 1, kmma(c))
        at(n0 + 2, kround(c))
    assert kslot[15] + 1 < 128
    sA = kslot[7] + 3
    at(sA, maxA)
    for j in range(8):
        s0 = sA + 1 + 3 * j
        at(s0, pexp(j))
        at(s0 + 1, aprep(j, 0)); at(s0 + 1, aprep(j, 1)); at(s0 + 1, pv(j, 0)); at(s0 + 1, pv(j, 1))
        at(s0 + 2, aprep(j, 2)); at(s0 + 2, aprep(j, 3)); at(s0 + 2, pv(j, 2)); at(s0 + 2, pv(j, 3))
        assert s0 + 2 < 96 + 4 * j
        if j < 7:
            assert s0 + 2 < kslot[9 + j] + 1
    sB = kslot[15] + 3
    at(sB, maxB)
    pre = {}
    for j in range(8):
        at(sB + 1 + j, pexp(8 + j))
    at(sB + 9, mlwrite)
    last = 0
    for n in range(96, 128):
        j, r = (n - 96) // 4, n % 4
        s = max(landed[n], sB + 2 + j, last)
        last = s
        pre.setdefault(s, []).append((8 + j, r))
    nslots = max(max(work), last) + 1

    def t2load(j):
        e(f"buffer_load_dwordx4 v{VT2}, s[44:47], s72 offen nt lds")
        if j < 8:
            e(f"s_add_u32 s72, s72, s{74 if j % 3 == 2 else 73}\ns_add_u32 m0, m0, 1024")

    def vload(i, depth):
        if i % 4 == 0:
            e(f"s_xor_b32 s61, s60, {coff(i // 4)}")
        if depth:
            e(f"s_waitcnt vmcnt({depth-1})")
        V = VV + 4 * (i % 32)
        e(f"buffer_load_dwordx4 v[{V}:{V+3}], v{VO}, s[52:55], s61 offen offset:{(i % 4) * 1024} nt")

    seq = []
    nw = nv = 0
    while nw < 18 or nv < 32:
        for _ in range(mix[0]):
            if nw < 18:
                seq.append(("W", nw)); nw += 1
        for _ in range(mix[1]):
            if nv < 32:
                seq.append(("V", nv)); nv += 1
    lastw = seq.index(("W", 17))
    assert lastw + d + 1 < len(seq)
    for p, (kind, i) in enumerate(seq[:lastw + d + 1]):
        depth = dw if p <= lastw else d
        if p == dw:
            e("s_barrier")
        if p == min(vt if vt is not None else 99, kt if kt is not None else 99, seq.index(("V", 0))):
            vsetup()
        for nm, at_, ptr in (("v", vt, 20), ("k", kt, 18)):
            if p != at_:
                continue
            if tvec:
                e(f"s_cmp_lg_u32 s3, {0 if nm == 'v' else 1}\ns_cbranch_scc1 L_t{nm}")
                srd(48, ptr, 0x10000000)
                e(f"s_mov_b64 exec, 1\nbuffer_load_dword v{T+4}, v{VO}, s[48:51], s60 offen nt\ns_mov_b64 exec, -1\nL_t{nm}:")
            else:
                e(f"s_andn2_b32 s5, s60, 0x7ffff\ns_add_u32 s74, s{ptr}, s5\ns_addc_u32 s75, s{ptr+1}, 0\ns_load_dword s96, s[74:75], 0")
        if p == lastw + d:
            e(f"s_waitcnt vmcnt({d-1})")
            stamp(1)
            ldsarrive(C1, T)
            e("s_mov_b64 exec, -1")
            stamp(3)
        if kind == "V":
            vload(i, depth if p >= depth else 0)
        else:
            if p >= depth:
                e(f"s_waitcnt vmcnt({depth-1})")
            e(f"buffer_load_dwordx4 v{VW1}, s[40:43], s72 offen nt lds")
            e(f"s_add_u32 s72, s72, s{62 if i % 3 < 2 else 63}\ns_add_u32 m0, m0, s{64 if i % 3 < 2 else 65}")
        if p == lastw + d:
            e("s_add_u32 s66, s40, s72\ns_bfe_u32 s66, s66, 0x30007\ns_cmp_eq_u32 s66, 3\ns_cselect_b32 s66, 1, 0\ns_cmp_ge_u32 s2, 208\ns_cselect_b32 s66, 2, s66")
            setup()

    def kload(i, depth):
        if i % 4 == 0:
            e(f"s_xor_b32 s62, s60, {coff(i // 4)}\ns_add_u32 m0, s67, {((i // 4) % R) * 4096}")
        e(f"s_waitcnt vmcnt({depth-1})")
        e(f"buffer_load_dwordx4 v{KD + i % 4}, s[48:51], s62 offen offset:{(i % 4) * 1024} nt lds")

    def plain(n, depth):
        if n == 32:
            stamp(2)
            e("s_barrier")
        if n < 32:
            vload(n, depth)
        else:
            kload(n - 32, depth)

    n0 = seq[lastw + d + 1][1]
    for si, (cnt, depth, who) in enumerate(segs):
        e(f"s_and_b32 s5, s66, {who}\ns_cbranch_scc1 L_deep{si}")
        for n in range(n0, n0 + cnt):
            plain(n, dep(n))
        e(f"s_branch L_deep{si}d\nL_deep{si}:")
        for n in range(n0, n0 + cnt):
            plain(n, depth)
        e(f"L_deep{si}d:")
        n0 += cnt
    while n0 <= 32:
        plain(n0, dep(n0))
        n0 += 1
    assert n0 <= qslot

    t2n = [0]

    def slot(n, t2):
        todo = pre.get(n, [])
        assert len(todo) <= 4
        for (c, r) in todo:
            aprep(c, r)()
        if 96 <= n < 128:
            vload(n - 64, dep(n))
        elif n < 96:
            i = n - 32
            if i % 4 == 0:
                e(f"s_xor_b32 s62, s60, {coff(i // 4)}\ns_add_u32 m0, s67, {((i // 4) % R) * 4096}")
            e(f"s_waitcnt vmcnt({dep(n)-1})")
            e(f"buffer_load_dwordx4 v{KD + i % 4}, s[48:51], s62 offen offset:{(i % 4) * 1024} nt lds")
        else:
            if n - d2 <= 127:
                e(f"s_waitcnt vmcnt({127 - (n - d2) + (t2n[0] if t2 else 0)})")
            left = nslots - 1 - n
            if t2 and left > 0:
                for _ in range(-(-(8 - t2n[0]) // left)):
                    t2load(t2n[0])
                    t2n[0] += 1
        for (c, r) in todo:
            pv(c, r)()
        for fn in work.get(n, []):
            fn()

    for n in range(n0, 128):
        slot(n, False)
    e("s_mov_b32 m0, s67\ns_sub_u32 s5, s2, 144\ns_cmp_lt_u32 s5, 64\ns_cbranch_scc1 L_tq")
    for n in range(128, nslots):
        slot(n, True)
    assert t2n[0] == 8
    e("s_branch L_tj\nL_tq:")
    for n in range(128, nslots):
        slot(n, False)
    e("L_tj:")
    if late is not None:
        e(f"s_cmp_lg_u32 s2, {late}\ns_cbranch_scc1 L_nl\ns_sleep 127\ns_sleep 127\nL_nl:")
    e(f"ds_write_b128 v{VW2}, v[{ACC}:{ACC+3}]")
    stamp(4)
    e("s_cmp_lt_u32 s2, 208\ns_cbranch_scc1 L_t9")
    t2load(8)
    e("L_t9:\ns_waitcnt lgkmcnt(0)\ns_barrier\ns_cmp_eq_u32 s3, 0\ns_cbranch_scc1 L_comb\ns_waitcnt vmcnt(0)")
    stamp(5)
    e("s_barrier\ns_barrier\ns_branch L_fin\nL_comb:")
    e("ds_read_b128 v[16:19], v3\nds_read_b128 v[20:23], v3 offset:16")
    for w in range(4):
        e(f"ds_read_b128 v[{28+4*w}:{31+4*w}], v6 offset:{1024*w}")
    e("""s_waitcnt lgkmcnt(4)
v_max3_f32 v24, v16, v18, v20
v_max_f32 v24, v24, v22
v_sub_f32 v16, v16, v24
v_sub_f32 v18, v18, v24
v_sub_f32 v20, v20, v24
v_sub_f32 v22, v22, v24
v_exp_f32 v16, v16
v_exp_f32 v18, v18
v_exp_f32 v20, v20
v_exp_f32 v22, v22
v_mul_f32 v25, v16, v17
v_fmac_f32 v25, v18, v19
v_fmac_f32 v25, v20, v21
v_fmac_f32 v25, v22, v23
v_rcp_f32 v26, v25
v_log_f32 v27, v25
s_waitcnt lgkmcnt(0)""")
    for r in range(4):
        e(f"v_mul_f32 v{ACC+r}, v{28+r}, v16")
    for w in range(1, 4):
        for r in range(4):
            e(f"v_fmac_f32 v{ACC+r}, v{28+4*w+r}, v{16+2*w}")
    for r in range(4):
        e(f"v_mul_f32 v{ACC+r}, v{ACC+r}, v26")
    e(f"""v_cvt_pk_bf16_f32 v28, v{ACC}, v{ACC+1}
v_cvt_pk_bf16_f32 v29, v{ACC+2}, v{ACC+3}
v_add_f32 v27, v27, v24
v_min_u32 v28, -2, v28
v_min_u32 v29, -2, v29
v_min_u32 v27, -2, v27
""")
    dual("""buffer_store_dwordx2 v[28:29], v4, s[56:59], s63 offen POL
s_mov_b32 exec_lo, 1
s_mov_b32 exec_hi, 1
buffer_store_dword v27, v5, s[56:59], s63 offen offset:512 POL""", 13, "o")
    e("ds_write_b32 v8, v27\ns_mov_b64 exec, -1\nds_write_b64 v7, v[28:29]")
    stamp(5)
    e("s_waitcnt vmcnt(2) lgkmcnt(0)\ns_barrier\ns_barrier\ns_branch L_fin")

    XN, WF, OF, AC, G, U = 16, 52, 160, 192, 208, 220
    e("L_aux:\ns_sub_u32 s4, s3, 4\nv_mul_u32_u24 v1, 36, v0\ns_mul_i32 s5, s4, 2304\nv_lshlrev_b32 v2, 4, v0")
    e(f"v_mov_b32 v8, {CNT}\nv_mov_b32 v4, 0\nv_mov_b32 v5, 0\nv_mov_b32 v6, 0\nv_mov_b32 v7, 0\nds_write_b128 v8, v[4:7]")
    e("s_movk_i32 s42, 9216\ns_mov_b32 s43, 0x20000\ns_waitcnt lgkmcnt(0)\ns_load_dword s14, s[38:39], 0\ns_mov_b64 s[40:41], s[16:17]")
    for k in range(3):
        e(f"buffer_load_dwordx3 v[{16+4*k}:{18+4*k}], v1, s[40:43], s5 offen offset:{12*k} {xld}")
    e("s_barrier")
    srd(56, 38, wsz)
    if pref:
        e(f"""s_cmp_lg_u32 s4, 2
s_cbranch_scc1 L_a0
s_getpc_b64 s[60:61]
L_pc:
s_sub_u32 s60, s60, L_pc-{KN}
s_subb_u32 s61, s61, 0
s_lshr_b32 s62, s2, 3
s_lshl_b32 s62, s62, 10
v_add_u32 v3, s62, v2
v_min_u32 v3, L_end-{KN}-12, v3
v_mov_b32 v5, s61
v_add_co_u32 v4, vcc, s60, v3
v_addc_co_u32 v5, vcc, 0, v5, vcc
global_load_dwordx4 v[28:31], v[4:5], off
L_a0:""")
    e(f"""s_add_u32 s13, s79, 64
s_bitcmp1_b32 s2, 3
s_cselect_b32 s60, 72, 0
s_add_u32 s13, s13, s60
s_cmp_ge_u32 s2, 144
s_cselect_b32 s13, s10, s13
s_lshl_b32 s13, s13, 11
s_add_u32 s13, s13, {PBUF}
s_getreg_b32 s78, hwreg(HW_REG_XCC_ID, 0, 4)
s_lshl_b32 s78, s78, 16
s_and_b32 s77, s2, 7
s_lshl_b32 s77, s77, 7
s_add_u32 s77, s77, {XID}
s_mov_b32 s68, 0xffff0000
s_mov_b32 s69, {f32(1/576)}
s_add_u32 s5, s5, {XS}
v_add_u32 v1, s5, v1""")
    e(f"""v_lshrrev_b32 v10, 4, v0
v_and_b32 v11, 15, v0
v_bfe_u32 v8, v0, 2, 2
v_lshl_add_u32 v12, v10, 3, v8
v_lshlrev_b32 v12, 7, v12
v_and_b32 v9, 3, v0
v_lshl_add_u32 v12, v9, 3, v12
v_lshrrev_b32 v13, 1, v8
v_and_b32 v8, 1, v10
v_lshl_or_b32 v13, v8, 1, v13
v_lshl_add_u32 v12, v13, 5, v12
s_lshl_b32 s60, s4, 5
v_xor_b32 v3, s60, v12
v_add_u32 v4, 0x10000, v3
v_and_b32 v14, 7, v0
v_bfe_u32 v15, v0, 2, 3
v_lshl_add_u32 v15, v9, 4, v15
v_lshlrev_b32 v15, 2, v15
v_mul_u32_u24 v5, 1152, v14
v_lshrrev_b32 v8, 3, v11
v_mul_u32_u24 v8, 576, v8
v_lshl_add_u32 v8, v10, 4, v8
v_add_u32 v5, v5, v8
v_add_u32 v5, {XS}, v5
s_mov_b32 s71, 0x07060302
v_and_b32 v57, 31, v0
v_lshlrev_b32 v57, 2, v57
s_waitcnt lgkmcnt(0)
s_add_u32 s14, s14, 1
s_and_b32 s15, s14, 0xffff
s_and_b32 s6, s14, 0xff
s_andn2_b32 s60, s14, 0xf0000
s_or_b32 s78, s78, s60
s_cmp_lg_u32 s4, 0
s_cbranch_scc1 L_a1
s_lshr_b32 s60, s2, 3
s_lshl_b32 s60, s60, 2
s_add_u32 s60, s60, s77
v_mov_b32 v8, s78
s_mov_b64 exec, 1
buffer_store_dword v8, v57, s[56:59], s60 offen
s_mov_b64 exec, -1
s_waitcnt vmcnt(1)
s_branch L_a2
L_a1:
s_waitcnt vmcnt(0)
L_a2:""")
    raw = [16, 17, 18, 20, 21, 22, 24, 25, 26]

    def red32(v, t):
        for s in (8, 4, 2, 1):
            e(f"v_add_f32_dpp v{v}, v{v}, v{v} row_ror:{s} row_mask:0xf bank_mask:0xf")
        e(f"v_mov_b32 v{t}, v{v}\nv_permlane16_swap_b32 v{v}, v{t}\nv_add_f32 v{v}, v{v}, v{t}")

    for k in range(9):
        e(f"v_lshlrev_b32 v{28+2*k}, 16, v{raw[k]}\nv_and_b32 v{29+2*k}, s68, v{raw[k]}")
    e("v_pk_add_f32 v[46:47], v[28:29], v[30:31]")
    for k in range(2, 9):
        e(f"v_pk_add_f32 v[46:47], v[46:47], v[{28+2*k}:{29+2*k}]")
    e("v_add_f32 v46, v46, v47")
    red32(46, 47)
    e("v_mul_f32 v48, s69, v46\nv_sub_f32 v50, 0, v48\nv_sub_f32 v51, 0, v48")
    for k in range(9):
        e(f"v_pk_add_f32 v[8:9], v[{28+2*k}:{29+2*k}], v[50:51]")
        e("v_pk_mul_f32 v[46:47], v[8:9], v[8:9]" if k == 0 else "v_pk_fma_f32 v[46:47], v[8:9], v[8:9], v[46:47]")
    e("v_add_f32 v46, v46, v47")
    red32(46, 47)
    e("v_mul_f32 v46, s69, v46")
    rnd(46, 46)
    e(f"v_add_f32 v46, {f32(1e-5)}, v46")
    rnd(46, 46)
    e("v_sqrt_f32 v46, v46")
    rnd(46, 46)
    e("v_rcp_f32 v46, v46")
    rnd(50, 50)
    e("v_mov_b32 v51, v50\nv_mov_b32 v47, v46")
    for k in range(9):
        e(f"v_pk_add_f32 v[8:9], v[{28+2*k}:{29+2*k}], v[50:51]\nv_cvt_pk_bf16_f32 v9, v8, v9\nv_lshlrev_b32 v8, 16, v9\nv_and_b32 v9, s68, v9")
        e(f"v_pk_mul_f32 v[8:9], v[8:9], v[46:47]\nv_cvt_pk_bf16_f32 v{raw[k]}, v8, v9")
    for k in range(0, 8, 2):
        e(f"ds_write2_b32 v1, v{raw[k]}, v{raw[k+1]} offset0:{k} offset1:{k+1}")
    e(f"ds_write_b32 v1, v{raw[8]} offset:32")
    stamp(1)
    e(f"""v_mov_b32 v{G}, -1
v_mov_b32 v{G+1}, -1
v_mov_b32 v{G+2}, -1
v_mov_b32 v{G+3}, -1
s_lshl_b32 s61, s10, 2
s_add_u32 s61, s61, s4
s_mul_i32 s61, s61, {OSL}
s_add_u32 s61, s61, {OBUF}
v_mov_b32 v1, v57
s_waitcnt lgkmcnt(0)""")
    ldsarrive(C1, 8)
    e(f"s_mov_b64 exec, -1\ns_mov_b32 s70, {tries - 1}\ns_cmp_ge_u32 s2, 208\ns_cbranch_scc1 L_a4\nL_xid:\nbuffer_load_dword v{G+4}, v1, s[56:59], s77 offen sc1\ns_waitcnt vmcnt(0)")
    xidcheck(G + 4)
    e("s_cmp_eq_u32 s7, 2\ns_cbranch_scc1 L_xidd\ns_sub_u32 s70, s70, 1\ns_cbranch_scc0 L_xid\nL_xidd:")
    e("s_cmp_lt_u32 s2, 144\ns_cbranch_scc1 L_a4\ns_mov_b32 exec_hi, 0xff")
    dual(f"buffer_store_dwordx4 v[{G}:{G+3}], v2, s[56:59], s61 offen POL", 7, "r")
    e("L_a4:\ns_mov_b64 exec, 1")
    ldsspin(8, 8, "L_sp1")
    stamp(2)
    for i in range(9):
        e(f"ds_read_b128 v[{XN+4*i}:{XN+4*i+3}], v5 offset:{64*i}")
    for kk in range(18):
        for hf in range(2):
            off = kk * 4096 + hf * 512
            e(f"ds_read_b64_tr_b16 v[{WF+4*kk+2*hf}:{WF+4*kk+2*hf+1}], v{3 if off < 65536 else 4} offset:{off % 65536}")
    e("s_lshl_b32 s60, s4, 9\ns_add_u32 s60, s60, s13\nv_mov_b32 v7, s68\ns_waitcnt lgkmcnt(0)")
    e("s_cmp_ge_u32 s2, 208\ns_cbranch_scc1 L_aq")
    for i in range(9):
        for hf in range(2):
            mfma(AC + 4 * hf, WF + 4 * (9 * hf + i), XN + 4 * i, i == 0)
    for r in range(4):
        e(f"v_add_f32_dpp v{AC+r}, v{AC+4+r}, v{AC+r} row_ror:8 row_mask:0xf bank_mask:0xf")
    e(f"""v_cvt_pk_bf16_f32 v8, v{AC}, v{AC+1}
v_cvt_pk_bf16_f32 v9, v{AC+2}, v{AC+3}
ds_bpermute_b32 v8, v15, v8
ds_bpermute_b32 v9, v15, v9
s_waitcnt lgkmcnt(0)
v_lshl_or_b32 v16, v8, 16, s15
v_and_or_b32 v17, v8, v7, s15
v_lshl_or_b32 v18, v9, 16, s15
v_and_or_b32 v19, v9, v7, s15
s_waitcnt vmcnt(0)""")
    e("s_mov_b32 exec_hi, 0")
    dual("buffer_store_dwordx4 v[16:19], v2, s[56:59], s60 offen POL", 7, "p")
    e("s_mov_b32 exec_hi, -1")
    stamp(3)
    e("L_aq:\ns_barrier\ns_cmp_lg_u32 s4, 3\ns_cbranch_scc1 L_a3")
    e(f"""s_lshr_b32 s60, s9, 1
s_lshl_b32 s60, s60, 6
s_lshl_b32 s61, s8, 13
s_add_u32 s60, s60, s61
s_add_u32 s60, s60, {PBUF}
v_lshrrev_b32 v6, 2, v0
v_lshlrev_b32 v6, 9, v6
v_and_b32 v7, 3, v0
v_lshl_add_u32 v6, v7, 4, v6""")
    e("buffer_load_dword v24, v1, s[56:59], s77 offen sc1")
    poll("buffer_load_dwordx4 v[20:23], v6, s[56:59], s60 offen " + pld, tagcmp([20, 21, 22, 23], 7), 4)
    xidcheck(24)
    e(f"""v_perm_b32 v8, v21, v20, s71
v_perm_b32 v9, v23, v22, s71
v_lshlrev_b32 v6, 3, v0
v_add_u32 v6, {QS}, v6
ds_write_b64 v6, v[8:9]
v_mov_b32 v6, {QF}
v_mov_b32 v7, s7
s_waitcnt lgkmcnt(0)
ds_write_b32 v6, v7
L_a3:
v_mul_u32_u24 v4, {RING - 1024}, v10
v_add_u32 v4, v4, v3
v_mov_b32 v12, 0xffffff00
v_lshrrev_b32 v3, 3, v0
v_lshlrev_b32 v3, 14, v3
v_lshl_add_u32 v3, v14, 4, v3
s_lshl_b32 s65, s4, 12
s_and_b32 s64, s4, 1
s_lshl_b32 s61, s8, 7
s_add_u32 s65, s65, s61
s_add_u32 s65, s65, {PART}
s_cmp_lt_u32 s2, 144
s_cbranch_scc1 L_aO
s_cmp_lt_u32 s2, 208
s_cbranch_scc1 L_fin""")

    e(f"""s_mul_i32 s60, s11, 9216
s_mul_i32 s61, s4, 2304
s_add_u32 s60, s60, s61
s_add_u32 s60, s60, {PBUF + 131072}
s_add_u32 s61, s60, {288 * 512}
s_mov_b32 s72, -1
s_mov_b32 s73, 0xffff
s_mov_b64 exec, s[72:73]""")
    poll("\n".join([f"buffer_load_dwordx4 v[{G+4*k}:{G+4*k+3}], v2, s[56:59], s60 offen offset:{768*k} {pld}" for k in range(3)] +
                   [f"buffer_load_dwordx4 v[{U+4*k}:{U+4*k+3}], v2, s[56:59], s61 offen offset:{768*k} {pld}" for k in range(3)]),
         tagcmp(list(range(G, G + 24)), 8), gsleep, restore="s[72:73]")
    c0 = -2 * LOG2E * 0.7978845608028654
    e(f"v_mov_b32 v32, {f32(c0)}\nv_mov_b32 v33, {f32(c0 * 0.044715)}\ns_mul_i32 s60, s4, 144")
    for k in range(6):
        e(f"""v_and_b32 v34, s68, v{G+2*k}
v_and_b32 v35, s68, v{G+2*k+1}
v_mul_f32 v36, v34, v34
v_mul_f32 v37, v35, v35
v_fma_f32 v36, v36, v33, v32
v_fma_f32 v37, v37, v33, v32
v_mul_f32 v36, v36, v34
v_mul_f32 v37, v37, v35
v_exp_f32 v36, v36
v_exp_f32 v37, v37
v_and_b32 v38, s68, v{U+2*k}
v_add_f32 v36, 1.0, v36
v_add_f32 v37, 1.0, v37
v_rcp_f32 v36, v36
v_rcp_f32 v37, v37
v_and_b32 v39, s68, v{U+2*k+1}
v_mul_f32 v34, v34, v36
v_mul_f32 v35, v35, v37
v_cvt_pk_bf16_f32 v35, v34, v35
v_lshlrev_b32 v34, 16, v35
v_and_b32 v35, s68, v35
v_mul_f32 v34, v34, v38
v_mul_f32 v35, v35, v39
v_cvt_pk_bf16_f32 v{40+k}, v34, v35""")
    for k in range(3):
        e(f"""v_add_u32 v34, s60, v0
v_bfe_u32 v35, v34, 2, 3
v_mul_u32_u24 v35, 576, v35
v_and_b32 v36, 3, v34
v_lshl_add_u32 v35, v36, 3, v35
v_and_b32 v34, 0xffe0, v34
v_add_u32 v35, v35, v34
v_add_u32 v35, {HS}, v35
ds_write_b64 v35, v[{40+2*k}:{41+2*k}]
s_add_u32 s60, s60, 48""")
    e("s_waitcnt lgkmcnt(0)")
    ldsarrive(CNT, 8)
    ldsspin(8, 4, "L_spin")
    e(f"""v_mul_u32_u24 v5, 576, v14
v_lshl_add_u32 v5, v10, 4, v5
v_add_u32 v5, {HS}, v5""")
    for i in range(9):
        e(f"ds_read_b128 v[{XN+4*i}:{XN+4*i+3}], v5 offset:{64*i}")
    e(f"""s_mul_i32 s60, s12, {3*65536}
s_add_u32 s60, s60, s65
s_add_u32 s60, s60, 2048
s_add_u32 s61, s60, 65536
s_add_u32 s62, s60, 131072
s_waitcnt lgkmcnt(0)""")
    for i in range(6):
        for sub in range(3):
            mfma(AC + 4 * sub, WF + 4 * (6 * sub + i), XN + 4 * i, i == 0)
    stamp(4)
    e("s_barrier\ns_barrier")
    for j in range(9):
        for hf in range(2):
            e(f"ds_read_b64_tr_b16 v[{WF+4*j+2*hf}:{WF+4*j+2*hf+1}], v4 offset:{j*1024 + hf*512}")
    for j in range(9):
        if j % 3 == 0:
            e(f"s_waitcnt lgkmcnt({12 - 2 * j})")
        mfma(AC + 4 * (j % 3), WF + 4 * j, XN + 4 * (6 + j // 3), False)

    def publish(n, src, soffs):
        for r in range(4 * n):
            e(f"v_and_or_b32 v{src+r}, v{src+r}, v12, s6")
            if bperm:
                e(f"ds_bpermute_b32 v{G+r}, v15, v{src+r}")
        e("s_mov_b32 exec_hi, 0" if bperm else "s_mov_b32 exec_lo, 0x00ff00ff\ns_mov_b32 exec_hi, 0x00ff00ff")
        for k in range(n):
            if bperm:
                e(f"s_waitcnt lgkmcnt({4 * (n - 1 - k)})")
            b = (G if bperm else src) + 4 * k
            e(f"buffer_store_dwordx4 v[{b}:{b+3}], v3, s[56:59], s{soffs[k]} offen {fst}")
        e("s_mov_b64 exec, -1")

    publish(3, AC, (60, 61, 62))
    stamp(7)
    e("s_branch L_fin")

    e(f"""L_aO:
s_lshl_b32 s61, s9, 16
s_add_u32 s65, s65, s61
v_mul_u32_u24 v6, {OSL}, v10
v_lshl_add_u32 v5, v11, 4, v6
s_lshl_b32 s62, s8, 2
s_add_u32 s62, s62, s4
s_mul_i32 s62, s62, {4*OSL}
s_add_u32 s62, s62, {OBUF}
s_mul_i32 s61, s4, {4*GST}
s_add_u32 s61, s61, {GB}
v_mul_u32_u24 v48, {GST}, v10
v_lshl_add_u32 v48, v11, 4, v48
v_add_u32 v48, s61, v48
s_lshl_b32 s61, s4, 5
s_add_u32 s61, s61, {LB}
v_lshl_add_u32 v49, v10, 3, s61
v_mul_u32_u24 v46, {GST}, v11
v_lshl_add_u32 v46, v10, 4, v46
v_add_u32 v46, {GB}, v46
v_lshlrev_b32 v47, 3, v11
v_add_u32 v47, {LB}, v47
s_lshl_b32 s74, s2, 12
s_lshl_b32 s61, s64, 6
s_add_u32 s74, s74, s61
s_add_u32 s74, s74, {PART}
v_lshrrev_b32 v8, 3, v0
v_lshlrev_b32 v7, 7, v8
v_lshl_add_u32 v7, v14, 3, v7
v_mov_b32 v26, 0xff
s_lshr_b32 s75, s8, 2
s_lshl_b32 s75, s75, 1
s_add_u32 s75, s75, s64
s_mul_i32 s75, s75, 1152
s_lshl_b32 s61, s9, 7
s_add_u32 s75, s75, s61
s_and_b32 s61, s8, 3
s_lshl_b32 s61, s61, 5
s_add_u32 s75, s75, s61
v_and_b32 v9, 1, v10
v_lshlrev_b32 v9, 1, v9
v_lshl_add_u32 v13, v14, 2, v9
buffer_load_ushort v50, v13, s[40:43], s75 offen
s_lshr_b32 s61, s9, 1
s_and_b32 s60, s9, 1
s_lshl_b32 s60, s60, 3
s_add_u32 s61, s61, s60
s_lshl_b32 s60, s4, 2
s_sub_u32 s61, s61, s60
v_cmp_ne_u32 s[72:73], s61, v10""")
    srd(48, 34, 9216)
    e("s_waitcnt vmcnt(0)\nv_lshlrev_b32 v50, 16, v50\ns_mov_b64 exec, s[72:73]\ns_barrier")
    stamp(5)

    def ofirst():
        e("s_mov_b64 exec, -1\ns_barrier")
        stamp(4)
        for ks in range(8):
            for hf in range(2):
                e(f"ds_read_b64_tr_b16 v[{OF+4*ks+2*hf}:{OF+4*ks+2*hf+1}], v4 offset:{ks*1024 + hf*512}")
        e("s_mov_b64 exec, s[72:73]")

    poll("""buffer_load_dwordx4 v[28:31], v5, s[56:59], s62 offen sc1
buffer_load_dwordx4 v[32:35], v5, s[56:59], s62 offen offset:256 sc1
buffer_load_dwordx2 v[36:37], v6, s[56:59], s62 offen offset:512 sc1""".replace("sc1", old), sentcmp(range(28, 38), 38), psleep, first=ofirst, restore="s[72:73]")
    e("ds_write_b128 v48, v[28:31]\nds_write_b128 v48, v[32:35] offset:256\nds_write_b64 v49, v[36:37]\ns_mov_b64 exec, -1")
    stamp(6)
    e("s_waitcnt lgkmcnt(0)\ns_barrier\nds_read_b64 v[36:37], v47")
    order = [0, 4, 1, 5, 2, 6, 3, 7]
    for ks in order:
        e(f"ds_read_b128 v[{WF+4*ks}:{WF+4*ks+3}], v46 offset:{64*ks}")
    e("""s_waitcnt lgkmcnt(8)
v_sub_f32_dpp v38, v36, v36 row_ror:8 row_mask:0xf bank_mask:0xf
v_sub_f32_dpp v39, v37, v37 row_ror:8 row_mask:0xf bank_mask:0xf""")
    fill = ["v_exp_f32 v38, v38", "v_exp_f32 v39, v39", "v_add_f32 v38, 1.0, v38", "v_add_f32 v39, 1.0, v39", "v_rcp_f32 v38, v38", "v_rcp_f32 v39, v39"]
    for i, ks in enumerate(order):
        e(f"s_waitcnt lgkmcnt({7 - i})")
        mfma(AC + 4 * (ks // 4), OF + 4 * ks, WF + 4 * ks, ks % 4 == 0)
        if i < len(fill):
            e(fill[i])
    for r in range(4):
        e(f"v_mul_f32 v{AC+r}, v{AC+r}, v38")
    for r in range(4):
        e(f"v_fmac_f32 v{AC+r}, v{AC+4+r}, v39")
    for r in range(4):
        e(f"v_add_f32_dpp v{AC+r}, v{AC+r}, v{AC+r} row_ror:8 row_mask:0xf bank_mask:0xf")
    publish(1, AC, (65,))
    stamp(3)
    e("s_cmp_ge_u32 s4, 2\ns_cbranch_scc1 L_fin")
    chk = "\n".join(f"v_xor_b32 v{16+i}, s6, v{16+i}" for i in range(8))
    chk += "\nv_or3_b32 v24, v16, v17, v18\nv_or3_b32 v25, v19, v20, v21\nv_or3_b32 v24, v24, v22, v23\nv_bitop3_b32 v24, v24, v26, v25 bitop3:0xc8\nv_cmp_ne_u32 vcc, 0, v24"
    poll("\n".join(f"buffer_load_dwordx2 v[{16+2*i}:{17+2*i}], v7, s[56:59], s74 offen offset:{1024*i} {fld}" for i in range(4)), chk, psleep if psleep2 is None else psleep2, masked=False)
    e("""v_pk_add_f32 v[16:17], v[16:17], v[18:19]
v_pk_add_f32 v[20:21], v[20:21], v[22:23]
v_permlane32_swap_b32 v16, v20
v_permlane32_swap_b32 v17, v21
v_pk_add_f32 v[16:17], v[16:17], v[20:21]
v_permlane16_swap_b32 v16, v17
v_add_f32 v16, v16, v17
v_add_f32_dpp v16, v16, v16 row_ror:8 row_mask:0xf bank_mask:0xf""")
    rnd(16, 16)
    e("v_add_f32 v17, v16, v50")
    rnd(17, 17)
    e("""v_permlane32_swap_b32 v16, v18
v_add_f32 v17, v17, v18
v_cvt_pk_bf16_f32 v17, v17, v17
s_mov_b32 exec_lo, 0x00ff00ff
s_mov_b32 exec_hi, 0
buffer_store_short v17, v13, s[48:51], s75 offen
s_mov_b64 exec, 1
s_add_u32 s60, s2, s4
s_cmp_lg_u32 s60, 0
s_cbranch_scc1 L_o3
v_mov_b32 v19, s14
buffer_store_dword v19, v7, s[56:59], 0 offen
L_o3:
s_mov_b64 exec, -1""")
    stamp(7)
    if probe:
        if probe[1] is not None:
            e(f"s_and_b32 s60, s2, {probe[1]}\ns_cmp_lg_u32 s60, {probe[2]}\ns_cbranch_scc1 L_fin")
        e(f"L_probe:\ns_memrealtime s[76:77]\ns_waitcnt lgkmcnt(0)\ns_sub_u32 s60, s76, s{80 + 2 * probe[0]}\ns_cmp_lt_u32 s60, 5000\ns_cbranch_scc1 L_probe")
    e("L_fin:")
    if diag:
        e("s_cmp_lt_u32 s3, 4\ns_cbranch_scc1 L_dg\ns_sub_u32 s60, s2, 144\ns_cmp_lt_u32 s60, 64\ns_cbranch_scc1 L_end\nL_dg:")
        e("s_waitcnt vmcnt(0)\ns_memrealtime s[76:77]\ns_waitcnt lgkmcnt(0)\ns_getreg_b32 s77, hwreg(HW_REG_HW_ID)")
        for i in range(8):
            e(f"v_mov_b32 v{16+i}, s{80+2*i}")
        e(f"v_mov_b32 v24, s76\nv_mov_b32 v25, s77\nv_mov_b32 v1, 0\ns_lshl_b32 s60, s2, 3\ns_add_u32 s60, s60, s3\ns_lshl_b32 s60, s60, 6\ns_add_u32 s60, s60, {STAMP}")
        e("s_mov_b64 exec, 1\nbuffer_store_dwordx4 v[16:19], v1, s[56:59], s60 offen\nbuffer_store_dwordx4 v[20:23], v1, s[56:59], s60 offen offset:16\nbuffer_store_dwordx2 v[24:25], v1, s[56:59], s60 offen offset:32")
    e("L_end:\ns_endpgm")
    e(f""".section .rodata,"a"
.p2align 6
.amdhsa_kernel {KN}
.amdhsa_next_free_vgpr 256
.amdhsa_next_free_sgpr 102
.amdhsa_accum_offset 256
.amdhsa_group_segment_fixed_size 0
.amdhsa_kernarg_size 96
.amdhsa_user_sgpr_count 2
.amdhsa_user_sgpr_kernarg_segment_ptr 1
.amdhsa_system_sgpr_workgroup_id_x 1
.amdhsa_float_denorm_mode_32 3
.end_amdhsa_kernel""")
    return top + e.text()


def summary(T, cfg):
    import numpy as np
    S = T[:, :4]; A = T[:144, 4:]; D = T[208:, 4:]
    wd = S[:, :, 4].max(1); m = wd.max()
    r = dict(startmax=S[:, :, 0].max(), B1med=float(np.median(S[:, :, 1])), B1max=S[:, :, 1].max(), b1wmean=(S[:, :, 3].max(1) - S[:, :, 1].max(1)).mean(), b1wmax=(S[:, :, 3].max(1) - S[:, :, 1].max(1)).max(), B2max=S[:, :, 2].max(), qwait=(S[:, :, 7] - S[:, :, 6]).max(),
             GO=wd[:144].mean(), Q=wd[144:208].mean(), D=wd[208:].mean(), xcdspread=max(wd[i::8].mean() for i in range(8)) - wd.mean(),
             pairmax=wd.reshape(8, 2, 16).mean(1).max(), p90=float(np.percentile(wd, 90)), p97=float(np.percentile(wd, 97)), meandone=wd.mean(), maxdone=m, opub=S[:, 0, 5].max() - m, t2=S[:, 1:, 5].max() - m, t2dur=(S[:144, 1:, 5].max(1) - wd[:144]).mean())
    if "a" not in cfg.get("abl", ""):
        r.update(LNmed=float(np.median(A[:, :, 1])), LNmax=A[:, :, 1].max(), dearly=D[:, :, 4].max(), dpub=D[:, :, 7].max() - m, ogath=A[:, :, 6].max() - m, ppub=A[:, :, 3].max() - m, out=A[:, :2, 7].max() - m, end=A[:, :, 8].max())
    return r


if __name__ == "__main__":
    kw = eval("dict(" + (sys.argv[2] if len(sys.argv) > 2 else "") + ")")
    open(sys.argv[1], "w").write(gen(**kw))
```

```python
import sys, struct
sys.path.insert(0, "dev")
from asmlib import Asm

KN = "parallel_sum__sliding_block_cached__geglu_ffn__decode_kernel"
REF = "parallel_sum__sliding_block_cached__geglu_ffn__decode.s.ref"

R = 6
RING = R * 4096
XS = 4 * RING
QS = XS + 9216
HS = QS + 512
ML = HS + 4608
CNT = ML + 64
QF = CNT + 4
C1 = CNT + 8
C2 = CNT + 12
PRG = CNT + 16
DEC = CNT + 32
LB = CNT + 64
RED = LB + 128
GB = RED + 4096
GST = 528
LDS_SZ = GB + 16 * GST
XID = 0x400
PLN = 0x800
PBUF, OBUF, PART = 0x1000, 0x70000, 0xA0000
OSL = 640
WS_SZ = PART + 144 * 4096
STAMP = 0x200000
LIMIT = 400000
LOG2E = 1.4426950408889634


def f32(x):
    return "0x%08x" % struct.unpack("<I", struct.pack("<f", x))[0]


def gen(d=6, d2=7, dw=None, sw2=96, diag=0, psleep=0, lnt="", init3=1, boostA=None, lpol="nt", probe=None, abl="", late=None, pref=0, gmask=1, psleep2=None, b1d=0, auxfirst=1, split=1, dv=None, dvend=32, wmap=0, pld="sc1 nt", fst="sc1", fld="sc1", old="sc1", xld="", loc="pro", bperm=1, force=None, mix=(18, 1), d3=10, k3=0, pat=(5,), pat0=0, bits="wwCsCCC", xs=3, tries=3, rot=0, boost=3, margin=0, thr=16, csleep=4, T1=48, cend=120, dlast=0, fdelay=1, fin=1, vt=None, kt=None, tvec=0, segs=((12, 9, 3), (14, 9, 1)), gsleep=8):
    dw = dw or d
    e = Asm()
    pos = {ch: [i for i, x in enumerate(bits) if x == ch] for ch in "wsC"}

    def coff(c):
        return sum(((c >> k) & 1) << p for k, p in enumerate(pos["C"])) * 4096 + {0: 0, 1: (c & 1) << 13, 2: (c & 3) << 12, 3: ((c & 1) << 13) | ((c >> 1 & 1) << (12 + pos["s"][0])), 4: (c >> 1 & 1) << 13}[xs]

    uid = [0]
    uid2 = [0]
    wsz = WS_SZ if not diag else 0x400000

    def stamp(i):
        if diag or (probe and probe[0] == i):
            e(f"s_memrealtime s[{80 + 2 * i}:{81 + 2 * i}]")

    def srd(b, lo, size):
        e(f"s_mov_b32 s{b}, s{lo}\ns_mov_b32 s{b+1}, s{lo+1}\ns_mov_b32 s{b+2}, {size}\ns_mov_b32 s{b+3}, 0x20000")

    def rnd(dst, src):
        e(f"v_cvt_pk_bf16_f32 v{dst}, v{src}, v{src}\nv_lshlrev_b32 v{dst}, 16, v{dst}")

    def poll(loads, cmp, sleep, restore="-1", masked=True, first=None):
        uid[0] += 1
        L = f"L_poll{uid[0]}"
        if str(uid[0]) in abl:
            loads = "s_nop 0"
        e(f"s_mov_b32 s70, {0 if 'p' in abl else LIMIT}")
        if first:
            e(loads)
            first()
            e(f"s_branch {L}_w")
        e(f"{L}:")
        e(loads)
        e(f"{L}_w:\ns_waitcnt vmcnt(0)")
        e(cmp)
        e(f"s_and_b64 exec, exec, vcc\ns_cbranch_scc0 {L}_d" if masked else f"s_cbranch_vccz {L}_d")
        e(f"s_sub_u32 s70, s70, 1\ns_cbranch_scc1 {L}_d")
        if not masked and gmask and fin:
            e("s_wqm_b64 exec, vcc")
        elif not masked and gmask:
            for h in ("lo", "hi"):
                e(f"s_and_b32 s60, vcc_{h}, 0x7f7f7f7f\ns_add_u32 s60, s60, 0x7f7f7f7f\ns_or_b32 s60, s60, vcc_{h}\ns_lshr_b32 s60, s60, 7\ns_and_b32 s60, s60, 0x01010101\ns_mul_i32 exec_{h}, s60, 255")
        if sleep:
            e(f"s_sleep {sleep}")
        e(f"s_branch {L}\n{L}_d:")
        if masked or gmask:
            e(f"s_mov_b64 exec, {restore}")

    def dual(stores, sreg_, kind):
        if kind.upper() in abl:
            return
        if kind not in loc:
            e(stores.replace("POL", "sc1"))
            return
        uid2[0] += 1
        L = f"L_dual{uid2[0]}"
        e(f"s_cmp_eq_u32 s{sreg_}, 2\ns_cbranch_scc0 {L}")
        e(stores.replace("POL", lpol if kind in lnt else ""))
        e(f"s_branch {L}_d\n{L}:")
        e(stores.replace("POL", "sc1"))
        e(f"{L}_d:")

    def xidcheck(v):
        e(f"v_cmp_ne_u32 vcc, s78, v{v}\ns_cmp_eq_u32 vcc_lo, 0\ns_cselect_b32 s7, 2, 1")
        if force is not None:
            e(f"s_mov_b32 s7, {force}")

    def ldsarrive(addr, va):
        e(f"s_mov_b64 exec, 1\nv_mov_b32 v{va}, {addr}\nv_mov_b32 v{va+1}, 1\nds_add_u32 v{va}, v{va+1}")

    def ldsspin(va, count, name, st=60, sleep=2, four=False):
        e(f"s_mov_b32 s70, {0 if 'a' in abl else LIMIT*8}\n{name}:")
        if four:
            e(f"ds_read_b128 v[{va+4}:{va+7}], v{va}\ns_waitcnt lgkmcnt(0)\nv_add3_u32 v{va+1}, v{va+4}, v{va+5}, v{va+6}\nv_add_u32 v{va+1}, v{va+1}, v{va+7}")
        else:
            e(f"ds_read_b32 v{va+1}, v{va}\ns_waitcnt lgkmcnt(0)")
        e(f"""v_readfirstlane_b32 s{st}, v{va+1}
s_cmp_ge_u32 s{st}, {count}
s_cbranch_scc1 {name}d
s_sub_u32 s70, s70, 1
s_cbranch_scc1 {name}d
s_sleep {sleep}
s_branch {name}
{name}d:
s_mov_b64 exec, -1""")

    CV = 232

    def control(name, until, final):
        e(f"""s_cmp_lg_u32 s4, 2
s_cbranch_scc1 {name}x
s_mov_b32 s70, {LIMIT}
{name}:
ds_read_b128 v[{CV+4}:{CV+7}], v{CV}
s_waitcnt lgkmcnt(0)
v_add3_u32 v{CV+1}, v{CV+4}, v{CV+5}, v{CV+6}
v_add_u32 v{CV+1}, v{CV+1}, v{CV+7}
v_readfirstlane_b32 s66, v{CV+1}
v_or_b32 v{CV+1}, s67, v{CV+1}
s_mov_b64 exec, 1
buffer_store_dword v{CV+1}, v{CV+3}, s[56:59], s76 offen
s_mov_b64 exec, -1
s_cmp_ge_u32 s66, {until}
s_cbranch_scc1 {name}d
buffer_load_dword v{CV+4}, v1, s[56:59], s76 offen sc1
v_add_u32 v{CV+1}, {margin + 1}, v{CV+1}
s_waitcnt vmcnt(0)
v_sub_u32 v{CV+4}, v{CV+4}, v{CV+1}
v_cmp_gt_u32 vcc, 0x8000, v{CV+4}
s_bcnt1_i32_b32 s66, vcc_lo
s_cmp_ge_u32 s66, {thr}
s_cselect_b32 s66, 1, 0
v_mov_b32 v{CV+4}, s66
ds_write_b32 v{CV}, v{CV+4} offset:{DEC - PRG}
s_sub_u32 s70, s70, 1
s_cbranch_scc1 {name}d
s_sleep {csleep}
s_branch {name}
{name}d:
{name}x:""")

    def sentcmp(regs, tmp):
        r = list(regs)
        out = []
        cur = r.pop(0)
        while r:
            out.append(f"v_max3_u32 v{tmp}, v{cur}, v{r[0]}, v{r[1]}" if len(r) > 1 else f"v_max_u32 v{tmp}, v{cur}, v{r[0]}")
            r = r[2:]
            cur = tmp
        out.append(f"v_cmp_eq_u32 vcc, -1, v{cur}")
        return "\n".join(out)

    def tagcmp(regs, tmp):
        out = [f"v_xor_b32 v{tmp}, s15, v{regs[0]}"]
        for r in regs[1:]:
            out.append(f"v_bitop3_b32 v{tmp}, v{r}, v{tmp}, s15 bitop3:0xde")
        out.append(f"v_and_b32 v{tmp}, 0xffff, v{tmp}\nv_cmp_ne_u32 vcc, 0, v{tmp}")
        return "\n".join(out)

    def allred_g(v, t, op):
        e(f"v_mov_b32 v{t}, v{v}\nv_permlane16_swap_b32 v{v}, v{t}\n{op} v{v}, v{v}, v{t}")
        e(f"v_mov_b32 v{t}, v{v}\nv_permlane32_swap_b32 v{v}, v{t}\n{op} v{v}, v{v}, v{t}")

    def mfma(D, A, B, first):
        e(f"v_mfma_f32_16x16x32_bf16 v[{D}:{D+3}], v[{A}:{A+3}], v[{B}:{B+3}], {'0' if first else f'v[{D}:{D+3}]'}")

    hdr = [l.rstrip("\n") for l in open(REF) if l.startswith(";") and "@launch" not in l and "Override" not in l and "grid=ceil" not in l]
    top = "\n".join(hdr) + f"\n; @launch grid=(256,1,1) block=(512,1,1) lds={LDS_SZ}\n"
    e(f""".amdgcn_target "amdgcn-amd-amdhsa--gfx950"
.text
.globl {KN}
.p2align 8
.type {KN},@function
{KN}:""")
    e("s_cmp_ge_u32 s2, 256\ns_cbranch_scc1 L_end")
    e("s_load_dwordx16 s[16:31], s[0:1], 0\ns_load_dwordx8 s[32:39], s[0:1], 64")
    if wmap == 2:
        e("s_lshr_b32 s5, s2, 4\ns_and_b32 s6, s2, 15\ns_lshl_b32 s6, s6, 4\ns_or_b32 s2, s5, s6")
    if wmap == 3:
        e("s_lshr_b32 s5, s2, 4\ns_and_b32 s5, s5, 1\ns_lshl_b32 s5, s5, 2\ns_xor_b32 s2, s2, s5")
    if wmap == 1:
        e("s_lshr_b32 s5, s2, 4\ns_add_u32 s6, s2, s5\ns_and_b32 s6, s6, 15\ns_andn2_b32 s2, s2, 15\ns_or_b32 s2, s2, s6")
    stamp(0)
    e("v_lshrrev_b32 v1, 6, v0\nv_and_b32 v0, 63, v0\nv_readfirstlane_b32 s3, v1")
    if auxfirst:
        e("s_xor_b32 s3, s3, 4")
    e("s_and_b32 s8, s2, 15\ns_lshr_b32 s9, s2, 4\ns_sub_u32 s12, s9, 13\ns_lshl_b32 s10, s8, 2\ns_add_u32 s10, s10, s9\ns_sub_u32 s10, s10, 9")
    e("s_and_b32 s5, s2, 7\ns_bfe_u32 s6, s2, 0x10003\ns_lshl_b32 s11, s5, 1\ns_add_u32 s11, s11, s6\ns_mul_i32 s79, s5, 9\ns_add_u32 s79, s79, s9")
    e("s_cmp_ge_u32 s3, 4\ns_cbranch_scc1 " + ("L_aux" if "a" not in abl else "L_end"))

    VO, KD, KR, MK, VW1, VW2, Q, KF, AB, ACC, T, SP, MRUN, NEGM, LS, VT2, VST, VPR, VDE, VDA, VV = 1, 2, 6, 10, 14, 15, 16, 32, 48, 64, 68, 84, 120, 121, 122, 123, 124, 125, 126, 127, 128
    e(f"""v_lshrrev_b32 v1, 3, v0
v_and_b32 v2, 7, v0
v_and_b32 v3, 2, v1
s_and_b32 s5, s3, 1
s_lshl_b32 s5, s5, 2
v_or_b32 v3, s5, v3
v_xor_b32 v2, v2, v3
v_lshlrev_b32 v2, 4, v2
s_lshl_b32 m0, s3, 10
s_mov_b32 s43, 0x20000
s_lshl_b32 s60, s79, 7
s_lshl_b32 s5, s10, 7
s_movk_i32 s7, 9216
s_mov_b32 s42, {576*9216}
s_cmp_ge_u32 s2, 144
s_cselect_b32 s60, s5, s60
s_cselect_b32 s7, 8192, s7
s_cselect_b32 s42, {576*8192}, s42
s_mul_i32 s5, s11, {288*1152}
s_mul_i32 s6, s12, 384
s_add_u32 s5, s5, s6
s_lshl_b32 s62, s7, 5
s_movk_i32 s64, 4096
s_cmp_ge_u32 s2, 208
s_cselect_b32 s60, s5, s60
s_cselect_b32 s7, 1152, s7
s_cselect_b32 s42, {4608*1152}, s42
s_cselect_b32 s63, {36864-256}, s62
s_cselect_b32 s62, 128, s62
s_cselect_b32 s65, {4096-49152}, s64
s_cselect_b32 s64, 24576, s64
s_mul_i32 s5, s3, s7
s_lshl_b32 s5, s5, 3
s_add_u32 s72, s60, s5
v_mad_u32_u24 v{VW1}, v1, s7, v2
""" + ("" if not rot else {1: "s_lshr_b32 s66, s2, 3", 2: "s_mov_b32 s66, s2", 3: "s_lshr_b32 s66, s2, 3\ns_and_b32 s66, s66, 1\ns_mul_i32 s66, s66, 3", 4: "s_add_u32 s66, s2, s3"}[rot] + """
s_mul_i32 s5, s66, 43
s_lshr_b32 s5, s5, 8
s_mul_i32 s5, s5, 6
s_sub_u32 s66, s66, s5
s_cmp_ge_u32 s66, 6
s_cselect_b32 s66, 0, s66
s_lshl_b32 s73, s62, 1
s_add_u32 s73, s73, s63
s_lshl_b32 s74, s64, 1
s_add_u32 s74, s74, s65
s_mul_i32 s5, s73, 6
s_add_u32 s75, s72, s5
s_mul_i32 s6, s66, s73
s_add_u32 s72, s72, s6
s_mul_i32 s6, s66, s74
s_add_u32 m0, m0, s6
s_mov_b32 s73, s5
s_mul_i32 s74, s74, 6""") + f"""
s_bitcmp1_b32 s2, 3
s_waitcnt lgkmcnt(0)
s_cselect_b64 s[40:41], s[30:31], s[28:29]
s_cmp_ge_u32 s2, 144
s_cselect_b64 s[40:41], s[22:23], s[40:41]
s_cmp_ge_u32 s2, 208
s_cselect_b64 s[40:41], s[32:33], s[40:41]
""")

    def vsetup():
        srd(52, 20, 0x10000000)
        e(f"""s_lshr_b32 s60, s9, 1
s_lshl_b32 s60, s60, 4
s_add_u32 s60, s60, s8
s_lshl_b32 s60, s60, 21
s_and_b32 s61, s9, 1
s_lshl_b32 s61, s61, {12 + pos["s"][0]}
s_add_u32 s60, s60, s61
s_and_b32 s61, s3, 1
s_lshl_b32 s61, s61, {12 + pos["w"][0]}
s_add_u32 s60, s60, s61
s_lshr_b32 s61, s3, 1
s_lshl_b32 s61, s61, {12 + pos["w"][1]}
s_add_u32 s60, s60, s61
s_add_u32 s60, s60, {6144*256}
v_mul_u32_u24 v{VT2}, 1152, v1
v_add_u32 v{VT2}, v{VT2}, v2
v_lshlrev_b32 v{VO}, 4, v0""")

    work = {}

    def at(slot, fn):
        work.setdefault(slot, []).append(fn)

    def setup():
        srd(48, 18, 0x10000000)
        srd(56, 38, wsz)
        e(f"""s_mul_i32 s67, s3, {RING}
s_mul_i32 s5, s8, {256*1152}
s_mul_i32 s6, s3, {8*1152}
s_add_u32 s5, s5, s6
s_lshl_b32 s6, s9, 7
s_add_u32 s5, s5, s6
s_mov_b32 s46, {4096*1152}
s_mov_b32 s47, 0x20000
s_cmp_ge_u32 s2, 208
s_cselect_b32 s72, s72, s5
s_cselect_b32 s73, s62, {32*1152}
s_cselect_b32 s74, s63, {32*1152}
s_cselect_b64 s[44:45], s[32:33], s[24:25]
s_cselect_b32 s46, s42, s46""")
        e(f"v_lshrrev_b32 v{T}, 4, v0\nv_and_b32 v{T+1}, 15, v0\nv_lshlrev_b32 v{T+2}, 2, v{T}\nv_xor_b32 v{T+2}, v{T+2}, v{T+1}")
        e(f"v_lshlrev_b32 v{T+2}, 4, v{T+2}\nv_lshl_add_u32 v{KD}, v{T}, 8, v{T+2}")
        for r in range(1, 4):
            e(f"v_xor_b32 v{KD+r}, {16*r}, v{KD}")
        e(f"v_and_b32 v{T+2}, 3, v0\nv_lshlrev_b32 v{T+2}, 2, v{T+2}\nv_lshrrev_b32 v{T+3}, 2, v{T+1}\nv_or_b32 v{T+2}, v{T+2}, v{T+3}")
        e(f"v_lshl_add_u32 v{T+2}, v{T+2}, 8, s67\nv_xor_b32 v{T+3}, v{T}, v{T+1}\nv_lshl_add_u32 v{KR}, v{T+3}, 4, v{T+2}")
        for t in range(1, 4):
            e(f"v_xor_b32 v{KR+t}, {64*t}, v{KR}")
        e(f"v_and_b32 v{T+2}, 1, v0\nv_lshlrev_b32 v{T+2}, 4, v{T+2}\nv_mov_b32 v{T+3}, 0xffff\nv_lshlrev_b32 v{T+3}, v{T+2}, v{T+3}\nv_bfe_u32 v{T+2}, v0, 1, 2")
        for r in range(4):
            e(f"v_cmp_eq_u32 vcc, {r}, v{T+2}\nv_cndmask_b32 v{MK+r}, 0, v{T+3}, vcc")
        e(f"v_lshrrev_b32 v{T+2}, 3, v{T+1}\nv_lshlrev_b32 v{T+2}, 8, v{T+2}\nv_lshl_add_u32 v{T+2}, v{T}, 4, v{T+2}\nv_add_u32 v{VW1}, {QS}, v{T+2}")
        e(f"s_mov_b32 s68, 0xffff0000\ns_mov_b32 s69, {f32(128 ** -0.5)}\ns_mov_b32 s71, {f32(LOG2E)}")
        e(f"v_mov_b32 v{LS}, 0\nv_mov_b32 v{MRUN}, 0xff800000")
        for r in range(4):
            e(f"v_mov_b32 v{ACC+r}, 0")


    def sreg(c):
        return SP + 4 * (c if c < 8 else (8 if c == 8 else c - 9))

    def kread(c):
        def f():
            for t in range(4):
                e(f"ds_read_b128 v[{KF+4*t}:{KF+4*t+3}], v{KR+t} offset:{(c % R) * 4096}")
        return f

    def kmma(c):
        def f():
            e("s_waitcnt lgkmcnt(0)")
            for t in range(4):
                mfma(sreg(c), KF + 4 * t, Q + 4 * t, t == 0)
        return f

    def kround(c):
        def f():
            S = sreg(c)
            for k in range(2):
                e(f"v_cvt_pk_bf16_f32 v{T}, v{S}, v{S+1}\nv_cvt_pk_bf16_f32 v{T+1}, v{S+2}, v{S+3}")
                e(f"v_lshlrev_b32 v{S}, 16, v{T}\nv_and_b32 v{S+1}, s68, v{T}\nv_lshlrev_b32 v{S+2}, 16, v{T+1}\nv_and_b32 v{S+3}, s68, v{T+1}")
                if k == 0:
                    for r in range(4):
                        e(f"v_mul_f32 v{S+r}, s69, v{S+r}")
            e(f"v_max3_f32 v{MRUN}, v{MRUN}, v{S}, v{S+1}\nv_max3_f32 v{MRUN}, v{MRUN}, v{S+2}, v{S+3}")
        return f

    def maxA():
        allred_g(MRUN, T, "v_max_f32")
        e(f"v_mul_f32 v{NEGM}, s71, v{MRUN}\nv_sub_f32 v{NEGM}, 0, v{NEGM}")

    def maxB():
        allred_g(MRUN, T, "v_max_f32")
        e(f"v_mul_f32 v{T+1}, s71, v{MRUN}\nv_add_f32 v{T+2}, v{NEGM}, v{T+1}\nv_sub_f32 v{NEGM}, 0, v{T+1}\nv_exp_f32 v{T+2}, -v{T+2}")
        e(f"v_mul_f32 v{LS}, v{LS}, v{T+2}\nv_mov_b32 v{T+3}, v{T+2}")
        e(f"v_mov_b32_dpp v{T+3}, v{T+2} row_ror:8 row_mask:0x3 bank_mask:0xc\nv_mov_b32_dpp v{T+3}, v{T+2} row_ror:8 row_mask:0xc bank_mask:0x3")
        for r in range(4):
            e(f"v_mul_f32 v{ACC+r}, v{ACC+r}, v{T+3}")

    def pexp(c):
        def f():
            S = sreg(c)
            for r in range(4):
                e(f"v_fma_f32 v{S+r}, v{S+r}, s71, v{NEGM}")
            for r in range(4):
                e(f"v_exp_f32 v{S+r}, v{S+r}")
            e(f"v_add_f32 v{T}, v{S}, v{S+1}\nv_add_f32 v{T+1}, v{S+2}, v{S+3}\nv_add_f32 v{LS}, v{LS}, v{T}\nv_add_f32 v{LS}, v{LS}, v{T+1}")
            for r in range(4):
                e(f"v_cvt_pk_bf16_f32 v{S+r}, v{S+r}, v{S+r}")
        return f

    def aprep(c, r):
        def f():
            for k in range(4):
                e(f"v_and_b32 v{AB+4*r+k}, v{sreg(c)+r}, v{MK+k}")
        return f

    def pv(c, r):
        def f():
            mfma(ACC, AB + 4 * r, VV + 16 * (c % 8) + 4 * r, False)
        return f

    def mlwrite():
        allred_g(LS, T, "v_add_f32")
        e(f"v_sub_f32 v{T+2}, 0, v{NEGM}\nv_mov_b32 v{T+3}, v{LS}")
        e(f"v_bfe_u32 v{T}, v0, 3, 1\nv_lshlrev_b32 v{T}, 5, v{T}\ns_lshl_b32 s63, s3, 3\ns_add_u32 s63, s63, {ML}\nv_add_u32 v{T}, s63, v{T}")
        e(f"ds_write_b64 v{T}, v[{T+2}:{T+3}]")
        e(f"""s_lshl_b32 s63, s3, 10
s_add_u32 s63, s63, {RED}
v_add_u32 v{VW2}, s63, v{VO}
v_lshrrev_b32 v2, 5, v0
v_lshlrev_b32 v3, 5, v2
v_add_u32 v3, {ML}, v3
v_lshlrev_b32 v4, 3, v0
v_lshlrev_b32 v5, 2, v2
v_and_b32 v6, 1, v0
v_lshl_add_u32 v6, v2, 1, v6
v_bfe_u32 v7, v0, 1, 4
v_lshl_add_u32 v6, v6, 4, v7
v_lshlrev_b32 v6, 4, v6
v_add_u32 v6, {RED}, v6
s_lshr_b32 s62, s9, 1
s_and_b32 s63, s9, 1
s_lshl_b32 s63, s63, 3
s_add_u32 s62, s62, s63
s_mul_i32 s63, s62, {GST}
s_add_u32 s63, s63, {GB}
v_add_u32 v7, s63, v4
s_lshl_b32 s63, s62, 3
s_add_u32 s63, s63, {LB}
v_add_u32 v8, s63, v5
s_lshl_b32 s63, s8, 4
s_add_u32 s63, s63, s62
s_mul_i32 s63, s63, {OSL}
s_add_u32 s63, s63, {OBUF}""")

    def qread():
        stamp(6)
        e(f"v_mov_b32 v{T}, {QF}\ns_mov_b32 s70, {0 if 'a' in abl else LIMIT*8}\nL_qw:\nds_read_b32 v{T+1}, v{T}")
        for t in range(4):
            e(f"ds_read_b128 v[{Q+4*t}:{Q+4*t+3}], v{VW1} offset:{64*t}")
        e(f"""s_waitcnt lgkmcnt(0)
v_readfirstlane_b32 s13, v{T+1}
s_cmp_lg_u32 s13, 0
s_cbranch_scc1 L_qd
s_sub_u32 s70, s70, 1
s_cbranch_scc1 L_qd
s_sleep 2
s_branch L_qw
L_qd:""")
        stamp(7)

    def dep(n):
        if pat and pat0 <= n < sw2:
            return pat[n % len(pat)]
        return d if n < sw2 else d2

    landed = {}
    for n in range(128 + 64):
        for m in range(min(127, n - dep(n) - (boost if n < min(cend, 128) else 0)) + 1):
            landed.setdefault(m, n)
    qslot = 32 + 4 * R - 3
    at(qslot, qread)
    kslot = {}
    for c in range(16):
        n0 = kslot[c] = max(landed[35 + 4 * c], qslot + 2 * c)
        assert c + R >= 16 or n0 + 1 < 32 + 4 * (c + R)
        at(n0, kread(c))
        at(n0 + 1, kmma(c))
        at(n0 + 2, kround(c))
    assert kslot[15] + 1 < 128
    sA = kslot[7] + 3
    at(sA, maxA)
    for j in range(8):
        s0 = sA + 1 + 3 * j
        at(s0, pexp(j))
        at(s0 + 1, aprep(j, 0)); at(s0 + 1, aprep(j, 1)); at(s0 + 1, pv(j, 0)); at(s0 + 1, pv(j, 1))
        at(s0 + 2, aprep(j, 2)); at(s0 + 2, aprep(j, 3)); at(s0 + 2, pv(j, 2)); at(s0 + 2, pv(j, 3))
        assert s0 + 2 < 96 + 4 * j
        if j < 7:
            assert s0 + 2 < kslot[9 + j] + 1
    sB = kslot[15] + 3
    at(sB, maxB)
    pre = {}
    for j in range(8):
        at(sB + 1 + j, pexp(8 + j))
    at(sB + 9, mlwrite)
    last = 0
    for n in range(96, 128):
        j, r = (n - 96) // 4, n % 4
        s = max(landed[n], sB + 2 + j, last)
        while len(pre.get(s, [])) >= 4:
            s += 1
        last = s
        pre.setdefault(s, []).append((8 + j, r))
    nslots = max(max(work), last) + 1

    def t2load(j):
        e(f"buffer_load_dwordx4 v{VT2}, s[44:47], s72 offen nt lds")
        if j < 8:
            e(f"s_add_u32 s72, s72, s{74 if j % 3 == 2 else 73}\ns_add_u32 m0, m0, 1024")

    wid = [0]

    def cwait(depth, cond, early=False):
        if cond and boost:
            wid[0] += 1
            e(f"s_waitcnt vmcnt({depth+(boostA if early and boostA else boost)-1})\ns_cbranch_vccnz L_cw{wid[0]}\ns_waitcnt vmcnt({depth-1})\nL_cw{wid[0]}:")
        else:
            e(f"s_waitcnt vmcnt({depth-1})")

    def post(stage):
        e(f"v_mov_b32 v{VST}, {stage}\nds_write_b32 v{VPR}, v{VST}\nds_read_b32 v{VDE}, v{VDA}")

    def decide():
        e(f"s_waitcnt lgkmcnt(0)\nv_cmp_ne_u32 vcc, 0, v{VDE}")

    def vload(i, depth, cond=True):
        if i % 4 == 0:
            e(f"s_xor_b32 s61, s60, {coff(i // 4)}")
        if depth:
            cwait(depth, cond, i < 32)
        V = VV + 4 * (i % 32)
        e(f"buffer_load_dwordx4 v[{V}:{V+3}], v{VO}, s[52:55], s61 offen offset:{(i % 4) * 1024} nt")

    seq = []
    nw = nv = 0
    while nw < 18 or nv < 32:
        for _ in range(mix[0]):
            if nw < 18:
                seq.append(("W", nw)); nw += 1
        for _ in range(mix[1]):
            if nv < 32:
                seq.append(("V", nv)); nv += 1
    lastw = seq.index(("W", 17))
    assert lastw + d + 1 < len(seq)
    for p, (kind, i) in enumerate(seq[:lastw + d + 1]):
        depth = dw if p <= lastw else d
        if p == dw:
            e(f"s_lshl_b32 s5, s3, 2\ns_add_u32 s5, s5, {PRG}\nv_mov_b32 v{VPR}, s5\nv_mov_b32 v{VDA}, {DEC}\ns_barrier")
        if p > dw and p % 4 == 2:
            post(p // 4)
        if p == min(vt if vt is not None else 99, kt if kt is not None else 99, seq.index(("V", 0))):
            vsetup()
        for nm, at_, ptr in (("v", vt, 20), ("k", kt, 18)):
            if p != at_:
                continue
            if tvec:
                e(f"s_cmp_lg_u32 s3, {0 if nm == 'v' else 1}\ns_cbranch_scc1 L_t{nm}")
                srd(48, ptr, 0x10000000)
                e(f"s_mov_b64 exec, 1\nbuffer_load_dword v{T+4}, v{VO}, s[48:51], s60 offen nt\ns_mov_b64 exec, -1\nL_t{nm}:")
            else:
                e(f"s_andn2_b32 s5, s60, 0x7ffff\ns_add_u32 s74, s{ptr}, s5\ns_addc_u32 s75, s{ptr+1}, 0\ns_load_dword s96, s[74:75], 0")
        if p == lastw + d:
            e(f"s_waitcnt vmcnt({d-1})")
            stamp(1)
            ldsarrive(C1, T)
            e("s_mov_b64 exec, -1")
            stamp(3)
        if kind == "V":
            vload(i, depth if p >= depth else 0, False)
        else:
            if p >= depth:
                e(f"s_waitcnt vmcnt({depth-1})")
            e(f"buffer_load_dwordx4 v{VW1}, s[40:43], s72 offen nt lds")
            e(f"s_add_u32 s72, s72, s{62 if i % 3 < 2 else 63}\ns_add_u32 m0, m0, s{64 if i % 3 < 2 else 65}")
            if rot and i % 3 == 2:
                if i < 17:
                    e("s_cmp_eq_u32 s72, s75\ns_cselect_b32 s5, s73, 0\ns_cselect_b32 s6, s74, 0\ns_sub_u32 s72, s72, s5\ns_sub_u32 m0, m0, s6")
                else:
                    e("s_mov_b32 s72, s75")
        if p == lastw + d:
            if init3:
                e(f"s_add_u32 s66, s40, s72\ns_bfe_u32 s66, s66, 0x30007\ns_cmp_eq_u32 s66, 3\ns_cselect_b32 s66, 1, 0\ns_cmp_ge_u32 s2, 208\ns_cselect_b32 s66, 0, s66\nv_mov_b32 v{VDE}, s66\ns_waitcnt lgkmcnt(0)\nv_mov_b32 v{VDE}, s66\nds_write_b32 v{VDA}, v{VDE}")
            setup()
            decide()

    def kload(i, depth):
        if i % 4 == 0:
            e(f"s_xor_b32 s62, s60, {coff(i // 4)}\ns_add_u32 m0, s67, {((i // 4) % R) * 4096}")
        cwait(depth, True, i < 16)
        e(f"buffer_load_dwordx4 v{KD + i % 4}, s[48:51], s62 offen offset:{(i % 4) * 1024} nt lds")

    n0 = seq[lastw + d + 1][1]

    t2n = [0]

    def slot(n, t2):
        todo = pre.get(n, [])
        assert len(todo) <= 4
        for (c, r) in todo:
            aprep(c, r)()
        if n == 32:
            stamp(2)
            e(f"v_mov_b32 v{T}, {C2}")
            ldsspin(T, 4, "L_sp2", st=5)
        if n < 32 or 96 <= n < 128:
            vload(n if n < 32 else n - 64, dep(n), n < cend)
        elif n < 96:
            kload(n - 32, dep(n))
        else:
            if n - d2 <= 127:
                e(f"s_waitcnt vmcnt({127 - (n - d2) + (t2n[0] if t2 else 0)})")
            left = nslots - 1 - n
            if t2 and left > 0:
                for _ in range(-(-(8 - t2n[0]) // left)):
                    t2load(t2n[0])
                    t2n[0] += 1
        for (c, r) in todo:
            pv(c, r)()
        if n < 128 and n % 4 == 1:
            decide()
        if n < 128 and n % 4 == 0:
            post((n + 18) // 4)
        for fn in work.get(n, []):
            fn()

    for n in range(n0, 128):
        slot(n, False)
    e("s_mov_b32 m0, s67\ns_sub_u32 s5, s2, 144\ns_cmp_lt_u32 s5, 64\ns_cbranch_scc1 L_tq")
    for n in range(128, nslots):
        slot(n, True)
    assert t2n[0] == 8
    e("s_branch L_tj\nL_tq:")
    for n in range(128, nslots):
        slot(n, False)
    e("L_tj:")
    if late is not None:
        e(f"s_cmp_lg_u32 s2, {late}\ns_cbranch_scc1 L_nl\ns_sleep 127\ns_sleep 127\nL_nl:")
    e(f"ds_write_b128 v{VW2}, v[{ACC}:{ACC+3}]")
    stamp(4)
    e("s_cmp_lt_u32 s2, 208\ns_cbranch_scc1 L_t9")
    t2load(8)
    e("L_t9:\ns_waitcnt lgkmcnt(0)\ns_barrier\ns_cmp_eq_u32 s3, 0\ns_cbranch_scc1 L_comb\ns_waitcnt vmcnt(0)")
    stamp(5)
    e("s_barrier\ns_barrier\ns_branch L_fin\nL_comb:")
    e("ds_read_b128 v[16:19], v3\nds_read_b128 v[20:23], v3 offset:16")
    for w in range(4):
        e(f"ds_read_b128 v[{28+4*w}:{31+4*w}], v6 offset:{1024*w}")
    e("""s_waitcnt lgkmcnt(4)
v_max3_f32 v24, v16, v18, v20
v_max_f32 v24, v24, v22
v_sub_f32 v16, v16, v24
v_sub_f32 v18, v18, v24
v_sub_f32 v20, v20, v24
v_sub_f32 v22, v22, v24
v_exp_f32 v16, v16
v_exp_f32 v18, v18
v_exp_f32 v20, v20
v_exp_f32 v22, v22
v_mul_f32 v25, v16, v17
v_fmac_f32 v25, v18, v19
v_fmac_f32 v25, v20, v21
v_fmac_f32 v25, v22, v23
v_rcp_f32 v26, v25
v_log_f32 v27, v25
s_waitcnt lgkmcnt(0)""")
    for r in range(4):
        e(f"v_mul_f32 v{ACC+r}, v{28+r}, v16")
    for w in range(1, 4):
        for r in range(4):
            e(f"v_fmac_f32 v{ACC+r}, v{28+4*w+r}, v{16+2*w}")
    for r in range(4):
        e(f"v_mul_f32 v{ACC+r}, v{ACC+r}, v26")
    e(f"""v_cvt_pk_bf16_f32 v28, v{ACC}, v{ACC+1}
v_cvt_pk_bf16_f32 v29, v{ACC+2}, v{ACC+3}
v_add_f32 v27, v27, v24
v_min_u32 v28, -2, v28
v_min_u32 v29, -2, v29
v_min_u32 v27, -2, v27
""")
    dual("""buffer_store_dwordx2 v[28:29], v4, s[56:59], s63 offen POL
s_mov_b32 exec_lo, 1
s_mov_b32 exec_hi, 1
buffer_store_dword v27, v5, s[56:59], s63 offen offset:512 POL""", 13, "o")
    e("ds_write_b32 v8, v27\ns_mov_b64 exec, -1\nds_write_b64 v7, v[28:29]")
    stamp(5)
    e("s_waitcnt vmcnt(2) lgkmcnt(0)\ns_barrier\ns_barrier\ns_branch L_fin")

    XN, WF, OF, AC, G, U = 16, 52, 160, 192, 208, 220
    e("L_aux:\ns_sub_u32 s4, s3, 4\nv_mul_u32_u24 v1, 36, v0\ns_mul_i32 s5, s4, 2304\nv_lshlrev_b32 v2, 4, v0")
    e(f"v_mov_b32 v8, {CNT}\nv_mov_b32 v4, 0\nv_mov_b32 v5, 0\nv_mov_b32 v6, 0\nv_mov_b32 v7, 0\nds_write_b128 v8, v[4:7]\nds_write_b128 v8, v[4:7] offset:16\nds_write_b128 v8, v[4:7] offset:32")
    e("s_movk_i32 s42, 9216\ns_mov_b32 s43, 0x20000\ns_waitcnt lgkmcnt(0)\ns_load_dword s14, s[38:39], 0\ns_mov_b64 s[40:41], s[16:17]")
    for k in range(3):
        e(f"buffer_load_dwordx3 v[{16+4*k}:{18+4*k}], v1, s[40:43], s5 offen offset:{12*k} {xld}")
    e("s_barrier")
    srd(56, 38, wsz)
    if pref:
        e(f"""s_cmp_lg_u32 s4, 2
s_cbranch_scc1 L_a0
s_getpc_b64 s[60:61]
L_pc:
s_sub_u32 s60, s60, L_pc-{KN}
s_subb_u32 s61, s61, 0
s_lshr_b32 s62, s2, 3
s_lshl_b32 s62, s62, 10
v_add_u32 v3, s62, v2
v_min_u32 v3, L_end-{KN}-12, v3
v_mov_b32 v5, s61
v_add_co_u32 v4, vcc, s60, v3
v_addc_co_u32 v5, vcc, 0, v5, vcc
global_load_dwordx4 v[28:31], v[4:5], off
L_a0:""")
    e(f"""s_add_u32 s13, s79, 64
s_bitcmp1_b32 s2, 3
s_cselect_b32 s60, 72, 0
s_add_u32 s13, s13, s60
s_cmp_ge_u32 s2, 144
s_cselect_b32 s13, s10, s13
s_lshl_b32 s13, s13, 11
s_add_u32 s13, s13, {PBUF}
s_getreg_b32 s78, hwreg(HW_REG_XCC_ID, 0, 4)
s_lshl_b32 s78, s78, 16
s_and_b32 s77, s2, 7
s_lshl_b32 s77, s77, 7
s_add_u32 s77, s77, {XID}
s_mov_b32 s68, 0xffff0000
s_mov_b32 s69, {f32(1/576)}
s_add_u32 s5, s5, {XS}
v_add_u32 v1, s5, v1""")
    e(f"""v_lshrrev_b32 v10, 4, v0
v_and_b32 v11, 15, v0
v_bfe_u32 v8, v0, 2, 2
v_lshl_add_u32 v12, v10, 3, v8
v_lshlrev_b32 v12, 7, v12
v_and_b32 v9, 3, v0
v_lshl_add_u32 v12, v9, 3, v12
v_lshrrev_b32 v13, 1, v8
v_and_b32 v8, 1, v10
v_lshl_or_b32 v13, v8, 1, v13
v_lshl_add_u32 v12, v13, 5, v12
s_lshl_b32 s60, s4, 5
v_xor_b32 v3, s60, v12
v_add_u32 v4, 0x10000, v3
v_and_b32 v14, 7, v0
v_bfe_u32 v15, v0, 2, 3
v_lshl_add_u32 v15, v9, 4, v15
v_lshlrev_b32 v15, 2, v15
v_mul_u32_u24 v5, 1152, v14
v_lshrrev_b32 v8, 3, v11
v_mul_u32_u24 v8, 576, v8
v_lshl_add_u32 v8, v10, 4, v8
v_add_u32 v5, v5, v8
v_add_u32 v5, {XS}, v5
s_mov_b32 s71, 0x07060302
v_and_b32 v57, 31, v0
v_lshlrev_b32 v57, 2, v57
s_waitcnt lgkmcnt(0)
s_add_u32 s14, s14, 1
s_and_b32 s15, s14, 0xffff
s_and_b32 s6, s14, 0xff
s_andn2_b32 s60, s14, 0xf0000
s_or_b32 s78, s78, s60
s_cmp_lg_u32 s4, 0
s_cbranch_scc1 L_a1
s_lshr_b32 s60, s2, 3
s_lshl_b32 s60, s60, 2
s_add_u32 s60, s60, s77
v_mov_b32 v8, s78
s_mov_b64 exec, 1
buffer_store_dword v8, v57, s[56:59], s60 offen
s_mov_b64 exec, -1
s_waitcnt vmcnt(1)
s_branch L_a2
L_a1:
s_waitcnt vmcnt(0)
L_a2:""")
    raw = [16, 17, 18, 20, 21, 22, 24, 25, 26]

    def red32(v, t):
        for s in (8, 4, 2, 1):
            e(f"v_add_f32_dpp v{v}, v{v}, v{v} row_ror:{s} row_mask:0xf bank_mask:0xf")
        e(f"v_mov_b32 v{t}, v{v}\nv_permlane16_swap_b32 v{v}, v{t}\nv_add_f32 v{v}, v{v}, v{t}")

    for k in range(9):
        e(f"v_lshlrev_b32 v{28+2*k}, 16, v{raw[k]}\nv_and_b32 v{29+2*k}, s68, v{raw[k]}")
    e("v_pk_add_f32 v[46:47], v[28:29], v[30:31]")
    for k in range(2, 9):
        e(f"v_pk_add_f32 v[46:47], v[46:47], v[{28+2*k}:{29+2*k}]")
    e("v_add_f32 v46, v46, v47")
    red32(46, 47)
    e("v_mul_f32 v48, s69, v46\nv_sub_f32 v50, 0, v48\nv_sub_f32 v51, 0, v48")
    for k in range(9):
        e(f"v_pk_add_f32 v[8:9], v[{28+2*k}:{29+2*k}], v[50:51]")
        e("v_pk_mul_f32 v[46:47], v[8:9], v[8:9]" if k == 0 else "v_pk_fma_f32 v[46:47], v[8:9], v[8:9], v[46:47]")
    e("v_add_f32 v46, v46, v47")
    red32(46, 47)
    e("v_mul_f32 v46, s69, v46")
    rnd(46, 46)
    e(f"v_add_f32 v46, {f32(1e-5)}, v46")
    rnd(46, 46)
    e("v_sqrt_f32 v46, v46")
    rnd(46, 46)
    e("v_rcp_f32 v46, v46")
    rnd(50, 50)
    e("v_mov_b32 v51, v50\nv_mov_b32 v47, v46")
    for k in range(9):
        e(f"v_pk_add_f32 v[8:9], v[{28+2*k}:{29+2*k}], v[50:51]\nv_cvt_pk_bf16_f32 v9, v8, v9\nv_lshlrev_b32 v8, 16, v9\nv_and_b32 v9, s68, v9")
        e(f"v_pk_mul_f32 v[8:9], v[8:9], v[46:47]\nv_cvt_pk_bf16_f32 v{raw[k]}, v8, v9")
    for k in range(0, 8, 2):
        e(f"ds_write2_b32 v1, v{raw[k]}, v{raw[k+1]} offset0:{k} offset1:{k+1}")
    e(f"ds_write_b32 v1, v{raw[8]} offset:32")
    stamp(1)
    e(f"""v_mov_b32 v{G}, -1
v_mov_b32 v{G+1}, -1
v_mov_b32 v{G+2}, -1
v_mov_b32 v{G+3}, -1
s_lshl_b32 s61, s10, 2
s_add_u32 s61, s61, s4
s_mul_i32 s61, s61, {OSL}
s_add_u32 s61, s61, {OBUF}
v_mov_b32 v1, v57
s_waitcnt lgkmcnt(0)""")
    ldsarrive(C1, 8)
    e(f"s_mov_b64 exec, -1\ns_mov_b32 s70, {tries - 1}\ns_cmp_ge_u32 s2, 208\ns_cbranch_scc1 L_a4\nL_xid:\nbuffer_load_dword v{G+4}, v1, s[56:59], s77 offen sc1\ns_waitcnt vmcnt(0)")
    xidcheck(G + 4)
    e("s_cmp_eq_u32 s7, 2\ns_cbranch_scc1 L_xidd\ns_sub_u32 s70, s70, 1\ns_cbranch_scc0 L_xid\nL_xidd:")
    e("s_cmp_lt_u32 s2, 144\ns_cbranch_scc1 L_a4\ns_mov_b32 exec_hi, 0xff")
    dual(f"buffer_store_dwordx4 v[{G}:{G+3}], v2, s[56:59], s61 offen POL", 7, "r")
    e("L_a4:\ns_mov_b64 exec, 1")
    ldsspin(8, 8, "L_sp1")
    stamp(2)
    for i in range(9):
        e(f"ds_read_b128 v[{XN+4*i}:{XN+4*i+3}], v5 offset:{64*i}")
    for kk in range(18):
        for hf in range(2):
            off = kk * 4096 + hf * 512
            e(f"ds_read_b64_tr_b16 v[{WF+4*kk+2*hf}:{WF+4*kk+2*hf+1}], v{3 if off < 65536 else 4} offset:{off % 65536}")
    e(f"""s_lshl_b32 s60, s4, 9
s_add_u32 s60, s60, s13
v_mov_b32 v7, s68
v_mov_b32 v{CV}, {PRG}
s_lshr_b32 s61, s2, 3
s_lshl_b32 s61, s61, 2
v_mov_b32 v{CV+3}, s61
s_lshl_b32 s67, s15, 16
s_add_u32 s76, s77, {PLN - XID}
s_waitcnt lgkmcnt(0)""")
    ldsarrive(C2, 8)
    e("s_mov_b64 exec, -1")
    e("s_cmp_ge_u32 s2, 208\ns_cbranch_scc1 L_aq")
    for i in range(9):
        for hf in range(2):
            mfma(AC + 4 * hf, WF + 4 * (9 * hf + i), XN + 4 * i, i == 0)
    for r in range(4):
        e(f"v_add_f32_dpp v{AC+r}, v{AC+4+r}, v{AC+r} row_ror:8 row_mask:0xf bank_mask:0xf")
    e(f"""v_cvt_pk_bf16_f32 v8, v{AC}, v{AC+1}
v_cvt_pk_bf16_f32 v9, v{AC+2}, v{AC+3}
ds_bpermute_b32 v8, v15, v8
ds_bpermute_b32 v9, v15, v9
s_waitcnt lgkmcnt(0)
v_lshl_or_b32 v16, v8, 16, s15
v_and_or_b32 v17, v8, v7, s15
v_lshl_or_b32 v18, v9, 16, s15
v_and_or_b32 v19, v9, v7, s15
s_waitcnt vmcnt(0)""")
    e("s_mov_b32 exec_hi, 0")
    dual("buffer_store_dwordx4 v[16:19], v2, s[56:59], s60 offen POL", 7, "p")
    e("s_mov_b32 exec_hi, -1")
    stamp(3)
    e("L_aq:")
    control("L_c1", T1, False)
    ldsspin(CV, T1, "L_sp3", sleep=8, four=True)
    e("s_cmp_lg_u32 s4, 3\ns_cbranch_scc1 L_a3")
    e(f"""s_lshr_b32 s60, s9, 1
s_lshl_b32 s60, s60, 6
s_lshl_b32 s61, s8, 13
s_add_u32 s60, s60, s61
s_add_u32 s60, s60, {PBUF}
v_lshrrev_b32 v6, 2, v0
v_lshlrev_b32 v6, 9, v6
v_and_b32 v7, 3, v0
v_lshl_add_u32 v6, v7, 4, v6""")
    e("buffer_load_dword v24, v1, s[56:59], s77 offen sc1")
    poll("buffer_load_dwordx4 v[20:23], v6, s[56:59], s60 offen " + pld, tagcmp([20, 21, 22, 23], 7), 4)
    xidcheck(24)
    e(f"""v_perm_b32 v8, v21, v20, s71
v_perm_b32 v9, v23, v22, s71
v_lshlrev_b32 v6, 3, v0
v_add_u32 v6, {QS}, v6
ds_write_b64 v6, v[8:9]
v_mov_b32 v6, {QF}
v_mov_b32 v7, s7
s_waitcnt lgkmcnt(0)
ds_write_b32 v6, v7
L_a3:
v_mul_u32_u24 v4, {RING - 1024}, v10
v_add_u32 v4, v4, v3
v_mov_b32 v12, 0xffffff00
v_lshrrev_b32 v3, 3, v0
v_lshlrev_b32 v3, 14, v3
v_lshl_add_u32 v3, v14, 4, v3
s_lshl_b32 s65, s4, 12
s_and_b32 s64, s4, 1
s_lshl_b32 s61, s8, 7
s_add_u32 s65, s65, s61
s_add_u32 s65, s65, {PART}
s_cmp_lt_u32 s2, 144
s_cbranch_scc1 L_aO
s_cmp_ge_u32 s2, 208
s_cbranch_scc1 L_aD""")
    CEND = 4 * ((cend - 8 + 18) // 4)
    control("L_c2", CEND, True)
    e("s_branch L_fin\nL_aD:")

    e(f"""s_mul_i32 s60, s11, 9216
s_mul_i32 s61, s4, 2304
s_add_u32 s60, s60, s61
s_add_u32 s60, s60, {PBUF + 131072}
s_add_u32 s61, s60, {288 * 512}
s_mov_b32 s72, -1
s_mov_b32 s73, 0xffff
s_mov_b64 exec, s[72:73]""")
    poll("\n".join([f"buffer_load_dwordx4 v[{G+4*k}:{G+4*k+3}], v2, s[56:59], s60 offen offset:{768*k} {pld}" for k in range(3)] +
                   [f"buffer_load_dwordx4 v[{U+4*k}:{U+4*k+3}], v2, s[56:59], s61 offen offset:{768*k} {pld}" for k in range(3)]),
         tagcmp(list(range(G, G + 24)), 8), gsleep, restore="s[72:73]")
    c0 = -2 * LOG2E * 0.7978845608028654
    e(f"v_mov_b32 v32, {f32(c0)}\nv_mov_b32 v33, {f32(c0 * 0.044715)}\ns_mul_i32 s60, s4, 144")
    for k in range(6):
        e(f"""v_and_b32 v34, s68, v{G+2*k}
v_and_b32 v35, s68, v{G+2*k+1}
v_mul_f32 v36, v34, v34
v_mul_f32 v37, v35, v35
v_fma_f32 v36, v36, v33, v32
v_fma_f32 v37, v37, v33, v32
v_mul_f32 v36, v36, v34
v_mul_f32 v37, v37, v35
v_exp_f32 v36, v36
v_exp_f32 v37, v37
v_and_b32 v38, s68, v{U+2*k}
v_add_f32 v36, 1.0, v36
v_add_f32 v37, 1.0, v37
v_rcp_f32 v36, v36
v_rcp_f32 v37, v37
v_and_b32 v39, s68, v{U+2*k+1}
v_mul_f32 v34, v34, v36
v_mul_f32 v35, v35, v37
v_cvt_pk_bf16_f32 v35, v34, v35
v_lshlrev_b32 v34, 16, v35
v_and_b32 v35, s68, v35
v_mul_f32 v34, v34, v38
v_mul_f32 v35, v35, v39
v_cvt_pk_bf16_f32 v{40+k}, v34, v35""")
    for k in range(3):
        e(f"""v_add_u32 v34, s60, v0
v_bfe_u32 v35, v34, 2, 3
v_mul_u32_u24 v35, 576, v35
v_and_b32 v36, 3, v34
v_lshl_add_u32 v35, v36, 3, v35
v_and_b32 v34, 0xffe0, v34
v_add_u32 v35, v35, v34
v_add_u32 v35, {HS}, v35
ds_write_b64 v35, v[{40+2*k}:{41+2*k}]
s_add_u32 s60, s60, 48""")
    e("s_waitcnt lgkmcnt(0)")
    ldsarrive(CNT, 8)
    ldsspin(8, 4, "L_spin")
    e(f"""v_mul_u32_u24 v5, 576, v14
v_lshl_add_u32 v5, v10, 4, v5
v_add_u32 v5, {HS}, v5""")
    for i in range(9):
        e(f"ds_read_b128 v[{XN+4*i}:{XN+4*i+3}], v5 offset:{64*i}")
    e(f"""s_mul_i32 s60, s12, {3*65536}
s_add_u32 s60, s60, s65
s_add_u32 s60, s60, 2048
s_add_u32 s61, s60, 65536
s_add_u32 s62, s60, 131072
s_waitcnt lgkmcnt(0)""")
    for i in range(6):
        for sub in range(3):
            mfma(AC + 4 * sub, WF + 4 * (6 * sub + i), XN + 4 * i, i == 0)
    stamp(4)
    control("L_c3", CEND, True)
    e("s_barrier\ns_barrier")
    for j in range(9):
        for hf in range(2):
            e(f"ds_read_b64_tr_b16 v[{WF+4*j+2*hf}:{WF+4*j+2*hf+1}], v4 offset:{j*1024 + hf*512}")
    for j in range(9):
        if j % 3 == 0:
            e(f"s_waitcnt lgkmcnt({12 - 2 * j})")
        mfma(AC + 4 * (j % 3), WF + 4 * j, XN + 4 * (6 + j // 3), False)

    def publish(n, src, soffs):
        for r in range(4 * n):
            e(f"v_and_or_b32 v{src+r}, v{src+r}, v12, s6")
            if bperm:
                e(f"ds_bpermute_b32 v{G+r}, v15, v{src+r}")
        e("s_mov_b32 exec_hi, 0" if bperm else "s_mov_b32 exec_lo, 0x00ff00ff\ns_mov_b32 exec_hi, 0x00ff00ff")
        for k in range(n):
            if bperm:
                e(f"s_waitcnt lgkmcnt({4 * (n - 1 - k)})")
            b = (G if bperm else src) + 4 * k
            e(f"buffer_store_dwordx4 v[{b}:{b+3}], v3, s[56:59], s{soffs[k]} offen {fst}")
        e("s_mov_b64 exec, -1")

    publish(3, AC, (60, 61, 62))
    stamp(7)
    e("s_branch L_fin")

    e(f"""L_aO:
s_lshl_b32 s61, s9, 16
s_add_u32 s65, s65, s61
v_mul_u32_u24 v6, {OSL}, v10
v_lshl_add_u32 v5, v11, 4, v6
s_lshl_b32 s62, s8, 2
s_add_u32 s62, s62, s4
s_mul_i32 s62, s62, {4*OSL}
s_add_u32 s62, s62, {OBUF}
s_mul_i32 s61, s4, {4*GST}
s_add_u32 s61, s61, {GB}
v_mul_u32_u24 v48, {GST}, v10
v_lshl_add_u32 v48, v11, 4, v48
v_add_u32 v48, s61, v48
s_lshl_b32 s61, s4, 5
s_add_u32 s61, s61, {LB}
v_lshl_add_u32 v49, v10, 3, s61
v_mul_u32_u24 v46, {GST}, v11
v_lshl_add_u32 v46, v10, 4, v46
v_add_u32 v46, {GB}, v46
v_lshlrev_b32 v47, 3, v11
v_add_u32 v47, {LB}, v47
s_lshl_b32 s74, s2, 12
s_lshl_b32 s61, s64, 6
s_add_u32 s74, s74, s61
s_add_u32 s74, s74, {PART}
""" + ("v_lshrrev_b32 v8, 2, v0\nv_lshlrev_b32 v7, 7, v8\nv_and_b32 v8, 3, v0\nv_lshl_add_u32 v7, v8, 4, v7" if fin else "v_lshrrev_b32 v8, 3, v0\nv_lshlrev_b32 v7, 7, v8\nv_lshl_add_u32 v7, v14, 3, v7") + f"""
v_mov_b32 v26, 0xff
s_lshr_b32 s75, s8, 2
s_lshl_b32 s75, s75, 1
s_add_u32 s75, s75, s64
s_mul_i32 s75, s75, 1152
s_lshl_b32 s61, s9, 7
s_add_u32 s75, s75, s61
s_and_b32 s61, s8, 3
s_lshl_b32 s61, s61, 5
s_add_u32 s75, s75, s61
v_and_b32 v9, 1, v10
v_lshlrev_b32 v9, 1, v9
""" + ("v_lshl_add_u32 v13, v8, 3, v9\nv_bfe_u32 v9, v0, 3, 1\nv_lshl_add_u32 v13, v9, 2, v13" if fin else "v_lshl_add_u32 v13, v14, 2, v9") + f"""
buffer_load_ushort v50, v13, s[40:43], s75 offen
s_lshr_b32 s61, s9, 1
s_and_b32 s60, s9, 1
s_lshl_b32 s60, s60, 3
s_add_u32 s61, s61, s60
s_lshl_b32 s60, s4, 2
s_sub_u32 s61, s61, s60
v_cmp_ne_u32 s[72:73], s61, v10""")
    srd(48, 34, 9216)
    control("L_c4", CEND, True)
    e("s_waitcnt vmcnt(0)\nv_lshlrev_b32 v50, 16, v50\ns_mov_b64 exec, s[72:73]\ns_barrier")
    stamp(5)

    def ofirst():
        e("s_mov_b64 exec, -1\ns_barrier")
        stamp(4)
        for ks in range(8):
            for hf in range(2):
                e(f"ds_read_b64_tr_b16 v[{OF+4*ks+2*hf}:{OF+4*ks+2*hf+1}], v4 offset:{ks*1024 + hf*512}")
        e("s_mov_b64 exec, s[72:73]")

    poll("""buffer_load_dwordx4 v[28:31], v5, s[56:59], s62 offen sc1
buffer_load_dwordx4 v[32:35], v5, s[56:59], s62 offen offset:256 sc1
buffer_load_dwordx2 v[36:37], v6, s[56:59], s62 offen offset:512 sc1""".replace("sc1", old), sentcmp(range(28, 38), 38), psleep, first=ofirst, restore="s[72:73]")
    e("ds_write_b128 v48, v[28:31]\nds_write_b128 v48, v[32:35] offset:256\nds_write_b64 v49, v[36:37]\ns_mov_b64 exec, -1")
    stamp(6)
    e("s_waitcnt lgkmcnt(0)\ns_barrier\nds_read_b64 v[36:37], v47")
    order = [0, 4, 1, 5, 2, 6, 3, 7]
    for ks in order:
        e(f"ds_read_b128 v[{WF+4*ks}:{WF+4*ks+3}], v46 offset:{64*ks}")
    e("""s_waitcnt lgkmcnt(8)
v_sub_f32_dpp v38, v36, v36 row_ror:8 row_mask:0xf bank_mask:0xf
v_sub_f32_dpp v39, v37, v37 row_ror:8 row_mask:0xf bank_mask:0xf""")
    fill = ["v_exp_f32 v38, v38", "v_exp_f32 v39, v39", "v_add_f32 v38, 1.0, v38", "v_add_f32 v39, 1.0, v39", "v_rcp_f32 v38, v38", "v_rcp_f32 v39, v39"]
    for i, ks in enumerate(order):
        e(f"s_waitcnt lgkmcnt({7 - i})")
        mfma(AC + 4 * (ks // 4), OF + 4 * ks, WF + 4 * ks, ks % 4 == 0)
        if i < len(fill):
            e(fill[i])
    for r in range(4):
        e(f"v_mul_f32 v{AC+r}, v{AC+r}, v38")
    for r in range(4):
        e(f"v_fmac_f32 v{AC+r}, v{AC+4+r}, v39")
    for r in range(4):
        e(f"v_add_f32_dpp v{AC+r}, v{AC+r}, v{AC+r} row_ror:8 row_mask:0xf bank_mask:0xf")
    publish(1, AC, (65,))
    stamp(3)
    e("s_cmp_ge_u32 s4, 2\ns_cbranch_scc1 L_fin")
    chk = "\n".join(f"v_xor_b32 v{16+i}, s6, v{16+i}" for i in range(8))
    chk += "\nv_or3_b32 v24, v16, v17, v18\nv_or3_b32 v25, v19, v20, v21\nv_or3_b32 v24, v24, v22, v23\nv_bitop3_b32 v24, v24, v26, v25 bitop3:0xc8\nv_cmp_ne_u32 vcc, 0, v24"
    if fdelay:
        e("s_waitcnt vmcnt(0)")
    if fdelay > 1:
        e(f"s_sleep {fdelay - 1}")
    ps2 = psleep if psleep2 is None else psleep2
    if fin:
        poll(f"buffer_load_dwordx4 v[16:19], v7, s[56:59], s74 offen {fld}\nbuffer_load_dwordx4 v[20:23], v7, s[56:59], s74 offen offset:2048 {fld}", chk, ps2, masked=False)
        e("""v_permlane32_swap_b32 v16, v20
v_permlane32_swap_b32 v17, v21
v_permlane32_swap_b32 v18, v22
v_permlane32_swap_b32 v19, v23
v_add_f32 v16, v16, v20
v_add_f32 v17, v17, v21
v_add_f32 v18, v18, v22
v_add_f32 v19, v19, v23
v_permlane16_swap_b32 v16, v17
v_permlane16_swap_b32 v18, v19
v_add_f32 v17, v16, v17
v_add_f32 v18, v18, v19
v_add_f32_dpp v16, v17, v17 row_ror:8 row_mask:0xf bank_mask:0x3
v_add_f32_dpp v16, v18, v18 row_ror:8 row_mask:0xf bank_mask:0xc
v_add_f32_dpp v16, v16, v16 row_shl:4 row_mask:0xf bank_mask:0x5""")
    else:
        poll("\n".join(f"buffer_load_dwordx2 v[{16+2*i}:{17+2*i}], v7, s[56:59], s74 offen offset:{1024*i} {fld}" for i in range(4)), chk, ps2, masked=False)
        e("""v_pk_add_f32 v[16:17], v[16:17], v[18:19]
v_pk_add_f32 v[20:21], v[20:21], v[22:23]
v_permlane32_swap_b32 v16, v20
v_permlane32_swap_b32 v17, v21
v_pk_add_f32 v[16:17], v[16:17], v[20:21]
v_permlane16_swap_b32 v16, v17
v_add_f32 v16, v16, v17
v_add_f32_dpp v16, v16, v16 row_ror:8 row_mask:0xf bank_mask:0xf""")
    rnd(16, 16)
    e("v_add_f32 v17, v16, v50")
    rnd(17, 17)
    e(f"""v_permlane32_swap_b32 v16, v18
v_add_f32 v17, v17, v18
v_cvt_pk_bf16_f32 v17, v17, v17
s_mov_b32 exec_lo, {"0x0f0f0f0f" if fin else "0x00ff00ff"}
s_mov_b32 exec_hi, 0
buffer_store_short v17, v13, s[48:51], s75 offen
s_mov_b64 exec, 1
s_add_u32 s60, s2, s4
s_cmp_lg_u32 s60, 0
s_cbranch_scc1 L_o3
v_mov_b32 v19, s14
buffer_store_dword v19, v7, s[56:59], 0 offen
L_o3:
s_mov_b64 exec, -1""")
    stamp(7)
    if probe:
        if probe[1] is not None:
            e(f"s_and_b32 s60, s2, {probe[1]}\ns_cmp_lg_u32 s60, {probe[2]}\ns_cbranch_scc1 L_fin")
        e(f"L_probe:\ns_memrealtime s[76:77]\ns_waitcnt lgkmcnt(0)\ns_sub_u32 s60, s76, s{80 + 2 * probe[0]}\ns_cmp_lt_u32 s60, 5000\ns_cbranch_scc1 L_probe")
    e("L_fin:")
    if diag:
        e("s_cmp_lt_u32 s3, 4\ns_cbranch_scc1 L_dg\ns_sub_u32 s60, s2, 144\ns_cmp_lt_u32 s60, 64\ns_cbranch_scc1 L_end\nL_dg:")
        e("s_waitcnt vmcnt(0)\ns_memrealtime s[76:77]\ns_waitcnt lgkmcnt(0)\ns_getreg_b32 s77, hwreg(HW_REG_HW_ID)")
        for i in range(8):
            e(f"v_mov_b32 v{16+i}, s{80+2*i}")
        e(f"v_mov_b32 v24, s76\nv_mov_b32 v25, s77\nv_mov_b32 v1, 0\ns_lshl_b32 s60, s2, 3\ns_add_u32 s60, s60, s3\ns_lshl_b32 s60, s60, 6\ns_add_u32 s60, s60, {STAMP}")
        e("s_mov_b64 exec, 1\nbuffer_store_dwordx4 v[16:19], v1, s[56:59], s60 offen\nbuffer_store_dwordx4 v[20:23], v1, s[56:59], s60 offen offset:16\nbuffer_store_dwordx2 v[24:25], v1, s[56:59], s60 offen offset:32")
    e("L_end:\ns_endpgm")
    e(f""".section .rodata,"a"
.p2align 6
.amdhsa_kernel {KN}
.amdhsa_next_free_vgpr 256
.amdhsa_next_free_sgpr 102
.amdhsa_accum_offset 256
.amdhsa_group_segment_fixed_size 0
.amdhsa_kernarg_size 96
.amdhsa_user_sgpr_count 2
.amdhsa_user_sgpr_kernarg_segment_ptr 1
.amdhsa_system_sgpr_workgroup_id_x 1
.amdhsa_float_denorm_mode_32 3
.end_amdhsa_kernel""")
    return top + e.text()


def summary(T, cfg):
    import numpy as np
    S = T[:, :4]; A = T[:144, 4:]; D = T[208:, 4:]
    wd = S[:, :, 4].max(1); m = wd.max()
    r = dict(startmax=S[:, :, 0].max(), B1med=float(np.median(S[:, :, 1])), B1max=S[:, :, 1].max(), b1wmean=(S[:, :, 3].max(1) - S[:, :, 1].max(1)).mean(), b1wmax=(S[:, :, 3].max(1) - S[:, :, 1].max(1)).max(), B2max=S[:, :, 2].max(), qwait=(S[:, :, 7] - S[:, :, 6]).max(),
             GO=wd[:144].mean(), Q=wd[144:208].mean(), D=wd[208:].mean(), xcdspread=max(wd[i::8].mean() for i in range(8)) - wd.mean(),
             pairmax=wd.reshape(8, 2, 16).mean(1).max(), p90=float(np.percentile(wd, 90)), p97=float(np.percentile(wd, 97)), meandone=wd.mean(), maxdone=m, opub=S[:, 0, 5].max() - m, t2=S[:, 1:, 5].max() - m, t2dur=(S[:144, 1:, 5].max(1) - wd[:144]).mean())
    if "a" not in cfg.get("abl", ""):
        r.update(LNmed=float(np.median(A[:, :, 1])), LNmax=A[:, :, 1].max(), dearly=D[:, :, 4].max(), dpub=D[:, :, 7].max() - m, ogath=A[:, :, 6].max() - m, ppub=A[:, :, 3].max() - m, out=A[:, :2, 7].max() - m, end=A[:, :, 8].max())
    return r


if __name__ == "__main__":
    kw = eval("dict(" + (sys.argv[2] if len(sys.argv) > 2 else "") + ")")
    open(sys.argv[1], "w").write(gen(**kw))
```

```python
import sys, struct
sys.path.insert(0, "dev")
from asmlib import Asm

KN = "parallel_sum__sliding_block_cached__geglu_ffn__decode_kernel"
REF = "parallel_sum__sliding_block_cached__geglu_ffn__decode.s.ref"

R = 6
RING = R * 4096
XS = 4 * RING
QS = XS + 9216
HS = QS + 512
ML = HS + 4608
CNT = ML + 64
QF, C1, C2, PRG, DEC, C3 = CNT + 4, CNT + 8, CNT + 12, CNT + 16, CNT + 32, CNT + 36
LB = CNT + 64
RED = LB + 128
GB = RED + 4096
GST = 528
LDS_SZ = GB + 16 * GST
XID, PLN, PBUF, OBUF, PART = 0x400, 0x800, 0x1000, 0x70000, 0xA0000
OSL = 640
WS_SZ = PART + 144 * 4096
STAMP = 0x200000
LIMIT = 2000000
LOG2E = 1.4426950408889634

DOC = """;
;
;
"""


def f32(x):
    return "0x%08x" % struct.unpack("<I", struct.pack("<f", x))[0]


def gen(dw=6, dm=5, d2=6, boost=3, thr=16, T1=48, diag=0, wmap=0):
    e = Asm()
    uid = [0]
    wsz = WS_SZ if not diag else 0x400000

    def lab(p):
        uid[0] += 1
        return f"L_{p}{uid[0]}"

    def coff(c):
        return ((c & 1) << 14) | ((c >> 1) << 16) | ((c & 1) << 13) | ((c >> 1 & 1) << 15)

    def stamp(i):
        if diag:
            e(f"s_memrealtime s[{80 + 2 * i}:{81 + 2 * i}]")

    def srd(b, lo, size):
        e(f"s_mov_b32 s{b}, s{lo}\ns_mov_b32 s{b+1}, s{lo+1}\ns_mov_b32 s{b+2}, {size}\ns_mov_b32 s{b+3}, 0x20000")

    def rnd(dst, src):
        e(f"v_cvt_pk_bf16_f32 v{dst}, v{src}, v{src}\nv_lshlrev_b32 v{dst}, 16, v{dst}")

    def poll(loads, cmp, sleep, restore="-1", quad=False, first=None):
        L = lab("poll")
        e(f"s_mov_b32 s70, {LIMIT}")
        if first:
            e(loads)
            first()
            e(f"s_branch {L}_w")
        e(f"{L}:")
        e(loads)
        e(f"{L}_w:\ns_waitcnt vmcnt(0)")
        e(cmp)
        e(f"s_cbranch_vccz {L}_d" if quad else f"s_and_b64 exec, exec, vcc\ns_cbranch_scc0 {L}_d")
        e(f"s_sub_u32 s70, s70, 1\ns_cbranch_scc1 {L}_d")
        if quad:
            e("s_wqm_b64 exec, vcc")
        if sleep:
            e(f"s_sleep {sleep}")
        e(f"s_branch {L}\n{L}_d:\ns_mov_b64 exec, {restore}")

    def dual(stores, mode):
        L = lab("st")
        e(f"s_cmp_eq_u32 s{mode}, 2\ns_cbranch_scc0 {L}")
        e(stores.replace("POL", ""))
        e(f"s_branch {L}_d\n{L}:")
        e(stores.replace("POL", "sc1"))
        e(f"{L}_d:")

    def xidcheck(v):
        e(f"v_cmp_ne_u32 vcc, s78, v{v}\ns_cmp_eq_u32 vcc_lo, 0\ns_cselect_b32 s7, 2, 1")

    def ldsarrive(addr, va):
        e(f"s_mov_b64 exec, 1\nv_mov_b32 v{va}, {addr}\nv_mov_b32 v{va+1}, 1\nds_add_u32 v{va}, v{va+1}")

    def ldsspin(va, count, st=60, sleep=2, four=False):
        L = lab("spin")
        e(f"s_mov_b32 s70, {LIMIT*8}\n{L}:")
        if four:
            e(f"ds_read_b128 v[{va+4}:{va+7}], v{va}\ns_waitcnt lgkmcnt(0)\nv_add3_u32 v{va+1}, v{va+4}, v{va+5}, v{va+6}\nv_add_u32 v{va+1}, v{va+1}, v{va+7}")
        else:
            e(f"ds_read_b32 v{va+1}, v{va}\ns_waitcnt lgkmcnt(0)")
        e(f"""v_readfirstlane_b32 s{st}, v{va+1}
s_cmp_ge_u32 s{st}, {count}
s_cbranch_scc1 {L}_d
s_sub_u32 s70, s70, 1
s_cbranch_scc1 {L}_d
s_sleep {sleep}
s_branch {L}
{L}_d:
s_mov_b64 exec, -1""")

    CV = 232

    def control(until):
        L = lab("ctl")
        e(f"""; wave 2: post the stream position, count group members that are ahead, select the queue depth
s_cmp_lg_u32 s4, 2
s_cbranch_scc1 {L}_d
s_mov_b32 s70, {LIMIT}
{L}:
ds_read_b128 v[{CV+4}:{CV+7}], v{CV}
s_waitcnt lgkmcnt(0)
v_add3_u32 v{CV+1}, v{CV+4}, v{CV+5}, v{CV+6}
v_add_u32 v{CV+1}, v{CV+1}, v{CV+7}
v_readfirstlane_b32 s66, v{CV+1}
v_lshl_or_b32 v{CV+1}, v{CV+1}, 16, s15
s_mov_b64 exec, 1
buffer_store_dword v{CV+1}, v{CV+3}, s[56:59], s76 offen
s_mov_b64 exec, -1
s_cmp_ge_u32 s66, {until}
s_cbranch_scc1 {L}_d
buffer_load_dword v{CV+4}, v1, s[56:59], s76 offen sc1
v_add_u32 v{CV+1}, 0x10000, v{CV+1}
s_waitcnt vmcnt(0)
v_sub_u32 v{CV+4}, v{CV+4}, v{CV+1}
v_and_b32 v{CV+4}, 0x8000ffff, v{CV+4}
v_cmp_eq_u32 vcc, 0, v{CV+4}
s_bcnt1_i32_b32 s66, vcc_lo
s_cmp_ge_u32 s66, {thr}
s_cselect_b32 s66, 1, 0
v_mov_b32 v{CV+4}, s66
ds_write_b32 v{CV}, v{CV+4} offset:{DEC - PRG}
s_sub_u32 s70, s70, 1
s_cbranch_scc0 {L}
{L}_d:""")

    def sentcmp(regs, tmp):
        r = list(regs)
        out = []
        cur = r.pop(0)
        while r:
            out.append(f"v_max3_u32 v{tmp}, v{cur}, v{r[0]}, v{r[1]}" if len(r) > 1 else f"v_max_u32 v{tmp}, v{cur}, v{r[0]}")
            r = r[2:]
            cur = tmp
        out.append(f"v_cmp_eq_u32 vcc, -1, v{cur}")
        return "\n".join(out)

    def tagcmp(regs, tmp):
        out = [f"v_xor_b32 v{tmp}, s15, v{regs[0]}"]
        for r in regs[1:]:
            out.append(f"v_bitop3_b32 v{tmp}, v{r}, v{tmp}, s15 bitop3:0xde")
        out.append(f"v_and_b32 v{tmp}, 0xffff, v{tmp}\nv_cmp_ne_u32 vcc, 0, v{tmp}")
        return "\n".join(out)

    def allred_g(v, t, op):
        e(f"v_mov_b32 v{t}, v{v}\nv_permlane16_swap_b32 v{v}, v{t}\n{op} v{v}, v{v}, v{t}")
        e(f"v_mov_b32 v{t}, v{v}\nv_permlane32_swap_b32 v{v}, v{t}\n{op} v{v}, v{v}, v{t}")

    def mfma(D, A, B, first):
        e(f"v_mfma_f32_16x16x32_bf16 v[{D}:{D+3}], v[{A}:{A+3}], v[{B}:{B+3}], {'0' if first else f'v[{D}:{D+3}]'}")

    def trread(dst, addr, off):
        for hf in range(2):
            e(f"ds_read_b64_tr_b16 v[{dst+2*hf}:{dst+2*hf+1}], v{addr} offset:{off + hf * 512}")

    hdr = [l.rstrip("\n") for l in open(REF) if l.startswith(";") and "@launch" not in l and "Override" not in l and "grid=ceil" not in l]
    top = "\n".join(hdr) + f"\n; @launch grid=(256,1,1) block=(512,1,1) lds={LDS_SZ}\n" + DOC
    e(f""".amdgcn_target "amdgcn-amd-amdhsa--gfx950"
.text
.globl {KN}
.p2align 8
.type {KN},@function
{KN}:
s_cmp_ge_u32 s2, 256
s_cbranch_scc1 L_end
s_load_dwordx16 s[16:31], s[0:1], 0
s_load_dwordx8 s[32:39], s[0:1], 64""")
    if wmap:
        e("s_lshr_b32 s5, s2, 4\ns_add_u32 s6, s2, s5\ns_and_b32 s6, s6, 15\ns_andn2_b32 s2, s2, 15\ns_or_b32 s2, s2, s6")
    stamp(0)
    e("""v_lshrrev_b32 v1, 6, v0
v_and_b32 v0, 63, v0
v_readfirstlane_b32 s3, v1
s_xor_b32 s3, s3, 4
s_and_b32 s8, s2, 15
s_lshr_b32 s9, s2, 4
s_sub_u32 s12, s9, 13
s_lshl_b32 s10, s8, 2
s_add_u32 s10, s10, s9
s_sub_u32 s10, s10, 9
s_and_b32 s5, s2, 7
s_bfe_u32 s6, s2, 0x10003
s_lshl_b32 s11, s5, 1
s_add_u32 s11, s11, s6
s_mul_i32 s79, s5, 9
s_add_u32 s79, s79, s9
s_cmp_ge_u32 s3, 4
s_cbranch_scc1 L_aux""")

    VO, KD, KR, MK, VW1, VW2, Q, KF, AB, ACC, T, SP = 1, 2, 6, 10, 14, 15, 16, 32, 48, 64, 68, 84
    MRUN, NEGM, LS, VT2, VST, VPR, VDE, VDA, VV = 120, 121, 122, 123, 124, 125, 126, 127, 128
    e(f"""; ===== stream waves (s3 = 0..3) =====
v_lshrrev_b32 v1, 3, v0
v_and_b32 v2, 7, v0
v_and_b32 v3, 2, v1
s_and_b32 s5, s3, 1
s_lshl_b32 s5, s5, 2
v_or_b32 v3, s5, v3
v_xor_b32 v2, v2, v3
v_lshlrev_b32 v2, 4, v2
s_lshl_b32 m0, s3, 10
s_mov_b32 s43, 0x20000
s_lshl_b32 s60, s79, 7
s_lshl_b32 s5, s10, 7
s_movk_i32 s7, 9216
s_mov_b32 s42, {576*9216}
s_cmp_ge_u32 s2, 144
s_cselect_b32 s60, s5, s60
s_cselect_b32 s7, 8192, s7
s_cselect_b32 s42, {576*8192}, s42
s_mul_i32 s5, s11, {288*1152}
s_mul_i32 s6, s12, 384
s_add_u32 s5, s5, s6
s_lshl_b32 s62, s7, 5
s_movk_i32 s64, 4096
s_cmp_ge_u32 s2, 208
s_cselect_b32 s60, s5, s60
s_cselect_b32 s7, 1152, s7
s_cselect_b32 s42, {4608*1152}, s42
s_cselect_b32 s63, {36864-256}, s62
s_cselect_b32 s62, 128, s62
s_cselect_b32 s65, {4096-49152}, s64
s_cselect_b32 s64, 24576, s64
s_mul_i32 s5, s3, s7
s_lshl_b32 s5, s5, 3
s_add_u32 s72, s60, s5
v_mad_u32_u24 v{VW1}, v1, s7, v2
s_bitcmp1_b32 s2, 3
s_waitcnt lgkmcnt(0)
s_cselect_b64 s[40:41], s[30:31], s[28:29]
s_cmp_ge_u32 s2, 144
s_cselect_b64 s[40:41], s[22:23], s[40:41]
s_cmp_ge_u32 s2, 208
s_cselect_b64 s[40:41], s[32:33], s[40:41]""")

    def vsetup():
        e("; s60 = this wave's base inside the K / V window")
        srd(52, 20, 0x10000000)
        e(f"""s_lshr_b32 s60, s9, 1
s_lshl_b32 s60, s60, 4
s_add_u32 s60, s60, s8
s_lshl_b32 s60, s60, 21
s_and_b32 s61, s9, 1
s_lshl_b32 s61, s61, 15
s_add_u32 s60, s60, s61
s_lshl_b32 s61, s3, 12
s_add_u32 s60, s60, s61
s_add_u32 s60, s60, {6144*256}
v_mul_u32_u24 v{VT2}, 1152, v1
v_add_u32 v{VT2}, v{VT2}, v2
v_lshlrev_b32 v{VO}, 4, v0""")

    work = {}

    def at(slot, fn):
        work.setdefault(slot, []).append(fn)

    def setup():
        e("; late tile descriptor, K swizzle addresses, diagonal masks for the P operand")
        srd(48, 18, 0x10000000)
        srd(56, 38, wsz)
        e(f"""s_mul_i32 s67, s3, {RING}
s_mul_i32 s5, s8, {256*1152}
s_mul_i32 s6, s3, {8*1152}
s_add_u32 s5, s5, s6
s_lshl_b32 s6, s9, 7
s_add_u32 s5, s5, s6
s_mov_b32 s46, {4096*1152}
s_mov_b32 s47, 0x20000
s_cmp_ge_u32 s2, 208
s_cselect_b32 s72, s72, s5
s_cselect_b32 s73, s62, {32*1152}
s_cselect_b32 s74, s63, {32*1152}
s_cselect_b64 s[44:45], s[32:33], s[24:25]
s_cselect_b32 s46, s42, s46""")
        e(f"v_lshrrev_b32 v{T}, 4, v0\nv_and_b32 v{T+1}, 15, v0\nv_lshlrev_b32 v{T+2}, 2, v{T}\nv_xor_b32 v{T+2}, v{T+2}, v{T+1}")
        e(f"v_lshlrev_b32 v{T+2}, 4, v{T+2}\nv_lshl_add_u32 v{KD}, v{T}, 8, v{T+2}")
        for r in range(1, 4):
            e(f"v_xor_b32 v{KD+r}, {16*r}, v{KD}")
        e(f"v_and_b32 v{T+2}, 3, v0\nv_lshlrev_b32 v{T+2}, 2, v{T+2}\nv_lshrrev_b32 v{T+3}, 2, v{T+1}\nv_or_b32 v{T+2}, v{T+2}, v{T+3}")
        e(f"v_lshl_add_u32 v{T+2}, v{T+2}, 8, s67\nv_xor_b32 v{T+3}, v{T}, v{T+1}\nv_lshl_add_u32 v{KR}, v{T+3}, 4, v{T+2}")
        for t in range(1, 4):
            e(f"v_xor_b32 v{KR+t}, {64*t}, v{KR}")
        e(f"v_and_b32 v{T+2}, 1, v0\nv_lshlrev_b32 v{T+2}, 4, v{T+2}\nv_mov_b32 v{T+3}, 0xffff\nv_lshlrev_b32 v{T+3}, v{T+2}, v{T+3}\nv_bfe_u32 v{T+2}, v0, 1, 2")
        for r in range(4):
            e(f"v_cmp_eq_u32 vcc, {r}, v{T+2}\nv_cndmask_b32 v{MK+r}, 0, v{T+3}, vcc")
        e(f"v_lshrrev_b32 v{T+2}, 3, v{T+1}\nv_lshlrev_b32 v{T+2}, 8, v{T+2}\nv_lshl_add_u32 v{T+2}, v{T}, 4, v{T+2}\nv_add_u32 v{VW1}, {QS}, v{T+2}")
        e(f"s_mov_b32 s68, 0xffff0000\ns_mov_b32 s69, {f32(128 ** -0.5)}\ns_mov_b32 s71, {f32(LOG2E)}")
        e(f"v_mov_b32 v{LS}, 0\nv_mov_b32 v{MRUN}, 0xff800000")
        for r in range(4):
            e(f"v_mov_b32 v{ACC+r}, 0")

    def sreg(c):
        return SP + 4 * (c if c < 8 else (8 if c == 8 else c - 9))

    def kread(c):
        def f():
            e(f"; K chunk {c}: fragments")
            for t in range(4):
                e(f"ds_read_b128 v[{KF+4*t}:{KF+4*t+3}], v{KR+t} offset:{(c % R) * 4096}")
        return f

    def kmma(c):
        def f():
            e(f"; K chunk {c}: scores\ns_waitcnt lgkmcnt(0)")
            for t in range(4):
                mfma(sreg(c), KF + 4 * t, Q + 4 * t, t == 0)
        return f

    def kround(c):
        def f():
            S = sreg(c)
            for k in range(2):
                e(f"v_cvt_pk_bf16_f32 v{T}, v{S}, v{S+1}\nv_cvt_pk_bf16_f32 v{T+1}, v{S+2}, v{S+3}")
                e(f"v_lshlrev_b32 v{S}, 16, v{T}\nv_and_b32 v{S+1}, s68, v{T}\nv_lshlrev_b32 v{S+2}, 16, v{T+1}\nv_and_b32 v{S+3}, s68, v{T+1}")
                if k == 0:
                    for r in range(4):
                        e(f"v_mul_f32 v{S+r}, s69, v{S+r}")
            e(f"v_max3_f32 v{MRUN}, v{MRUN}, v{S}, v{S+1}\nv_max3_f32 v{MRUN}, v{MRUN}, v{S+2}, v{S+3}")
        return f

    def maxA():
        e("; max over the first 128 keys of this wave")
        allred_g(MRUN, T, "v_max_f32")
        e(f"v_mul_f32 v{NEGM}, s71, v{MRUN}\nv_sub_f32 v{NEGM}, 0, v{NEGM}")

    def maxB():
        e("; max over all 256 keys, rescale of the running sum and accumulator")
        allred_g(MRUN, T, "v_max_f32")
        e(f"v_mul_f32 v{T+1}, s71, v{MRUN}\nv_add_f32 v{T+2}, v{NEGM}, v{T+1}\nv_sub_f32 v{NEGM}, 0, v{T+1}\nv_exp_f32 v{T+2}, -v{T+2}")
        e(f"v_mul_f32 v{LS}, v{LS}, v{T+2}\nv_mov_b32 v{T+3}, v{T+2}")
        e(f"v_mov_b32_dpp v{T+3}, v{T+2} row_ror:8 row_mask:0x3 bank_mask:0xc\nv_mov_b32_dpp v{T+3}, v{T+2} row_ror:8 row_mask:0xc bank_mask:0x3")
        for r in range(4):
            e(f"v_mul_f32 v{ACC+r}, v{ACC+r}, v{T+3}")

    def pexp(c):
        def f():
            S = sreg(c)
            for r in range(4):
                e(f"v_fma_f32 v{S+r}, v{S+r}, s71, v{NEGM}")
            for r in range(4):
                e(f"v_exp_f32 v{S+r}, v{S+r}")
            e(f"v_add_f32 v{T}, v{S}, v{S+1}\nv_add_f32 v{T+1}, v{S+2}, v{S+3}\nv_add_f32 v{LS}, v{LS}, v{T}\nv_add_f32 v{LS}, v{LS}, v{T+1}")
            for r in range(4):
                e(f"v_cvt_pk_bf16_f32 v{S+r}, v{S+r}, v{S+r}")
        return f

    def aprep(c, r):
        def f():
            for k in range(4):
                e(f"v_and_b32 v{AB+4*r+k}, v{sreg(c)+r}, v{MK+k}")
        return f

    def pv(c, r):
        def f():
            mfma(ACC, AB + 4 * r, VV + 16 * (c % 8) + 4 * r, False)
        return f

    def mlwrite():
        e("; publish this wave's max and sum in LDS, prepare the combine addresses")
        allred_g(LS, T, "v_add_f32")
        e(f"v_sub_f32 v{T+2}, 0, v{NEGM}\nv_mov_b32 v{T+3}, v{LS}")
        e(f"v_bfe_u32 v{T}, v0, 3, 1\nv_lshlrev_b32 v{T}, 5, v{T}\ns_lshl_b32 s63, s3, 3\ns_add_u32 s63, s63, {ML}\nv_add_u32 v{T}, s63, v{T}")
        e(f"ds_write_b64 v{T}, v[{T+2}:{T+3}]")
        ldsarrive(C3, T)
        e(f"""s_mov_b64 exec, -1
s_lshl_b32 s63, s3, 10
s_add_u32 s63, s63, {RED}
v_add_u32 v{VW2}, s63, v{VO}
v_lshrrev_b32 v2, 5, v0
v_lshlrev_b32 v3, 5, v2
v_add_u32 v3, {ML}, v3
s_lshl_b32 s63, s3, 3
v_add_u32 v9, s63, v3
v_lshlrev_b32 v4, 3, v0
v_lshlrev_b32 v5, 2, v2
v_and_b32 v6, 1, v0
v_lshl_add_u32 v6, v2, 1, v6
v_bfe_u32 v7, v0, 1, 4
v_lshl_add_u32 v6, v6, 4, v7
v_lshlrev_b32 v6, 4, v6
v_add_u32 v6, {RED}, v6
s_lshr_b32 s62, s9, 1
s_and_b32 s63, s9, 1
s_lshl_b32 s63, s63, 3
s_add_u32 s62, s62, s63
s_mul_i32 s63, s62, {GST}
s_add_u32 s63, s63, {GB}
v_add_u32 v7, s63, v4
s_lshl_b32 s63, s62, 3
s_add_u32 s63, s63, {LB}
v_add_u32 v8, s63, v5
s_lshl_b32 s63, s8, 4
s_add_u32 s63, s63, s62
s_mul_i32 s63, s63, {OSL}
s_add_u32 s63, s63, {OBUF}""")

    def factors():
        e(f"""; workgroup max and sum: v9 = this wave's normalizing factor, v27 = log2-sum-exp
v_mov_b32 v{T}, {C3}
s_mov_b32 s70, {LIMIT*8}
L_fw:
ds_read_b32 v{T+1}, v{T}
ds_read_b128 v[16:19], v3
ds_read_b128 v[20:23], v3 offset:16
ds_read_b32 v9, v9
s_waitcnt lgkmcnt(0)
v_readfirstlane_b32 s5, v{T+1}
s_cmp_ge_u32 s5, 4
s_cbranch_scc1 L_fd
s_sub_u32 s70, s70, 1
s_cbranch_scc1 L_fd
s_lshl_b32 s5, s3, 3
v_add_u32 v9, s5, v3
s_branch L_fw
L_fd:
v_max3_f32 v24, v16, v18, v20
v_max_f32 v24, v24, v22
v_sub_f32 v16, v16, v24
v_sub_f32 v18, v18, v24
v_sub_f32 v20, v20, v24
v_sub_f32 v22, v22, v24
v_sub_f32 v9, v9, v24
v_exp_f32 v16, v16
v_exp_f32 v18, v18
v_exp_f32 v20, v20
v_exp_f32 v22, v22
v_exp_f32 v9, v9
v_mul_f32 v25, v16, v17
v_fmac_f32 v25, v18, v19
v_fmac_f32 v25, v20, v21
v_fmac_f32 v25, v22, v23
v_rcp_f32 v26, v25
v_log_f32 v27, v25
v_mul_f32 v9, v9, v26
v_add_f32 v27, v27, v24
v_min_u32 v27, -2, v27""")

    def qread():
        stamp(6)
        e(f"; q fragments, s13 = store mode\nv_mov_b32 v{T}, {QF}\ns_mov_b32 s70, {LIMIT*8}\nL_qw:\nds_read_b32 v{T+1}, v{T}")
        for t in range(4):
            e(f"ds_read_b128 v[{Q+4*t}:{Q+4*t+3}], v{VW1} offset:{64*t}")
        e(f"""s_waitcnt lgkmcnt(0)
v_readfirstlane_b32 s13, v{T+1}
s_cmp_lg_u32 s13, 0
s_cbranch_scc1 L_qd
s_sub_u32 s70, s70, 1
s_cbranch_scc1 L_qd
s_sleep 2
s_branch L_qw
L_qd:""")
        stamp(7)

    def dep(n):
        return dm if n < 96 else d2

    landed = {}
    for n in range(128 + 64):
        for m in range(min(127, n - dep(n) - (boost if n < 128 else 0)) + 1):
            landed.setdefault(m, n)
    qslot = 32 + 4 * R - 3
    at(qslot, qread)
    kslot = {}
    for c in range(16):
        n0 = kslot[c] = max(landed[35 + 4 * c], qslot + 2 * c)
        assert c + R >= 16 or n0 + 1 < 32 + 4 * (c + R)
        at(n0, kread(c))
        at(n0 + 1, kmma(c))
        at(n0 + 2, kround(c))
    sA = kslot[7] + 3
    at(sA, maxA)
    for j in range(8):
        s0 = sA + 1 + 3 * j
        at(s0, pexp(j))
        for h in range(2):
            for fn in (aprep(j, 2 * h), aprep(j, 2 * h + 1), pv(j, 2 * h), pv(j, 2 * h + 1)):
                at(s0 + 1 + h, fn)
        assert s0 + 2 < 96 + 4 * j
        assert j == 7 or s0 + 2 < kslot[9 + j] + 1
    sB = kslot[15] + 3
    assert sA + 24 < sB and sB + 9 < 126
    at(sB, maxB)
    for j in range(8):
        at(sB + 1 + j, pexp(8 + j))
    at(sB + 9, mlwrite)
    at(127, factors)
    pre = {}
    last = 0
    for n in range(96, 128):
        j, r = (n - 96) // 4, n % 4
        s = max(landed[n], sB + 2 + j, last)
        while len(pre.get(s, [])) >= 4:
            s += 1
        last = s
        pre.setdefault(s, []).append((8 + j, r))
    nslots = max(max(work), last) + 1

    def t2load(j):
        e(f"buffer_load_dwordx4 v{VT2}, s[44:47], s72 offen nt lds")
        if j < 8:
            e(f"s_add_u32 s72, s72, s{74 if j % 3 == 2 else 73}\ns_add_u32 m0, m0, 1024")

    def cwait(depth):
        L = lab("w")
        e(f"s_waitcnt vmcnt({depth+boost-1})\ns_cbranch_vccnz {L}\ns_waitcnt vmcnt({depth-1})\n{L}:")

    def post(stage):
        e(f"v_mov_b32 v{VST}, {stage}\nds_write_b32 v{VPR}, v{VST}\nds_read_b32 v{VDE}, v{VDA}")

    def decide():
        e(f"s_waitcnt lgkmcnt(0)\nv_cmp_ne_u32 vcc, 0, v{VDE}")

    def vload(i, wait):
        if i % 4 == 0:
            e(f"s_xor_b32 s61, s60, {coff(i // 4)}")
        wait()
        V = VV + 4 * (i % 32)
        e(f"buffer_load_dwordx4 v[{V}:{V+3}], v{VO}, s[52:55], s61 offen offset:{(i % 4) * 1024} nt")

    def kload(i, depth):
        if i % 4 == 0:
            e(f"s_xor_b32 s62, s60, {coff(i // 4)}\ns_add_u32 m0, s67, {((i // 4) % R) * 4096}")
        cwait(depth)
        e(f"buffer_load_dwordx4 v{KD + i % 4}, s[48:51], s62 offen offset:{(i % 4) * 1024} nt lds")

    for p in range(18 + dw):
        if p == dw:
            e(f"s_lshl_b32 s5, s3, 2\ns_add_u32 s5, s5, {PRG}\nv_mov_b32 v{VPR}, s5\nv_mov_b32 v{VDA}, {DEC}\ns_barrier")
        if p > dw and p % 4 == 2:
            post(p // 4)
        if p == 18:
            vsetup()
        if p == 17 + dw:
            e(f"; this wave's part of the weight tile has landed\ns_waitcnt vmcnt({dw-1})")
            stamp(1)
            ldsarrive(C1, T)
            e("s_mov_b64 exec, -1")
        if p >= 18:
            vload(p - 18, lambda: e(f"s_waitcnt vmcnt({dw-1})"))
        else:
            if p >= dw:
                e(f"s_waitcnt vmcnt({dw-1})")
            e(f"buffer_load_dwordx4 v{VW1}, s[40:43], s72 offen nt lds")
            e(f"s_add_u32 s72, s72, s{62 if p % 3 < 2 else 63}\ns_add_u32 m0, m0, s{64 if p % 3 < 2 else 65}")
    e(f"""; tiles whose lines all have address bits [9:7] = 3 arrive late: start those workgroups on the deep queue
s_add_u32 s66, s40, s72
s_bfe_u32 s66, s66, 0x30007
s_cmp_eq_u32 s66, 3
s_cselect_b32 s66, 1, 0
s_cmp_ge_u32 s2, 208
s_cselect_b32 s66, 0, s66
s_waitcnt lgkmcnt(0)
v_mov_b32 v{VDE}, s66
ds_write_b32 v{VDA}, v{VDE}""")
    setup()
    decide()

    t2n = [0]

    def slot(n, t2):
        todo = pre.get(n, [])
        for (c, r) in todo:
            aprep(c, r)()
        if n == 32:
            stamp(2)
            e(f"; the K rings reuse the weight tile's LDS once it has been read\nv_mov_b32 v{T}, {C2}")
            ldsspin(T, 4, st=5)
        if n < 32 or 96 <= n < 128:
            vload(n if n < 32 else n - 64, lambda: cwait(dep(n)))
        elif n < 96:
            kload(n - 32, dep(n))
        else:
            if n - d2 <= 127:
                e(f"s_waitcnt vmcnt({127 - (n - d2) + (t2n[0] if t2 else 0)})")
            left = nslots - 1 - n
            if t2 and left > 0:
                for _ in range(-(-(8 - t2n[0]) // left)):
                    t2load(t2n[0])
                    t2n[0] += 1
        for (c, r) in todo:
            pv(c, r)()
        if n < 128 and n % 4 == 1:
            decide()
        if n < 128 and n % 4 == 0:
            post((n + 18) // 4)
        for fn in work.get(n, []):
            fn()

    for n in range(dw, 128):
        slot(n, False)
    e("; drain V; the wo / w_down roles queue their late tile behind it\ns_mov_b32 m0, s67\ns_sub_u32 s5, s2, 144\ns_cmp_lt_u32 s5, 64\ns_cbranch_scc1 L_tq")
    for n in range(128, nslots):
        slot(n, True)
    assert t2n[0] == 8
    e("s_branch L_tj\nL_tq:")
    for n in range(128, nslots):
        slot(n, False)
    e("L_tj:")
    for r in range(4):
        e(f"v_mul_f32 v{ACC+r}, v{ACC+r}, v9")
    e(f"ds_write_b128 v{VW2}, v[{ACC}:{ACC+3}]")
    stamp(4)
    e("s_cmp_lt_u32 s2, 208\ns_cbranch_scc1 L_t9")
    t2load(8)
    e("L_t9:\ns_waitcnt lgkmcnt(0)\ns_barrier\ns_cmp_lg_u32 s3, 0\ns_cbranch_scc1 L_sd")
    for w in range(4):
        e(f"ds_read_b128 v[{28+4*w}:{31+4*w}], v6 offset:{1024*w}")
    for w in range(1, 4):
        e(f"s_waitcnt lgkmcnt({3 - w})")
        for r in range(4):
            e(f"v_add_f32 v{28+r}, v{28+r}, v{28+4*w+r}")
    e("v_cvt_pk_bf16_f32 v28, v28, v29\nv_cvt_pk_bf16_f32 v29, v30, v31\nv_min_u32 v28, -2, v28\nv_min_u32 v29, -2, v29")
    dual("""buffer_store_dwordx2 v[28:29], v4, s[56:59], s63 offen POL
s_mov_b32 exec_lo, 1
s_mov_b32 exec_hi, 1
buffer_store_dword v27, v5, s[56:59], s63 offen offset:512 POL""", 13)
    e("ds_write_b32 v8, v27\ns_mov_b64 exec, -1\nds_write_b64 v7, v[28:29]")
    stamp(3)
    e("L_sd:\ns_waitcnt vmcnt(0) lgkmcnt(0)")
    stamp(5)
    e("s_barrier\ns_barrier\ns_branch L_fin")

    XN, WF, OF, AC, G, U = 16, 52, 160, 192, 208, 220
    e(f"""; ===== projection and hand-off waves (s4 = 0..3) =====
L_aux:
s_sub_u32 s4, s3, 4
v_mul_u32_u24 v1, 36, v0
s_mul_i32 s5, s4, 2304
v_lshlrev_b32 v2, 4, v0
v_mov_b32 v8, {CNT}
v_mov_b32 v4, 0
v_mov_b32 v5, 0
v_mov_b32 v6, 0
v_mov_b32 v7, 0
ds_write_b128 v8, v[4:7]
ds_write_b128 v8, v[4:7] offset:16
ds_write_b128 v8, v[4:7] offset:32
s_movk_i32 s42, 9216
s_mov_b32 s43, 0x20000
s_waitcnt lgkmcnt(0)
s_load_dword s14, s[38:39], 0
s_mov_b64 s[40:41], s[16:17]""")
    for k in range(3):
        e(f"buffer_load_dwordx3 v[{16+4*k}:{18+4*k}], v1, s[40:43], s5 offen offset:{12*k}")
    e("s_barrier")
    srd(56, 38, wsz)
    e(f"""s_add_u32 s13, s79, 64
s_bitcmp1_b32 s2, 3
s_cselect_b32 s60, 72, 0
s_add_u32 s13, s13, s60
s_cmp_ge_u32 s2, 144
s_cselect_b32 s13, s10, s13
s_lshl_b32 s13, s13, 11
s_add_u32 s13, s13, {PBUF}
s_getreg_b32 s78, hwreg(HW_REG_XCC_ID, 0, 4)
s_lshl_b32 s78, s78, 16
s_and_b32 s77, s2, 7
s_lshl_b32 s77, s77, 7
s_add_u32 s77, s77, {XID}
s_mov_b32 s68, 0xffff0000
s_mov_b32 s69, {f32(1/576)}
s_add_u32 s5, s5, {XS}
v_add_u32 v1, s5, v1
v_lshrrev_b32 v10, 4, v0
v_and_b32 v11, 15, v0
v_bfe_u32 v8, v0, 2, 2
v_lshl_add_u32 v12, v10, 3, v8
v_lshlrev_b32 v12, 7, v12
v_and_b32 v9, 3, v0
v_lshl_add_u32 v12, v9, 3, v12
v_lshrrev_b32 v13, 1, v8
v_and_b32 v8, 1, v10
v_lshl_or_b32 v13, v8, 1, v13
v_lshl_add_u32 v12, v13, 5, v12
s_lshl_b32 s60, s4, 5
v_xor_b32 v3, s60, v12
v_add_u32 v4, 0x10000, v3
v_and_b32 v14, 7, v0
v_bfe_u32 v15, v0, 2, 3
v_lshl_add_u32 v15, v9, 4, v15
v_lshlrev_b32 v15, 2, v15
v_mul_u32_u24 v5, 1152, v14
v_lshrrev_b32 v8, 3, v11
v_mul_u32_u24 v8, 576, v8
v_lshl_add_u32 v8, v10, 4, v8
v_add_u32 v5, v5, v8
v_add_u32 v5, {XS}, v5
s_mov_b32 s71, 0x07060302
v_and_b32 v57, 31, v0
v_lshlrev_b32 v57, 2, v57
s_waitcnt lgkmcnt(0)
s_add_u32 s14, s14, 1
s_and_b32 s15, s14, 0xffff
s_and_b32 s6, s14, 0xff
s_andn2_b32 s60, s14, 0xf0000
s_or_b32 s78, s78, s60
s_cmp_lg_u32 s4, 0
s_cbranch_scc1 L_a1
s_lshr_b32 s60, s2, 3
s_lshl_b32 s60, s60, 2
s_add_u32 s60, s60, s77
v_mov_b32 v8, s78
s_mov_b64 exec, 1
buffer_store_dword v8, v57, s[56:59], s60 offen
s_mov_b64 exec, -1
s_waitcnt vmcnt(1)
s_branch L_a2
L_a1:
s_waitcnt vmcnt(0)
L_a2:
; LayerNorm of two rows per wave, rounded to bf16 after every step like the reference""")
    raw = [16, 17, 18, 20, 21, 22, 24, 25, 26]

    def red32(v, t):
        for s in (8, 4, 2, 1):
            e(f"v_add_f32_dpp v{v}, v{v}, v{v} row_ror:{s} row_mask:0xf bank_mask:0xf")
        e(f"v_mov_b32 v{t}, v{v}\nv_permlane16_swap_b32 v{v}, v{t}\nv_add_f32 v{v}, v{v}, v{t}")

    for k in range(9):
        e(f"v_lshlrev_b32 v{28+2*k}, 16, v{raw[k]}\nv_and_b32 v{29+2*k}, s68, v{raw[k]}")
    e("v_pk_add_f32 v[46:47], v[28:29], v[30:31]")
    for k in range(2, 9):
        e(f"v_pk_add_f32 v[46:47], v[46:47], v[{28+2*k}:{29+2*k}]")
    e("v_add_f32 v46, v46, v47")
    red32(46, 47)
    e("v_mul_f32 v48, s69, v46\nv_sub_f32 v50, 0, v48\nv_sub_f32 v51, 0, v48")
    for k in range(9):
        e(f"v_pk_add_f32 v[8:9], v[{28+2*k}:{29+2*k}], v[50:51]")
        e("v_pk_mul_f32 v[46:47], v[8:9], v[8:9]" if k == 0 else "v_pk_fma_f32 v[46:47], v[8:9], v[8:9], v[46:47]")
    e("v_add_f32 v46, v46, v47")
    red32(46, 47)
    e("v_mul_f32 v46, s69, v46")
    rnd(46, 46)
    e(f"v_add_f32 v46, {f32(1e-5)}, v46")
    rnd(46, 46)
    e("v_sqrt_f32 v46, v46")
    rnd(46, 46)
    e("v_rcp_f32 v46, v46")
    rnd(50, 50)
    e("v_mov_b32 v51, v50\nv_mov_b32 v47, v46")
    for k in range(9):
        e(f"v_pk_add_f32 v[8:9], v[{28+2*k}:{29+2*k}], v[50:51]\nv_cvt_pk_bf16_f32 v9, v8, v9\nv_lshlrev_b32 v8, 16, v9\nv_and_b32 v9, s68, v9")
        e(f"v_pk_mul_f32 v[8:9], v[8:9], v[46:47]\nv_cvt_pk_bf16_f32 v{raw[k]}, v8, v9")
    for k in range(0, 8, 2):
        e(f"ds_write2_b32 v1, v{raw[k]}, v{raw[k+1]} offset0:{k} offset1:{k+1}")
    e(f"ds_write_b32 v1, v{raw[8]} offset:32")
    stamp(1)
    e(f"""v_mov_b32 v{G}, -1
v_mov_b32 v{G+1}, -1
v_mov_b32 v{G+2}, -1
v_mov_b32 v{G+3}, -1
s_lshl_b32 s61, s10, 2
s_add_u32 s61, s61, s4
s_mul_i32 s61, s61, {OSL}
s_add_u32 s61, s61, {OBUF}
v_mov_b32 v1, v57
s_waitcnt lgkmcnt(0)""")
    ldsarrive(C1, 8)
    e(f"""s_mov_b64 exec, -1
s_mov_b32 s70, 2
s_cmp_ge_u32 s2, 208
s_cbranch_scc1 L_a4
L_xid:
buffer_load_dword v{G+4}, v1, s[56:59], s77 offen sc1
s_waitcnt vmcnt(0)""")
    xidcheck(G + 4)
    e("""s_cmp_eq_u32 s7, 2
s_cbranch_scc1 L_xidd
s_sub_u32 s70, s70, 1
s_cbranch_scc0 L_xid
L_xidd:
s_cmp_lt_u32 s2, 144
s_cbranch_scc1 L_a4
s_mov_b32 exec_hi, 0xff""")
    dual(f"buffer_store_dwordx4 v[{G}:{G+3}], v2, s[56:59], s61 offen POL", 7)
    e("L_a4:\ns_mov_b64 exec, 1")
    ldsspin(8, 8)
    stamp(2)
    for i in range(9):
        e(f"ds_read_b128 v[{XN+4*i}:{XN+4*i+3}], v5 offset:{64*i}")
    for kk in range(18):
        trread(WF + 4 * kk, 3 if kk < 16 else 4, (kk % 16) * 4096)
    e(f"""s_lshl_b32 s60, s4, 9
s_add_u32 s60, s60, s13
v_mov_b32 v7, s68
v_mov_b32 v{CV}, {PRG}
s_lshr_b32 s61, s2, 3
s_lshl_b32 s61, s61, 2
v_mov_b32 v{CV+3}, s61
s_add_u32 s76, s77, {PLN - XID}
s_waitcnt lgkmcnt(0)""")
    ldsarrive(C2, 8)
    e("s_mov_b64 exec, -1\ns_cmp_ge_u32 s2, 208\ns_cbranch_scc1 L_aq")
    for i in range(9):
        for hf in range(2):
            mfma(AC + 4 * hf, WF + 4 * (9 * hf + i), XN + 4 * i, i == 0)
    for r in range(4):
        e(f"v_add_f32_dpp v{AC+r}, v{AC+4+r}, v{AC+r} row_ror:8 row_mask:0xf bank_mask:0xf")
    e(f"""; publish 8 x 16 values as (bf16 << 16 | tag)
v_cvt_pk_bf16_f32 v8, v{AC}, v{AC+1}
v_cvt_pk_bf16_f32 v9, v{AC+2}, v{AC+3}
ds_bpermute_b32 v8, v15, v8
ds_bpermute_b32 v9, v15, v9
s_waitcnt lgkmcnt(0)
v_lshl_or_b32 v16, v8, 16, s15
v_and_or_b32 v17, v8, v7, s15
v_lshl_or_b32 v18, v9, 16, s15
v_and_or_b32 v19, v9, v7, s15
s_waitcnt vmcnt(0)
s_mov_b32 exec_hi, 0""")
    dual("buffer_store_dwordx4 v[16:19], v2, s[56:59], s60 offen POL", 7)
    e("s_mov_b32 exec_hi, -1\nL_aq:")
    control(T1)
    ldsspin(CV, T1, sleep=8, four=True)
    e(f"""; wave 3 gathers q for the stream waves
s_cmp_lg_u32 s4, 3
s_cbranch_scc1 L_a3
s_lshr_b32 s60, s9, 1
s_lshl_b32 s60, s60, 6
s_lshl_b32 s61, s8, 13
s_add_u32 s60, s60, s61
s_add_u32 s60, s60, {PBUF}
v_lshrrev_b32 v6, 2, v0
v_lshlrev_b32 v6, 9, v6
v_and_b32 v7, 3, v0
v_lshl_add_u32 v6, v7, 4, v6
buffer_load_dword v24, v1, s[56:59], s77 offen sc1""")
    poll("buffer_load_dwordx4 v[20:23], v6, s[56:59], s60 offen sc1 nt", tagcmp([20, 21, 22, 23], 7), 4)
    xidcheck(24)
    CEND = 136
    e(f"""v_perm_b32 v8, v21, v20, s71
v_perm_b32 v9, v23, v22, s71
v_lshlrev_b32 v6, 3, v0
v_add_u32 v6, {QS}, v6
ds_write_b64 v6, v[8:9]
v_mov_b32 v6, {QF}
v_mov_b32 v7, s7
s_waitcnt lgkmcnt(0)
ds_write_b32 v6, v7
L_a3:
v_mul_u32_u24 v4, {RING - 1024}, v10
v_add_u32 v4, v4, v3
v_mov_b32 v12, 0xffffff00
v_lshrrev_b32 v3, 3, v0
v_lshlrev_b32 v3, 14, v3
v_lshl_add_u32 v3, v14, 4, v3
s_lshl_b32 s65, s4, 12
s_and_b32 s64, s4, 1
s_lshl_b32 s61, s8, 7
s_add_u32 s65, s65, s61
s_add_u32 s65, s65, {PART}
s_cmp_lt_u32 s2, 144
s_cbranch_scc1 L_aO
s_cmp_ge_u32 s2, 208
s_cbranch_scc1 L_aD""")
    control(CEND)
    e(f"""s_branch L_fin
L_aD:
s_mul_i32 s60, s11, 9216
s_mul_i32 s61, s4, 2304
s_add_u32 s60, s60, s61
s_add_u32 s60, s60, {PBUF + 131072}
s_add_u32 s61, s60, {288 * 512}
s_mov_b32 s72, -1
s_mov_b32 s73, 0xffff
s_mov_b64 exec, s[72:73]""")
    poll("\n".join([f"buffer_load_dwordx4 v[{G+4*k}:{G+4*k+3}], v2, s[56:59], s60 offen offset:{768*k} sc1 nt" for k in range(3)] +
                   [f"buffer_load_dwordx4 v[{U+4*k}:{U+4*k+3}], v2, s[56:59], s61 offen offset:{768*k} sc1 nt" for k in range(3)]),
         tagcmp(list(range(G, G + 24)), 8), 8, restore="s[72:73]")
    c0 = -2 * LOG2E * 0.7978845608028654
    e(f"; gelu_tanh(g) = g / (1 + exp(-2 * sqrt(2/pi) * (g + 0.044715 g^3)))\nv_mov_b32 v32, {f32(c0)}\nv_mov_b32 v33, {f32(c0 * 0.044715)}\ns_mul_i32 s60, s4, 144")
    for k in range(6):
        e(f"""v_and_b32 v34, s68, v{G+2*k}
v_and_b32 v35, s68, v{G+2*k+1}
v_mul_f32 v36, v34, v34
v_mul_f32 v37, v35, v35
v_fma_f32 v36, v36, v33, v32
v_fma_f32 v37, v37, v33, v32
v_mul_f32 v36, v36, v34
v_mul_f32 v37, v37, v35
v_exp_f32 v36, v36
v_exp_f32 v37, v37
v_and_b32 v38, s68, v{U+2*k}
v_add_f32 v36, 1.0, v36
v_add_f32 v37, 1.0, v37
v_rcp_f32 v36, v36
v_rcp_f32 v37, v37
v_and_b32 v39, s68, v{U+2*k+1}
v_mul_f32 v34, v34, v36
v_mul_f32 v35, v35, v37
v_cvt_pk_bf16_f32 v35, v34, v35
v_lshlrev_b32 v34, 16, v35
v_and_b32 v35, s68, v35
v_mul_f32 v34, v34, v38
v_mul_f32 v35, v35, v39
v_cvt_pk_bf16_f32 v{40+k}, v34, v35""")
    for k in range(3):
        e(f"""v_add_u32 v34, s60, v0
v_bfe_u32 v35, v34, 2, 3
v_mul_u32_u24 v35, 576, v35
v_and_b32 v36, 3, v34
v_lshl_add_u32 v35, v36, 3, v35
v_and_b32 v34, 0xffe0, v34
v_add_u32 v35, v35, v34
v_add_u32 v35, {HS}, v35
ds_write_b64 v35, v[{40+2*k}:{41+2*k}]
s_add_u32 s60, s60, 48""")
    e("s_waitcnt lgkmcnt(0)")
    ldsarrive(CNT, 8)
    ldsspin(8, 4)
    e(f"v_mul_u32_u24 v5, 576, v14\nv_lshl_add_u32 v5, v10, 4, v5\nv_add_u32 v5, {HS}, v5")
    for i in range(9):
        e(f"ds_read_b128 v[{XN+4*i}:{XN+4*i+3}], v5 offset:{64*i}")
    e(f"""s_mul_i32 s60, s12, {3*65536}
s_add_u32 s60, s60, s65
s_add_u32 s60, s60, 2048
s_add_u32 s61, s60, 65536
s_add_u32 s62, s60, 131072
s_waitcnt lgkmcnt(0)""")
    for i in range(6):
        for sub in range(3):
            mfma(AC + 4 * sub, WF + 4 * (6 * sub + i), XN + 4 * i, i == 0)
    stamp(4)
    control(CEND)
    e("; last 96 rows arrive with the late tile\ns_barrier\ns_barrier")
    for j in range(9):
        trread(WF + 4 * j, 4, j * 1024)
    for j in range(9):
        if j % 3 == 0:
            e(f"s_waitcnt lgkmcnt({12 - 2 * j})")
        mfma(AC + 4 * (j % 3), WF + 4 * j, XN + 4 * (6 + j // 3), False)

    def publish(n, src, soffs):
        e("; partial outputs: f32 with the 8-bit tag in the low mantissa byte, whole 128 B lines")
        for r in range(4 * n):
            e(f"v_and_or_b32 v{src+r}, v{src+r}, v12, s6\nds_bpermute_b32 v{G+r}, v15, v{src+r}")
        e("s_mov_b32 exec_hi, 0")
        for k in range(n):
            e(f"s_waitcnt lgkmcnt({4 * (n - 1 - k)})\nbuffer_store_dwordx4 v[{G+4*k}:{G+4*k+3}], v3, s[56:59], s{soffs[k]} offen sc1")
        e("s_mov_b64 exec, -1")

    publish(3, AC, (60, 61, 62))
    stamp(7)
    e(f"""s_branch L_fin
L_aO:
s_lshl_b32 s61, s9, 16
s_add_u32 s65, s65, s61
v_mul_u32_u24 v6, {OSL}, v10
v_lshl_add_u32 v5, v11, 4, v6
s_lshl_b32 s62, s8, 2
s_add_u32 s62, s62, s4
s_mul_i32 s62, s62, {4*OSL}
s_add_u32 s62, s62, {OBUF}
s_mul_i32 s61, s4, {4*GST}
s_add_u32 s61, s61, {GB}
v_mul_u32_u24 v48, {GST}, v10
v_lshl_add_u32 v48, v11, 4, v48
v_add_u32 v48, s61, v48
s_lshl_b32 s61, s4, 5
s_add_u32 s61, s61, {LB}
v_lshl_add_u32 v49, v10, 3, s61
v_mul_u32_u24 v46, {GST}, v11
v_lshl_add_u32 v46, v10, 4, v46
v_add_u32 v46, {GB}, v46
v_lshlrev_b32 v47, 3, v11
v_add_u32 v47, {LB}, v47
s_lshl_b32 s74, s2, 12
s_lshl_b32 s61, s4, 5
s_add_u32 s74, s74, s61
s_add_u32 s74, s74, {PART}
v_lshrrev_b32 v8, 1, v0
v_lshlrev_b32 v7, 7, v8
v_and_b32 v8, 1, v0
v_lshl_add_u32 v7, v8, 4, v7
v_mov_b32 v26, 0xff
s_lshr_b32 s75, s8, 2
s_lshl_b32 s75, s75, 1
s_lshr_b32 s61, s4, 1
s_add_u32 s75, s75, s61
s_mul_i32 s75, s75, 1152
s_lshl_b32 s61, s9, 7
s_add_u32 s75, s75, s61
s_and_b32 s61, s8, 3
s_lshl_b32 s61, s61, 5
s_add_u32 s75, s75, s61
s_lshl_b32 s61, s64, 4
s_add_u32 s75, s75, s61
v_and_b32 v9, 1, v10
v_lshlrev_b32 v9, 1, v9
v_lshl_add_u32 v13, v8, 3, v9
v_bfe_u32 v9, v0, 3, 1
v_lshl_add_u32 v13, v9, 2, v13
buffer_load_ushort v50, v13, s[40:43], s75 offen
s_lshr_b32 s61, s9, 1
s_and_b32 s60, s9, 1
s_lshl_b32 s60, s60, 3
s_add_u32 s61, s61, s60
s_lshl_b32 s60, s4, 2
s_sub_u32 s61, s61, s60
v_cmp_ne_u32 s[72:73], s61, v10""")
    srd(48, 34, 9216)
    control(CEND)
    e("s_waitcnt vmcnt(0)\nv_lshlrev_b32 v50, 16, v50\ns_mov_b64 exec, s[72:73]\ns_barrier")
    stamp(5)

    def wofrags(back):
        e("s_mov_b64 exec, -1\ns_barrier")
        stamp(4)
        for ks in range(8):
            trread(OF + 4 * ks, 4, ks * 1024)
        if back:
            e(f"s_mov_b64 exec, {back}")

    oloads = """buffer_load_dwordx4 v[28:31], v5, s[56:59], s62 offen sc1
buffer_load_dwordx4 v[32:35], v5, s[56:59], s62 offen offset:256 sc1
buffer_load_dwordx2 v[36:37], v6, s[56:59], s62 offen offset:512 sc1"""
    owrite = "ds_write_b128 v48, v[28:31]\nds_write_b128 v48, v[32:35] offset:256\nds_write_b64 v49, v[36:37]"
    ocmp = sentcmp(range(28, 38), 38)
    e(oloads + "\ns_waitcnt vmcnt(0)\n" + ocmp + "\ns_cbranch_vccnz L_og1")
    e(owrite)
    wofrags(None)
    e("s_branch L_og2\nL_og1:\ns_mov_b64 exec, vcc")
    poll(oloads, ocmp, 0, first=lambda: wofrags("vcc"), restore="s[72:73]")
    e(owrite + "\ns_mov_b64 exec, -1\nL_og2:")
    stamp(6)
    e("s_waitcnt lgkmcnt(0)\ns_barrier\nds_read_b64 v[36:37], v47")
    order = [0, 4, 1, 5, 2, 6, 3, 7]
    for ks in order:
        e(f"ds_read_b128 v[{WF+4*ks}:{WF+4*ks+3}], v46 offset:{64*ks}")
    e("""s_waitcnt lgkmcnt(8)
v_sub_f32_dpp v38, v36, v36 row_ror:8 row_mask:0xf bank_mask:0xf
v_sub_f32_dpp v39, v37, v37 row_ror:8 row_mask:0xf bank_mask:0xf""")
    fill = ["v_exp_f32 v38, v38", "v_exp_f32 v39, v39", "v_add_f32 v38, 1.0, v38", "v_add_f32 v39, 1.0, v39", "v_rcp_f32 v38, v38", "v_rcp_f32 v39, v39"]
    for i, ks in enumerate(order):
        e(f"s_waitcnt lgkmcnt({7 - i})")
        mfma(AC + 4 * (ks // 4), OF + 4 * ks, WF + 4 * ks, ks % 4 == 0)
        if i < len(fill):
            e(fill[i])
    for r in range(4):
        e(f"v_mul_f32 v{AC+r}, v{AC+r}, v38")
    for r in range(4):
        e(f"v_fmac_f32 v{AC+r}, v{AC+4+r}, v39")
    for r in range(4):
        e(f"v_add_f32_dpp v{AC+r}, v{AC+r}, v{AC+r} row_ror:8 row_mask:0xf bank_mask:0xf")
    publish(1, AC, (65,))
    stamp(3)
    e("; final sum of 8 outputs: lanes 0-31 hold 16 attention partials, lanes 32-63 hold 16 FFN partials\ns_waitcnt vmcnt(0)")
    chk = "\n".join(f"v_xor_b32 v{16+i}, s6, v{16+i}" for i in range(4)) + "\nv_or3_b32 v24, v16, v17, v18\nv_bitop3_b32 v24, v24, v26, v19 bitop3:0xc8\nv_cmp_ne_u32 vcc, 0, v24"
    poll("buffer_load_dwordx4 v[16:19], v7, s[56:59], s74 offen sc1", chk, 0, quad=True)
    e("""v_permlane16_swap_b32 v16, v17
v_permlane16_swap_b32 v18, v19
v_add_f32 v17, v16, v17
v_add_f32 v18, v18, v19
v_add_f32_dpp v16, v17, v17 row_ror:8 row_mask:0xf bank_mask:0x3
v_add_f32_dpp v16, v18, v18 row_ror:8 row_mask:0xf bank_mask:0xc
v_add_f32_dpp v16, v16, v16 row_shl:4 row_mask:0xf bank_mask:0x5
v_add_f32_dpp v16, v16, v16 quad_perm:[2,3,0,1] row_mask:0xf bank_mask:0xf""")
    rnd(16, 16)
    e("v_add_f32 v17, v16, v50")
    rnd(17, 17)
    e("""v_permlane32_swap_b32 v16, v18
v_add_f32 v17, v17, v18
v_cvt_pk_bf16_f32 v17, v17, v17
s_mov_b32 exec_lo, 0x03030303
s_mov_b32 exec_hi, 0
buffer_store_short v17, v13, s[48:51], s75 offen
s_mov_b64 exec, 1
s_add_u32 s60, s2, s4
s_cmp_lg_u32 s60, 0
s_cbranch_scc1 L_o3
v_mov_b32 v19, s14
buffer_store_dword v19, v7, s[56:59], 0 offen
L_o3:""")
    stamp(7)
    e("L_fin:")
    if diag:
        e("s_mov_b64 exec, -1\ns_cmp_lt_u32 s3, 4\ns_cbranch_scc1 L_dg\ns_sub_u32 s60, s2, 144\ns_cmp_lt_u32 s60, 64\ns_cbranch_scc1 L_end\nL_dg:")
        e("s_waitcnt vmcnt(0)\ns_memrealtime s[76:77]\ns_waitcnt lgkmcnt(0)\ns_getreg_b32 s77, hwreg(HW_REG_HW_ID)")
        for i in range(8):
            e(f"v_mov_b32 v{16+i}, s{80+2*i}")
        e(f"v_mov_b32 v24, s76\nv_mov_b32 v25, s77\nv_mov_b32 v1, 0\ns_lshl_b32 s60, s2, 3\ns_add_u32 s60, s60, s3\ns_lshl_b32 s60, s60, 6\ns_add_u32 s60, s60, {STAMP}")
        e("s_mov_b64 exec, 1\nbuffer_store_dwordx4 v[16:19], v1, s[56:59], s60 offen\nbuffer_store_dwordx4 v[20:23], v1, s[56:59], s60 offen offset:16\nbuffer_store_dwordx2 v[24:25], v1, s[56:59], s60 offen offset:32")
    e("L_end:\ns_endpgm")
    e(f""".section .rodata,"a"
.p2align 6
.amdhsa_kernel {KN}
.amdhsa_next_free_vgpr 256
.amdhsa_next_free_sgpr 102
.amdhsa_accum_offset 256
.amdhsa_group_segment_fixed_size 0
.amdhsa_kernarg_size 96
.amdhsa_user_sgpr_count 2
.amdhsa_user_sgpr_kernarg_segment_ptr 1
.amdhsa_system_sgpr_workgroup_id_x 1
.amdhsa_float_denorm_mode_32 3
.end_amdhsa_kernel""")
    return top + e.text()


def summary(T, cfg):
    import numpy as np
    S = T[:, :4]; A = T[:144, 4:]; D = T[208:, 4:]
    wd = S[:, :, 4].max(1); m = wd.max()
    return dict(startmax=S[:, :, 0].max(), B1med=float(np.median(S[:, :, 1])), B1max=S[:, :, 1].max(), B2max=S[:, :, 2].max(), qwait=(S[:, :, 7] - S[:, :, 6]).max(),
                xcdspread=max(wd[i::8].mean() for i in range(8)) - wd.mean(), meandone=wd.mean(), maxdone=m, opub=S[:, 0, 3].max() - m, t2=S[:, :, 5].max() - m,
                dpub=D[:, :, 7].max() - m, ogath=A[:, :, 6].max() - m, ppub=A[:, :, 3].max() - m, out=A[:, :, 7].max() - m, end=A[:, :, 8].max())


if __name__ == "__main__":
    kw = eval("dict(" + (sys.argv[2] if len(sys.argv) > 2 else "") + ")")
    open(sys.argv[1], "w").write(gen(**kw))
```

```python
import sys, struct
sys.path.insert(0, "dev")
from asmlib import Asm

KN = "parallel_sum__sliding_block_cached__geglu_ffn__decode_kernel"
REF = "parallel_sum__sliding_block_cached__geglu_ffn__decode.s.ref"

R = 6
RING = R * 4096
XS = 4 * RING
QS = XS + 9216
HS = QS + 512
ML = HS + 4608
CNT = ML + 64
QF, C1, C2, PRG, DEC, C3 = CNT + 4, CNT + 8, CNT + 12, CNT + 16, CNT + 32, CNT + 36
SIDE = CNT + 40
LB = CNT + 64
RED = LB + 128
GB = RED + 4096
GST = 528
LDS_SZ = GB + 16 * GST
XID, PLN, PBUF, OBUF, PART = 0x400, 0x800, 0x1000, 0x70000, 0xA0000
PAR, PRB = 0x200, 0x6C000
OSL = 640
WS_SZ = PART + 144 * 4096
STAMP = 0x200000
LIMIT = 2000000
LOG2E = 1.4426950408889634

DOC = """;
;
;
"""


def f32(x):
    return "0x%08x" % struct.unpack("<I", struct.pack("<f", x))[0]


def gen(dw=6, dm=5, d2=6, boost=3, thr=16, T1=48, diag=0, wmap=0, T2=96, trials=5):
    e = Asm()
    uid = [0]
    wsz = WS_SZ if not diag else 0x400000

    def lab(p):
        uid[0] += 1
        return f"L_{p}{uid[0]}"

    def coff(c):
        return ((c & 1) << 14) | ((c >> 1) << 16) | ((c & 1) << 13) | ((c >> 1 & 1) << 15)

    def stamp(i):
        if diag:
            e(f"s_memrealtime s[{80 + 2 * i}:{81 + 2 * i}]")

    def srd(b, lo, size):
        e(f"s_mov_b32 s{b}, s{lo}\ns_mov_b32 s{b+1}, s{lo+1}\ns_mov_b32 s{b+2}, {size}\ns_mov_b32 s{b+3}, 0x20000")

    def rnd(dst, src):
        e(f"v_cvt_pk_bf16_f32 v{dst}, v{src}, v{src}\nv_lshlrev_b32 v{dst}, 16, v{dst}")

    def poll(loads, cmp, sleep, restore="-1", quad=False, first=None):
        L = lab("poll")
        e(f"s_mov_b32 s70, {LIMIT}")
        if first:
            e(loads)
            first()
            e(f"s_branch {L}_w")
        e(f"{L}:")
        e(loads)
        e(f"{L}_w:\ns_waitcnt vmcnt(0)")
        e(cmp)
        e(f"s_cbranch_vccz {L}_d" if quad else f"s_and_b64 exec, exec, vcc\ns_cbranch_scc0 {L}_d")
        e(f"s_sub_u32 s70, s70, 1\ns_cbranch_scc1 {L}_d")
        if quad:
            e("s_wqm_b64 exec, vcc")
        if sleep:
            e(f"s_sleep {sleep}")
        e(f"s_branch {L}\n{L}_d:\ns_mov_b64 exec, {restore}")

    def dual(stores, mode):
        L = lab("st")
        e(f"s_cmp_eq_u32 s{mode}, 2\ns_cbranch_scc0 {L}")
        e(stores.replace("POL", ""))
        e(f"s_branch {L}_d\n{L}:")
        e(stores.replace("POL", "sc1"))
        e(f"{L}_d:")

    def xidcheck(v):
        e(f"v_cmp_ne_u32 vcc, s78, v{v}\ns_cmp_eq_u32 vcc_lo, 0\ns_cselect_b32 s7, 2, 1")

    def ldsarrive(addr, va):
        e(f"s_mov_b64 exec, 1\nv_mov_b32 v{va}, {addr}\nv_mov_b32 v{va+1}, 1\nds_add_u32 v{va}, v{va+1}")

    def ldsspin(va, count, st=60, sleep=2, four=False):
        L = lab("spin")
        e(f"s_mov_b32 s70, {LIMIT*8}\n{L}:")
        if four:
            e(f"ds_read_b128 v[{va+4}:{va+7}], v{va}\ns_waitcnt lgkmcnt(0)\nv_add3_u32 v{va+1}, v{va+4}, v{va+5}, v{va+6}\nv_add_u32 v{va+1}, v{va+1}, v{va+7}")
        else:
            e(f"ds_read_b32 v{va+1}, v{va}\ns_waitcnt lgkmcnt(0)")
        e(f"""v_readfirstlane_b32 s{st}, v{va+1}
s_cmp_ge_u32 s{st}, {count}
s_cbranch_scc1 {L}_d
s_sub_u32 s70, s70, 1
s_cbranch_scc1 {L}_d
s_sleep {sleep}
s_branch {L}
{L}_d:
s_mov_b64 exec, -1""")

    CV = 232

    def control(until):
        L = lab("ctl")
        e(f"""; wave 2: post the stream position, count group members that are ahead, select the queue depth
s_cmp_lg_u32 s4, 2
s_cbranch_scc1 {L}_d
s_mov_b32 s70, {LIMIT}
{L}:
ds_read_b128 v[{CV+4}:{CV+7}], v{CV}
s_waitcnt lgkmcnt(0)
v_add3_u32 v{CV+1}, v{CV+4}, v{CV+5}, v{CV+6}
v_add_u32 v{CV+1}, v{CV+1}, v{CV+7}
v_readfirstlane_b32 s66, v{CV+1}
v_lshl_or_b32 v{CV+1}, v{CV+1}, 16, s15
s_mov_b64 exec, 1
buffer_store_dword v{CV+1}, v{CV+3}, s[56:59], s76 offen
s_mov_b64 exec, -1
s_cmp_ge_u32 s66, {until}
s_cbranch_scc1 {L}_d
buffer_load_dword v{CV+4}, v1, s[56:59], s76 offen sc1
v_add_u32 v{CV+1}, 0x10000, v{CV+1}
s_waitcnt vmcnt(0)
v_sub_u32 v{CV+4}, v{CV+4}, v{CV+1}
v_and_b32 v{CV+4}, 0x8000ffff, v{CV+4}
v_cmp_eq_u32 vcc, 0, v{CV+4}
s_bcnt1_i32_b32 s66, vcc_lo
s_cmp_ge_u32 s66, {thr}
s_cselect_b32 s66, 1, 0
v_mov_b32 v{CV+4}, s66
ds_write_b32 v{CV}, v{CV+4} offset:{DEC - PRG}
s_sub_u32 s70, s70, 1
s_cbranch_scc0 {L}
{L}_d:""")

    def getside():
        L = lab("side")
        e(f"; wave 3 fetches the announced bit for the partial output layout\ns_cmp_lg_u32 s4, 3\ns_cbranch_scc1 {L}")
        ldsspin(CV, T2, st=5, sleep=16, four=True)
        e(f"v_mov_b32 v{CV+2}, 0")
        poll(f"buffer_load_dwordx2 v[{CV+4}:{CV+5}], v{CV+2}, s[56:59], 0 offen offset:{PAR} sc1",
             f"v_xor_b32 v{CV+6}, s15, v{CV+4}\nv_and_b32 v{CV+6}, 0xfffeffff, v{CV+6}\nv_xor_b32 v{CV+5}, s14, v{CV+5}\nv_or_b32 v{CV+6}, v{CV+6}, v{CV+5}\nv_cmp_ne_u32 vcc, 0, v{CV+6}", 16)
        e(f"v_bfe_u32 v{CV+4}, v{CV+4}, 16, 1\nv_lshlrev_b32 v{CV+4}, 13, v{CV+4}\nds_write_b32 v{CV}, v{CV+4} offset:{SIDE - PRG}\ns_waitcnt lgkmcnt(0)\n{L}:")

    def sentcmp(regs, tmp):
        r = list(regs)
        out = []
        cur = r.pop(0)
        while r:
            out.append(f"v_max3_u32 v{tmp}, v{cur}, v{r[0]}, v{r[1]}" if len(r) > 1 else f"v_max_u32 v{tmp}, v{cur}, v{r[0]}")
            r = r[2:]
            cur = tmp
        out.append(f"v_cmp_eq_u32 vcc, -1, v{cur}")
        return "\n".join(out)

    def tagcmp(regs, tmp):
        out = [f"v_xor_b32 v{tmp}, s15, v{regs[0]}"]
        for r in regs[1:]:
            out.append(f"v_bitop3_b32 v{tmp}, v{r}, v{tmp}, s15 bitop3:0xde")
        out.append(f"v_and_b32 v{tmp}, 0xffff, v{tmp}\nv_cmp_ne_u32 vcc, 0, v{tmp}")
        return "\n".join(out)

    def allred_g(v, t, op):
        e(f"v_mov_b32 v{t}, v{v}\nv_permlane16_swap_b32 v{v}, v{t}\n{op} v{v}, v{v}, v{t}")
        e(f"v_mov_b32 v{t}, v{v}\nv_permlane32_swap_b32 v{v}, v{t}\n{op} v{v}, v{v}, v{t}")

    def mfma(D, A, B, first):
        e(f"v_mfma_f32_16x16x32_bf16 v[{D}:{D+3}], v[{A}:{A+3}], v[{B}:{B+3}], {'0' if first else f'v[{D}:{D+3}]'}")

    def trread(dst, addr, off):
        for hf in range(2):
            e(f"ds_read_b64_tr_b16 v[{dst+2*hf}:{dst+2*hf+1}], v{addr} offset:{off + hf * 512}")

    hdr = [l.rstrip("\n") for l in open(REF) if l.startswith(";") and "@launch" not in l and "Override" not in l and "grid=ceil" not in l]
    top = "\n".join(hdr) + f"\n; @launch grid=(256,1,1) block=(512,1,1) lds={LDS_SZ}\n" + DOC
    e(f""".amdgcn_target "amdgcn-amd-amdhsa--gfx950"
.text
.globl {KN}
.p2align 8
.type {KN},@function
{KN}:
s_cmp_ge_u32 s2, 256
s_cbranch_scc1 L_end
s_load_dwordx16 s[16:31], s[0:1], 0
s_load_dwordx8 s[32:39], s[0:1], 64""")
    if wmap:
        e("s_lshr_b32 s5, s2, 4\ns_add_u32 s6, s2, s5\ns_and_b32 s6, s6, 15\ns_andn2_b32 s2, s2, 15\ns_or_b32 s2, s2, s6")
    stamp(0)
    e("""v_lshrrev_b32 v1, 6, v0
v_and_b32 v0, 63, v0
v_readfirstlane_b32 s3, v1
s_xor_b32 s3, s3, 4
s_and_b32 s8, s2, 15
s_lshr_b32 s9, s2, 4
s_sub_u32 s12, s9, 13
s_lshl_b32 s10, s8, 2
s_add_u32 s10, s10, s9
s_sub_u32 s10, s10, 9
s_and_b32 s5, s2, 7
s_bfe_u32 s6, s2, 0x10003
s_lshl_b32 s11, s5, 1
s_add_u32 s11, s11, s6
s_mul_i32 s79, s5, 9
s_add_u32 s79, s79, s9
s_cmp_ge_u32 s3, 4
s_cbranch_scc1 L_aux""")

    VO, KD, KR, MK, VW1, VW2, Q, KF, AB, ACC, T, SP = 1, 2, 6, 10, 14, 15, 16, 32, 48, 64, 68, 84
    MRUN, NEGM, LS, VT2, VST, VPR, VDE, VDA, VV = 120, 121, 122, 123, 124, 125, 126, 127, 128
    e(f"""; ===== stream waves (s3 = 0..3) =====
v_lshrrev_b32 v1, 3, v0
v_and_b32 v2, 7, v0
v_and_b32 v3, 2, v1
s_and_b32 s5, s3, 1
s_lshl_b32 s5, s5, 2
v_or_b32 v3, s5, v3
v_xor_b32 v2, v2, v3
v_lshlrev_b32 v2, 4, v2
s_lshl_b32 m0, s3, 10
s_mov_b32 s43, 0x20000
s_lshl_b32 s60, s79, 7
s_lshl_b32 s5, s10, 7
s_movk_i32 s7, 9216
s_mov_b32 s42, {576*9216}
s_cmp_ge_u32 s2, 144
s_cselect_b32 s60, s5, s60
s_cselect_b32 s7, 8192, s7
s_cselect_b32 s42, {576*8192}, s42
s_mul_i32 s5, s11, {288*1152}
s_mul_i32 s6, s12, 384
s_add_u32 s5, s5, s6
s_lshl_b32 s62, s7, 5
s_movk_i32 s64, 4096
s_cmp_ge_u32 s2, 208
s_cselect_b32 s60, s5, s60
s_cselect_b32 s7, 1152, s7
s_cselect_b32 s42, {4608*1152}, s42
s_cselect_b32 s63, {36864-256}, s62
s_cselect_b32 s62, 128, s62
s_cselect_b32 s65, {4096-49152}, s64
s_cselect_b32 s64, 24576, s64
s_mul_i32 s5, s3, s7
s_lshl_b32 s5, s5, 3
s_add_u32 s72, s60, s5
v_mad_u32_u24 v{VW1}, v1, s7, v2
s_bitcmp1_b32 s2, 3
s_waitcnt lgkmcnt(0)
s_cselect_b64 s[40:41], s[30:31], s[28:29]
s_cmp_ge_u32 s2, 144
s_cselect_b64 s[40:41], s[22:23], s[40:41]
s_cmp_ge_u32 s2, 208
s_cselect_b64 s[40:41], s[32:33], s[40:41]""")

    def vsetup():
        e("; s60 = this wave's base inside the K / V window")
        srd(52, 20, 0x10000000)
        e(f"""s_lshr_b32 s60, s9, 1
s_lshl_b32 s60, s60, 4
s_add_u32 s60, s60, s8
s_lshl_b32 s60, s60, 21
s_and_b32 s61, s9, 1
s_lshl_b32 s61, s61, 15
s_add_u32 s60, s60, s61
s_lshl_b32 s61, s3, 12
s_add_u32 s60, s60, s61
s_add_u32 s60, s60, {6144*256}
v_mul_u32_u24 v{VT2}, 1152, v1
v_add_u32 v{VT2}, v{VT2}, v2
v_lshlrev_b32 v{VO}, 4, v0""")

    work = {}

    def at(slot, fn):
        work.setdefault(slot, []).append(fn)

    def setup():
        e("; late tile descriptor, K swizzle addresses, diagonal masks for the P operand")
        srd(48, 18, 0x10000000)
        srd(56, 38, wsz)
        e(f"""s_mul_i32 s67, s3, {RING}
s_mul_i32 s5, s8, {256*1152}
s_mul_i32 s6, s3, {8*1152}
s_add_u32 s5, s5, s6
s_lshl_b32 s6, s9, 7
s_add_u32 s5, s5, s6
s_mov_b32 s46, {4096*1152}
s_mov_b32 s47, 0x20000
s_cmp_ge_u32 s2, 208
s_cselect_b32 s72, s72, s5
s_cselect_b32 s73, s62, {32*1152}
s_cselect_b32 s74, s63, {32*1152}
s_cselect_b64 s[44:45], s[32:33], s[24:25]
s_cselect_b32 s46, s42, s46""")
        e(f"v_lshrrev_b32 v{T}, 4, v0\nv_and_b32 v{T+1}, 15, v0\nv_lshlrev_b32 v{T+2}, 2, v{T}\nv_xor_b32 v{T+2}, v{T+2}, v{T+1}")
        e(f"v_lshlrev_b32 v{T+2}, 4, v{T+2}\nv_lshl_add_u32 v{KD}, v{T}, 8, v{T+2}")
        for r in range(1, 4):
            e(f"v_xor_b32 v{KD+r}, {16*r}, v{KD}")
        e(f"v_and_b32 v{T+2}, 3, v0\nv_lshlrev_b32 v{T+2}, 2, v{T+2}\nv_lshrrev_b32 v{T+3}, 2, v{T+1}\nv_or_b32 v{T+2}, v{T+2}, v{T+3}")
        e(f"v_lshl_add_u32 v{T+2}, v{T+2}, 8, s67\nv_xor_b32 v{T+3}, v{T}, v{T+1}\nv_lshl_add_u32 v{KR}, v{T+3}, 4, v{T+2}")
        for t in range(1, 4):
            e(f"v_xor_b32 v{KR+t}, {64*t}, v{KR}")
        e(f"v_and_b32 v{T+2}, 1, v0\nv_lshlrev_b32 v{T+2}, 4, v{T+2}\nv_mov_b32 v{T+3}, 0xffff\nv_lshlrev_b32 v{T+3}, v{T+2}, v{T+3}\nv_bfe_u32 v{T+2}, v0, 1, 2")
        for r in range(4):
            e(f"v_cmp_eq_u32 vcc, {r}, v{T+2}\nv_cndmask_b32 v{MK+r}, 0, v{T+3}, vcc")
        e(f"v_lshrrev_b32 v{T+2}, 3, v{T+1}\nv_lshlrev_b32 v{T+2}, 8, v{T+2}\nv_lshl_add_u32 v{T+2}, v{T}, 4, v{T+2}\nv_add_u32 v{VW1}, {QS}, v{T+2}")
        e(f"s_mov_b32 s68, 0xffff0000\ns_mov_b32 s69, {f32(128 ** -0.5)}\ns_mov_b32 s71, {f32(LOG2E)}")
        e(f"v_mov_b32 v{LS}, 0\nv_mov_b32 v{MRUN}, 0xff800000")
        for r in range(4):
            e(f"v_mov_b32 v{ACC+r}, 0")

    def sreg(c):
        return SP + 4 * (c if c < 8 else (8 if c == 8 else c - 9))

    def kread(c):
        def f():
            e(f"; K chunk {c}: fragments")
            for t in range(4):
                e(f"ds_read_b128 v[{KF+4*t}:{KF+4*t+3}], v{KR+t} offset:{(c % R) * 4096}")
        return f

    def kmma(c):
        def f():
            e(f"; K chunk {c}: scores\ns_waitcnt lgkmcnt(0)")
            for t in range(4):
                mfma(sreg(c), KF + 4 * t, Q + 4 * t, t == 0)
        return f

    def kround(c):
        def f():
            S = sreg(c)
            for k in range(2):
                e(f"v_cvt_pk_bf16_f32 v{T}, v{S}, v{S+1}\nv_cvt_pk_bf16_f32 v{T+1}, v{S+2}, v{S+3}")
                e(f"v_lshlrev_b32 v{S}, 16, v{T}\nv_and_b32 v{S+1}, s68, v{T}\nv_lshlrev_b32 v{S+2}, 16, v{T+1}\nv_and_b32 v{S+3}, s68, v{T+1}")
                if k == 0:
                    for r in range(4):
                        e(f"v_mul_f32 v{S+r}, s69, v{S+r}")
            e(f"v_max3_f32 v{MRUN}, v{MRUN}, v{S}, v{S+1}\nv_max3_f32 v{MRUN}, v{MRUN}, v{S+2}, v{S+3}")
        return f

    def maxA():
        e("; max over the first 128 keys of this wave")
        allred_g(MRUN, T, "v_max_f32")
        e(f"v_mul_f32 v{NEGM}, s71, v{MRUN}\nv_sub_f32 v{NEGM}, 0, v{NEGM}")

    def maxB():
        e("; max over all 256 keys, rescale of the running sum and accumulator")
        allred_g(MRUN, T, "v_max_f32")
        e(f"v_mul_f32 v{T+1}, s71, v{MRUN}\nv_add_f32 v{T+2}, v{NEGM}, v{T+1}\nv_sub_f32 v{NEGM}, 0, v{T+1}\nv_exp_f32 v{T+2}, -v{T+2}")
        e(f"v_mul_f32 v{LS}, v{LS}, v{T+2}\nv_mov_b32 v{T+3}, v{T+2}")
        e(f"v_mov_b32_dpp v{T+3}, v{T+2} row_ror:8 row_mask:0x3 bank_mask:0xc\nv_mov_b32_dpp v{T+3}, v{T+2} row_ror:8 row_mask:0xc bank_mask:0x3")
        for r in range(4):
            e(f"v_mul_f32 v{ACC+r}, v{ACC+r}, v{T+3}")

    def pexp(c):
        def f():
            S = sreg(c)
            for r in range(4):
                e(f"v_fma_f32 v{S+r}, v{S+r}, s71, v{NEGM}")
            for r in range(4):
                e(f"v_exp_f32 v{S+r}, v{S+r}")
            e(f"v_add_f32 v{T}, v{S}, v{S+1}\nv_add_f32 v{T+1}, v{S+2}, v{S+3}\nv_add_f32 v{LS}, v{LS}, v{T}\nv_add_f32 v{LS}, v{LS}, v{T+1}")
            for r in range(4):
                e(f"v_cvt_pk_bf16_f32 v{S+r}, v{S+r}, v{S+r}")
        return f

    def aprep(c, r):
        def f():
            for k in range(4):
                e(f"v_and_b32 v{AB+4*r+k}, v{sreg(c)+r}, v{MK+k}")
        return f

    def pv(c, r):
        def f():
            mfma(ACC, AB + 4 * r, VV + 16 * (c % 8) + 4 * r, False)
        return f

    def mlwrite():
        e("; publish this wave's max and sum in LDS, prepare the combine addresses")
        allred_g(LS, T, "v_add_f32")
        e(f"v_sub_f32 v{T+2}, 0, v{NEGM}\nv_mov_b32 v{T+3}, v{LS}")
        e(f"v_bfe_u32 v{T}, v0, 3, 1\nv_lshlrev_b32 v{T}, 5, v{T}\ns_lshl_b32 s63, s3, 3\ns_add_u32 s63, s63, {ML}\nv_add_u32 v{T}, s63, v{T}")
        e(f"ds_write_b64 v{T}, v[{T+2}:{T+3}]")
        ldsarrive(C3, T)
        e(f"""s_mov_b64 exec, -1
s_lshl_b32 s63, s3, 10
s_add_u32 s63, s63, {RED}
v_add_u32 v{VW2}, s63, v{VO}
v_lshrrev_b32 v2, 5, v0
v_lshlrev_b32 v3, 5, v2
v_add_u32 v3, {ML}, v3
s_lshl_b32 s63, s3, 3
v_add_u32 v9, s63, v3
v_lshlrev_b32 v4, 3, v0
v_lshlrev_b32 v5, 2, v2
v_and_b32 v6, 1, v0
v_lshl_add_u32 v6, v2, 1, v6
v_bfe_u32 v7, v0, 1, 4
v_lshl_add_u32 v6, v6, 4, v7
v_lshlrev_b32 v6, 4, v6
v_add_u32 v6, {RED}, v6
s_lshr_b32 s62, s9, 1
s_and_b32 s63, s9, 1
s_lshl_b32 s63, s63, 3
s_add_u32 s62, s62, s63
s_mul_i32 s63, s62, {GST}
s_add_u32 s63, s63, {GB}
v_add_u32 v7, s63, v4
s_lshl_b32 s63, s62, 3
s_add_u32 s63, s63, {LB}
v_add_u32 v8, s63, v5
s_lshl_b32 s63, s8, 4
s_add_u32 s63, s63, s62
s_mul_i32 s63, s63, {OSL}
s_add_u32 s63, s63, {OBUF}""")

    def factors():
        e(f"""; workgroup max and sum: v9 = this wave's normalizing factor, v27 = log2-sum-exp
v_mov_b32 v{T}, {C3}
s_mov_b32 s70, {LIMIT*8}
L_fw:
ds_read_b32 v{T+1}, v{T}
ds_read_b128 v[16:19], v3
ds_read_b128 v[20:23], v3 offset:16
ds_read_b32 v9, v9
s_waitcnt lgkmcnt(0)
v_readfirstlane_b32 s5, v{T+1}
s_cmp_ge_u32 s5, 4
s_cbranch_scc1 L_fd
s_sub_u32 s70, s70, 1
s_cbranch_scc1 L_fd
s_lshl_b32 s5, s3, 3
v_add_u32 v9, s5, v3
s_branch L_fw
L_fd:
v_max3_f32 v24, v16, v18, v20
v_max_f32 v24, v24, v22
v_sub_f32 v16, v16, v24
v_sub_f32 v18, v18, v24
v_sub_f32 v20, v20, v24
v_sub_f32 v22, v22, v24
v_sub_f32 v9, v9, v24
v_exp_f32 v16, v16
v_exp_f32 v18, v18
v_exp_f32 v20, v20
v_exp_f32 v22, v22
v_exp_f32 v9, v9
v_mul_f32 v25, v16, v17
v_fmac_f32 v25, v18, v19
v_fmac_f32 v25, v20, v21
v_fmac_f32 v25, v22, v23
v_rcp_f32 v26, v25
v_log_f32 v27, v25
v_mul_f32 v9, v9, v26
v_add_f32 v27, v27, v24
v_min_u32 v27, -2, v27""")

    def qread():
        stamp(6)
        e(f"; q fragments, s13 = store mode\nv_mov_b32 v{T}, {QF}\ns_mov_b32 s70, {LIMIT*8}\nL_qw:\nds_read_b32 v{T+1}, v{T}")
        for t in range(4):
            e(f"ds_read_b128 v[{Q+4*t}:{Q+4*t+3}], v{VW1} offset:{64*t}")
        e(f"""s_waitcnt lgkmcnt(0)
v_readfirstlane_b32 s13, v{T+1}
s_cmp_lg_u32 s13, 0
s_cbranch_scc1 L_qd
s_sub_u32 s70, s70, 1
s_cbranch_scc1 L_qd
s_sleep 2
s_branch L_qw
L_qd:""")
        stamp(7)

    def dep(n):
        return dm if n < 96 else d2

    landed = {}
    for n in range(128 + 64):
        for m in range(min(127, n - dep(n) - (boost if n < 128 else 0)) + 1):
            landed.setdefault(m, n)
    qslot = 32 + 4 * R - 3
    at(qslot, qread)
    kslot = {}
    for c in range(16):
        n0 = kslot[c] = max(landed[35 + 4 * c], qslot + 2 * c)
        assert c + R >= 16 or n0 + 1 < 32 + 4 * (c + R)
        at(n0, kread(c))
        at(n0 + 1, kmma(c))
        at(n0 + 2, kround(c))
    sA = kslot[7] + 3
    at(sA, maxA)
    for j in range(8):
        s0 = sA + 1 + 3 * j
        at(s0, pexp(j))
        for h in range(2):
            for fn in (aprep(j, 2 * h), aprep(j, 2 * h + 1), pv(j, 2 * h), pv(j, 2 * h + 1)):
                at(s0 + 1 + h, fn)
        assert s0 + 2 < 96 + 4 * j
        assert j == 7 or s0 + 2 < kslot[9 + j] + 1
    sB = kslot[15] + 3
    assert sA + 24 < sB and sB + 9 < 126
    at(sB, maxB)
    for j in range(8):
        at(sB + 1 + j, pexp(8 + j))
    at(sB + 9, mlwrite)
    at(127, factors)
    pre = {}
    last = 0
    for n in range(96, 128):
        j, r = (n - 96) // 4, n % 4
        s = max(landed[n], sB + 2 + j, last)
        while len(pre.get(s, [])) >= 4:
            s += 1
        last = s
        pre.setdefault(s, []).append((8 + j, r))
    nslots = max(max(work), last) + 1

    def t2load(j):
        e(f"buffer_load_dwordx4 v{VT2}, s[44:47], s72 offen nt lds")
        if j < 8:
            e(f"s_add_u32 s72, s72, s{74 if j % 3 == 2 else 73}\ns_add_u32 m0, m0, 1024")

    def cwait(depth):
        L = lab("w")
        e(f"s_waitcnt vmcnt({depth+boost-1})\ns_cbranch_vccnz {L}\ns_waitcnt vmcnt({depth-1})\n{L}:")

    def post(stage):
        e(f"v_mov_b32 v{VST}, {stage}\nds_write_b32 v{VPR}, v{VST}\nds_read_b32 v{VDE}, v{VDA}")

    def decide():
        e(f"s_waitcnt lgkmcnt(0)\nv_cmp_ne_u32 vcc, 0, v{VDE}")

    def vload(i, wait):
        if i % 4 == 0:
            e(f"s_xor_b32 s61, s60, {coff(i // 4)}")
        wait()
        V = VV + 4 * (i % 32)
        e(f"buffer_load_dwordx4 v[{V}:{V+3}], v{VO}, s[52:55], s61 offen offset:{(i % 4) * 1024} nt")

    def kload(i, depth):
        if i % 4 == 0:
            e(f"s_xor_b32 s62, s60, {coff(i // 4)}\ns_add_u32 m0, s67, {((i // 4) % R) * 4096}")
        cwait(depth)
        e(f"buffer_load_dwordx4 v{KD + i % 4}, s[48:51], s62 offen offset:{(i % 4) * 1024} nt lds")

    for p in range(18 + dw):
        if p == dw:
            e(f"s_lshl_b32 s5, s3, 2\ns_add_u32 s5, s5, {PRG}\nv_mov_b32 v{VPR}, s5\nv_mov_b32 v{VDA}, {DEC}\ns_barrier")
        if p > dw and p % 4 == 2:
            post(p // 4)
        if p == 18:
            vsetup()
        if p == 17 + dw:
            e(f"; this wave's part of the weight tile has landed\ns_waitcnt vmcnt({dw-1})")
            stamp(1)
            ldsarrive(C1, T)
            e("s_mov_b64 exec, -1")
        if p >= 18:
            vload(p - 18, lambda: e(f"s_waitcnt vmcnt({dw-1})"))
        else:
            if p >= dw:
                e(f"s_waitcnt vmcnt({dw-1})")
            e(f"buffer_load_dwordx4 v{VW1}, s[40:43], s72 offen nt lds")
            e(f"s_add_u32 s72, s72, s{62 if p % 3 < 2 else 63}\ns_add_u32 m0, m0, s{64 if p % 3 < 2 else 65}")
    e(f"""; tiles whose lines all have address bits [9:7] = 3 arrive late: start those workgroups on the deep queue
s_add_u32 s66, s40, s72
s_bfe_u32 s66, s66, 0x30007
s_cmp_eq_u32 s66, 3
s_cselect_b32 s66, 1, 0
s_cmp_ge_u32 s2, 208
s_cselect_b32 s66, 0, s66
s_waitcnt lgkmcnt(0)
v_mov_b32 v{VDE}, s66
ds_write_b32 v{VDA}, v{VDE}""")
    setup()
    decide()

    t2n = [0]

    def slot(n, t2):
        todo = pre.get(n, [])
        for (c, r) in todo:
            aprep(c, r)()
        if n == 32:
            stamp(2)
            e(f"; the K rings reuse the weight tile's LDS once it has been read\nv_mov_b32 v{T}, {C2}")
            ldsspin(T, 4, st=5)
        if n < 32 or 96 <= n < 128:
            vload(n if n < 32 else n - 64, lambda: cwait(dep(n)))
        elif n < 96:
            kload(n - 32, dep(n))
        else:
            if n - d2 <= 127:
                e(f"s_waitcnt vmcnt({127 - (n - d2) + (t2n[0] if t2 else 0)})")
            left = nslots - 1 - n
            if t2 and left > 0:
                for _ in range(-(-(8 - t2n[0]) // left)):
                    t2load(t2n[0])
                    t2n[0] += 1
        for (c, r) in todo:
            pv(c, r)()
        if n < 128 and n % 4 == 1:
            decide()
        if n < 128 and n % 4 == 0:
            post((n + 18) // 4)
        for fn in work.get(n, []):
            fn()

    for n in range(dw, 128):
        slot(n, False)
    e("; drain V; the wo / w_down roles queue their late tile behind it\ns_mov_b32 m0, s67\ns_sub_u32 s5, s2, 144\ns_cmp_lt_u32 s5, 64\ns_cbranch_scc1 L_tq")
    for n in range(128, nslots):
        slot(n, True)
    assert t2n[0] == 8
    e("s_branch L_tj\nL_tq:")
    for n in range(128, nslots):
        slot(n, False)
    e("L_tj:")
    for r in range(4):
        e(f"v_mul_f32 v{ACC+r}, v{ACC+r}, v9")
    e(f"ds_write_b128 v{VW2}, v[{ACC}:{ACC+3}]")
    stamp(4)
    e("s_cmp_lt_u32 s2, 208\ns_cbranch_scc1 L_t9")
    t2load(8)
    e("L_t9:\ns_waitcnt lgkmcnt(0)\ns_barrier\ns_cmp_lg_u32 s3, 0\ns_cbranch_scc1 L_sd")
    for w in range(4):
        e(f"ds_read_b128 v[{28+4*w}:{31+4*w}], v6 offset:{1024*w}")
    for w in range(1, 4):
        e(f"s_waitcnt lgkmcnt({3 - w})")
        for r in range(4):
            e(f"v_add_f32 v{28+r}, v{28+r}, v{28+4*w+r}")
    e("v_cvt_pk_bf16_f32 v28, v28, v29\nv_cvt_pk_bf16_f32 v29, v30, v31\nv_min_u32 v28, -2, v28\nv_min_u32 v29, -2, v29")
    dual("""buffer_store_dwordx2 v[28:29], v4, s[56:59], s63 offen POL
s_mov_b32 exec_lo, 1
s_mov_b32 exec_hi, 1
buffer_store_dword v27, v5, s[56:59], s63 offen offset:512 POL""", 13)
    e("ds_write_b32 v8, v27\ns_mov_b64 exec, -1\nds_write_b64 v7, v[28:29]")
    stamp(3)
    e("L_sd:\ns_waitcnt vmcnt(0) lgkmcnt(0)")
    stamp(5)
    e("s_barrier\ns_barrier\ns_branch L_fin")

    XN, WF, OF, AC, G, U = 16, 52, 160, 192, 208, 220
    e(f"""; ===== projection and hand-off waves (s4 = 0..3) =====
L_aux:
s_sub_u32 s4, s3, 4
v_mul_u32_u24 v1, 36, v0
s_mul_i32 s5, s4, 2304
v_lshlrev_b32 v2, 4, v0
v_mov_b32 v8, {CNT}
v_mov_b32 v4, 0
v_mov_b32 v5, 0
v_mov_b32 v6, 0
v_mov_b32 v7, 0
ds_write_b128 v8, v[4:7]
ds_write_b128 v8, v[4:7] offset:16
ds_write_b128 v8, v[4:7] offset:32
s_movk_i32 s42, 9216
s_mov_b32 s43, 0x20000
s_waitcnt lgkmcnt(0)
s_load_dword s14, s[38:39], 0
s_mov_b64 s[40:41], s[16:17]""")
    for k in range(3):
        e(f"buffer_load_dwordx3 v[{16+4*k}:{18+4*k}], v1, s[40:43], s5 offen offset:{12*k}")
    e("s_barrier")
    srd(56, 38, wsz)
    e(f"""s_add_u32 s13, s79, 64
s_bitcmp1_b32 s2, 3
s_cselect_b32 s60, 72, 0
s_add_u32 s13, s13, s60
s_cmp_ge_u32 s2, 144
s_cselect_b32 s13, s10, s13
s_lshl_b32 s13, s13, 11
s_add_u32 s13, s13, {PBUF}
s_getreg_b32 s78, hwreg(HW_REG_XCC_ID, 0, 4)
s_lshl_b32 s78, s78, 16
s_and_b32 s77, s2, 7
s_lshl_b32 s77, s77, 7
s_add_u32 s77, s77, {XID}
s_mov_b32 s68, 0xffff0000
s_mov_b32 s69, {f32(1/576)}
s_add_u32 s5, s5, {XS}
v_add_u32 v1, s5, v1
v_lshrrev_b32 v10, 4, v0
v_and_b32 v11, 15, v0
v_bfe_u32 v8, v0, 2, 2
v_lshl_add_u32 v12, v10, 3, v8
v_lshlrev_b32 v12, 7, v12
v_and_b32 v9, 3, v0
v_lshl_add_u32 v12, v9, 3, v12
v_lshrrev_b32 v13, 1, v8
v_and_b32 v8, 1, v10
v_lshl_or_b32 v13, v8, 1, v13
v_lshl_add_u32 v12, v13, 5, v12
s_lshl_b32 s60, s4, 5
v_xor_b32 v3, s60, v12
v_add_u32 v4, 0x10000, v3
v_and_b32 v14, 7, v0
v_bfe_u32 v15, v0, 2, 3
v_lshl_add_u32 v15, v9, 4, v15
v_lshlrev_b32 v15, 2, v15
v_mul_u32_u24 v5, 1152, v14
v_lshrrev_b32 v8, 3, v11
v_mul_u32_u24 v8, 576, v8
v_lshl_add_u32 v8, v10, 4, v8
v_add_u32 v5, v5, v8
v_add_u32 v5, {XS}, v5
s_mov_b32 s71, 0x07060302
v_and_b32 v57, 31, v0
v_lshlrev_b32 v57, 2, v57
s_waitcnt lgkmcnt(0)
s_add_u32 s14, s14, 1
s_and_b32 s15, s14, 0xffff
s_and_b32 s6, s14, 0xff
s_andn2_b32 s60, s14, 0xf0000
s_or_b32 s78, s78, s60
s_cmp_lg_u32 s4, 0
s_cbranch_scc1 L_a1
s_lshr_b32 s60, s2, 3
s_lshl_b32 s60, s60, 2
s_add_u32 s60, s60, s77
v_mov_b32 v8, s78
s_mov_b64 exec, 1
buffer_store_dword v8, v57, s[56:59], s60 offen
s_mov_b64 exec, -1
s_waitcnt vmcnt(1)
s_branch L_a2
L_a1:
s_waitcnt vmcnt(0)
L_a2:
; LayerNorm of two rows per wave, rounded to bf16 after every step like the reference""")
    raw = [16, 17, 18, 20, 21, 22, 24, 25, 26]

    def red32(v, t):
        for s in (8, 4, 2, 1):
            e(f"v_add_f32_dpp v{v}, v{v}, v{v} row_ror:{s} row_mask:0xf bank_mask:0xf")
        e(f"v_mov_b32 v{t}, v{v}\nv_permlane16_swap_b32 v{v}, v{t}\nv_add_f32 v{v}, v{v}, v{t}")

    for k in range(9):
        e(f"v_lshlrev_b32 v{28+2*k}, 16, v{raw[k]}\nv_and_b32 v{29+2*k}, s68, v{raw[k]}")
    e("v_pk_add_f32 v[46:47], v[28:29], v[30:31]")
    for k in range(2, 9):
        e(f"v_pk_add_f32 v[46:47], v[46:47], v[{28+2*k}:{29+2*k}]")
    e("v_add_f32 v46, v46, v47")
    red32(46, 47)
    e("v_mul_f32 v48, s69, v46\nv_sub_f32 v50, 0, v48\nv_sub_f32 v51, 0, v48")
    for k in range(9):
        e(f"v_pk_add_f32 v[8:9], v[{28+2*k}:{29+2*k}], v[50:51]")
        e("v_pk_mul_f32 v[46:47], v[8:9], v[8:9]" if k == 0 else "v_pk_fma_f32 v[46:47], v[8:9], v[8:9], v[46:47]")
    e("v_add_f32 v46, v46, v47")
    red32(46, 47)
    e("v_mul_f32 v46, s69, v46")
    rnd(46, 46)
    e(f"v_add_f32 v46, {f32(1e-5)}, v46")
    rnd(46, 46)
    e("v_sqrt_f32 v46, v46")
    rnd(46, 46)
    e("v_rcp_f32 v46, v46")
    rnd(50, 50)
    e("v_mov_b32 v51, v50\nv_mov_b32 v47, v46")
    for k in range(9):
        e(f"v_pk_add_f32 v[8:9], v[{28+2*k}:{29+2*k}], v[50:51]\nv_cvt_pk_bf16_f32 v9, v8, v9\nv_lshlrev_b32 v8, 16, v9\nv_and_b32 v9, s68, v9")
        e(f"v_pk_mul_f32 v[8:9], v[8:9], v[46:47]\nv_cvt_pk_bf16_f32 v{raw[k]}, v8, v9")
    for k in range(0, 8, 2):
        e(f"ds_write2_b32 v1, v{raw[k]}, v{raw[k+1]} offset0:{k} offset1:{k+1}")
    e(f"ds_write_b32 v1, v{raw[8]} offset:32")
    stamp(1)
    e(f"""v_mov_b32 v{G}, -1
v_mov_b32 v{G+1}, -1
v_mov_b32 v{G+2}, -1
v_mov_b32 v{G+3}, -1
s_lshl_b32 s61, s10, 2
s_add_u32 s61, s61, s4
s_mul_i32 s61, s61, {OSL}
s_add_u32 s61, s61, {OBUF}
v_mov_b32 v1, v57
s_waitcnt lgkmcnt(0)""")
    ldsarrive(C1, 8)
    e(f"""s_mov_b64 exec, -1
s_mov_b32 s70, 2
s_cmp_ge_u32 s2, 208
s_cbranch_scc1 L_a4
L_xid:
buffer_load_dword v{G+4}, v1, s[56:59], s77 offen sc1
s_waitcnt vmcnt(0)""")
    xidcheck(G + 4)
    e("""s_cmp_eq_u32 s7, 2
s_cbranch_scc1 L_xidd
s_sub_u32 s70, s70, 1
s_cbranch_scc0 L_xid
L_xidd:
s_cmp_lt_u32 s2, 144
s_cbranch_scc1 L_a4
s_mov_b32 exec_hi, 0xff""")
    dual(f"buffer_store_dwordx4 v[{G}:{G+3}], v2, s[56:59], s61 offen POL", 7)
    e("L_a4:\ns_mov_b64 exec, 1")
    ldsspin(8, 8)
    stamp(2)
    for i in range(9):
        e(f"ds_read_b128 v[{XN+4*i}:{XN+4*i+3}], v5 offset:{64*i}")
    for kk in range(18):
        trread(WF + 4 * kk, 3 if kk < 16 else 4, (kk % 16) * 4096)
    e(f"""s_lshl_b32 s60, s4, 9
s_add_u32 s60, s60, s13
v_mov_b32 v7, s68
v_mov_b32 v{CV}, {PRG}
s_lshr_b32 s61, s2, 3
s_lshl_b32 s61, s61, 2
v_mov_b32 v{CV+3}, s61
s_add_u32 s76, s77, {PLN - XID}
s_waitcnt lgkmcnt(0)""")
    ldsarrive(C2, 8)
    e("s_mov_b64 exec, -1\ns_cmp_ge_u32 s2, 208\ns_cbranch_scc1 L_aq")
    for i in range(9):
        for hf in range(2):
            mfma(AC + 4 * hf, WF + 4 * (9 * hf + i), XN + 4 * i, i == 0)
    for r in range(4):
        e(f"v_add_f32_dpp v{AC+r}, v{AC+4+r}, v{AC+r} row_ror:8 row_mask:0xf bank_mask:0xf")
    e(f"""; publish 8 x 16 values as (bf16 << 16 | tag)
v_cvt_pk_bf16_f32 v8, v{AC}, v{AC+1}
v_cvt_pk_bf16_f32 v9, v{AC+2}, v{AC+3}
ds_bpermute_b32 v8, v15, v8
ds_bpermute_b32 v9, v15, v9
s_waitcnt lgkmcnt(0)
v_lshl_or_b32 v16, v8, 16, s15
v_and_or_b32 v17, v8, v7, s15
v_lshl_or_b32 v18, v9, 16, s15
v_and_or_b32 v19, v9, v7, s15
s_waitcnt vmcnt(0)
s_mov_b32 exec_hi, 0""")
    dual("buffer_store_dwordx4 v[16:19], v2, s[56:59], s60 offen POL", 7)
    race = """s_not_b32 s60, s96
s_not_b32 s61, s97
LOADS
s_waitcnt lgkmcnt(1)
s_cmp_eq_u32 s60, s96
s_addc_u32 s98, s98, 0
s_cmp_eq_u32 s61, s97
s_subb_u32 s98, s98, 0
s_waitcnt lgkmcnt(0)"""
    la, lb = f"s_load_dword s60, s[38:39], {PRB} glc", f"s_load_dword s61, s[38:39], {PRB + 0x2000} glc"
    e(f"""s_mov_b32 exec_hi, -1
s_lshl_b32 s60, s4, 8
s_add_u32 s60, s60, s2
s_cmp_lg_u32 s60, {256 + 144}
s_cbranch_scc1 L_aq
s_load_dword s96, s[38:39], {PRB} glc
s_load_dword s97, s[38:39], {PRB + 0x2000} glc
s_mov_b32 s98, 0
s_mov_b32 s70, {trials - 1}
s_waitcnt lgkmcnt(0)
L_race:""")
    e(race.replace("LOADS", la + "\n" + lb))
    e(race.replace("LOADS", lb + "\n" + la))
    e(f"""s_sub_u32 s70, s70, 1
s_cbranch_scc0 L_race
s_cmp_lt_i32 s98, 0
s_cselect_b32 s60, 0x10000, 0
s_or_b32 s60, s60, s15
v_mov_b32 v8, s60
v_mov_b32 v9, s14
s_mov_b64 exec, 1
buffer_store_dwordx2 v[8:9], v2, s[56:59], 0 offen offset:{PAR} sc1
s_mov_b64 exec, -1
L_aq:""")
    control(T1)
    ldsspin(CV, T1, sleep=8, four=True)
    e(f"""; wave 3 gathers q for the stream waves
s_cmp_lg_u32 s4, 3
s_cbranch_scc1 L_a3
s_lshr_b32 s60, s9, 1
s_lshl_b32 s60, s60, 6
s_lshl_b32 s61, s8, 13
s_add_u32 s60, s60, s61
s_add_u32 s60, s60, {PBUF}
v_lshrrev_b32 v6, 2, v0
v_lshlrev_b32 v6, 9, v6
v_and_b32 v7, 3, v0
v_lshl_add_u32 v6, v7, 4, v6
buffer_load_dword v24, v1, s[56:59], s77 offen sc1""")
    poll("buffer_load_dwordx4 v[20:23], v6, s[56:59], s60 offen sc1 nt", tagcmp([20, 21, 22, 23], 7), 4)
    xidcheck(24)
    CEND = 136
    e(f"""v_perm_b32 v8, v21, v20, s71
v_perm_b32 v9, v23, v22, s71
v_lshlrev_b32 v6, 3, v0
v_add_u32 v6, {QS}, v6
ds_write_b64 v6, v[8:9]
v_mov_b32 v6, {QF}
v_mov_b32 v7, s7
s_waitcnt lgkmcnt(0)
ds_write_b32 v6, v7
L_a3:
v_mul_u32_u24 v4, {RING - 1024}, v10
v_add_u32 v4, v4, v3
v_mov_b32 v12, 0xffffff00
v_bfe_u32 v3, v0, 3, 1
v_lshlrev_b32 v3, 13, v3
v_lshl_add_u32 v3, v10, 15, v3
v_lshl_add_u32 v3, v14, 4, v3
s_and_b32 s64, s4, 1
s_lshl_b32 s65, s64, 12
s_lshr_b32 s61, s4, 1
s_lshl_b32 s61, s61, 14
s_add_u32 s65, s65, s61
s_lshl_b32 s61, s8, 7
s_add_u32 s65, s65, s61
s_add_u32 s65, s65, {PART}
s_cmp_lt_u32 s2, 144
s_cbranch_scc1 L_aO
s_cmp_ge_u32 s2, 208
s_cbranch_scc1 L_aD""")
    control(CEND)
    e(f"""s_branch L_fin
L_aD:
s_mul_i32 s60, s11, 9216
s_mul_i32 s61, s4, 2304
s_add_u32 s60, s60, s61
s_add_u32 s60, s60, {PBUF + 131072}
s_add_u32 s61, s60, {288 * 512}
s_mov_b32 s72, -1
s_mov_b32 s73, 0xffff
s_mov_b64 exec, s[72:73]""")
    poll("\n".join([f"buffer_load_dwordx4 v[{G+4*k}:{G+4*k+3}], v2, s[56:59], s60 offen offset:{768*k} sc1 nt" for k in range(3)] +
                   [f"buffer_load_dwordx4 v[{U+4*k}:{U+4*k+3}], v2, s[56:59], s61 offen offset:{768*k} sc1 nt" for k in range(3)]),
         tagcmp(list(range(G, G + 24)), 8), 8, restore="s[72:73]")
    c0 = -2 * LOG2E * 0.7978845608028654
    e(f"; gelu_tanh(g) = g / (1 + exp(-2 * sqrt(2/pi) * (g + 0.044715 g^3)))\nv_mov_b32 v32, {f32(c0)}\nv_mov_b32 v33, {f32(c0 * 0.044715)}\ns_mul_i32 s60, s4, 144")
    for k in range(6):
        e(f"""v_and_b32 v34, s68, v{G+2*k}
v_and_b32 v35, s68, v{G+2*k+1}
v_mul_f32 v36, v34, v34
v_mul_f32 v37, v35, v35
v_fma_f32 v36, v36, v33, v32
v_fma_f32 v37, v37, v33, v32
v_mul_f32 v36, v36, v34
v_mul_f32 v37, v37, v35
v_exp_f32 v36, v36
v_exp_f32 v37, v37
v_and_b32 v38, s68, v{U+2*k}
v_add_f32 v36, 1.0, v36
v_add_f32 v37, 1.0, v37
v_rcp_f32 v36, v36
v_rcp_f32 v37, v37
v_and_b32 v39, s68, v{U+2*k+1}
v_mul_f32 v34, v34, v36
v_mul_f32 v35, v35, v37
v_cvt_pk_bf16_f32 v35, v34, v35
v_lshlrev_b32 v34, 16, v35
v_and_b32 v35, s68, v35
v_mul_f32 v34, v34, v38
v_mul_f32 v35, v35, v39
v_cvt_pk_bf16_f32 v{40+k}, v34, v35""")
    for k in range(3):
        e(f"""v_add_u32 v34, s60, v0
v_bfe_u32 v35, v34, 2, 3
v_mul_u32_u24 v35, 576, v35
v_and_b32 v36, 3, v34
v_lshl_add_u32 v35, v36, 3, v35
v_and_b32 v34, 0xffe0, v34
v_add_u32 v35, v35, v34
v_add_u32 v35, {HS}, v35
ds_write_b64 v35, v[{40+2*k}:{41+2*k}]
s_add_u32 s60, s60, 48""")
    e("s_waitcnt lgkmcnt(0)")
    ldsarrive(CNT, 8)
    ldsspin(8, 4)
    e(f"v_mul_u32_u24 v5, 576, v14\nv_lshl_add_u32 v5, v10, 4, v5\nv_add_u32 v5, {HS}, v5")
    for i in range(9):
        e(f"ds_read_b128 v[{XN+4*i}:{XN+4*i+3}], v5 offset:{64*i}")
    e(f"""s_mul_i32 s60, s12, {3*65536}
s_add_u32 s60, s60, s65
s_add_u32 s60, s60, 2048
s_add_u32 s61, s60, 65536
s_add_u32 s62, s60, 131072
s_waitcnt lgkmcnt(0)""")
    for i in range(6):
        for sub in range(3):
            mfma(AC + 4 * sub, WF + 4 * (6 * sub + i), XN + 4 * i, i == 0)
    stamp(4)
    control(CEND)
    getside()
    e(f"; last 96 rows arrive with the late tile\ns_barrier\nds_read_b32 v{CV+4}, v{CV} offset:{SIDE - PRG}\ns_waitcnt lgkmcnt(0)\nv_xor_b32 v3, v3, v{CV+4}\ns_barrier")
    for j in range(9):
        trread(WF + 4 * j, 4, j * 1024)
    for j in range(9):
        if j % 3 == 0:
            e(f"s_waitcnt lgkmcnt({12 - 2 * j})")
        mfma(AC + 4 * (j % 3), WF + 4 * j, XN + 4 * (6 + j // 3), False)

    def publish(n, src, soffs):
        e("; partial outputs: f32 with the 8-bit tag in the low mantissa byte, whole 128 B lines")
        for r in range(4 * n):
            e(f"v_and_or_b32 v{src+r}, v{src+r}, v12, s6\nds_bpermute_b32 v{G+r}, v15, v{src+r}")
        e("s_mov_b32 exec_hi, 0")
        for k in range(n):
            e(f"s_waitcnt lgkmcnt({4 * (n - 1 - k)})\nbuffer_store_dwordx4 v[{G+4*k}:{G+4*k+3}], v3, s[56:59], s{soffs[k]} offen sc1")
        e("s_mov_b64 exec, -1")

    publish(3, AC, (60, 61, 62))
    stamp(7)
    e(f"""s_branch L_fin
L_aO:
s_lshl_b32 s61, s9, 16
s_add_u32 s65, s65, s61
v_mul_u32_u24 v6, {OSL}, v10
v_lshl_add_u32 v5, v11, 4, v6
s_lshl_b32 s62, s8, 2
s_add_u32 s62, s62, s4
s_mul_i32 s62, s62, {4*OSL}
s_add_u32 s62, s62, {OBUF}
s_mul_i32 s61, s4, {4*GST}
s_add_u32 s61, s61, {GB}
v_mul_u32_u24 v48, {GST}, v10
v_lshl_add_u32 v48, v11, 4, v48
v_add_u32 v48, s61, v48
s_lshl_b32 s61, s4, 5
s_add_u32 s61, s61, {LB}
v_lshl_add_u32 v49, v10, 3, s61
v_mul_u32_u24 v46, {GST}, v11
v_lshl_add_u32 v46, v10, 4, v46
v_add_u32 v46, {GB}, v46
v_lshlrev_b32 v47, 3, v11
v_add_u32 v47, {LB}, v47
s_andn2_b32 s74, s2, 6
s_and_b32 s61, s2, 2
s_lshl_b32 s61, s61, 1
s_or_b32 s74, s74, s61
s_lshl_b32 s74, s74, 12
s_lshl_b32 s61, s4, 5
s_add_u32 s74, s74, s61
s_add_u32 s74, s74, {PART}
v_lshrrev_b32 v8, 1, v0
v_lshlrev_b32 v7, 7, v8
v_and_b32 v8, 1, v0
v_lshl_add_u32 v7, v8, 4, v7
s_and_b32 s61, s2, 4
s_lshl_b32 s61, s61, 11
v_add_u32 v7, s61, v7
v_mov_b32 v26, 0xff
s_lshr_b32 s75, s8, 2
s_lshl_b32 s75, s75, 1
s_lshr_b32 s61, s4, 1
s_add_u32 s75, s75, s61
s_mul_i32 s75, s75, 1152
s_lshl_b32 s61, s9, 7
s_add_u32 s75, s75, s61
s_and_b32 s61, s8, 3
s_lshl_b32 s61, s61, 5
s_add_u32 s75, s75, s61
s_lshl_b32 s61, s64, 4
s_add_u32 s75, s75, s61
v_and_b32 v9, 1, v10
v_lshlrev_b32 v9, 1, v9
v_lshl_add_u32 v13, v8, 3, v9
v_bfe_u32 v9, v0, 3, 1
v_lshl_add_u32 v13, v9, 2, v13
buffer_load_ushort v50, v13, s[40:43], s75 offen
s_lshr_b32 s61, s9, 1
s_and_b32 s60, s9, 1
s_lshl_b32 s60, s60, 3
s_add_u32 s61, s61, s60
s_lshl_b32 s60, s4, 2
s_sub_u32 s61, s61, s60
v_cmp_ne_u32 s[72:73], s61, v10""")
    srd(48, 34, 9216)
    control(CEND)
    getside()
    e("s_waitcnt vmcnt(0)\nv_lshlrev_b32 v50, 16, v50\ns_mov_b64 exec, s[72:73]\ns_barrier")
    stamp(5)

    def wofrags(back):
        e(f"s_mov_b64 exec, -1\nds_read_b32 v{CV+4}, v{CV} offset:{SIDE - PRG}\ns_barrier")
        stamp(4)
        for ks in range(8):
            trread(OF + 4 * ks, 4, ks * 1024)
        if back:
            e(f"s_mov_b64 exec, {back}")

    oloads = """buffer_load_dwordx4 v[28:31], v5, s[56:59], s62 offen sc1
buffer_load_dwordx4 v[32:35], v5, s[56:59], s62 offen offset:256 sc1
buffer_load_dwordx2 v[36:37], v6, s[56:59], s62 offen offset:512 sc1"""
    owrite = "ds_write_b128 v48, v[28:31]\nds_write_b128 v48, v[32:35] offset:256\nds_write_b64 v49, v[36:37]"
    ocmp = sentcmp(range(28, 38), 38)
    e(oloads + "\ns_waitcnt vmcnt(0)\n" + ocmp + "\ns_cbranch_vccnz L_og1")
    e(owrite)
    wofrags(None)
    e("s_branch L_og2\nL_og1:\ns_mov_b64 exec, vcc")
    poll(oloads, ocmp, 0, first=lambda: wofrags("vcc"), restore="s[72:73]")
    e(owrite + "\ns_mov_b64 exec, -1\nL_og2:")
    stamp(6)
    e("s_waitcnt lgkmcnt(0)\ns_barrier\nds_read_b64 v[36:37], v47")
    order = [0, 4, 1, 5, 2, 6, 3, 7]
    for ks in order:
        e(f"ds_read_b128 v[{WF+4*ks}:{WF+4*ks+3}], v46 offset:{64*ks}")
    e("""s_waitcnt lgkmcnt(8)
v_sub_f32_dpp v38, v36, v36 row_ror:8 row_mask:0xf bank_mask:0xf
v_sub_f32_dpp v39, v37, v37 row_ror:8 row_mask:0xf bank_mask:0xf""")
    fill = ["v_exp_f32 v38, v38", "v_exp_f32 v39, v39", "v_add_f32 v38, 1.0, v38", "v_add_f32 v39, 1.0, v39", "v_rcp_f32 v38, v38", "v_rcp_f32 v39, v39", f"v_xor_b32 v3, v3, v{CV+4}", f"v_xor_b32 v7, v7, v{CV+4}"]
    for i, ks in enumerate(order):
        e(f"s_waitcnt lgkmcnt({7 - i})")
        mfma(AC + 4 * (ks // 4), OF + 4 * ks, WF + 4 * ks, ks % 4 == 0)
        if i < len(fill):
            e(fill[i])
    for r in range(4):
        e(f"v_mul_f32 v{AC+r}, v{AC+r}, v38")
    for r in range(4):
        e(f"v_fmac_f32 v{AC+r}, v{AC+4+r}, v39")
    for r in range(4):
        e(f"v_add_f32_dpp v{AC+r}, v{AC+r}, v{AC+r} row_ror:8 row_mask:0xf bank_mask:0xf")
    publish(1, AC, (65,))
    stamp(3)
    e("; final sum of 8 outputs: lanes 0-31 hold 16 attention partials, lanes 32-63 hold 16 FFN partials\ns_waitcnt vmcnt(0)")
    chk = "\n".join(f"v_xor_b32 v{16+i}, s6, v{16+i}" for i in range(4)) + "\nv_or3_b32 v24, v16, v17, v18\nv_bitop3_b32 v24, v24, v26, v19 bitop3:0xc8\nv_cmp_ne_u32 vcc, 0, v24"
    poll("buffer_load_dwordx4 v[16:19], v7, s[56:59], s74 offen sc1", chk, 0, quad=True)
    e("""v_permlane16_swap_b32 v16, v17
v_permlane16_swap_b32 v18, v19
v_add_f32 v17, v16, v17
v_add_f32 v18, v18, v19
v_add_f32_dpp v16, v17, v17 row_ror:8 row_mask:0xf bank_mask:0x3
v_add_f32_dpp v16, v18, v18 row_ror:8 row_mask:0xf bank_mask:0xc
v_add_f32_dpp v16, v16, v16 row_shl:4 row_mask:0xf bank_mask:0x5
v_add_f32_dpp v16, v16, v16 quad_perm:[2,3,0,1] row_mask:0xf bank_mask:0xf""")
    rnd(16, 16)
    e("v_add_f32 v17, v16, v50")
    rnd(17, 17)
    e("""v_permlane32_swap_b32 v16, v18
v_add_f32 v17, v17, v18
v_cvt_pk_bf16_f32 v17, v17, v17
s_mov_b32 exec_lo, 0x03030303
s_mov_b32 exec_hi, 0
buffer_store_short v17, v13, s[48:51], s75 offen
s_mov_b64 exec, 1
s_add_u32 s60, s2, s4
s_cmp_lg_u32 s60, 0
s_cbranch_scc1 L_o3
v_mov_b32 v19, s14
buffer_store_dword v19, v2, s[56:59], 0 offen
L_o3:""")
    stamp(7)
    e("L_fin:")
    if diag:
        e("s_mov_b64 exec, -1\ns_cmp_lt_u32 s3, 4\ns_cbranch_scc1 L_dg\ns_sub_u32 s60, s2, 144\ns_cmp_lt_u32 s60, 64\ns_cbranch_scc1 L_end\nL_dg:")
        e("s_waitcnt vmcnt(0)\ns_memrealtime s[76:77]\ns_waitcnt lgkmcnt(0)\ns_getreg_b32 s77, hwreg(HW_REG_HW_ID)")
        for i in range(8):
            e(f"v_mov_b32 v{16+i}, s{80+2*i}")
        e(f"v_mov_b32 v24, s76\nv_mov_b32 v25, s77\nv_mov_b32 v1, 0\ns_lshl_b32 s60, s2, 3\ns_add_u32 s60, s60, s3\ns_lshl_b32 s60, s60, 6\ns_add_u32 s60, s60, {STAMP}")
        e("s_mov_b64 exec, 1\nbuffer_store_dwordx4 v[16:19], v1, s[56:59], s60 offen\nbuffer_store_dwordx4 v[20:23], v1, s[56:59], s60 offen offset:16\nbuffer_store_dwordx2 v[24:25], v1, s[56:59], s60 offen offset:32")
    e("L_end:\ns_endpgm")
    e(f""".section .rodata,"a"
.p2align 6
.amdhsa_kernel {KN}
.amdhsa_next_free_vgpr 256
.amdhsa_next_free_sgpr 102
.amdhsa_accum_offset 256
.amdhsa_group_segment_fixed_size 0
.amdhsa_kernarg_size 96
.amdhsa_user_sgpr_count 2
.amdhsa_user_sgpr_kernarg_segment_ptr 1
.amdhsa_system_sgpr_workgroup_id_x 1
.amdhsa_float_denorm_mode_32 3
.end_amdhsa_kernel""")
    return top + e.text()


def summary(T, cfg):
    import numpy as np
    S = T[:, :4]; A = T[:144, 4:]; D = T[208:, 4:]
    wd = S[:, :, 4].max(1); m = wd.max()
    return dict(startmax=S[:, :, 0].max(), B1med=float(np.median(S[:, :, 1])), B1max=S[:, :, 1].max(), B2max=S[:, :, 2].max(), qwait=(S[:, :, 7] - S[:, :, 6]).max(),
                xcdspread=max(wd[i::8].mean() for i in range(8)) - wd.mean(), meandone=wd.mean(), maxdone=m, opub=S[:, 0, 3].max() - m, t2=S[:, :, 5].max() - m,
                dpub=D[:, :, 7].max() - m, ogath=A[:, :, 6].max() - m, ppub=A[:, :, 3].max() - m, out=A[:, :, 7].max() - m, end=A[:, :, 8].max())


if __name__ == "__main__":
    kw = eval("dict(" + (sys.argv[2] if len(sys.argv) > 2 else "") + ")")
    open(sys.argv[1], "w").write(gen(**kw))
```

```python
import sys, struct
sys.path.insert(0, "dev")
from asmlib import Asm

KN = "parallel_sum__sliding_block_cached__geglu_ffn__decode_kernel"
REF = "parallel_sum__sliding_block_cached__geglu_ffn__decode.s.ref"

R = 6
RING = R * 4096
XS = 4 * RING
QS = XS + 9216
HS = QS + 512
ML = HS + 4608
CNT = ML + 64
QF, C1, C2, PRG, DEC, C3 = CNT + 4, CNT + 8, CNT + 12, CNT + 16, CNT + 32, CNT + 36
SIDE = CNT + 40
LB = CNT + 64
RED = LB + 128
GB = RED + 4096
GST = 528
LDS_SZ = GB + 16 * GST
XID, PLN, PBUF, OBUF, PART = 0x400, 0x800, 0x1000, 0x70000, 0xA0000
PAR, PRB = 0x200, 0x6C000
OSL = 640
WS_SZ = PART + 144 * 4096
STAMP = 0x200000
LIMIT = 2000000
LOG2E = 1.4426950408889634

DOC = """;
;
;
"""


def f32(x):
    return "0x%08x" % struct.unpack("<I", struct.pack("<f", x))[0]


def gen(dw=6, dm=5, d2=6, boost=3, thr=16, T1=48, diag=0, wmap=0, T2=96, trials=3):
    e = Asm()
    uid = [0]
    wsz = WS_SZ if not diag else 0x400000

    def lab(p):
        uid[0] += 1
        return f"L_{p}{uid[0]}"

    def coff(c):
        return ((c & 1) << 14) | ((c >> 1) << 16) | ((c & 1) << 13) | ((c >> 1 & 1) << 15)

    def stamp(i):
        if diag:
            e(f"s_memrealtime s[{80 + 2 * i}:{81 + 2 * i}]")

    def srd(b, lo, size):
        e(f"s_mov_b32 s{b}, s{lo}\ns_mov_b32 s{b+1}, s{lo+1}\ns_mov_b32 s{b+2}, {size}\ns_mov_b32 s{b+3}, 0x20000")

    def rnd(dst, src):
        e(f"v_cvt_pk_bf16_f32 v{dst}, v{src}, v{src}\nv_lshlrev_b32 v{dst}, 16, v{dst}")

    def poll(loads, cmp, sleep, restore="-1", quad=False, first=None):
        L = lab("poll")
        e(f"s_mov_b32 s70, {LIMIT}")
        if first:
            e(loads)
            first()
            e(f"s_branch {L}_w")
        e(f"{L}:")
        e(loads)
        e(f"{L}_w:\ns_waitcnt vmcnt(0)")
        e(cmp)
        e(f"s_cbranch_vccz {L}_d" if quad else f"s_and_b64 exec, exec, vcc\ns_cbranch_scc0 {L}_d")
        e(f"s_sub_u32 s70, s70, 1\ns_cbranch_scc1 {L}_d")
        if quad:
            e("s_wqm_b64 exec, vcc")
        if sleep:
            e(f"s_sleep {sleep}")
        e(f"s_branch {L}\n{L}_d:\ns_mov_b64 exec, {restore}")

    def dual(stores, mode):
        L = lab("st")
        e(f"s_cmp_eq_u32 s{mode}, 2\ns_cbranch_scc0 {L}")
        e(stores.replace("POL", ""))
        e(f"s_branch {L}_d\n{L}:")
        e(stores.replace("POL", "sc1"))
        e(f"{L}_d:")

    def xidcheck(v):
        e(f"v_cmp_ne_u32 vcc, s78, v{v}\ns_cmp_eq_u32 vcc_lo, 0\ns_cselect_b32 s7, 2, 1")

    def ldsarrive(addr, va):
        e(f"s_mov_b64 exec, 1\nv_mov_b32 v{va}, {addr}\nv_mov_b32 v{va+1}, 1\nds_add_u32 v{va}, v{va+1}")

    def ldsspin(va, count, st=60, sleep=2, four=False):
        L = lab("spin")
        e(f"s_mov_b32 s70, {LIMIT*8}\n{L}:")
        if four:
            e(f"ds_read_b128 v[{va+4}:{va+7}], v{va}\ns_waitcnt lgkmcnt(0)\nv_add3_u32 v{va+1}, v{va+4}, v{va+5}, v{va+6}\nv_add_u32 v{va+1}, v{va+1}, v{va+7}")
        else:
            e(f"ds_read_b32 v{va+1}, v{va}\ns_waitcnt lgkmcnt(0)")
        e(f"""v_readfirstlane_b32 s{st}, v{va+1}
s_cmp_ge_u32 s{st}, {count}
s_cbranch_scc1 {L}_d
s_sub_u32 s70, s70, 1
s_cbranch_scc1 {L}_d
s_sleep {sleep}
s_branch {L}
{L}_d:
s_mov_b64 exec, -1""")

    CV = 232

    def control(until):
        L = lab("ctl")
        e(f"""; wave 2: post the stream position, count group members that are ahead, select the queue depth
s_cmp_lg_u32 s4, 2
s_cbranch_scc1 {L}_d
s_mov_b32 s70, {LIMIT}
{L}:
ds_read_b128 v[{CV+4}:{CV+7}], v{CV}
s_waitcnt lgkmcnt(0)
v_add3_u32 v{CV+1}, v{CV+4}, v{CV+5}, v{CV+6}
v_add_u32 v{CV+1}, v{CV+1}, v{CV+7}
v_readfirstlane_b32 s66, v{CV+1}
v_lshl_or_b32 v{CV+1}, v{CV+1}, 16, s15
s_mov_b64 exec, 1
buffer_store_dword v{CV+1}, v{CV+3}, s[56:59], s76 offen
s_mov_b64 exec, -1
s_cmp_ge_u32 s66, {until}
s_cbranch_scc1 {L}_d
buffer_load_dword v{CV+4}, v1, s[56:59], s76 offen sc1
v_add_u32 v{CV+1}, 0x10000, v{CV+1}
s_waitcnt vmcnt(0)
v_sub_u32 v{CV+4}, v{CV+4}, v{CV+1}
v_and_b32 v{CV+4}, 0x8000ffff, v{CV+4}
v_cmp_eq_u32 vcc, 0, v{CV+4}
s_bcnt1_i32_b32 s66, vcc_lo
s_cmp_ge_u32 s66, {thr}
s_cselect_b32 s66, 1, 0
v_mov_b32 v{CV+4}, s66
ds_write_b32 v{CV}, v{CV+4} offset:{DEC - PRG}
s_sub_u32 s70, s70, 1
s_cbranch_scc0 {L}
{L}_d:""")

    def getside():
        L = lab("side")
        e(f"; wave 3 fetches the announced bit for the partial output layout\ns_cmp_lg_u32 s4, 3\ns_cbranch_scc1 {L}")
        ldsspin(CV, T2, st=5, sleep=16, four=True)
        e(f"v_mov_b32 v{CV+2}, 0")
        poll(f"buffer_load_dwordx2 v[{CV+4}:{CV+5}], v{CV+2}, s[56:59], 0 offen offset:{PAR} sc1",
             f"v_xor_b32 v{CV+6}, s15, v{CV+4}\nv_and_b32 v{CV+6}, 0xfffeffff, v{CV+6}\nv_xor_b32 v{CV+5}, s14, v{CV+5}\nv_or_b32 v{CV+6}, v{CV+6}, v{CV+5}\nv_cmp_ne_u32 vcc, 0, v{CV+6}", 16)
        e(f"v_bfe_u32 v{CV+4}, v{CV+4}, 16, 1\nv_lshlrev_b32 v{CV+4}, 13, v{CV+4}\nds_write_b32 v{CV}, v{CV+4} offset:{SIDE - PRG}\ns_waitcnt lgkmcnt(0)\n{L}:")

    def sentcmp(regs, tmp):
        r = list(regs)
        out = []
        cur = r.pop(0)
        while r:
            out.append(f"v_max3_u32 v{tmp}, v{cur}, v{r[0]}, v{r[1]}" if len(r) > 1 else f"v_max_u32 v{tmp}, v{cur}, v{r[0]}")
            r = r[2:]
            cur = tmp
        out.append(f"v_cmp_eq_u32 vcc, -1, v{cur}")
        return "\n".join(out)

    def tagcmp(regs, tmp):
        out = [f"v_xor_b32 v{tmp}, s15, v{regs[0]}"]
        for r in regs[1:]:
            out.append(f"v_bitop3_b32 v{tmp}, v{r}, v{tmp}, s15 bitop3:0xde")
        out.append(f"v_and_b32 v{tmp}, 0xffff, v{tmp}\nv_cmp_ne_u32 vcc, 0, v{tmp}")
        return "\n".join(out)

    def allred_g(v, t, op):
        e(f"v_mov_b32 v{t}, v{v}\nv_permlane16_swap_b32 v{v}, v{t}\n{op} v{v}, v{v}, v{t}")
        e(f"v_mov_b32 v{t}, v{v}\nv_permlane32_swap_b32 v{v}, v{t}\n{op} v{v}, v{v}, v{t}")

    def mfma(D, A, B, first):
        e(f"v_mfma_f32_16x16x32_bf16 v[{D}:{D+3}], v[{A}:{A+3}], v[{B}:{B+3}], {'0' if first else f'v[{D}:{D+3}]'}")

    def trread(dst, addr, off):
        for hf in range(2):
            e(f"ds_read_b64_tr_b16 v[{dst+2*hf}:{dst+2*hf+1}], v{addr} offset:{off + hf * 512}")

    hdr = [l.rstrip("\n") for l in open(REF) if l.startswith(";") and "@launch" not in l and "Override" not in l and "grid=ceil" not in l]
    top = "\n".join(hdr) + f"\n; @launch grid=(256,1,1) block=(512,1,1) lds={LDS_SZ}\n" + DOC
    e(f""".amdgcn_target "amdgcn-amd-amdhsa--gfx950"
.text
.globl {KN}
.p2align 8
.type {KN},@function
{KN}:
s_cmp_ge_u32 s2, 256
s_cbranch_scc1 L_end
s_load_dwordx16 s[16:31], s[0:1], 0
s_load_dwordx8 s[32:39], s[0:1], 64""")
    if wmap:
        e("s_lshr_b32 s5, s2, 4\ns_add_u32 s6, s2, s5\ns_and_b32 s6, s6, 15\ns_andn2_b32 s2, s2, 15\ns_or_b32 s2, s2, s6")
    stamp(0)
    e("""v_lshrrev_b32 v1, 6, v0
v_and_b32 v0, 63, v0
v_readfirstlane_b32 s3, v1
s_xor_b32 s3, s3, 4
s_and_b32 s8, s2, 15
s_lshr_b32 s9, s2, 4
s_sub_u32 s12, s9, 13
s_lshl_b32 s10, s8, 2
s_add_u32 s10, s10, s9
s_sub_u32 s10, s10, 9
s_and_b32 s5, s2, 7
s_bfe_u32 s6, s2, 0x10003
s_lshl_b32 s11, s5, 1
s_add_u32 s11, s11, s6
s_mul_i32 s79, s5, 9
s_add_u32 s79, s79, s9
s_cmp_ge_u32 s3, 4
s_cbranch_scc1 L_aux""")

    VO, KD, KR, MK, VW1, VW2, Q, KF, AB, ACC, T, SP = 1, 2, 6, 10, 14, 15, 16, 32, 48, 64, 68, 84
    MRUN, NEGM, LS, VT2, VST, VPR, VDE, VDA, VV = 120, 121, 122, 123, 124, 125, 126, 127, 128
    e(f"""; ===== stream waves (s3 = 0..3) =====
v_lshrrev_b32 v1, 3, v0
v_and_b32 v2, 7, v0
v_and_b32 v3, 2, v1
s_and_b32 s5, s3, 1
s_lshl_b32 s5, s5, 2
v_or_b32 v3, s5, v3
v_xor_b32 v2, v2, v3
v_lshlrev_b32 v2, 4, v2
s_lshl_b32 m0, s3, 10
s_mov_b32 s43, 0x20000
s_lshl_b32 s60, s79, 7
s_lshl_b32 s5, s10, 7
s_movk_i32 s7, 9216
s_mov_b32 s42, {576*9216}
s_cmp_ge_u32 s2, 144
s_cselect_b32 s60, s5, s60
s_cselect_b32 s7, 8192, s7
s_cselect_b32 s42, {576*8192}, s42
s_mul_i32 s5, s11, {288*1152}
s_mul_i32 s6, s12, 384
s_add_u32 s5, s5, s6
s_lshl_b32 s62, s7, 5
s_movk_i32 s64, 4096
s_cmp_ge_u32 s2, 208
s_cselect_b32 s60, s5, s60
s_cselect_b32 s7, 1152, s7
s_cselect_b32 s42, {4608*1152}, s42
s_cselect_b32 s63, {36864-256}, s62
s_cselect_b32 s62, 128, s62
s_cselect_b32 s65, {4096-49152}, s64
s_cselect_b32 s64, 24576, s64
s_mul_i32 s5, s3, s7
s_lshl_b32 s5, s5, 3
s_add_u32 s72, s60, s5
v_mad_u32_u24 v{VW1}, v1, s7, v2
s_bitcmp1_b32 s2, 3
s_waitcnt lgkmcnt(0)
s_cselect_b64 s[40:41], s[30:31], s[28:29]
s_cmp_ge_u32 s2, 144
s_cselect_b64 s[40:41], s[22:23], s[40:41]
s_cmp_ge_u32 s2, 208
s_cselect_b64 s[40:41], s[32:33], s[40:41]""")

    def vsetup():
        e("; s60 = this wave's base inside the K / V window")
        srd(52, 20, 0x10000000)
        e(f"""s_lshr_b32 s60, s9, 1
s_lshl_b32 s60, s60, 4
s_add_u32 s60, s60, s8
s_lshl_b32 s60, s60, 21
s_and_b32 s61, s9, 1
s_lshl_b32 s61, s61, 15
s_add_u32 s60, s60, s61
s_lshl_b32 s61, s3, 12
s_add_u32 s60, s60, s61
s_add_u32 s60, s60, {6144*256}
v_mul_u32_u24 v{VT2}, 1152, v1
v_add_u32 v{VT2}, v{VT2}, v2
v_lshlrev_b32 v{VO}, 4, v0""")

    work = {}

    def at(slot, fn):
        work.setdefault(slot, []).append(fn)

    def setup():
        e("; late tile descriptor, K swizzle addresses, diagonal masks for the P operand")
        srd(48, 18, 0x10000000)
        srd(56, 38, wsz)
        e(f"""s_mul_i32 s67, s3, {RING}
s_mul_i32 s5, s8, {256*1152}
s_mul_i32 s6, s3, {8*1152}
s_add_u32 s5, s5, s6
s_lshl_b32 s6, s9, 7
s_add_u32 s5, s5, s6
s_mov_b32 s46, {4096*1152}
s_mov_b32 s47, 0x20000
s_cmp_ge_u32 s2, 208
s_cselect_b32 s72, s72, s5
s_cselect_b32 s73, s62, {32*1152}
s_cselect_b32 s74, s63, {32*1152}
s_cselect_b64 s[44:45], s[32:33], s[24:25]
s_cselect_b32 s46, s42, s46""")
        e(f"v_lshrrev_b32 v{T}, 4, v0\nv_and_b32 v{T+1}, 15, v0\nv_lshlrev_b32 v{T+2}, 2, v{T}\nv_xor_b32 v{T+2}, v{T+2}, v{T+1}")
        e(f"v_lshlrev_b32 v{T+2}, 4, v{T+2}\nv_lshl_add_u32 v{KD}, v{T}, 8, v{T+2}")
        for r in range(1, 4):
            e(f"v_xor_b32 v{KD+r}, {16*r}, v{KD}")
        e(f"v_and_b32 v{T+2}, 3, v0\nv_lshlrev_b32 v{T+2}, 2, v{T+2}\nv_lshrrev_b32 v{T+3}, 2, v{T+1}\nv_or_b32 v{T+2}, v{T+2}, v{T+3}")
        e(f"v_lshl_add_u32 v{T+2}, v{T+2}, 8, s67\nv_xor_b32 v{T+3}, v{T}, v{T+1}\nv_lshl_add_u32 v{KR}, v{T+3}, 4, v{T+2}")
        for t in range(1, 4):
            e(f"v_xor_b32 v{KR+t}, {64*t}, v{KR}")
        e(f"v_and_b32 v{T+2}, 1, v0\nv_lshlrev_b32 v{T+2}, 4, v{T+2}\nv_mov_b32 v{T+3}, 0xffff\nv_lshlrev_b32 v{T+3}, v{T+2}, v{T+3}\nv_bfe_u32 v{T+2}, v0, 1, 2")
        for r in range(4):
            e(f"v_cmp_eq_u32 vcc, {r}, v{T+2}\nv_cndmask_b32 v{MK+r}, 0, v{T+3}, vcc")
        e(f"v_lshrrev_b32 v{T+2}, 3, v{T+1}\nv_lshlrev_b32 v{T+2}, 8, v{T+2}\nv_lshl_add_u32 v{T+2}, v{T}, 4, v{T+2}\nv_add_u32 v{VW1}, {QS}, v{T+2}")
        e(f"s_mov_b32 s68, 0xffff0000\ns_mov_b32 s69, {f32(128 ** -0.5)}\ns_mov_b32 s71, {f32(LOG2E)}")
        e(f"v_mov_b32 v{LS}, 0\nv_mov_b32 v{MRUN}, 0xff800000")
        for r in range(4):
            e(f"v_mov_b32 v{ACC+r}, 0")

    def sreg(c):
        return SP + 4 * (c if c < 8 else (8 if c == 8 else c - 9))

    def kread(c):
        def f():
            e(f"; K chunk {c}: fragments")
            for t in range(4):
                e(f"ds_read_b128 v[{KF+4*t}:{KF+4*t+3}], v{KR+t} offset:{(c % R) * 4096}")
        return f

    def kmma(c):
        def f():
            e(f"; K chunk {c}: scores\ns_waitcnt lgkmcnt(0)")
            for t in range(4):
                mfma(sreg(c), KF + 4 * t, Q + 4 * t, t == 0)
        return f

    def kround(c):
        def f():
            S = sreg(c)
            for k in range(2):
                e(f"v_cvt_pk_bf16_f32 v{T}, v{S}, v{S+1}\nv_cvt_pk_bf16_f32 v{T+1}, v{S+2}, v{S+3}")
                e(f"v_lshlrev_b32 v{S}, 16, v{T}\nv_and_b32 v{S+1}, s68, v{T}\nv_lshlrev_b32 v{S+2}, 16, v{T+1}\nv_and_b32 v{S+3}, s68, v{T+1}")
                if k == 0:
                    for r in range(4):
                        e(f"v_mul_f32 v{S+r}, s69, v{S+r}")
            e(f"v_max3_f32 v{MRUN}, v{MRUN}, v{S}, v{S+1}\nv_max3_f32 v{MRUN}, v{MRUN}, v{S+2}, v{S+3}")
        return f

    def maxA():
        e("; max over the first 128 keys of this wave")
        allred_g(MRUN, T, "v_max_f32")
        e(f"v_mul_f32 v{NEGM}, s71, v{MRUN}\nv_sub_f32 v{NEGM}, 0, v{NEGM}")

    def maxB():
        e("; max over all 256 keys, rescale of the running sum and accumulator")
        allred_g(MRUN, T, "v_max_f32")
        e(f"v_mul_f32 v{T+1}, s71, v{MRUN}\nv_add_f32 v{T+2}, v{NEGM}, v{T+1}\nv_sub_f32 v{NEGM}, 0, v{T+1}\nv_exp_f32 v{T+2}, -v{T+2}")
        e(f"v_mul_f32 v{LS}, v{LS}, v{T+2}\nv_mov_b32 v{T+3}, v{T+2}")
        e(f"v_mov_b32_dpp v{T+3}, v{T+2} row_ror:8 row_mask:0x3 bank_mask:0xc\nv_mov_b32_dpp v{T+3}, v{T+2} row_ror:8 row_mask:0xc bank_mask:0x3")
        for r in range(4):
            e(f"v_mul_f32 v{ACC+r}, v{ACC+r}, v{T+3}")

    def pexp(c):
        def f():
            S = sreg(c)
            for r in range(4):
                e(f"v_fma_f32 v{S+r}, v{S+r}, s71, v{NEGM}")
            for r in range(4):
                e(f"v_exp_f32 v{S+r}, v{S+r}")
            e(f"v_add_f32 v{T}, v{S}, v{S+1}\nv_add_f32 v{T+1}, v{S+2}, v{S+3}\nv_add_f32 v{LS}, v{LS}, v{T}\nv_add_f32 v{LS}, v{LS}, v{T+1}")
            for r in range(4):
                e(f"v_cvt_pk_bf16_f32 v{S+r}, v{S+r}, v{S+r}")
        return f

    def aprep(c, r):
        def f():
            for k in range(4):
                e(f"v_and_b32 v{AB+4*r+k}, v{sreg(c)+r}, v{MK+k}")
        return f

    def pv(c, r):
        def f():
            mfma(ACC, AB + 4 * r, VV + 16 * (c % 8) + 4 * r, False)
        return f

    def mlwrite():
        e("; publish this wave's max and sum in LDS, prepare the combine addresses")
        allred_g(LS, T, "v_add_f32")
        e(f"v_sub_f32 v{T+2}, 0, v{NEGM}\nv_mov_b32 v{T+3}, v{LS}")
        e(f"v_bfe_u32 v{T}, v0, 3, 1\nv_lshlrev_b32 v{T}, 5, v{T}\ns_lshl_b32 s63, s3, 3\ns_add_u32 s63, s63, {ML}\nv_add_u32 v{T}, s63, v{T}")
        e(f"ds_write_b64 v{T}, v[{T+2}:{T+3}]")
        ldsarrive(C3, T)
        e(f"""s_mov_b64 exec, -1
s_lshl_b32 s63, s3, 10
s_add_u32 s63, s63, {RED}
v_add_u32 v{VW2}, s63, v{VO}
v_lshrrev_b32 v2, 5, v0
v_lshlrev_b32 v3, 5, v2
v_add_u32 v3, {ML}, v3
s_lshl_b32 s63, s3, 3
v_add_u32 v9, s63, v3
v_lshlrev_b32 v4, 3, v0
v_lshlrev_b32 v5, 2, v2
v_and_b32 v6, 1, v0
v_lshl_add_u32 v6, v2, 1, v6
v_bfe_u32 v7, v0, 1, 4
v_lshl_add_u32 v6, v6, 4, v7
v_lshlrev_b32 v6, 4, v6
v_add_u32 v6, {RED}, v6
s_lshr_b32 s62, s9, 1
s_and_b32 s63, s9, 1
s_lshl_b32 s63, s63, 3
s_add_u32 s62, s62, s63
s_mul_i32 s63, s62, {GST}
s_add_u32 s63, s63, {GB}
v_add_u32 v7, s63, v4
s_lshl_b32 s63, s62, 3
s_add_u32 s63, s63, {LB}
v_add_u32 v8, s63, v5
s_lshl_b32 s63, s8, 4
s_add_u32 s63, s63, s62
s_mul_i32 s63, s63, {OSL}
s_add_u32 s63, s63, {OBUF}""")

    def factors():
        e(f"""; workgroup max and sum: v9 = this wave's normalizing factor, v27 = log2-sum-exp
v_mov_b32 v{T}, {C3}
s_mov_b32 s70, {LIMIT*8}
L_fw:
ds_read_b32 v{T+1}, v{T}
ds_read_b128 v[16:19], v3
ds_read_b128 v[20:23], v3 offset:16
ds_read_b32 v9, v9
s_waitcnt lgkmcnt(0)
v_readfirstlane_b32 s5, v{T+1}
s_cmp_ge_u32 s5, 4
s_cbranch_scc1 L_fd
s_sub_u32 s70, s70, 1
s_cbranch_scc1 L_fd
s_lshl_b32 s5, s3, 3
v_add_u32 v9, s5, v3
s_branch L_fw
L_fd:
v_max3_f32 v24, v16, v18, v20
v_max_f32 v24, v24, v22
v_sub_f32 v16, v16, v24
v_sub_f32 v18, v18, v24
v_sub_f32 v20, v20, v24
v_sub_f32 v22, v22, v24
v_sub_f32 v9, v9, v24
v_exp_f32 v16, v16
v_exp_f32 v18, v18
v_exp_f32 v20, v20
v_exp_f32 v22, v22
v_exp_f32 v9, v9
v_mul_f32 v25, v16, v17
v_fmac_f32 v25, v18, v19
v_fmac_f32 v25, v20, v21
v_fmac_f32 v25, v22, v23
v_rcp_f32 v26, v25
v_log_f32 v27, v25
v_mul_f32 v9, v9, v26
v_add_f32 v27, v27, v24
v_min_u32 v27, -2, v27""")

    def qread():
        stamp(6)
        e(f"; q fragments, s13 = store mode\nv_mov_b32 v{T}, {QF}\ns_mov_b32 s70, {LIMIT*8}\nL_qw:\nds_read_b32 v{T+1}, v{T}")
        for t in range(4):
            e(f"ds_read_b128 v[{Q+4*t}:{Q+4*t+3}], v{VW1} offset:{64*t}")
        e(f"""s_waitcnt lgkmcnt(0)
v_readfirstlane_b32 s13, v{T+1}
s_cmp_lg_u32 s13, 0
s_cbranch_scc1 L_qd
s_sub_u32 s70, s70, 1
s_cbranch_scc1 L_qd
s_sleep 2
s_branch L_qw
L_qd:""")
        stamp(7)

    def dep(n):
        return dm if n < 96 else d2

    landed = {}
    for n in range(128 + 64):
        for m in range(min(127, n - dep(n) - (boost if n < 128 else 0)) + 1):
            landed.setdefault(m, n)
    qslot = 32 + 4 * R - 3
    at(qslot, qread)
    kslot = {}
    for c in range(16):
        n0 = kslot[c] = max(landed[35 + 4 * c], qslot + 2 * c)
        assert c + R >= 16 or n0 + 1 < 32 + 4 * (c + R)
        at(n0, kread(c))
        at(n0 + 1, kmma(c))
        at(n0 + 2, kround(c))
    sA = kslot[7] + 3
    at(sA, maxA)
    for j in range(8):
        s0 = sA + 1 + 3 * j
        at(s0, pexp(j))
        for h in range(2):
            for fn in (aprep(j, 2 * h), aprep(j, 2 * h + 1), pv(j, 2 * h), pv(j, 2 * h + 1)):
                at(s0 + 1 + h, fn)
        assert s0 + 2 < 96 + 4 * j
        assert j == 7 or s0 + 2 < kslot[9 + j] + 1
    sB = kslot[15] + 3
    assert sA + 24 < sB and sB + 9 < 126
    at(sB, maxB)
    for j in range(8):
        at(sB + 1 + j, pexp(8 + j))
    at(sB + 9, mlwrite)
    at(127, factors)
    pre = {}
    last = 0
    for n in range(96, 128):
        j, r = (n - 96) // 4, n % 4
        s = max(landed[n], sB + 2 + j, last)
        while len(pre.get(s, [])) >= 4:
            s += 1
        last = s
        pre.setdefault(s, []).append((8 + j, r))
    nslots = max(max(work), last) + 1

    def t2load(j):
        e(f"buffer_load_dwordx4 v{VT2}, s[44:47], s72 offen nt lds")
        if j < 8:
            e(f"s_add_u32 s72, s72, s{74 if j % 3 == 2 else 73}\ns_add_u32 m0, m0, 1024")

    def cwait(depth):
        L = lab("w")
        e(f"s_waitcnt vmcnt({depth+boost-1})\ns_cbranch_vccnz {L}\ns_waitcnt vmcnt({depth-1})\n{L}:")

    def post(stage):
        e(f"v_mov_b32 v{VST}, {stage}\nds_write_b32 v{VPR}, v{VST}\nds_read_b32 v{VDE}, v{VDA}")

    def decide():
        e(f"s_waitcnt lgkmcnt(0)\nv_cmp_ne_u32 vcc, 0, v{VDE}")

    def vload(i, wait):
        if i % 4 == 0:
            e(f"s_xor_b32 s61, s60, {coff(i // 4)}")
        wait()
        V = VV + 4 * (i % 32)
        e(f"buffer_load_dwordx4 v[{V}:{V+3}], v{VO}, s[52:55], s61 offen offset:{(i % 4) * 1024} nt")

    def kload(i, depth):
        if i % 4 == 0:
            e(f"s_xor_b32 s62, s60, {coff(i // 4)}\ns_add_u32 m0, s67, {((i // 4) % R) * 4096}")
        cwait(depth)
        e(f"buffer_load_dwordx4 v{KD + i % 4}, s[48:51], s62 offen offset:{(i % 4) * 1024} nt lds")

    for p in range(18 + dw):
        if p == dw:
            e(f"s_lshl_b32 s5, s3, 2\ns_add_u32 s5, s5, {PRG}\nv_mov_b32 v{VPR}, s5\nv_mov_b32 v{VDA}, {DEC}\ns_barrier")
        if p > dw and p % 4 == 2:
            post(p // 4)
        if p == 18:
            vsetup()
        if p == 17 + dw:
            e(f"; this wave's part of the weight tile has landed\ns_waitcnt vmcnt({dw-1})")
            stamp(1)
            ldsarrive(C1, T)
            e("s_mov_b64 exec, -1")
        if p >= 18:
            vload(p - 18, lambda: e(f"s_waitcnt vmcnt({dw-1})"))
        else:
            if p >= dw:
                e(f"s_waitcnt vmcnt({dw-1})")
            e(f"buffer_load_dwordx4 v{VW1}, s[40:43], s72 offen nt lds")
            e(f"s_add_u32 s72, s72, s{62 if p % 3 < 2 else 63}\ns_add_u32 m0, m0, s{64 if p % 3 < 2 else 65}")
    e(f"""; tiles whose lines all have address bits [9:7] = 3 arrive late: start those workgroups on the deep queue
s_add_u32 s66, s40, s72
s_bfe_u32 s66, s66, 0x30007
s_cmp_eq_u32 s66, 3
s_cselect_b32 s66, 1, 0
s_cmp_ge_u32 s2, 208
s_cselect_b32 s66, 0, s66
s_waitcnt lgkmcnt(0)
v_mov_b32 v{VDE}, s66
ds_write_b32 v{VDA}, v{VDE}""")
    setup()
    decide()

    t2n = [0]

    def slot(n, t2):
        todo = pre.get(n, [])
        for (c, r) in todo:
            aprep(c, r)()
        if n == 32:
            stamp(2)
            e(f"; the K rings reuse the weight tile's LDS once it has been read\nv_mov_b32 v{T}, {C2}")
            ldsspin(T, 4, st=5)
        if n < 32 or 96 <= n < 128:
            vload(n if n < 32 else n - 64, lambda: cwait(dep(n)))
        elif n < 96:
            kload(n - 32, dep(n))
        else:
            if n - d2 <= 127:
                e(f"s_waitcnt vmcnt({127 - (n - d2) + (t2n[0] if t2 else 0)})")
            left = nslots - 1 - n
            if t2 and left > 0:
                for _ in range(-(-(8 - t2n[0]) // left)):
                    t2load(t2n[0])
                    t2n[0] += 1
        for (c, r) in todo:
            pv(c, r)()
        if n < 128 and n % 4 == 1:
            decide()
        if n < 128 and n % 4 == 0:
            post((n + 18) // 4)
        for fn in work.get(n, []):
            fn()

    for n in range(dw, 128):
        slot(n, False)
    e("; drain V; the wo / w_down roles queue their late tile behind it\ns_mov_b32 m0, s67\ns_sub_u32 s5, s2, 144\ns_cmp_lt_u32 s5, 64\ns_cbranch_scc1 L_tq")
    for n in range(128, nslots):
        slot(n, True)
    assert t2n[0] == 8
    e("s_branch L_tj\nL_tq:")
    for n in range(128, nslots):
        slot(n, False)
    e("L_tj:")
    for r in range(4):
        e(f"v_mul_f32 v{ACC+r}, v{ACC+r}, v9")
    e(f"ds_write_b128 v{VW2}, v[{ACC}:{ACC+3}]")
    stamp(4)
    e("s_cmp_lt_u32 s2, 208\ns_cbranch_scc1 L_t9")
    t2load(8)
    e("L_t9:\ns_waitcnt lgkmcnt(0)\ns_barrier\ns_cmp_lg_u32 s3, 0\ns_cbranch_scc1 L_sd")
    for w in range(4):
        e(f"ds_read_b128 v[{28+4*w}:{31+4*w}], v6 offset:{1024*w}")
    for w in range(1, 4):
        e(f"s_waitcnt lgkmcnt({3 - w})")
        for r in range(4):
            e(f"v_add_f32 v{28+r}, v{28+r}, v{28+4*w+r}")
    e("v_cvt_pk_bf16_f32 v28, v28, v29\nv_cvt_pk_bf16_f32 v29, v30, v31\nv_min_u32 v28, -2, v28\nv_min_u32 v29, -2, v29")
    dual("""buffer_store_dwordx2 v[28:29], v4, s[56:59], s63 offen POL
s_mov_b32 exec_lo, 1
s_mov_b32 exec_hi, 1
buffer_store_dword v27, v5, s[56:59], s63 offen offset:512 POL""", 13)
    e("ds_write_b32 v8, v27\ns_mov_b64 exec, -1\nds_write_b64 v7, v[28:29]")
    stamp(3)
    e("L_sd:\ns_waitcnt vmcnt(0) lgkmcnt(0)")
    stamp(5)
    e("s_barrier\ns_barrier\ns_branch L_fin")

    XN, WF, OF, AC, G, U = 16, 52, 160, 192, 208, 220
    e(f"""; ===== projection and hand-off waves (s4 = 0..3) =====
L_aux:
s_sub_u32 s4, s3, 4
v_mul_u32_u24 v1, 36, v0
s_mul_i32 s5, s4, 2304
v_lshlrev_b32 v2, 4, v0
v_mov_b32 v8, {CNT}
v_mov_b32 v4, 0
v_mov_b32 v5, 0
v_mov_b32 v6, 0
v_mov_b32 v7, 0
ds_write_b128 v8, v[4:7]
ds_write_b128 v8, v[4:7] offset:16
ds_write_b128 v8, v[4:7] offset:32
s_movk_i32 s42, 9216
s_mov_b32 s43, 0x20000
s_waitcnt lgkmcnt(0)
s_load_dword s14, s[38:39], 0
s_mov_b64 s[40:41], s[16:17]""")
    for k in range(3):
        e(f"buffer_load_dwordx3 v[{16+4*k}:{18+4*k}], v1, s[40:43], s5 offen offset:{12*k}")
    e("s_barrier")
    srd(56, 38, wsz)
    e(f"""s_add_u32 s13, s79, 64
s_bitcmp1_b32 s2, 3
s_cselect_b32 s60, 72, 0
s_add_u32 s13, s13, s60
s_cmp_ge_u32 s2, 144
s_cselect_b32 s13, s10, s13
s_lshl_b32 s13, s13, 11
s_add_u32 s13, s13, {PBUF}
s_getreg_b32 s78, hwreg(HW_REG_XCC_ID, 0, 4)
s_lshl_b32 s78, s78, 16
s_and_b32 s77, s2, 7
s_lshl_b32 s77, s77, 7
s_add_u32 s77, s77, {XID}
s_mov_b32 s68, 0xffff0000
s_mov_b32 s69, {f32(1/576)}
s_add_u32 s5, s5, {XS}
v_add_u32 v1, s5, v1
v_lshrrev_b32 v10, 4, v0
v_and_b32 v11, 15, v0
v_bfe_u32 v8, v0, 2, 2
v_lshl_add_u32 v12, v10, 3, v8
v_lshlrev_b32 v12, 7, v12
v_and_b32 v9, 3, v0
v_lshl_add_u32 v12, v9, 3, v12
v_lshrrev_b32 v13, 1, v8
v_and_b32 v8, 1, v10
v_lshl_or_b32 v13, v8, 1, v13
v_lshl_add_u32 v12, v13, 5, v12
s_lshl_b32 s60, s4, 5
v_xor_b32 v3, s60, v12
v_add_u32 v4, 0x10000, v3
v_and_b32 v14, 7, v0
v_bfe_u32 v15, v0, 2, 3
v_lshl_add_u32 v15, v9, 4, v15
v_lshlrev_b32 v15, 2, v15
v_mul_u32_u24 v5, 1152, v14
v_lshrrev_b32 v8, 3, v11
v_mul_u32_u24 v8, 576, v8
v_lshl_add_u32 v8, v10, 4, v8
v_add_u32 v5, v5, v8
v_add_u32 v5, {XS}, v5
s_mov_b32 s71, 0x07060302
v_and_b32 v57, 31, v0
v_lshlrev_b32 v57, 2, v57
s_waitcnt lgkmcnt(0)
s_add_u32 s14, s14, 1
s_and_b32 s15, s14, 0xffff
s_and_b32 s6, s14, 0xff
s_andn2_b32 s60, s14, 0xf0000
s_or_b32 s78, s78, s60
s_cmp_lg_u32 s4, 0
s_cbranch_scc1 L_a1
s_lshr_b32 s60, s2, 3
s_lshl_b32 s60, s60, 2
s_add_u32 s60, s60, s77
v_mov_b32 v8, s78
s_mov_b64 exec, 1
buffer_store_dword v8, v57, s[56:59], s60 offen
s_mov_b64 exec, -1
s_waitcnt vmcnt(1)
s_branch L_a2
L_a1:
s_waitcnt vmcnt(0)
L_a2:
; LayerNorm of two rows per wave, rounded to bf16 after every step like the reference""")
    raw = [16, 17, 18, 20, 21, 22, 24, 25, 26]

    def red32(v, t):
        for s in (8, 4, 2, 1):
            e(f"v_add_f32_dpp v{v}, v{v}, v{v} row_ror:{s} row_mask:0xf bank_mask:0xf")
        e(f"v_mov_b32 v{t}, v{v}\nv_permlane16_swap_b32 v{v}, v{t}\nv_add_f32 v{v}, v{v}, v{t}")

    for k in range(9):
        e(f"v_lshlrev_b32 v{28+2*k}, 16, v{raw[k]}\nv_and_b32 v{29+2*k}, s68, v{raw[k]}")
    e("v_pk_add_f32 v[46:47], v[28:29], v[30:31]")
    for k in range(2, 9):
        e(f"v_pk_add_f32 v[46:47], v[46:47], v[{28+2*k}:{29+2*k}]")
    e("v_add_f32 v46, v46, v47")
    red32(46, 47)
    e("v_mul_f32 v48, s69, v46\nv_sub_f32 v50, 0, v48\nv_sub_f32 v51, 0, v48")
    for k in range(9):
        e(f"v_pk_add_f32 v[8:9], v[{28+2*k}:{29+2*k}], v[50:51]")
        e("v_pk_mul_f32 v[46:47], v[8:9], v[8:9]" if k == 0 else "v_pk_fma_f32 v[46:47], v[8:9], v[8:9], v[46:47]")
    e("v_add_f32 v46, v46, v47")
    red32(46, 47)
    e("v_mul_f32 v46, s69, v46")
    rnd(46, 46)
    e(f"v_add_f32 v46, {f32(1e-5)}, v46")
    rnd(46, 46)
    e("v_sqrt_f32 v46, v46")
    rnd(46, 46)
    e("v_rcp_f32 v46, v46")
    rnd(50, 50)
    e("v_mov_b32 v51, v50\nv_mov_b32 v47, v46")
    for k in range(9):
        e(f"v_pk_add_f32 v[8:9], v[{28+2*k}:{29+2*k}], v[50:51]\nv_cvt_pk_bf16_f32 v9, v8, v9\nv_lshlrev_b32 v8, 16, v9\nv_and_b32 v9, s68, v9")
        e(f"v_pk_mul_f32 v[8:9], v[8:9], v[46:47]\nv_cvt_pk_bf16_f32 v{raw[k]}, v8, v9")
    for k in range(0, 8, 2):
        e(f"ds_write2_b32 v1, v{raw[k]}, v{raw[k+1]} offset0:{k} offset1:{k+1}")
    e(f"ds_write_b32 v1, v{raw[8]} offset:32")
    stamp(1)
    e(f"""v_mov_b32 v{G}, -1
v_mov_b32 v{G+1}, -1
v_mov_b32 v{G+2}, -1
v_mov_b32 v{G+3}, -1
s_lshl_b32 s61, s10, 2
s_add_u32 s61, s61, s4
s_mul_i32 s61, s61, {OSL}
s_add_u32 s61, s61, {OBUF}
v_mov_b32 v1, v57
s_waitcnt lgkmcnt(0)""")
    ldsarrive(C1, 8)
    e(f"""s_mov_b64 exec, -1
s_mov_b32 s70, 2
s_cmp_ge_u32 s2, 208
s_cbranch_scc1 L_a4
L_xid:
buffer_load_dword v{G+4}, v1, s[56:59], s77 offen sc1
s_waitcnt vmcnt(0)""")
    xidcheck(G + 4)
    e("""s_cmp_eq_u32 s7, 2
s_cbranch_scc1 L_xidd
s_sub_u32 s70, s70, 1
s_cbranch_scc0 L_xid
L_xidd:
s_cmp_lt_u32 s2, 144
s_cbranch_scc1 L_a4
s_mov_b32 exec_hi, 0xff""")
    dual(f"buffer_store_dwordx4 v[{G}:{G+3}], v2, s[56:59], s61 offen POL", 7)
    e("L_a4:\ns_mov_b64 exec, 1")
    ldsspin(8, 8)
    stamp(2)
    for i in range(9):
        e(f"ds_read_b128 v[{XN+4*i}:{XN+4*i+3}], v5 offset:{64*i}")
    for kk in range(18):
        trread(WF + 4 * kk, 3 if kk < 16 else 4, (kk % 16) * 4096)
    e(f"""s_lshl_b32 s60, s4, 9
s_add_u32 s60, s60, s13
v_mov_b32 v7, s68
v_mov_b32 v{CV}, {PRG}
s_lshr_b32 s61, s2, 3
s_lshl_b32 s61, s61, 2
v_mov_b32 v{CV+3}, s61
s_add_u32 s76, s77, {PLN - XID}
s_waitcnt lgkmcnt(0)""")
    ldsarrive(C2, 8)
    e("s_mov_b64 exec, -1\ns_cmp_ge_u32 s2, 208\ns_cbranch_scc1 L_aq")
    for i in range(9):
        for hf in range(2):
            mfma(AC + 4 * hf, WF + 4 * (9 * hf + i), XN + 4 * i, i == 0)
    for r in range(4):
        e(f"v_add_f32_dpp v{AC+r}, v{AC+4+r}, v{AC+r} row_ror:8 row_mask:0xf bank_mask:0xf")
    e(f"""; publish 8 x 16 values as (bf16 << 16 | tag)
v_cvt_pk_bf16_f32 v8, v{AC}, v{AC+1}
v_cvt_pk_bf16_f32 v9, v{AC+2}, v{AC+3}
ds_bpermute_b32 v8, v15, v8
ds_bpermute_b32 v9, v15, v9
s_waitcnt lgkmcnt(0)
v_lshl_or_b32 v16, v8, 16, s15
v_and_or_b32 v17, v8, v7, s15
v_lshl_or_b32 v18, v9, 16, s15
v_and_or_b32 v19, v9, v7, s15
s_waitcnt vmcnt(0)
s_mov_b32 exec_hi, 0""")
    dual("buffer_store_dwordx4 v[16:19], v2, s[56:59], s60 offen POL", 7)
    race = """s_mov_b64 s[60:61], 0
LOADS
s_waitcnt lgkmcnt(1)
s_add_u32 s62, s62, s60
s_sub_u32 s62, s62, s61
s_waitcnt lgkmcnt(0)"""
    la, lb = f"s_load_dword s60, s[38:39], {PRB} glc", f"s_load_dword s61, s[38:39], {PRB + 0x2000} glc"
    e(f"""s_mov_b32 exec_hi, -1
s_lshl_b32 s60, s4, 8
s_add_u32 s60, s60, s2
s_cmp_lg_u32 s60, {256 + 144}
s_cbranch_scc1 L_aq
v_lshlrev_b32 v8, 13, v0
v_mov_b32 v9, 1
s_mov_b32 s60, {PRB}
s_mov_b64 exec, 3
buffer_store_dword v9, v8, s[56:59], s60 offen sc1
s_mov_b64 exec, -1
s_mov_b32 s62, 0
s_mov_b32 s70, {trials - 1}
s_waitcnt vmcnt(0)
L_race:""")
    e(race.replace("LOADS", la + "\n" + lb))
    e(race.replace("LOADS", lb + "\n" + la))
    e(f"""s_sub_u32 s70, s70, 1
s_cbranch_scc0 L_race
s_cmp_lt_i32 s62, 0
s_cselect_b32 s60, 0x10000, 0
s_or_b32 s60, s60, s15
v_mov_b32 v8, s60
v_mov_b32 v9, s14
s_mov_b64 exec, 1
buffer_store_dwordx2 v[8:9], v2, s[56:59], 0 offen offset:{PAR} sc1
s_mov_b64 exec, -1
L_aq:""")
    control(T1)
    ldsspin(CV, T1, sleep=8, four=True)
    e(f"""; wave 3 gathers q for the stream waves
s_cmp_lg_u32 s4, 3
s_cbranch_scc1 L_a3
s_lshr_b32 s60, s9, 1
s_lshl_b32 s60, s60, 6
s_lshl_b32 s61, s8, 13
s_add_u32 s60, s60, s61
s_add_u32 s60, s60, {PBUF}
v_lshrrev_b32 v6, 2, v0
v_lshlrev_b32 v6, 9, v6
v_and_b32 v7, 3, v0
v_lshl_add_u32 v6, v7, 4, v6
buffer_load_dword v24, v1, s[56:59], s77 offen sc1""")
    poll("buffer_load_dwordx4 v[20:23], v6, s[56:59], s60 offen sc1 nt", tagcmp([20, 21, 22, 23], 7), 4)
    xidcheck(24)
    CEND = 136
    e(f"""v_perm_b32 v8, v21, v20, s71
v_perm_b32 v9, v23, v22, s71
v_lshlrev_b32 v6, 3, v0
v_add_u32 v6, {QS}, v6
ds_write_b64 v6, v[8:9]
v_mov_b32 v6, {QF}
v_mov_b32 v7, s7
s_waitcnt lgkmcnt(0)
ds_write_b32 v6, v7
L_a3:
v_mul_u32_u24 v4, {RING - 1024}, v10
v_add_u32 v4, v4, v3
v_mov_b32 v12, 0xffffff00
v_bfe_u32 v3, v0, 3, 1
v_lshlrev_b32 v3, 13, v3
v_lshl_add_u32 v3, v10, 15, v3
v_lshl_add_u32 v3, v14, 4, v3
s_and_b32 s64, s4, 1
s_lshl_b32 s65, s64, 12
s_lshr_b32 s61, s4, 1
s_lshl_b32 s61, s61, 14
s_add_u32 s65, s65, s61
s_lshl_b32 s61, s8, 7
s_add_u32 s65, s65, s61
s_add_u32 s65, s65, {PART}
s_cmp_lt_u32 s2, 144
s_cbranch_scc1 L_aO
s_cmp_ge_u32 s2, 208
s_cbranch_scc1 L_aD""")
    control(CEND)
    e(f"""s_branch L_fin
L_aD:
s_mul_i32 s60, s11, 9216
s_mul_i32 s61, s4, 2304
s_add_u32 s60, s60, s61
s_add_u32 s60, s60, {PBUF + 131072}
s_add_u32 s61, s60, {288 * 512}
s_mov_b32 s72, -1
s_mov_b32 s73, 0xffff
s_mov_b64 exec, s[72:73]""")
    poll("\n".join([f"buffer_load_dwordx4 v[{G+4*k}:{G+4*k+3}], v2, s[56:59], s60 offen offset:{768*k} sc1 nt" for k in range(3)] +
                   [f"buffer_load_dwordx4 v[{U+4*k}:{U+4*k+3}], v2, s[56:59], s61 offen offset:{768*k} sc1 nt" for k in range(3)]),
         tagcmp(list(range(G, G + 24)), 8), 8, restore="s[72:73]")
    c0 = -2 * LOG2E * 0.7978845608028654
    e(f"; gelu_tanh(g) = g / (1 + exp(-2 * sqrt(2/pi) * (g + 0.044715 g^3)))\nv_mov_b32 v32, {f32(c0)}\nv_mov_b32 v33, {f32(c0 * 0.044715)}\ns_mul_i32 s60, s4, 144")
    for k in range(6):
        e(f"""v_and_b32 v34, s68, v{G+2*k}
v_and_b32 v35, s68, v{G+2*k+1}
v_mul_f32 v36, v34, v34
v_mul_f32 v37, v35, v35
v_fma_f32 v36, v36, v33, v32
v_fma_f32 v37, v37, v33, v32
v_mul_f32 v36, v36, v34
v_mul_f32 v37, v37, v35
v_exp_f32 v36, v36
v_exp_f32 v37, v37
v_and_b32 v38, s68, v{U+2*k}
v_add_f32 v36, 1.0, v36
v_add_f32 v37, 1.0, v37
v_rcp_f32 v36, v36
v_rcp_f32 v37, v37
v_and_b32 v39, s68, v{U+2*k+1}
v_mul_f32 v34, v34, v36
v_mul_f32 v35, v35, v37
v_cvt_pk_bf16_f32 v35, v34, v35
v_lshlrev_b32 v34, 16, v35
v_and_b32 v35, s68, v35
v_mul_f32 v34, v34, v38
v_mul_f32 v35, v35, v39
v_cvt_pk_bf16_f32 v{40+k}, v34, v35""")
    for k in range(3):
        e(f"""v_add_u32 v34, s60, v0
v_bfe_u32 v35, v34, 2, 3
v_mul_u32_u24 v35, 576, v35
v_and_b32 v36, 3, v34
v_lshl_add_u32 v35, v36, 3, v35
v_and_b32 v34, 0xffe0, v34
v_add_u32 v35, v35, v34
v_add_u32 v35, {HS}, v35
ds_write_b64 v35, v[{40+2*k}:{41+2*k}]
s_add_u32 s60, s60, 48""")
    e("s_waitcnt lgkmcnt(0)")
    ldsarrive(CNT, 8)
    ldsspin(8, 4)
    e(f"v_mul_u32_u24 v5, 576, v14\nv_lshl_add_u32 v5, v10, 4, v5\nv_add_u32 v5, {HS}, v5")
    for i in range(9):
        e(f"ds_read_b128 v[{XN+4*i}:{XN+4*i+3}], v5 offset:{64*i}")
    e(f"""s_mul_i32 s60, s12, {3*65536}
s_add_u32 s60, s60, s65
s_add_u32 s60, s60, 2048
s_add_u32 s61, s60, 65536
s_add_u32 s62, s60, 131072
s_waitcnt lgkmcnt(0)""")
    for i in range(6):
        for sub in range(3):
            mfma(AC + 4 * sub, WF + 4 * (6 * sub + i), XN + 4 * i, i == 0)
    stamp(4)
    control(CEND)
    getside()
    e(f"; last 96 rows arrive with the late tile\ns_barrier\nds_read_b32 v{CV+4}, v{CV} offset:{SIDE - PRG}\ns_waitcnt lgkmcnt(0)\nv_xor_b32 v3, v3, v{CV+4}\ns_barrier")
    for j in range(9):
        trread(WF + 4 * j, 4, j * 1024)
    for j in range(9):
        if j % 3 == 0:
            e(f"s_waitcnt lgkmcnt({12 - 2 * j})")
        mfma(AC + 4 * (j % 3), WF + 4 * j, XN + 4 * (6 + j // 3), False)

    def publish(n, src, soffs):
        e("; partial outputs: f32 with the 8-bit tag in the low mantissa byte, whole 128 B lines")
        for r in range(4 * n):
            e(f"v_and_or_b32 v{src+r}, v{src+r}, v12, s6\nds_bpermute_b32 v{G+r}, v15, v{src+r}")
        e("s_mov_b32 exec_hi, 0")
        for k in range(n):
            e(f"s_waitcnt lgkmcnt({4 * (n - 1 - k)})\nbuffer_store_dwordx4 v[{G+4*k}:{G+4*k+3}], v3, s[56:59], s{soffs[k]} offen sc1")
        e("s_mov_b64 exec, -1")

    publish(3, AC, (60, 61, 62))
    stamp(7)
    e(f"""s_branch L_fin
L_aO:
s_lshl_b32 s61, s9, 16
s_add_u32 s65, s65, s61
v_mul_u32_u24 v6, {OSL}, v10
v_lshl_add_u32 v5, v11, 4, v6
s_lshl_b32 s62, s8, 2
s_add_u32 s62, s62, s4
s_mul_i32 s62, s62, {4*OSL}
s_add_u32 s62, s62, {OBUF}
s_mul_i32 s61, s4, {4*GST}
s_add_u32 s61, s61, {GB}
v_mul_u32_u24 v48, {GST}, v10
v_lshl_add_u32 v48, v11, 4, v48
v_add_u32 v48, s61, v48
s_lshl_b32 s61, s4, 5
s_add_u32 s61, s61, {LB}
v_lshl_add_u32 v49, v10, 3, s61
v_mul_u32_u24 v46, {GST}, v11
v_lshl_add_u32 v46, v10, 4, v46
v_add_u32 v46, {GB}, v46
v_lshlrev_b32 v47, 3, v11
v_add_u32 v47, {LB}, v47
s_andn2_b32 s74, s2, 6
s_and_b32 s61, s2, 2
s_lshl_b32 s61, s61, 1
s_or_b32 s74, s74, s61
s_lshl_b32 s74, s74, 12
s_lshl_b32 s61, s4, 5
s_add_u32 s74, s74, s61
s_add_u32 s74, s74, {PART}
v_lshrrev_b32 v8, 1, v0
v_lshlrev_b32 v7, 7, v8
v_and_b32 v8, 1, v0
v_lshl_add_u32 v7, v8, 4, v7
s_and_b32 s61, s2, 4
s_lshl_b32 s61, s61, 11
v_add_u32 v7, s61, v7
v_mov_b32 v26, 0xff
s_lshr_b32 s75, s8, 2
s_lshl_b32 s75, s75, 1
s_lshr_b32 s61, s4, 1
s_add_u32 s75, s75, s61
s_mul_i32 s75, s75, 1152
s_lshl_b32 s61, s9, 7
s_add_u32 s75, s75, s61
s_and_b32 s61, s8, 3
s_lshl_b32 s61, s61, 5
s_add_u32 s75, s75, s61
s_lshl_b32 s61, s64, 4
s_add_u32 s75, s75, s61
v_and_b32 v9, 1, v10
v_lshlrev_b32 v9, 1, v9
v_lshl_add_u32 v13, v8, 3, v9
v_bfe_u32 v9, v0, 3, 1
v_lshl_add_u32 v13, v9, 2, v13
buffer_load_ushort v50, v13, s[40:43], s75 offen
s_lshr_b32 s61, s9, 1
s_and_b32 s60, s9, 1
s_lshl_b32 s60, s60, 3
s_add_u32 s61, s61, s60
s_lshl_b32 s60, s4, 2
s_sub_u32 s61, s61, s60
v_cmp_ne_u32 s[72:73], s61, v10""")
    srd(48, 34, 9216)
    control(CEND)
    getside()
    e("s_waitcnt vmcnt(0)\nv_lshlrev_b32 v50, 16, v50\ns_mov_b64 exec, s[72:73]\ns_barrier")
    stamp(5)

    def wofrags(back):
        e(f"s_mov_b64 exec, -1\nds_read_b32 v{CV+4}, v{CV} offset:{SIDE - PRG}\ns_barrier")
        stamp(4)
        for ks in range(8):
            trread(OF + 4 * ks, 4, ks * 1024)
        if back:
            e(f"s_mov_b64 exec, {back}")

    oloads = """buffer_load_dwordx4 v[28:31], v5, s[56:59], s62 offen sc1
buffer_load_dwordx4 v[32:35], v5, s[56:59], s62 offen offset:256 sc1
buffer_load_dwordx2 v[36:37], v6, s[56:59], s62 offen offset:512 sc1"""
    owrite = "ds_write_b128 v48, v[28:31]\nds_write_b128 v48, v[32:35] offset:256\nds_write_b64 v49, v[36:37]"
    ocmp = sentcmp(range(28, 38), 38)
    e(oloads + "\ns_waitcnt vmcnt(0)\n" + ocmp + "\ns_cbranch_vccnz L_og1")
    e(owrite)
    wofrags(None)
    e("s_branch L_og2\nL_og1:\ns_mov_b64 exec, vcc")
    poll(oloads, ocmp, 0, first=lambda: wofrags("vcc"), restore="s[72:73]")
    e(owrite + "\ns_mov_b64 exec, -1\nL_og2:")
    stamp(6)
    e("s_waitcnt lgkmcnt(0)\ns_barrier\nds_read_b64 v[36:37], v47")
    order = [0, 4, 1, 5, 2, 6, 3, 7]
    for ks in order:
        e(f"ds_read_b128 v[{WF+4*ks}:{WF+4*ks+3}], v46 offset:{64*ks}")
    e("""s_waitcnt lgkmcnt(8)
v_sub_f32_dpp v38, v36, v36 row_ror:8 row_mask:0xf bank_mask:0xf
v_sub_f32_dpp v39, v37, v37 row_ror:8 row_mask:0xf bank_mask:0xf""")
    fill = ["v_exp_f32 v38, v38", "v_exp_f32 v39, v39", "v_add_f32 v38, 1.0, v38", "v_add_f32 v39, 1.0, v39", "v_rcp_f32 v38, v38", "v_rcp_f32 v39, v39", f"v_xor_b32 v3, v3, v{CV+4}", f"v_xor_b32 v7, v7, v{CV+4}"]
    for i, ks in enumerate(order):
        e(f"s_waitcnt lgkmcnt({7 - i})")
        mfma(AC + 4 * (ks // 4), OF + 4 * ks, WF + 4 * ks, ks % 4 == 0)
        if i < len(fill):
            e(fill[i])
    for r in range(4):
        e(f"v_mul_f32 v{AC+r}, v{AC+r}, v38")
    for r in range(4):
        e(f"v_fmac_f32 v{AC+r}, v{AC+4+r}, v39")
    for r in range(4):
        e(f"v_add_f32_dpp v{AC+r}, v{AC+r}, v{AC+r} row_ror:8 row_mask:0xf bank_mask:0xf")
    publish(1, AC, (65,))
    stamp(3)
    e("; final sum of 8 outputs: lanes 0-31 hold 16 attention partials, lanes 32-63 hold 16 FFN partials\ns_waitcnt vmcnt(0)")
    chk = "\n".join(f"v_xor_b32 v{16+i}, s6, v{16+i}" for i in range(4)) + "\nv_or3_b32 v24, v16, v17, v18\nv_bitop3_b32 v24, v24, v26, v19 bitop3:0xc8\nv_cmp_ne_u32 vcc, 0, v24"
    poll("buffer_load_dwordx4 v[16:19], v7, s[56:59], s74 offen sc1", chk, 0, quad=True)
    e("""v_permlane16_swap_b32 v16, v17
v_permlane16_swap_b32 v18, v19
v_add_f32 v17, v16, v17
v_add_f32 v18, v18, v19
v_add_f32_dpp v16, v17, v17 row_ror:8 row_mask:0xf bank_mask:0x3
v_add_f32_dpp v16, v18, v18 row_ror:8 row_mask:0xf bank_mask:0xc
v_add_f32_dpp v16, v16, v16 row_shl:4 row_mask:0xf bank_mask:0x5
v_add_f32_dpp v16, v16, v16 quad_perm:[2,3,0,1] row_mask:0xf bank_mask:0xf""")
    rnd(16, 16)
    e("v_add_f32 v17, v16, v50")
    rnd(17, 17)
    e("""v_permlane32_swap_b32 v16, v18
v_add_f32 v17, v17, v18
v_cvt_pk_bf16_f32 v17, v17, v17
s_mov_b32 exec_lo, 0x03030303
s_mov_b32 exec_hi, 0
buffer_store_short v17, v13, s[48:51], s75 offen
s_mov_b64 exec, 1
s_add_u32 s60, s2, s4
s_cmp_lg_u32 s60, 0
s_cbranch_scc1 L_o3
v_mov_b32 v19, s14
buffer_store_dword v19, v2, s[56:59], 0 offen
L_o3:""")
    stamp(7)
    e("L_fin:")
    if diag:
        e("s_mov_b64 exec, -1\ns_cmp_lt_u32 s3, 4\ns_cbranch_scc1 L_dg\ns_sub_u32 s60, s2, 144\ns_cmp_lt_u32 s60, 64\ns_cbranch_scc1 L_end\nL_dg:")
        e("s_waitcnt vmcnt(0)\ns_memrealtime s[76:77]\ns_waitcnt lgkmcnt(0)\ns_getreg_b32 s77, hwreg(HW_REG_HW_ID)")
        for i in range(8):
            e(f"v_mov_b32 v{16+i}, s{80+2*i}")
        e(f"v_mov_b32 v24, s76\nv_mov_b32 v25, s77\nv_mov_b32 v1, 0\ns_lshl_b32 s60, s2, 3\ns_add_u32 s60, s60, s3\ns_lshl_b32 s60, s60, 6\ns_add_u32 s60, s60, {STAMP}")
        e("s_mov_b64 exec, 1\nbuffer_store_dwordx4 v[16:19], v1, s[56:59], s60 offen\nbuffer_store_dwordx4 v[20:23], v1, s[56:59], s60 offen offset:16\nbuffer_store_dwordx2 v[24:25], v1, s[56:59], s60 offen offset:32")
    e("L_end:\ns_endpgm")
    e(f""".section .rodata,"a"
.p2align 6
.amdhsa_kernel {KN}
.amdhsa_next_free_vgpr 256
.amdhsa_next_free_sgpr 102
.amdhsa_accum_offset 256
.amdhsa_group_segment_fixed_size 0
.amdhsa_kernarg_size 96
.amdhsa_user_sgpr_count 2
.amdhsa_user_sgpr_kernarg_segment_ptr 1
.amdhsa_system_sgpr_workgroup_id_x 1
.amdhsa_float_denorm_mode_32 3
.end_amdhsa_kernel""")
    return top + e.text()


def summary(T, cfg):
    import numpy as np
    S = T[:, :4]; A = T[:144, 4:]; D = T[208:, 4:]
    wd = S[:, :, 4].max(1); m = wd.max()
    return dict(startmax=S[:, :, 0].max(), B1med=float(np.median(S[:, :, 1])), B1max=S[:, :, 1].max(), B2max=S[:, :, 2].max(), qwait=(S[:, :, 7] - S[:, :, 6]).max(),
                xcdspread=max(wd[i::8].mean() for i in range(8)) - wd.mean(), meandone=wd.mean(), maxdone=m, opub=S[:, 0, 3].max() - m, t2=S[:, :, 5].max() - m,
                dpub=D[:, :, 7].max() - m, ogath=A[:, :, 6].max() - m, ppub=A[:, :, 3].max() - m, out=A[:, :, 7].max() - m, end=A[:, :, 8].max())


if __name__ == "__main__":
    kw = eval("dict(" + (sys.argv[2] if len(sys.argv) > 2 else "") + ")")
    open(sys.argv[1], "w").write(gen(**kw))
```

```python
import sys, struct
sys.path.insert(0, "dev")
from asmlib import Asm

KN = "parallel_sum__sliding_block_cached__geglu_ffn__decode_kernel"
REF = "parallel_sum__sliding_block_cached__geglu_ffn__decode.s.ref"

R = 6
RING = R * 4096
XS = 4 * RING
QS = XS + 9216
HS = QS + 512
ML = HS + 4608
CNT = ML + 64
QF, C1, C2, PRG, DEC, C3 = CNT + 4, CNT + 8, CNT + 12, CNT + 16, CNT + 32, CNT + 36
SIDE = CNT + 40
LB = CNT + 64
RED = LB + 128
GB = RED + 4096
GST = 528
LDS_SZ = GB + 16 * GST
XID, PLN, PBUF, OBUF, PART = 0x400, 0x800, 0x1000, 0x70000, 0xA0000
PAR, PRB = 0x200, 0x6C000
OSL = 640
WS_SZ = PART + 144 * 4096
STAMP = 0x200000
LIMIT = 2000000
LOG2E = 1.4426950408889634

DOC = """;
;
;
"""


def f32(x):
    return "0x%08x" % struct.unpack("<I", struct.pack("<f", x))[0]


def gen(dw=6, dm=5, d2=6, boost=3, thr=16, T1=48, diag=0, wmap=0, T2=96, trials=3):
    e = Asm()
    uid = [0]
    wsz = WS_SZ if not diag else 0x400000

    def lab(p):
        uid[0] += 1
        return f"L_{p}{uid[0]}"

    def coff(c):
        return ((c & 1) << 14) | ((c >> 1) << 16) | ((c & 1) << 13) | ((c >> 1 & 1) << 15)

    def stamp(i):
        if diag:
            e(f"s_memrealtime s[{80 + 2 * i}:{81 + 2 * i}]")

    def srd(b, lo, size):
        e(f"s_mov_b32 s{b}, s{lo}\ns_mov_b32 s{b+1}, s{lo+1}\ns_mov_b32 s{b+2}, {size}\ns_mov_b32 s{b+3}, 0x20000")

    def rnd(dst, src):
        e(f"v_cvt_pk_bf16_f32 v{dst}, v{src}, v{src}\nv_lshlrev_b32 v{dst}, 16, v{dst}")

    def poll(loads, cmp, sleep, restore="-1", quad=False, first=None):
        L = lab("poll")
        e(f"s_mov_b32 s70, {LIMIT}")
        if first:
            e(loads)
            first()
            e(f"s_branch {L}_w")
        e(f"{L}:")
        e(loads)
        e(f"{L}_w:\ns_waitcnt vmcnt(0)")
        e(cmp)
        e(f"s_cbranch_vccz {L}_d" if quad else f"s_and_b64 exec, exec, vcc\ns_cbranch_scc0 {L}_d")
        e(f"s_sub_u32 s70, s70, 1\ns_cbranch_scc1 {L}_d")
        if quad:
            e("s_wqm_b64 exec, vcc")
        if sleep:
            e(f"s_sleep {sleep}")
        e(f"s_branch {L}\n{L}_d:\ns_mov_b64 exec, {restore}")

    def dual(stores, mode):
        L = lab("st")
        e(f"s_cmp_eq_u32 s{mode}, 2\ns_cbranch_scc0 {L}")
        e(stores.replace("POL", ""))
        e(f"s_branch {L}_d\n{L}:")
        e(stores.replace("POL", "sc1"))
        e(f"{L}_d:")

    def xidcheck(v):
        e(f"v_cmp_ne_u32 vcc, s78, v{v}\ns_cmp_eq_u32 vcc_lo, 0\ns_cselect_b32 s7, 2, 1")

    def ldsarrive(addr, va):
        e(f"s_mov_b64 exec, 1\nv_mov_b32 v{va}, {addr}\nv_mov_b32 v{va+1}, 1\nds_add_u32 v{va}, v{va+1}")

    def ldsspin(va, count, st=60, sleep=2, four=False):
        L = lab("spin")
        e(f"s_mov_b32 s70, {LIMIT*8}\n{L}:")
        if four:
            e(f"ds_read_b128 v[{va+4}:{va+7}], v{va}\ns_waitcnt lgkmcnt(0)\nv_add3_u32 v{va+1}, v{va+4}, v{va+5}, v{va+6}\nv_add_u32 v{va+1}, v{va+1}, v{va+7}")
        else:
            e(f"ds_read_b32 v{va+1}, v{va}\ns_waitcnt lgkmcnt(0)")
        e(f"""v_readfirstlane_b32 s{st}, v{va+1}
s_cmp_ge_u32 s{st}, {count}
s_cbranch_scc1 {L}_d
s_sub_u32 s70, s70, 1
s_cbranch_scc1 {L}_d
s_sleep {sleep}
s_branch {L}
{L}_d:
s_mov_b64 exec, -1""")

    CV = 232

    def control(until):
        L = lab("ctl")
        e(f"""; wave 2: post the stream position, count group members that are ahead, select the queue depth
s_cmp_lg_u32 s4, 2
s_cbranch_scc1 {L}_d
s_mov_b32 s70, {LIMIT}
{L}:
ds_read_b128 v[{CV+4}:{CV+7}], v{CV}
s_waitcnt lgkmcnt(0)
v_add3_u32 v{CV+1}, v{CV+4}, v{CV+5}, v{CV+6}
v_add_u32 v{CV+1}, v{CV+1}, v{CV+7}
v_readfirstlane_b32 s66, v{CV+1}
v_lshl_or_b32 v{CV+1}, v{CV+1}, 16, s15
s_mov_b64 exec, 1
buffer_store_dword v{CV+1}, v{CV+3}, s[56:59], s76 offen
s_mov_b64 exec, -1
s_cmp_ge_u32 s66, {until}
s_cbranch_scc1 {L}_d
buffer_load_dword v{CV+4}, v1, s[56:59], s76 offen sc1
v_add_u32 v{CV+1}, 0x10000, v{CV+1}
s_waitcnt vmcnt(0)
v_sub_u32 v{CV+4}, v{CV+4}, v{CV+1}
v_and_b32 v{CV+4}, 0x8000ffff, v{CV+4}
v_cmp_eq_u32 vcc, 0, v{CV+4}
s_bcnt1_i32_b32 s66, vcc_lo
s_cmp_ge_u32 s66, {thr}
s_cselect_b32 s66, 1, 0
v_mov_b32 v{CV+4}, s66
ds_write_b32 v{CV}, v{CV+4} offset:{DEC - PRG}
s_sub_u32 s70, s70, 1
s_cbranch_scc0 {L}
{L}_d:""")

    def getside():
        L = lab("side")
        e(f"; wave 3 fetches the announced bit for the partial output layout\ns_cmp_lg_u32 s4, 3\ns_cbranch_scc1 {L}")
        ldsspin(CV, T2, st=5, sleep=16, four=True)
        e(f"v_mov_b32 v{CV+2}, 0")
        poll(f"buffer_load_dwordx2 v[{CV+4}:{CV+5}], v{CV+2}, s[56:59], 0 offen offset:{PAR} sc1",
             f"v_xor_b32 v{CV+6}, s15, v{CV+4}\nv_and_b32 v{CV+6}, 0xfffeffff, v{CV+6}\nv_xor_b32 v{CV+5}, s14, v{CV+5}\nv_or_b32 v{CV+6}, v{CV+6}, v{CV+5}\nv_cmp_ne_u32 vcc, 0, v{CV+6}", 16)
        e(f"v_bfe_u32 v{CV+4}, v{CV+4}, 16, 1\nv_lshlrev_b32 v{CV+4}, 13, v{CV+4}\nds_write_b32 v{CV}, v{CV+4} offset:{SIDE - PRG}\ns_waitcnt lgkmcnt(0)\n{L}:")

    def sentcmp(regs, tmp):
        r = list(regs)
        out = []
        cur = r.pop(0)
        while r:
            out.append(f"v_max3_u32 v{tmp}, v{cur}, v{r[0]}, v{r[1]}" if len(r) > 1 else f"v_max_u32 v{tmp}, v{cur}, v{r[0]}")
            r = r[2:]
            cur = tmp
        out.append(f"v_cmp_eq_u32 vcc, -1, v{cur}")
        return "\n".join(out)

    def tagcmp(regs, tmp):
        out = [f"v_xor_b32 v{tmp}, s15, v{regs[0]}"]
        for r in regs[1:]:
            out.append(f"v_bitop3_b32 v{tmp}, v{r}, v{tmp}, s15 bitop3:0xde")
        out.append(f"v_and_b32 v{tmp}, 0xffff, v{tmp}\nv_cmp_ne_u32 vcc, 0, v{tmp}")
        return "\n".join(out)

    def allred_g(v, t, op):
        e(f"v_mov_b32 v{t}, v{v}\nv_permlane16_swap_b32 v{v}, v{t}\n{op} v{v}, v{v}, v{t}")
        e(f"v_mov_b32 v{t}, v{v}\nv_permlane32_swap_b32 v{v}, v{t}\n{op} v{v}, v{v}, v{t}")

    def mfma(D, A, B, first):
        e(f"v_mfma_f32_16x16x32_bf16 v[{D}:{D+3}], v[{A}:{A+3}], v[{B}:{B+3}], {'0' if first else f'v[{D}:{D+3}]'}")

    def trread(dst, addr, off):
        for hf in range(2):
            e(f"ds_read_b64_tr_b16 v[{dst+2*hf}:{dst+2*hf+1}], v{addr} offset:{off + hf * 512}")

    hdr = [l.rstrip("\n") for l in open(REF) if l.startswith(";") and "@launch" not in l and "Override" not in l and "grid=ceil" not in l]
    top = "\n".join(hdr) + f"\n; @launch grid=(256,1,1) block=(512,1,1) lds={LDS_SZ}\n" + DOC
    e(f""".amdgcn_target "amdgcn-amd-amdhsa--gfx950"
.text
.globl {KN}
.p2align 8
.type {KN},@function
{KN}:
s_cmp_ge_u32 s2, 256
s_cbranch_scc1 L_end
s_load_dwordx16 s[16:31], s[0:1], 0
s_load_dwordx8 s[32:39], s[0:1], 64""")
    if wmap:
        e("s_lshr_b32 s5, s2, 4\ns_add_u32 s6, s2, s5\ns_and_b32 s6, s6, 15\ns_andn2_b32 s2, s2, 15\ns_or_b32 s2, s2, s6")
    stamp(0)
    e("""v_lshrrev_b32 v1, 6, v0
v_and_b32 v0, 63, v0
v_readfirstlane_b32 s3, v1
s_xor_b32 s3, s3, 4
s_and_b32 s8, s2, 15
s_lshr_b32 s9, s2, 4
s_sub_u32 s12, s9, 13
s_lshl_b32 s10, s8, 2
s_add_u32 s10, s10, s9
s_sub_u32 s10, s10, 9
s_and_b32 s5, s2, 7
s_bfe_u32 s6, s2, 0x10003
s_lshl_b32 s11, s5, 1
s_add_u32 s11, s11, s6
s_mul_i32 s79, s5, 9
s_add_u32 s79, s79, s9
s_cmp_ge_u32 s3, 4
s_cbranch_scc1 L_aux""")

    VO, KD, KR, MK, VW1, VW2, Q, KF, AB, ACC, T, SP = 1, 2, 6, 10, 14, 15, 16, 32, 48, 64, 68, 84
    MRUN, NEGM, LS, VT2, VST, VPR, VDE, VDA, VV = 120, 121, 122, 123, 124, 125, 126, 127, 128
    e(f"""; ===== stream waves (s3 = 0..3) =====
v_lshrrev_b32 v1, 3, v0
v_and_b32 v2, 7, v0
v_and_b32 v3, 2, v1
s_and_b32 s5, s3, 1
s_lshl_b32 s5, s5, 2
v_or_b32 v3, s5, v3
v_xor_b32 v2, v2, v3
v_lshlrev_b32 v2, 4, v2
s_lshl_b32 m0, s3, 10
s_mov_b32 s43, 0x20000
s_lshl_b32 s60, s79, 7
s_lshl_b32 s5, s10, 7
s_movk_i32 s7, 9216
s_mov_b32 s42, {576*9216}
s_cmp_ge_u32 s2, 144
s_cselect_b32 s60, s5, s60
s_cselect_b32 s7, 8192, s7
s_cselect_b32 s42, {576*8192}, s42
s_mul_i32 s5, s11, {288*1152}
s_mul_i32 s6, s12, 384
s_add_u32 s5, s5, s6
s_lshl_b32 s62, s7, 5
s_movk_i32 s64, 4096
s_cmp_ge_u32 s2, 208
s_cselect_b32 s60, s5, s60
s_cselect_b32 s7, 1152, s7
s_cselect_b32 s42, {4608*1152}, s42
s_cselect_b32 s63, {36864-256}, s62
s_cselect_b32 s62, 128, s62
s_cselect_b32 s65, {4096-49152}, s64
s_cselect_b32 s64, 24576, s64
s_mul_i32 s5, s3, s7
s_lshl_b32 s5, s5, 3
s_add_u32 s72, s60, s5
v_mad_u32_u24 v{VW1}, v1, s7, v2
s_bitcmp1_b32 s2, 3
s_waitcnt lgkmcnt(0)
s_cselect_b64 s[40:41], s[30:31], s[28:29]
s_cmp_ge_u32 s2, 144
s_cselect_b64 s[40:41], s[22:23], s[40:41]
s_cmp_ge_u32 s2, 208
s_cselect_b64 s[40:41], s[32:33], s[40:41]""")

    def vsetup():
        e("; s60 = this wave's base inside the K / V window")
        srd(52, 20, 0x10000000)
        e(f"""s_lshr_b32 s60, s9, 1
s_lshl_b32 s60, s60, 4
s_add_u32 s60, s60, s8
s_lshl_b32 s60, s60, 21
s_and_b32 s61, s9, 1
s_lshl_b32 s61, s61, 15
s_add_u32 s60, s60, s61
s_lshl_b32 s61, s3, 12
s_add_u32 s60, s60, s61
s_add_u32 s60, s60, {6144*256}
v_mul_u32_u24 v{VT2}, 1152, v1
v_add_u32 v{VT2}, v{VT2}, v2
v_lshlrev_b32 v{VO}, 4, v0""")

    work = {}

    def at(slot, fn):
        work.setdefault(slot, []).append(fn)

    def setup():
        e("; late tile descriptor, K swizzle addresses, diagonal masks for the P operand")
        srd(48, 18, 0x10000000)
        srd(56, 38, wsz)
        e(f"""s_mul_i32 s67, s3, {RING}
s_mul_i32 s5, s8, {256*1152}
s_mul_i32 s6, s3, {8*1152}
s_add_u32 s5, s5, s6
s_lshl_b32 s6, s9, 7
s_add_u32 s5, s5, s6
s_mov_b32 s46, {4096*1152}
s_mov_b32 s47, 0x20000
s_cmp_ge_u32 s2, 208
s_cselect_b32 s72, s72, s5
s_cselect_b32 s73, s62, {32*1152}
s_cselect_b32 s74, s63, {32*1152}
s_cselect_b64 s[44:45], s[32:33], s[24:25]
s_cselect_b32 s46, s42, s46""")
        e(f"v_lshrrev_b32 v{T}, 4, v0\nv_and_b32 v{T+1}, 15, v0\nv_lshlrev_b32 v{T+2}, 2, v{T}\nv_xor_b32 v{T+2}, v{T+2}, v{T+1}")
        e(f"v_lshlrev_b32 v{T+2}, 4, v{T+2}\nv_lshl_add_u32 v{KD}, v{T}, 8, v{T+2}")
        for r in range(1, 4):
            e(f"v_xor_b32 v{KD+r}, {16*r}, v{KD}")
        e(f"v_and_b32 v{T+2}, 3, v0\nv_lshlrev_b32 v{T+2}, 2, v{T+2}\nv_lshrrev_b32 v{T+3}, 2, v{T+1}\nv_or_b32 v{T+2}, v{T+2}, v{T+3}")
        e(f"v_lshl_add_u32 v{T+2}, v{T+2}, 8, s67\nv_xor_b32 v{T+3}, v{T}, v{T+1}\nv_lshl_add_u32 v{KR}, v{T+3}, 4, v{T+2}")
        for t in range(1, 4):
            e(f"v_xor_b32 v{KR+t}, {64*t}, v{KR}")
        e(f"v_and_b32 v{T+2}, 1, v0\nv_lshlrev_b32 v{T+2}, 4, v{T+2}\nv_mov_b32 v{T+3}, 0xffff\nv_lshlrev_b32 v{T+3}, v{T+2}, v{T+3}\nv_bfe_u32 v{T+2}, v0, 1, 2")
        for r in range(4):
            e(f"v_cmp_eq_u32 vcc, {r}, v{T+2}\nv_cndmask_b32 v{MK+r}, 0, v{T+3}, vcc")
        e(f"v_lshrrev_b32 v{T+2}, 3, v{T+1}\nv_lshlrev_b32 v{T+2}, 8, v{T+2}\nv_lshl_add_u32 v{T+2}, v{T}, 4, v{T+2}\nv_add_u32 v{VW1}, {QS}, v{T+2}")
        e(f"s_mov_b32 s68, 0xffff0000\ns_mov_b32 s69, {f32(128 ** -0.5)}\ns_mov_b32 s71, {f32(LOG2E)}")
        e(f"v_mov_b32 v{LS}, 0\nv_mov_b32 v{MRUN}, 0xff800000")
        for r in range(4):
            e(f"v_mov_b32 v{ACC+r}, 0")

    def sreg(c):
        return SP + 4 * (c if c < 8 else (8 if c == 8 else c - 9))

    def kread(c):
        def f():
            e(f"; K chunk {c}: fragments")
            for t in range(4):
                e(f"ds_read_b128 v[{KF+4*t}:{KF+4*t+3}], v{KR+t} offset:{(c % R) * 4096}")
        return f

    def kmma(c):
        def f():
            e(f"; K chunk {c}: scores\ns_waitcnt lgkmcnt(0)")
            for t in range(4):
                mfma(sreg(c), KF + 4 * t, Q + 4 * t, t == 0)
        return f

    def kround(c):
        def f():
            S = sreg(c)
            for k in range(2):
                e(f"v_cvt_pk_bf16_f32 v{T}, v{S}, v{S+1}\nv_cvt_pk_bf16_f32 v{T+1}, v{S+2}, v{S+3}")
                e(f"v_lshlrev_b32 v{S}, 16, v{T}\nv_and_b32 v{S+1}, s68, v{T}\nv_lshlrev_b32 v{S+2}, 16, v{T+1}\nv_and_b32 v{S+3}, s68, v{T+1}")
                if k == 0:
                    for r in range(4):
                        e(f"v_mul_f32 v{S+r}, s69, v{S+r}")
            e(f"v_max3_f32 v{MRUN}, v{MRUN}, v{S}, v{S+1}\nv_max3_f32 v{MRUN}, v{MRUN}, v{S+2}, v{S+3}")
        return f

    def maxA():
        e("; max over the first 128 keys of this wave")
        allred_g(MRUN, T, "v_max_f32")
        e(f"v_mul_f32 v{NEGM}, s71, v{MRUN}\nv_sub_f32 v{NEGM}, 0, v{NEGM}")

    def maxB():
        e("; max over all 256 keys, rescale of the running sum and accumulator")
        allred_g(MRUN, T, "v_max_f32")
        e(f"v_mul_f32 v{T+1}, s71, v{MRUN}\nv_add_f32 v{T+2}, v{NEGM}, v{T+1}\nv_sub_f32 v{NEGM}, 0, v{T+1}\nv_exp_f32 v{T+2}, -v{T+2}")
        e(f"v_mul_f32 v{LS}, v{LS}, v{T+2}\nv_mov_b32 v{T+3}, v{T+2}")
        e(f"v_mov_b32_dpp v{T+3}, v{T+2} row_ror:8 row_mask:0x3 bank_mask:0xc\nv_mov_b32_dpp v{T+3}, v{T+2} row_ror:8 row_mask:0xc bank_mask:0x3")
        for r in range(4):
            e(f"v_mul_f32 v{ACC+r}, v{ACC+r}, v{T+3}")

    def pexp(c):
        def f():
            S = sreg(c)
            for r in range(4):
                e(f"v_fma_f32 v{S+r}, v{S+r}, s71, v{NEGM}")
            for r in range(4):
                e(f"v_exp_f32 v{S+r}, v{S+r}")
            e(f"v_add_f32 v{T}, v{S}, v{S+1}\nv_add_f32 v{T+1}, v{S+2}, v{S+3}\nv_add_f32 v{LS}, v{LS}, v{T}\nv_add_f32 v{LS}, v{LS}, v{T+1}")
            for r in range(4):
                e(f"v_cvt_pk_bf16_f32 v{S+r}, v{S+r}, v{S+r}")
        return f

    def aprep(c, r):
        def f():
            for k in range(4):
                e(f"v_and_b32 v{AB+4*r+k}, v{sreg(c)+r}, v{MK+k}")
        return f

    def pv(c, r):
        def f():
            mfma(ACC, AB + 4 * r, VV + 16 * (c % 8) + 4 * r, False)
        return f

    def mlwrite():
        e("; publish this wave's max and sum in LDS, prepare the combine addresses")
        allred_g(LS, T, "v_add_f32")
        e(f"v_sub_f32 v{T+2}, 0, v{NEGM}\nv_mov_b32 v{T+3}, v{LS}")
        e(f"v_bfe_u32 v{T}, v0, 3, 1\nv_lshlrev_b32 v{T}, 5, v{T}\ns_lshl_b32 s63, s3, 3\ns_add_u32 s63, s63, {ML}\nv_add_u32 v{T}, s63, v{T}")
        e(f"ds_write_b64 v{T}, v[{T+2}:{T+3}]")
        ldsarrive(C3, T)
        e(f"""s_mov_b64 exec, -1
s_lshl_b32 s63, s3, 10
s_add_u32 s63, s63, {RED}
v_add_u32 v{VW2}, s63, v{VO}
v_lshrrev_b32 v2, 5, v0
v_lshlrev_b32 v3, 5, v2
v_add_u32 v3, {ML}, v3
s_lshl_b32 s63, s3, 3
v_add_u32 v9, s63, v3
v_lshlrev_b32 v4, 3, v0
v_lshlrev_b32 v5, 2, v2
v_and_b32 v6, 1, v0
v_lshl_add_u32 v6, v2, 1, v6
v_bfe_u32 v7, v0, 1, 4
v_lshl_add_u32 v6, v6, 4, v7
v_lshlrev_b32 v6, 4, v6
v_add_u32 v6, {RED}, v6
s_lshr_b32 s62, s9, 1
s_and_b32 s63, s9, 1
s_lshl_b32 s63, s63, 3
s_add_u32 s62, s62, s63
s_mul_i32 s63, s62, {GST}
s_add_u32 s63, s63, {GB}
v_add_u32 v7, s63, v4
s_lshl_b32 s63, s62, 3
s_add_u32 s63, s63, {LB}
v_add_u32 v8, s63, v5
s_lshl_b32 s63, s8, 4
s_add_u32 s63, s63, s62
s_mul_i32 s63, s63, {OSL}
s_add_u32 s63, s63, {OBUF}""")

    def factors():
        e(f"""; workgroup max and sum: v9 = this wave's normalizing factor, v27 = log2-sum-exp
v_mov_b32 v{T}, {C3}
s_mov_b32 s70, {LIMIT*8}
L_fw:
ds_read_b32 v{T+1}, v{T}
ds_read_b128 v[16:19], v3
ds_read_b128 v[20:23], v3 offset:16
ds_read_b32 v9, v9
s_waitcnt lgkmcnt(0)
v_readfirstlane_b32 s5, v{T+1}
s_cmp_ge_u32 s5, 4
s_cbranch_scc1 L_fd
s_sub_u32 s70, s70, 1
s_cbranch_scc1 L_fd
s_lshl_b32 s5, s3, 3
v_add_u32 v9, s5, v3
s_branch L_fw
L_fd:
v_max3_f32 v24, v16, v18, v20
v_max_f32 v24, v24, v22
v_sub_f32 v16, v16, v24
v_sub_f32 v18, v18, v24
v_sub_f32 v20, v20, v24
v_sub_f32 v22, v22, v24
v_sub_f32 v9, v9, v24
v_exp_f32 v16, v16
v_exp_f32 v18, v18
v_exp_f32 v20, v20
v_exp_f32 v22, v22
v_exp_f32 v9, v9
v_mul_f32 v25, v16, v17
v_fmac_f32 v25, v18, v19
v_fmac_f32 v25, v20, v21
v_fmac_f32 v25, v22, v23
v_rcp_f32 v26, v25
v_log_f32 v27, v25
v_mul_f32 v9, v9, v26
v_add_f32 v27, v27, v24
v_min_u32 v27, -2, v27""")

    def qread():
        stamp(6)
        e(f"; q fragments, s13 = store mode\nv_mov_b32 v{T}, {QF}\ns_mov_b32 s70, {LIMIT*8}\nL_qw:\nds_read_b32 v{T+1}, v{T}")
        for t in range(4):
            e(f"ds_read_b128 v[{Q+4*t}:{Q+4*t+3}], v{VW1} offset:{64*t}")
        e(f"""s_waitcnt lgkmcnt(0)
v_readfirstlane_b32 s13, v{T+1}
s_cmp_lg_u32 s13, 0
s_cbranch_scc1 L_qd
s_sub_u32 s70, s70, 1
s_cbranch_scc1 L_qd
s_sleep 2
s_branch L_qw
L_qd:""")
        stamp(7)

    def dep(n):
        return dm if n < 96 else d2

    landed = {}
    for n in range(128 + 64):
        for m in range(min(127, n - dep(n) - (boost if n < 128 else 0)) + 1):
            landed.setdefault(m, n)
    qslot = 32 + 4 * R - 3
    at(qslot, qread)
    kslot = {}
    for c in range(16):
        n0 = kslot[c] = max(landed[35 + 4 * c], qslot + 2 * c)
        assert c + R >= 16 or n0 + 1 < 32 + 4 * (c + R)
        at(n0, kread(c))
        at(n0 + 1, kmma(c))
        at(n0 + 2, kround(c))
    sA = kslot[7] + 3
    at(sA, maxA)
    for j in range(8):
        s0 = sA + 1 + 3 * j
        at(s0, pexp(j))
        for h in range(2):
            for fn in (aprep(j, 2 * h), aprep(j, 2 * h + 1), pv(j, 2 * h), pv(j, 2 * h + 1)):
                at(s0 + 1 + h, fn)
        assert s0 + 2 < 96 + 4 * j
        assert j == 7 or s0 + 2 < kslot[9 + j] + 1
    sB = kslot[15] + 3
    assert sA + 24 < sB and sB + 9 < 126
    at(sB, maxB)
    for j in range(8):
        at(sB + 1 + j, pexp(8 + j))
    at(sB + 9, mlwrite)
    at(127, factors)
    pre = {}
    last = 0
    for n in range(96, 128):
        j, r = (n - 96) // 4, n % 4
        s = max(landed[n], sB + 2 + j, last)
        while len(pre.get(s, [])) >= 4:
            s += 1
        last = s
        pre.setdefault(s, []).append((8 + j, r))
    nslots = max(max(work), last) + 1

    def t2load(j):
        e(f"buffer_load_dwordx4 v{VT2}, s[44:47], s72 offen nt lds")
        if j < 8:
            e(f"s_add_u32 s72, s72, s{74 if j % 3 == 2 else 73}\ns_add_u32 m0, m0, 1024")

    def cwait(depth):
        L = lab("w")
        e(f"s_waitcnt vmcnt({depth+boost-1})\ns_cbranch_vccnz {L}\ns_waitcnt vmcnt({depth-1})\n{L}:")

    def post(stage):
        e(f"v_mov_b32 v{VST}, {stage}\nds_write_b32 v{VPR}, v{VST}\nds_read_b32 v{VDE}, v{VDA}")

    def decide():
        e(f"s_waitcnt lgkmcnt(0)\nv_cmp_ne_u32 vcc, 0, v{VDE}")

    def vload(i, wait):
        if i % 4 == 0:
            e(f"s_xor_b32 s61, s60, {coff(i // 4)}")
        wait()
        V = VV + 4 * (i % 32)
        e(f"buffer_load_dwordx4 v[{V}:{V+3}], v{VO}, s[52:55], s61 offen offset:{(i % 4) * 1024} nt")

    def kload(i, depth):
        if i % 4 == 0:
            e(f"s_xor_b32 s62, s60, {coff(i // 4)}\ns_add_u32 m0, s67, {((i // 4) % R) * 4096}")
        cwait(depth)
        e(f"buffer_load_dwordx4 v{KD + i % 4}, s[48:51], s62 offen offset:{(i % 4) * 1024} nt lds")

    for p in range(18 + dw):
        if p == dw:
            e(f"s_lshl_b32 s5, s3, 2\ns_add_u32 s5, s5, {PRG}\nv_mov_b32 v{VPR}, s5\nv_mov_b32 v{VDA}, {DEC}\ns_barrier")
        if p > dw and p % 4 == 2:
            post(p // 4)
        if p == 18:
            vsetup()
        if p == 17 + dw:
            e(f"; this wave's part of the weight tile has landed\ns_waitcnt vmcnt({dw-1})")
            stamp(1)
            ldsarrive(C1, T)
            e("s_mov_b64 exec, -1")
        if p >= 18:
            vload(p - 18, lambda: e(f"s_waitcnt vmcnt({dw-1})"))
        else:
            if p >= dw:
                e(f"s_waitcnt vmcnt({dw-1})")
            e(f"buffer_load_dwordx4 v{VW1}, s[40:43], s72 offen nt lds")
            e(f"s_add_u32 s72, s72, s{62 if p % 3 < 2 else 63}\ns_add_u32 m0, m0, s{64 if p % 3 < 2 else 65}")
    e(f"""; tiles whose lines all have address bits [9:7] = 3 arrive late: start those workgroups on the deep queue
s_add_u32 s66, s40, s72
s_bfe_u32 s66, s66, 0x30007
s_cmp_eq_u32 s66, 3
s_cselect_b32 s66, 1, 0
s_cmp_ge_u32 s2, 208
s_cselect_b32 s66, 0, s66
s_waitcnt lgkmcnt(0)
v_mov_b32 v{VDE}, s66
ds_write_b32 v{VDA}, v{VDE}""")
    setup()
    decide()

    t2n = [0]

    def slot(n, t2):
        todo = pre.get(n, [])
        for (c, r) in todo:
            aprep(c, r)()
        if n == 32:
            stamp(2)
            e(f"; the K rings reuse the weight tile's LDS once it has been read\nv_mov_b32 v{T}, {C2}")
            ldsspin(T, 4, st=5)
        if n < 32 or 96 <= n < 128:
            vload(n if n < 32 else n - 64, lambda: cwait(dep(n)))
        elif n < 96:
            kload(n - 32, dep(n))
        else:
            if n - d2 <= 127:
                e(f"s_waitcnt vmcnt({127 - (n - d2) + (t2n[0] if t2 else 0)})")
            left = nslots - 1 - n
            if t2 and left > 0:
                for _ in range(-(-(8 - t2n[0]) // left)):
                    t2load(t2n[0])
                    t2n[0] += 1
        for (c, r) in todo:
            pv(c, r)()
        if n < 128 and n % 4 == 1:
            decide()
        if n < 128 and n % 4 == 0:
            post((n + 18) // 4)
        for fn in work.get(n, []):
            fn()

    for n in range(dw, 128):
        slot(n, False)
    e("; drain V; the wo / w_down roles queue their late tile behind it\ns_mov_b32 m0, s67\ns_sub_u32 s5, s2, 144\ns_cmp_lt_u32 s5, 64\ns_cbranch_scc1 L_tq")
    for n in range(128, nslots):
        slot(n, True)
    assert t2n[0] == 8
    e("s_branch L_tj\nL_tq:")
    for n in range(128, nslots):
        slot(n, False)
    e("L_tj:")
    for r in range(4):
        e(f"v_mul_f32 v{ACC+r}, v{ACC+r}, v9")
    e(f"ds_write_b128 v{VW2}, v[{ACC}:{ACC+3}]")
    stamp(4)
    e("s_cmp_lt_u32 s2, 208\ns_cbranch_scc1 L_t9")
    t2load(8)
    e("L_t9:\ns_waitcnt lgkmcnt(0)\ns_barrier\ns_cmp_lg_u32 s3, 0\ns_cbranch_scc1 L_sd")
    for w in range(4):
        e(f"ds_read_b128 v[{28+4*w}:{31+4*w}], v6 offset:{1024*w}")
    for w in range(1, 4):
        e(f"s_waitcnt lgkmcnt({3 - w})")
        for r in range(4):
            e(f"v_add_f32 v{28+r}, v{28+r}, v{28+4*w+r}")
    e("v_cvt_pk_bf16_f32 v28, v28, v29\nv_cvt_pk_bf16_f32 v29, v30, v31\nv_min_u32 v28, -2, v28\nv_min_u32 v29, -2, v29")
    dual("""buffer_store_dwordx2 v[28:29], v4, s[56:59], s63 offen POL
s_mov_b32 exec_lo, 1
s_mov_b32 exec_hi, 1
buffer_store_dword v27, v5, s[56:59], s63 offen offset:512 POL""", 13)
    e("ds_write_b32 v8, v27\ns_mov_b64 exec, -1\nds_write_b64 v7, v[28:29]")
    stamp(3)
    e("L_sd:\ns_waitcnt vmcnt(0) lgkmcnt(0)")
    stamp(5)
    e("s_barrier\ns_barrier\ns_branch L_fin")

    XN, WF, OF, AC, G, U = 16, 52, 160, 192, 208, 220
    e(f"""; ===== projection and hand-off waves (s4 = 0..3) =====
L_aux:
s_sub_u32 s4, s3, 4
v_mul_u32_u24 v1, 36, v0
s_mul_i32 s5, s4, 2304
v_lshlrev_b32 v2, 4, v0
v_mov_b32 v8, {CNT}
v_mov_b32 v4, 0
v_mov_b32 v5, 0
v_mov_b32 v6, 0
v_mov_b32 v7, 0
ds_write_b128 v8, v[4:7]
ds_write_b128 v8, v[4:7] offset:16
ds_write_b128 v8, v[4:7] offset:32
s_movk_i32 s42, 9216
s_mov_b32 s43, 0x20000
s_waitcnt lgkmcnt(0)
s_load_dword s14, s[38:39], 0
s_mov_b64 s[40:41], s[16:17]""")
    for k in range(3):
        e(f"buffer_load_dwordx3 v[{16+4*k}:{18+4*k}], v1, s[40:43], s5 offen offset:{12*k}")
    e("s_barrier")
    srd(56, 38, wsz)
    e(f"""s_add_u32 s13, s79, 64
s_bitcmp1_b32 s2, 3
s_cselect_b32 s60, 72, 0
s_add_u32 s13, s13, s60
s_cmp_ge_u32 s2, 144
s_cselect_b32 s13, s10, s13
s_lshl_b32 s13, s13, 11
s_add_u32 s13, s13, {PBUF}
s_getreg_b32 s78, hwreg(HW_REG_XCC_ID, 0, 4)
s_lshl_b32 s78, s78, 16
s_and_b32 s77, s2, 7
s_lshl_b32 s77, s77, 7
s_add_u32 s77, s77, {XID}
s_mov_b32 s68, 0xffff0000
s_mov_b32 s69, {f32(1/576)}
s_add_u32 s5, s5, {XS}
v_add_u32 v1, s5, v1
v_lshrrev_b32 v10, 4, v0
v_and_b32 v11, 15, v0
v_bfe_u32 v8, v0, 2, 2
v_lshl_add_u32 v12, v10, 3, v8
v_lshlrev_b32 v12, 7, v12
v_and_b32 v9, 3, v0
v_lshl_add_u32 v12, v9, 3, v12
v_lshrrev_b32 v13, 1, v8
v_and_b32 v8, 1, v10
v_lshl_or_b32 v13, v8, 1, v13
v_lshl_add_u32 v12, v13, 5, v12
s_lshl_b32 s60, s4, 5
v_xor_b32 v3, s60, v12
v_add_u32 v4, 0x10000, v3
v_and_b32 v14, 7, v0
v_bfe_u32 v15, v0, 2, 3
v_lshl_add_u32 v15, v9, 4, v15
v_lshlrev_b32 v15, 2, v15
v_mul_u32_u24 v5, 1152, v14
v_lshrrev_b32 v8, 3, v11
v_mul_u32_u24 v8, 576, v8
v_lshl_add_u32 v8, v10, 4, v8
v_add_u32 v5, v5, v8
v_add_u32 v5, {XS}, v5
s_mov_b32 s71, 0x07060302
v_and_b32 v57, 31, v0
v_lshlrev_b32 v57, 2, v57
s_waitcnt lgkmcnt(0)
s_add_u32 s14, s14, 1
s_and_b32 s15, s14, 0xffff
s_and_b32 s6, s14, 0xff
s_andn2_b32 s60, s14, 0xf0000
s_or_b32 s78, s78, s60
s_cmp_lg_u32 s4, 0
s_cbranch_scc1 L_a1
s_lshr_b32 s60, s2, 3
s_lshl_b32 s60, s60, 2
s_add_u32 s60, s60, s77
v_mov_b32 v8, s78
s_mov_b64 exec, 1
buffer_store_dword v8, v57, s[56:59], s60 offen
s_mov_b64 exec, -1
s_waitcnt vmcnt(1)
s_branch L_a2
L_a1:
s_waitcnt vmcnt(0)
L_a2:
; LayerNorm of two rows per wave, rounded to bf16 after every step like the reference""")
    raw = [16, 17, 18, 20, 21, 22, 24, 25, 26]

    def red32(v, t):
        for s in (8, 4, 2, 1):
            e(f"v_add_f32_dpp v{v}, v{v}, v{v} row_ror:{s} row_mask:0xf bank_mask:0xf")
        e(f"v_mov_b32 v{t}, v{v}\nv_permlane16_swap_b32 v{v}, v{t}\nv_add_f32 v{v}, v{v}, v{t}")

    for k in range(9):
        e(f"v_lshlrev_b32 v{28+2*k}, 16, v{raw[k]}\nv_and_b32 v{29+2*k}, s68, v{raw[k]}")
    e("v_pk_add_f32 v[46:47], v[28:29], v[30:31]")
    for k in range(2, 9):
        e(f"v_pk_add_f32 v[46:47], v[46:47], v[{28+2*k}:{29+2*k}]")
    e("v_add_f32 v46, v46, v47")
    red32(46, 47)
    e("v_mul_f32 v48, s69, v46\nv_sub_f32 v50, 0, v48\nv_sub_f32 v51, 0, v48")
    for k in range(9):
        e(f"v_pk_add_f32 v[8:9], v[{28+2*k}:{29+2*k}], v[50:51]")
        e("v_pk_mul_f32 v[46:47], v[8:9], v[8:9]" if k == 0 else "v_pk_fma_f32 v[46:47], v[8:9], v[8:9], v[46:47]")
    e("v_add_f32 v46, v46, v47")
    red32(46, 47)
    e("v_mul_f32 v46, s69, v46")
    rnd(46, 46)
    e(f"v_add_f32 v46, {f32(1e-5)}, v46")
    rnd(46, 46)
    e("v_sqrt_f32 v46, v46")
    rnd(46, 46)
    e("v_rcp_f32 v46, v46")
    rnd(50, 50)
    e("v_mov_b32 v51, v50\nv_mov_b32 v47, v46")
    for k in range(9):
        e(f"v_pk_add_f32 v[8:9], v[{28+2*k}:{29+2*k}], v[50:51]\nv_cvt_pk_bf16_f32 v9, v8, v9\nv_lshlrev_b32 v8, 16, v9\nv_and_b32 v9, s68, v9")
        e(f"v_pk_mul_f32 v[8:9], v[8:9], v[46:47]\nv_cvt_pk_bf16_f32 v{raw[k]}, v8, v9")
    for k in range(0, 8, 2):
        e(f"ds_write2_b32 v1, v{raw[k]}, v{raw[k+1]} offset0:{k} offset1:{k+1}")
    e(f"ds_write_b32 v1, v{raw[8]} offset:32")
    stamp(1)
    e(f"""v_mov_b32 v{G}, -1
v_mov_b32 v{G+1}, -1
v_mov_b32 v{G+2}, -1
v_mov_b32 v{G+3}, -1
s_lshl_b32 s61, s10, 2
s_add_u32 s61, s61, s4
s_mul_i32 s61, s61, {OSL}
s_add_u32 s61, s61, {OBUF}
v_mov_b32 v1, v57
s_waitcnt lgkmcnt(0)""")
    ldsarrive(C1, 8)
    e(f"""s_mov_b64 exec, -1
s_mov_b32 s70, 2
s_cmp_ge_u32 s2, 208
s_cbranch_scc1 L_a4
L_xid:
buffer_load_dword v{G+4}, v1, s[56:59], s77 offen sc1
s_waitcnt vmcnt(0)""")
    xidcheck(G + 4)
    e("""s_cmp_eq_u32 s7, 2
s_cbranch_scc1 L_xidd
s_sub_u32 s70, s70, 1
s_cbranch_scc0 L_xid
L_xidd:
s_cmp_lt_u32 s2, 144
s_cbranch_scc1 L_a4
s_mov_b32 exec_hi, 0xff""")
    dual(f"buffer_store_dwordx4 v[{G}:{G+3}], v2, s[56:59], s61 offen POL", 7)
    e("L_a4:\ns_mov_b64 exec, 1")
    ldsspin(8, 8)
    stamp(2)
    for i in range(9):
        e(f"ds_read_b128 v[{XN+4*i}:{XN+4*i+3}], v5 offset:{64*i}")
    for kk in range(18):
        trread(WF + 4 * kk, 3 if kk < 16 else 4, (kk % 16) * 4096)
    e(f"""s_lshl_b32 s60, s4, 9
s_add_u32 s60, s60, s13
v_mov_b32 v7, s68
v_mov_b32 v{CV}, {PRG}
s_lshr_b32 s61, s2, 3
s_lshl_b32 s61, s61, 2
v_mov_b32 v{CV+3}, s61
s_add_u32 s76, s77, {PLN - XID}
s_waitcnt lgkmcnt(0)""")
    ldsarrive(C2, 8)
    e("s_mov_b64 exec, -1\ns_cmp_ge_u32 s2, 208\ns_cbranch_scc1 L_aq")
    for i in range(9):
        for hf in range(2):
            mfma(AC + 4 * hf, WF + 4 * (9 * hf + i), XN + 4 * i, i == 0)
    for r in range(4):
        e(f"v_add_f32_dpp v{AC+r}, v{AC+4+r}, v{AC+r} row_ror:8 row_mask:0xf bank_mask:0xf")
    e(f"""; publish 8 x 16 values as (bf16 << 16 | tag)
v_cvt_pk_bf16_f32 v8, v{AC}, v{AC+1}
v_cvt_pk_bf16_f32 v9, v{AC+2}, v{AC+3}
ds_bpermute_b32 v8, v15, v8
ds_bpermute_b32 v9, v15, v9
s_waitcnt lgkmcnt(0)
v_lshl_or_b32 v16, v8, 16, s15
v_and_or_b32 v17, v8, v7, s15
v_lshl_or_b32 v18, v9, 16, s15
v_and_or_b32 v19, v9, v7, s15
s_waitcnt vmcnt(0)
s_mov_b32 exec_hi, 0""")
    dual("buffer_store_dwordx4 v[16:19], v2, s[56:59], s60 offen POL", 7)
    race = """s_mov_b64 s[60:61], 0
LOADS
s_waitcnt lgkmcnt(1)
s_add_u32 s62, s62, s60
s_sub_u32 s62, s62, s61
s_waitcnt lgkmcnt(0)"""
    la, lb = f"s_load_dword s60, s[38:39], {PRB} glc", f"s_load_dword s61, s[38:39], {PRB + 0x2000} glc"
    e(f"""s_mov_b32 exec_hi, -1
s_lshl_b32 s60, s4, 8
s_add_u32 s60, s60, s2
s_cmp_lg_u32 s60, {256 + 144}
s_cbranch_scc1 L_aq
v_lshlrev_b32 v8, 13, v0
v_mov_b32 v9, 1
s_mov_b32 s60, {PRB}
s_mov_b64 exec, 3
buffer_store_dword v9, v8, s[56:59], s60 offen sc1
s_mov_b64 exec, -1
s_mov_b32 s62, 0
s_mov_b32 s70, {trials - 1}
s_waitcnt vmcnt(0)
L_race:""")
    e(race.replace("LOADS", la + "\n" + lb))
    e(race.replace("LOADS", lb + "\n" + la))
    e(f"""s_sub_u32 s70, s70, 1
s_cbranch_scc0 L_race
s_cmp_lt_i32 s62, 0
s_cselect_b32 s60, 0x10000, 0
s_or_b32 s60, s60, s15
v_mov_b32 v8, s60
v_mov_b32 v9, s14
s_mov_b64 exec, 1
buffer_store_dwordx2 v[8:9], v2, s[56:59], 0 offen offset:{PAR} sc1
s_mov_b64 exec, -1
L_aq:""")
    control(T1)
    ldsspin(CV, T1, sleep=8, four=True)
    e(f"""; wave 3 gathers q for the stream waves
s_cmp_lg_u32 s4, 3
s_cbranch_scc1 L_a3
s_lshr_b32 s60, s9, 1
s_lshl_b32 s60, s60, 6
s_lshl_b32 s61, s8, 13
s_add_u32 s60, s60, s61
s_add_u32 s60, s60, {PBUF}
v_lshrrev_b32 v6, 2, v0
v_lshlrev_b32 v6, 9, v6
v_and_b32 v7, 3, v0
v_lshl_add_u32 v6, v7, 4, v6
buffer_load_dword v24, v1, s[56:59], s77 offen sc1""")
    poll("buffer_load_dwordx4 v[20:23], v6, s[56:59], s60 offen sc1 nt", tagcmp([20, 21, 22, 23], 7), 4)
    xidcheck(24)
    CEND = 136
    e(f"""v_perm_b32 v8, v21, v20, s71
v_perm_b32 v9, v23, v22, s71
v_lshlrev_b32 v6, 3, v0
v_add_u32 v6, {QS}, v6
ds_write_b64 v6, v[8:9]
v_mov_b32 v6, {QF}
v_mov_b32 v7, s7
s_waitcnt lgkmcnt(0)
ds_write_b32 v6, v7
L_a3:
v_mul_u32_u24 v4, {RING - 1024}, v10
v_add_u32 v4, v4, v3
v_mov_b32 v12, 0xffffff00
v_bfe_u32 v3, v0, 4, 1
v_lshlrev_b32 v3, 13, v3
v_lshrrev_b32 v8, 5, v0
v_lshl_add_u32 v3, v8, 15, v3
v_lshl_add_u32 v3, v14, 4, v3
s_and_b32 s64, s4, 1
s_lshl_b32 s65, s64, 12
s_lshr_b32 s61, s4, 1
s_lshl_b32 s61, s61, 14
s_add_u32 s65, s65, s61
s_lshl_b32 s61, s8, 7
s_add_u32 s65, s65, s61
s_add_u32 s65, s65, {PART}
s_cmp_lt_u32 s2, 144
s_cbranch_scc1 L_aO
s_cmp_ge_u32 s2, 208
s_cbranch_scc1 L_aD""")
    control(CEND)
    e(f"""s_branch L_fin
L_aD:
s_mul_i32 s60, s11, 9216
s_mul_i32 s61, s4, 2304
s_add_u32 s60, s60, s61
s_add_u32 s60, s60, {PBUF + 131072}
s_add_u32 s61, s60, {288 * 512}
s_mov_b32 s72, -1
s_mov_b32 s73, 0xffff
s_mov_b64 exec, s[72:73]""")
    poll("\n".join([f"buffer_load_dwordx4 v[{G+4*k}:{G+4*k+3}], v2, s[56:59], s60 offen offset:{768*k} sc1 nt" for k in range(3)] +
                   [f"buffer_load_dwordx4 v[{U+4*k}:{U+4*k+3}], v2, s[56:59], s61 offen offset:{768*k} sc1 nt" for k in range(3)]),
         tagcmp(list(range(G, G + 24)), 8), 8, restore="s[72:73]")
    c0 = -2 * LOG2E * 0.7978845608028654
    e(f"; gelu_tanh(g) = g / (1 + exp(-2 * sqrt(2/pi) * (g + 0.044715 g^3)))\nv_mov_b32 v32, {f32(c0)}\nv_mov_b32 v33, {f32(c0 * 0.044715)}\ns_mul_i32 s60, s4, 144")
    for k in range(6):
        e(f"""v_and_b32 v34, s68, v{G+2*k}
v_and_b32 v35, s68, v{G+2*k+1}
v_mul_f32 v36, v34, v34
v_mul_f32 v37, v35, v35
v_fma_f32 v36, v36, v33, v32
v_fma_f32 v37, v37, v33, v32
v_mul_f32 v36, v36, v34
v_mul_f32 v37, v37, v35
v_exp_f32 v36, v36
v_exp_f32 v37, v37
v_and_b32 v38, s68, v{U+2*k}
v_add_f32 v36, 1.0, v36
v_add_f32 v37, 1.0, v37
v_rcp_f32 v36, v36
v_rcp_f32 v37, v37
v_and_b32 v39, s68, v{U+2*k+1}
v_mul_f32 v34, v34, v36
v_mul_f32 v35, v35, v37
v_cvt_pk_bf16_f32 v35, v34, v35
v_lshlrev_b32 v34, 16, v35
v_and_b32 v35, s68, v35
v_mul_f32 v34, v34, v38
v_mul_f32 v35, v35, v39
v_cvt_pk_bf16_f32 v{40+k}, v34, v35""")
    for k in range(3):
        e(f"""v_add_u32 v34, s60, v0
v_bfe_u32 v35, v34, 2, 3
v_mul_u32_u24 v35, 576, v35
v_and_b32 v36, 3, v34
v_lshl_add_u32 v35, v36, 3, v35
v_and_b32 v34, 0xffe0, v34
v_add_u32 v35, v35, v34
v_add_u32 v35, {HS}, v35
ds_write_b64 v35, v[{40+2*k}:{41+2*k}]
s_add_u32 s60, s60, 48""")
    e("s_waitcnt lgkmcnt(0)")
    ldsarrive(CNT, 8)
    ldsspin(8, 4)
    e(f"v_mul_u32_u24 v5, 576, v14\nv_lshl_add_u32 v5, v10, 4, v5\nv_add_u32 v5, {HS}, v5")
    for i in range(9):
        e(f"ds_read_b128 v[{XN+4*i}:{XN+4*i+3}], v5 offset:{64*i}")
    e(f"""s_mul_i32 s60, s12, {3*65536}
s_add_u32 s60, s60, s65
s_add_u32 s60, s60, 2048
s_add_u32 s61, s60, 65536
s_add_u32 s62, s60, 131072
s_waitcnt lgkmcnt(0)""")
    for i in range(6):
        for sub in range(3):
            mfma(AC + 4 * sub, WF + 4 * (6 * sub + i), XN + 4 * i, i == 0)
    stamp(4)
    control(CEND)
    getside()
    e(f"; last 96 rows arrive with the late tile\ns_barrier\nds_read_b32 v{CV+4}, v{CV} offset:{SIDE - PRG}\ns_waitcnt lgkmcnt(0)\nv_xor_b32 v3, v3, v{CV+4}\ns_barrier")
    for j in range(9):
        trread(WF + 4 * j, 4, j * 1024)
    for j in range(9):
        if j % 3 == 0:
            e(f"s_waitcnt lgkmcnt({12 - 2 * j})")
        mfma(AC + 4 * (j % 3), WF + 4 * j, XN + 4 * (6 + j // 3), False)

    def publish(n, src, soffs):
        e("; partial outputs: f32 with the 8-bit tag in the low mantissa byte, one 128 B line = 8 batches x 4 columns")
        e("s_mov_b32 exec_lo, 0x00ff00ff\ns_mov_b32 exec_hi, 0x00ff00ff")
        for k in range(n):
            for r in range(4):
                e(f"v_and_or_b32 v{src+4*k+r}, v{src+4*k+r}, v12, s6")
            e(f"buffer_store_dwordx4 v[{src+4*k}:{src+4*k+3}], v3, s[56:59], s{soffs[k]} offen sc1")
        e("s_mov_b64 exec, -1")

    publish(3, AC, (60, 61, 62))
    stamp(7)
    e(f"""s_branch L_fin
L_aO:
s_lshl_b32 s61, s9, 16
s_add_u32 s65, s65, s61
v_mul_u32_u24 v6, {OSL}, v10
v_lshl_add_u32 v5, v11, 4, v6
s_lshl_b32 s62, s8, 2
s_add_u32 s62, s62, s4
s_mul_i32 s62, s62, {4*OSL}
s_add_u32 s62, s62, {OBUF}
s_mul_i32 s61, s4, {4*GST}
s_add_u32 s61, s61, {GB}
v_mul_u32_u24 v48, {GST}, v10
v_lshl_add_u32 v48, v11, 4, v48
v_add_u32 v48, s61, v48
s_lshl_b32 s61, s4, 5
s_add_u32 s61, s61, {LB}
v_lshl_add_u32 v49, v10, 3, s61
v_mul_u32_u24 v46, {GST}, v11
v_lshl_add_u32 v46, v10, 4, v46
v_add_u32 v46, {GB}, v46
v_lshlrev_b32 v47, 3, v11
v_add_u32 v47, {LB}, v47
s_andn2_b32 s74, s2, 6
s_and_b32 s61, s2, 2
s_lshl_b32 s61, s61, 1
s_or_b32 s74, s74, s61
s_lshl_b32 s74, s74, 12
s_lshl_b32 s61, s4, 5
s_add_u32 s74, s74, s61
s_add_u32 s74, s74, {PART}
v_lshrrev_b32 v8, 1, v0
v_lshlrev_b32 v7, 7, v8
v_and_b32 v8, 1, v0
v_lshl_add_u32 v7, v8, 4, v7
s_and_b32 s61, s2, 4
s_lshl_b32 s61, s61, 11
v_add_u32 v7, s61, v7
v_mov_b32 v26, 0xff
s_mul_i32 s75, s4, 2304
s_lshl_b32 s61, s9, 7
s_add_u32 s75, s75, s61
s_and_b32 s61, s8, 3
s_lshl_b32 s61, s61, 5
s_add_u32 s75, s75, s61
s_lshr_b32 s61, s8, 2
s_lshl_b32 s61, s61, 3
s_add_u32 s75, s75, s61
v_and_b32 v9, 1, v10
v_mul_u32_u24 v13, 1152, v8
v_lshl_add_u32 v13, v9, 1, v13
v_bfe_u32 v9, v0, 3, 1
v_lshl_add_u32 v13, v9, 2, v13
buffer_load_ushort v50, v13, s[40:43], s75 offen
s_lshr_b32 s61, s9, 1
s_and_b32 s60, s9, 1
s_lshl_b32 s60, s60, 3
s_add_u32 s61, s61, s60
s_lshl_b32 s60, s4, 2
s_sub_u32 s61, s61, s60
v_cmp_ne_u32 s[72:73], s61, v10""")
    srd(48, 34, 9216)
    control(CEND)
    getside()
    e("s_waitcnt vmcnt(0)\nv_lshlrev_b32 v50, 16, v50\ns_mov_b64 exec, s[72:73]\ns_barrier")
    stamp(5)

    def wofrags(back):
        e(f"s_mov_b64 exec, -1\nds_read_b32 v{CV+4}, v{CV} offset:{SIDE - PRG}\ns_barrier")
        stamp(4)
        for ks in range(8):
            trread(OF + 4 * ks, 4, ks * 1024)
        if back:
            e(f"s_mov_b64 exec, {back}")

    oloads = """buffer_load_dwordx4 v[28:31], v5, s[56:59], s62 offen sc1
buffer_load_dwordx4 v[32:35], v5, s[56:59], s62 offen offset:256 sc1
buffer_load_dwordx2 v[36:37], v6, s[56:59], s62 offen offset:512 sc1"""
    owrite = "ds_write_b128 v48, v[28:31]\nds_write_b128 v48, v[32:35] offset:256\nds_write_b64 v49, v[36:37]"
    ocmp = sentcmp(range(28, 38), 38)
    e(oloads + "\ns_waitcnt vmcnt(0)\n" + ocmp + "\ns_cbranch_vccnz L_og1")
    e(owrite)
    wofrags(None)
    e("s_branch L_og2\nL_og1:\ns_mov_b64 exec, vcc")
    poll(oloads, ocmp, 0, first=lambda: wofrags("vcc"), restore="s[72:73]")
    e(owrite + "\ns_mov_b64 exec, -1\nL_og2:")
    stamp(6)
    e("s_waitcnt lgkmcnt(0)\ns_barrier\nds_read_b64 v[36:37], v47")
    order = [0, 4, 1, 5, 2, 6, 3, 7]
    for ks in order:
        e(f"ds_read_b128 v[{WF+4*ks}:{WF+4*ks+3}], v46 offset:{64*ks}")
    e("""s_waitcnt lgkmcnt(8)
v_sub_f32_dpp v38, v36, v36 row_ror:8 row_mask:0xf bank_mask:0xf
v_sub_f32_dpp v39, v37, v37 row_ror:8 row_mask:0xf bank_mask:0xf""")
    fill = ["v_exp_f32 v38, v38", "v_exp_f32 v39, v39", "v_add_f32 v38, 1.0, v38", "v_add_f32 v39, 1.0, v39", "v_rcp_f32 v38, v38", "v_rcp_f32 v39, v39", f"v_xor_b32 v3, v3, v{CV+4}", f"v_xor_b32 v7, v7, v{CV+4}"]
    for i, ks in enumerate(order):
        e(f"s_waitcnt lgkmcnt({7 - i})")
        mfma(AC + 4 * (ks // 4), OF + 4 * ks, WF + 4 * ks, ks % 4 == 0)
        if i < len(fill):
            e(fill[i])
    for r in range(4):
        e(f"v_mul_f32 v{AC+r}, v{AC+r}, v38")
    for r in range(4):
        e(f"v_fmac_f32 v{AC+r}, v{AC+4+r}, v39")
    for r in range(4):
        e(f"v_add_f32_dpp v{AC+r}, v{AC+r}, v{AC+r} row_ror:8 row_mask:0xf bank_mask:0xf")
    publish(1, AC, (65,))
    stamp(3)
    e("; final sum of 8 outputs: lanes 0-31 hold 16 attention partials, lanes 32-63 hold 16 FFN partials\ns_waitcnt vmcnt(0)")
    chk = "\n".join(f"v_xor_b32 v{16+i}, s6, v{16+i}" for i in range(4)) + "\nv_or3_b32 v24, v16, v17, v18\nv_bitop3_b32 v24, v24, v26, v19 bitop3:0xc8\nv_cmp_ne_u32 vcc, 0, v24"
    poll("buffer_load_dwordx4 v[16:19], v7, s[56:59], s74 offen sc1", chk, 0, quad=True)
    e("""v_permlane16_swap_b32 v16, v17
v_permlane16_swap_b32 v18, v19
v_add_f32 v17, v16, v17
v_add_f32 v18, v18, v19
v_add_f32_dpp v16, v17, v17 row_ror:8 row_mask:0xf bank_mask:0x3
v_add_f32_dpp v16, v18, v18 row_ror:8 row_mask:0xf bank_mask:0xc
v_add_f32_dpp v16, v16, v16 row_shl:4 row_mask:0xf bank_mask:0x5
v_add_f32_dpp v16, v16, v16 quad_perm:[2,3,0,1] row_mask:0xf bank_mask:0xf""")
    rnd(16, 16)
    e("v_add_f32 v17, v16, v50")
    rnd(17, 17)
    e("""v_permlane32_swap_b32 v16, v18
v_add_f32 v17, v17, v18
v_cvt_pk_bf16_f32 v17, v17, v17
s_mov_b32 exec_lo, 0x03030303
s_mov_b32 exec_hi, 0
buffer_store_short v17, v13, s[48:51], s75 offen
s_mov_b64 exec, 1
s_add_u32 s60, s2, s4
s_cmp_lg_u32 s60, 0
s_cbranch_scc1 L_o3
v_mov_b32 v19, s14
buffer_store_dword v19, v2, s[56:59], 0 offen
L_o3:""")
    stamp(7)
    e("L_fin:")
    if diag:
        e("s_mov_b64 exec, -1\ns_cmp_lt_u32 s3, 4\ns_cbranch_scc1 L_dg\ns_sub_u32 s60, s2, 144\ns_cmp_lt_u32 s60, 64\ns_cbranch_scc1 L_end\nL_dg:")
        e("s_waitcnt vmcnt(0)\ns_memrealtime s[76:77]\ns_waitcnt lgkmcnt(0)\ns_getreg_b32 s77, hwreg(HW_REG_HW_ID)")
        for i in range(8):
            e(f"v_mov_b32 v{16+i}, s{80+2*i}")
        e(f"v_mov_b32 v24, s76\nv_mov_b32 v25, s77\nv_mov_b32 v1, 0\ns_lshl_b32 s60, s2, 3\ns_add_u32 s60, s60, s3\ns_lshl_b32 s60, s60, 6\ns_add_u32 s60, s60, {STAMP}")
        e("s_mov_b64 exec, 1\nbuffer_store_dwordx4 v[16:19], v1, s[56:59], s60 offen\nbuffer_store_dwordx4 v[20:23], v1, s[56:59], s60 offen offset:16\nbuffer_store_dwordx2 v[24:25], v1, s[56:59], s60 offen offset:32")
    e("L_end:\ns_endpgm")
    e(f""".section .rodata,"a"
.p2align 6
.amdhsa_kernel {KN}
.amdhsa_next_free_vgpr 256
.amdhsa_next_free_sgpr 102
.amdhsa_accum_offset 256
.amdhsa_group_segment_fixed_size 0
.amdhsa_kernarg_size 96
.amdhsa_user_sgpr_count 2
.amdhsa_user_sgpr_kernarg_segment_ptr 1
.amdhsa_system_sgpr_workgroup_id_x 1
.amdhsa_float_denorm_mode_32 3
.end_amdhsa_kernel""")
    return top + e.text()


def summary(T, cfg):
    import numpy as np
    S = T[:, :4]; A = T[:144, 4:]; D = T[208:, 4:]
    wd = S[:, :, 4].max(1); m = wd.max()
    return dict(startmax=S[:, :, 0].max(), B1med=float(np.median(S[:, :, 1])), B1max=S[:, :, 1].max(), B2max=S[:, :, 2].max(), qwait=(S[:, :, 7] - S[:, :, 6]).max(),
                xcdspread=max(wd[i::8].mean() for i in range(8)) - wd.mean(), meandone=wd.mean(), maxdone=m, opub=S[:, 0, 3].max() - m, t2=S[:, :, 5].max() - m,
                dpub=D[:, :, 7].max() - m, ogath=A[:, :, 6].max() - m, ppub=A[:, :, 3].max() - m, out=A[:, :, 7].max() - m, end=A[:, :, 8].max())


if __name__ == "__main__":
    kw = eval("dict(" + (sys.argv[2] if len(sys.argv) > 2 else "") + ")")
    open(sys.argv[1], "w").write(gen(**kw))
```

```python
import sys, struct
sys.path.insert(0, "dev")
from asmlib import Asm

KN = "parallel_sum__sliding_block_cached__geglu_ffn__decode_kernel"
REF = "parallel_sum__sliding_block_cached__geglu_ffn__decode.s.ref"

R = 6
RING = R * 4096
XS = 4 * RING
QS = XS + 9216
HS = QS + 512
ML = HS + 4608
CNT = ML + 64
QF, C1, C2, PRG, DEC, C3 = CNT + 4, CNT + 8, CNT + 12, CNT + 16, CNT + 32, CNT + 36
SIDE = CNT + 40
LB = CNT + 64
RED = LB + 128
GB = RED + 4096
GST = 528
LDS_SZ = GB + 16 * GST
XID, PLN, PBUF, OBUF, PART = 0x400, 0x800, 0x1000, 0x70000, 0xA0000
PAR, PRB = 0x200, 0x6C000
OSL = 640
WS_SZ = PART + 144 * 4096
STAMP = 0x200000
LIMIT = 2000000
LOG2E = 1.4426950408889634

DOC = """;
;
;
"""


def f32(x):
    return "0x%08x" % struct.unpack("<I", struct.pack("<f", x))[0]


def gen(dw=6, dm=5, d2=6, boost=3, thr=16, T1=48, diag=0, wmap=0, T2=96, trials=3, amp=None):
    e = Asm()
    uid = [0]
    wsz = WS_SZ if not diag else 0x400000

    def lab(p):
        uid[0] += 1
        return f"L_{p}{uid[0]}"

    def coff(c):
        return ((c & 1) << 14) | ((c >> 1) << 16) | ((c & 1) << 13) | ((c >> 1 & 1) << 15)

    def stamp(i):
        if diag or (amp and i in amp[:2]):
            e(f"s_memrealtime s[{80 + 2 * i}:{81 + 2 * i}]")

    def srd(b, lo, size):
        e(f"s_mov_b32 s{b}, s{lo}\ns_mov_b32 s{b+1}, s{lo+1}\ns_mov_b32 s{b+2}, {size}\ns_mov_b32 s{b+3}, 0x20000")

    def rnd(dst, src):
        e(f"v_cvt_pk_bf16_f32 v{dst}, v{src}, v{src}\nv_lshlrev_b32 v{dst}, 16, v{dst}")

    def poll(loads, cmp, sleep, restore="-1", quad=False, first=None):
        L = lab("poll")
        e(f"s_mov_b32 s70, {LIMIT}")
        if first:
            e(loads)
            first()
            e(f"s_branch {L}_w")
        e(f"{L}:")
        e(loads)
        e(f"{L}_w:\ns_waitcnt vmcnt(0)")
        e(cmp)
        e(f"s_cbranch_vccz {L}_d" if quad else f"s_and_b64 exec, exec, vcc\ns_cbranch_scc0 {L}_d")
        e(f"s_sub_u32 s70, s70, 1\ns_cbranch_scc1 {L}_d")
        if quad:
            e("s_wqm_b64 exec, vcc")
        if sleep:
            e(f"s_sleep {sleep}")
        e(f"s_branch {L}\n{L}_d:\ns_mov_b64 exec, {restore}")

    def dual(stores, mode):
        L = lab("st")
        e(f"s_cmp_eq_u32 s{mode}, 2\ns_cbranch_scc0 {L}")
        e(stores.replace("POL", ""))
        e(f"s_branch {L}_d\n{L}:")
        e(stores.replace("POL", "sc1"))
        e(f"{L}_d:")

    def xidcheck(v):
        e(f"v_cmp_ne_u32 vcc, s78, v{v}\ns_cmp_eq_u32 vcc_lo, 0\ns_cselect_b32 s7, 2, 1")

    def ldsarrive(addr, va):
        e(f"s_mov_b64 exec, 1\nv_mov_b32 v{va}, {addr}\nv_mov_b32 v{va+1}, 1\nds_add_u32 v{va}, v{va+1}")

    def ldsspin(va, count, st=60, sleep=2, four=False):
        L = lab("spin")
        e(f"s_mov_b32 s70, {LIMIT*8}\n{L}:")
        if four:
            e(f"ds_read_b128 v[{va+4}:{va+7}], v{va}\ns_waitcnt lgkmcnt(0)\nv_add3_u32 v{va+1}, v{va+4}, v{va+5}, v{va+6}\nv_add_u32 v{va+1}, v{va+1}, v{va+7}")
        else:
            e(f"ds_read_b32 v{va+1}, v{va}\ns_waitcnt lgkmcnt(0)")
        e(f"""v_readfirstlane_b32 s{st}, v{va+1}
s_cmp_ge_u32 s{st}, {count}
s_cbranch_scc1 {L}_d
s_sub_u32 s70, s70, 1
s_cbranch_scc1 {L}_d
s_sleep {sleep}
s_branch {L}
{L}_d:
s_mov_b64 exec, -1""")

    CV = 232

    def control(until):
        L = lab("ctl")
        e(f"""; wave 2: post the stream position, count group members that are ahead, select the queue depth
s_cmp_lg_u32 s4, 2
s_cbranch_scc1 {L}_d
s_mov_b32 s70, {LIMIT}
{L}:
ds_read_b128 v[{CV+4}:{CV+7}], v{CV}
s_waitcnt lgkmcnt(0)
v_add3_u32 v{CV+1}, v{CV+4}, v{CV+5}, v{CV+6}
v_add_u32 v{CV+1}, v{CV+1}, v{CV+7}
v_readfirstlane_b32 s66, v{CV+1}
v_lshl_or_b32 v{CV+1}, v{CV+1}, 16, s15
s_mov_b64 exec, 1
buffer_store_dword v{CV+1}, v{CV+3}, s[56:59], s76 offen
s_mov_b64 exec, -1
s_cmp_ge_u32 s66, {until}
s_cbranch_scc1 {L}_d
buffer_load_dword v{CV+4}, v1, s[56:59], s76 offen sc1
v_add_u32 v{CV+1}, 0x10000, v{CV+1}
s_waitcnt vmcnt(0)
v_sub_u32 v{CV+4}, v{CV+4}, v{CV+1}
v_and_b32 v{CV+4}, 0x8000ffff, v{CV+4}
v_cmp_eq_u32 vcc, 0, v{CV+4}
s_bcnt1_i32_b32 s66, vcc_lo
s_cmp_ge_u32 s66, {thr}
s_cselect_b32 s66, 1, 0
v_mov_b32 v{CV+4}, s66
ds_write_b32 v{CV}, v{CV+4} offset:{DEC - PRG}
s_sub_u32 s70, s70, 1
s_cbranch_scc0 {L}
{L}_d:""")

    def getside():
        L = lab("side")
        e(f"; wave 3 fetches the announced bit for the partial output layout\ns_cmp_lg_u32 s4, 3\ns_cbranch_scc1 {L}")
        ldsspin(CV, T2, st=5, sleep=16, four=True)
        e(f"v_mov_b32 v{CV+2}, 0")
        poll(f"buffer_load_dwordx2 v[{CV+4}:{CV+5}], v{CV+2}, s[56:59], 0 offen offset:{PAR} sc1",
             f"v_xor_b32 v{CV+6}, s15, v{CV+4}\nv_and_b32 v{CV+6}, 0xfffeffff, v{CV+6}\nv_xor_b32 v{CV+5}, s14, v{CV+5}\nv_or_b32 v{CV+6}, v{CV+6}, v{CV+5}\nv_cmp_ne_u32 vcc, 0, v{CV+6}", 16)
        e(f"v_bfe_u32 v{CV+4}, v{CV+4}, 16, 1\nv_lshlrev_b32 v{CV+4}, 13, v{CV+4}\nds_write_b32 v{CV}, v{CV+4} offset:{SIDE - PRG}\ns_waitcnt lgkmcnt(0)\n{L}:")

    def sentcmp(regs, tmp):
        r = list(regs)
        out = []
        cur = r.pop(0)
        while r:
            out.append(f"v_max3_u32 v{tmp}, v{cur}, v{r[0]}, v{r[1]}" if len(r) > 1 else f"v_max_u32 v{tmp}, v{cur}, v{r[0]}")
            r = r[2:]
            cur = tmp
        out.append(f"v_cmp_eq_u32 vcc, -1, v{cur}")
        return "\n".join(out)

    def tagcmp(regs, tmp):
        out = [f"v_xor_b32 v{tmp}, s15, v{regs[0]}"]
        for r in regs[1:]:
            out.append(f"v_bitop3_b32 v{tmp}, v{r}, v{tmp}, s15 bitop3:0xde")
        out.append(f"v_and_b32 v{tmp}, 0xffff, v{tmp}\nv_cmp_ne_u32 vcc, 0, v{tmp}")
        return "\n".join(out)

    def allred_g(v, t, op):
        e(f"v_mov_b32 v{t}, v{v}\nv_permlane16_swap_b32 v{v}, v{t}\n{op} v{v}, v{v}, v{t}")
        e(f"v_mov_b32 v{t}, v{v}\nv_permlane32_swap_b32 v{v}, v{t}\n{op} v{v}, v{v}, v{t}")

    def mfma(D, A, B, first):
        e(f"v_mfma_f32_16x16x32_bf16 v[{D}:{D+3}], v[{A}:{A+3}], v[{B}:{B+3}], {'0' if first else f'v[{D}:{D+3}]'}")

    def trread(dst, addr, off):
        for hf in range(2):
            e(f"ds_read_b64_tr_b16 v[{dst+2*hf}:{dst+2*hf+1}], v{addr} offset:{off + hf * 512}")

    hdr = [l.rstrip("\n") for l in open(REF) if l.startswith(";") and "@launch" not in l and "Override" not in l and "grid=ceil" not in l]
    top = "\n".join(hdr) + f"\n; @launch grid=(256,1,1) block=(512,1,1) lds={LDS_SZ}\n" + DOC
    e(f""".amdgcn_target "amdgcn-amd-amdhsa--gfx950"
.text
.globl {KN}
.p2align 8
.type {KN},@function
{KN}:
s_cmp_ge_u32 s2, 256
s_cbranch_scc1 L_end
s_load_dwordx16 s[16:31], s[0:1], 0
s_load_dwordx8 s[32:39], s[0:1], 64""")
    if wmap:
        e("s_lshr_b32 s5, s2, 4\ns_add_u32 s6, s2, s5\ns_and_b32 s6, s6, 15\ns_andn2_b32 s2, s2, 15\ns_or_b32 s2, s2, s6")
    stamp(0)
    e("""v_lshrrev_b32 v1, 6, v0
v_and_b32 v0, 63, v0
v_readfirstlane_b32 s3, v1
s_xor_b32 s3, s3, 4
s_and_b32 s8, s2, 15
s_lshr_b32 s9, s2, 4
s_sub_u32 s12, s9, 13
s_lshl_b32 s10, s8, 2
s_add_u32 s10, s10, s9
s_sub_u32 s10, s10, 9
s_and_b32 s5, s2, 7
s_bfe_u32 s6, s2, 0x10003
s_lshl_b32 s11, s5, 1
s_add_u32 s11, s11, s6
s_mul_i32 s79, s5, 9
s_add_u32 s79, s79, s9
s_cmp_ge_u32 s3, 4
s_cbranch_scc1 L_aux""")

    VO, KD, KR, MK, VW1, VW2, Q, KF, AB, ACC, T, SP = 1, 2, 6, 10, 14, 15, 16, 32, 48, 64, 68, 84
    MRUN, NEGM, LS, VT2, VST, VPR, VDE, VDA, VV = 120, 121, 122, 123, 124, 125, 126, 127, 128
    e(f"""; ===== stream waves (s3 = 0..3) =====
v_lshrrev_b32 v1, 3, v0
v_and_b32 v2, 7, v0
v_and_b32 v3, 2, v1
s_and_b32 s5, s3, 1
s_lshl_b32 s5, s5, 2
v_or_b32 v3, s5, v3
v_xor_b32 v2, v2, v3
v_lshlrev_b32 v2, 4, v2
s_lshl_b32 m0, s3, 10
s_mov_b32 s43, 0x20000
s_lshl_b32 s60, s79, 7
s_lshl_b32 s5, s10, 7
s_movk_i32 s7, 9216
s_mov_b32 s42, {576*9216}
s_cmp_ge_u32 s2, 144
s_cselect_b32 s60, s5, s60
s_cselect_b32 s7, 8192, s7
s_cselect_b32 s42, {576*8192}, s42
s_mul_i32 s5, s11, {288*1152}
s_mul_i32 s6, s12, 384
s_add_u32 s5, s5, s6
s_lshl_b32 s62, s7, 5
s_movk_i32 s64, 4096
s_cmp_ge_u32 s2, 208
s_cselect_b32 s60, s5, s60
s_cselect_b32 s7, 1152, s7
s_cselect_b32 s42, {4608*1152}, s42
s_cselect_b32 s63, {36864-256}, s62
s_cselect_b32 s62, 128, s62
s_cselect_b32 s65, {4096-49152}, s64
s_cselect_b32 s64, 24576, s64
s_mul_i32 s5, s3, s7
s_lshl_b32 s5, s5, 3
s_add_u32 s72, s60, s5
v_mad_u32_u24 v{VW1}, v1, s7, v2
s_bitcmp1_b32 s2, 3
s_waitcnt lgkmcnt(0)
s_cselect_b64 s[40:41], s[30:31], s[28:29]
s_cmp_ge_u32 s2, 144
s_cselect_b64 s[40:41], s[22:23], s[40:41]
s_cmp_ge_u32 s2, 208
s_cselect_b64 s[40:41], s[32:33], s[40:41]""")

    def vsetup():
        e("; s60 = this wave's base inside the K / V window")
        srd(52, 20, 0x10000000)
        e(f"""s_lshr_b32 s60, s9, 1
s_lshl_b32 s60, s60, 4
s_add_u32 s60, s60, s8
s_lshl_b32 s60, s60, 21
s_and_b32 s61, s9, 1
s_lshl_b32 s61, s61, 15
s_add_u32 s60, s60, s61
s_lshl_b32 s61, s3, 12
s_add_u32 s60, s60, s61
s_add_u32 s60, s60, {6144*256}
v_mul_u32_u24 v{VT2}, 1152, v1
v_add_u32 v{VT2}, v{VT2}, v2
v_lshlrev_b32 v{VO}, 4, v0""")

    work = {}

    def at(slot, fn):
        work.setdefault(slot, []).append(fn)

    def setup():
        e("; late tile descriptor, K swizzle addresses, diagonal masks for the P operand")
        srd(48, 18, 0x10000000)
        srd(56, 38, wsz)
        e(f"""s_mul_i32 s67, s3, {RING}
s_mul_i32 s5, s8, {256*1152}
s_mul_i32 s6, s3, {8*1152}
s_add_u32 s5, s5, s6
s_lshl_b32 s6, s9, 7
s_add_u32 s5, s5, s6
s_mov_b32 s46, {4096*1152}
s_mov_b32 s47, 0x20000
s_cmp_ge_u32 s2, 208
s_cselect_b32 s72, s72, s5
s_cselect_b32 s73, s62, {32*1152}
s_cselect_b32 s74, s63, {32*1152}
s_cselect_b64 s[44:45], s[32:33], s[24:25]
s_cselect_b32 s46, s42, s46""")
        e(f"v_lshrrev_b32 v{T}, 4, v0\nv_and_b32 v{T+1}, 15, v0\nv_lshlrev_b32 v{T+2}, 2, v{T}\nv_xor_b32 v{T+2}, v{T+2}, v{T+1}")
        e(f"v_lshlrev_b32 v{T+2}, 4, v{T+2}\nv_lshl_add_u32 v{KD}, v{T}, 8, v{T+2}")
        for r in range(1, 4):
            e(f"v_xor_b32 v{KD+r}, {16*r}, v{KD}")
        e(f"v_and_b32 v{T+2}, 3, v0\nv_lshlrev_b32 v{T+2}, 2, v{T+2}\nv_lshrrev_b32 v{T+3}, 2, v{T+1}\nv_or_b32 v{T+2}, v{T+2}, v{T+3}")
        e(f"v_lshl_add_u32 v{T+2}, v{T+2}, 8, s67\nv_xor_b32 v{T+3}, v{T}, v{T+1}\nv_lshl_add_u32 v{KR}, v{T+3}, 4, v{T+2}")
        for t in range(1, 4):
            e(f"v_xor_b32 v{KR+t}, {64*t}, v{KR}")
        e(f"v_and_b32 v{T+2}, 1, v0\nv_lshlrev_b32 v{T+2}, 4, v{T+2}\nv_mov_b32 v{T+3}, 0xffff\nv_lshlrev_b32 v{T+3}, v{T+2}, v{T+3}\nv_bfe_u32 v{T+2}, v0, 1, 2")
        for r in range(4):
            e(f"v_cmp_eq_u32 vcc, {r}, v{T+2}\nv_cndmask_b32 v{MK+r}, 0, v{T+3}, vcc")
        e(f"v_lshrrev_b32 v{T+2}, 3, v{T+1}\nv_lshlrev_b32 v{T+2}, 8, v{T+2}\nv_lshl_add_u32 v{T+2}, v{T}, 4, v{T+2}\nv_add_u32 v{VW1}, {QS}, v{T+2}")
        e(f"s_mov_b32 s68, 0xffff0000\ns_mov_b32 s69, {f32(128 ** -0.5)}\ns_mov_b32 s71, {f32(LOG2E)}")
        e(f"v_mov_b32 v{LS}, 0\nv_mov_b32 v{MRUN}, 0xff800000")
        for r in range(4):
            e(f"v_mov_b32 v{ACC+r}, 0")

    def sreg(c):
        return SP + 4 * (c if c < 8 else (8 if c == 8 else c - 9))

    def kread(c):
        def f():
            e(f"; K chunk {c}: fragments")
            for t in range(4):
                e(f"ds_read_b128 v[{KF+4*t}:{KF+4*t+3}], v{KR+t} offset:{(c % R) * 4096}")
        return f

    def kmma(c):
        def f():
            e(f"; K chunk {c}: scores\ns_waitcnt lgkmcnt(0)")
            for t in range(4):
                mfma(sreg(c), KF + 4 * t, Q + 4 * t, t == 0)
        return f

    def kround(c):
        def f():
            S = sreg(c)
            for k in range(2):
                e(f"v_cvt_pk_bf16_f32 v{T}, v{S}, v{S+1}\nv_cvt_pk_bf16_f32 v{T+1}, v{S+2}, v{S+3}")
                e(f"v_lshlrev_b32 v{S}, 16, v{T}\nv_and_b32 v{S+1}, s68, v{T}\nv_lshlrev_b32 v{S+2}, 16, v{T+1}\nv_and_b32 v{S+3}, s68, v{T+1}")
                if k == 0:
                    for r in range(4):
                        e(f"v_mul_f32 v{S+r}, s69, v{S+r}")
            e(f"v_max3_f32 v{MRUN}, v{MRUN}, v{S}, v{S+1}\nv_max3_f32 v{MRUN}, v{MRUN}, v{S+2}, v{S+3}")
        return f

    def maxA():
        e("; max over the first 128 keys of this wave")
        allred_g(MRUN, T, "v_max_f32")
        e(f"v_mul_f32 v{NEGM}, s71, v{MRUN}\nv_sub_f32 v{NEGM}, 0, v{NEGM}")

    def maxB():
        e("; max over all 256 keys, rescale of the running sum and accumulator")
        allred_g(MRUN, T, "v_max_f32")
        e(f"v_mul_f32 v{T+1}, s71, v{MRUN}\nv_add_f32 v{T+2}, v{NEGM}, v{T+1}\nv_sub_f32 v{NEGM}, 0, v{T+1}\nv_exp_f32 v{T+2}, -v{T+2}")
        e(f"v_mul_f32 v{LS}, v{LS}, v{T+2}\nv_mov_b32 v{T+3}, v{T+2}")
        e(f"v_mov_b32_dpp v{T+3}, v{T+2} row_ror:8 row_mask:0x3 bank_mask:0xc\nv_mov_b32_dpp v{T+3}, v{T+2} row_ror:8 row_mask:0xc bank_mask:0x3")
        for r in range(4):
            e(f"v_mul_f32 v{ACC+r}, v{ACC+r}, v{T+3}")

    def pexp(c):
        def f():
            S = sreg(c)
            for r in range(4):
                e(f"v_fma_f32 v{S+r}, v{S+r}, s71, v{NEGM}")
            for r in range(4):
                e(f"v_exp_f32 v{S+r}, v{S+r}")
            e(f"v_add_f32 v{T}, v{S}, v{S+1}\nv_add_f32 v{T+1}, v{S+2}, v{S+3}\nv_add_f32 v{LS}, v{LS}, v{T}\nv_add_f32 v{LS}, v{LS}, v{T+1}")
            for r in range(4):
                e(f"v_cvt_pk_bf16_f32 v{S+r}, v{S+r}, v{S+r}")
        return f

    def aprep(c, r):
        def f():
            for k in range(4):
                e(f"v_and_b32 v{AB+4*r+k}, v{sreg(c)+r}, v{MK+k}")
        return f

    def pv(c, r):
        def f():
            mfma(ACC, AB + 4 * r, VV + 16 * (c % 8) + 4 * r, False)
        return f

    def mlwrite():
        e("; publish this wave's max and sum in LDS, prepare the combine addresses")
        allred_g(LS, T, "v_add_f32")
        e(f"v_sub_f32 v{T+2}, 0, v{NEGM}\nv_mov_b32 v{T+3}, v{LS}")
        e(f"v_bfe_u32 v{T}, v0, 3, 1\nv_lshlrev_b32 v{T}, 5, v{T}\ns_lshl_b32 s63, s3, 3\ns_add_u32 s63, s63, {ML}\nv_add_u32 v{T}, s63, v{T}")
        e(f"ds_write_b64 v{T}, v[{T+2}:{T+3}]")
        ldsarrive(C3, T)
        e(f"""s_mov_b64 exec, -1
s_lshl_b32 s63, s3, 10
s_add_u32 s63, s63, {RED}
v_add_u32 v{VW2}, s63, v{VO}
v_lshrrev_b32 v2, 5, v0
v_lshlrev_b32 v3, 5, v2
v_add_u32 v3, {ML}, v3
s_lshl_b32 s63, s3, 3
v_add_u32 v9, s63, v3
v_lshlrev_b32 v4, 3, v0
v_lshlrev_b32 v5, 2, v2
v_and_b32 v6, 1, v0
v_lshl_add_u32 v6, v2, 1, v6
v_bfe_u32 v7, v0, 1, 4
v_lshl_add_u32 v6, v6, 4, v7
v_lshlrev_b32 v6, 4, v6
v_add_u32 v6, {RED}, v6
s_lshr_b32 s62, s9, 1
s_and_b32 s63, s9, 1
s_lshl_b32 s63, s63, 3
s_add_u32 s62, s62, s63
s_mul_i32 s63, s62, {GST}
s_add_u32 s63, s63, {GB}
v_add_u32 v7, s63, v4
s_lshl_b32 s63, s62, 3
s_add_u32 s63, s63, {LB}
v_add_u32 v8, s63, v5
s_lshl_b32 s63, s8, 4
s_add_u32 s63, s63, s62
s_mul_i32 s63, s63, {OSL}
s_add_u32 s63, s63, {OBUF}""")

    def factors():
        e(f"""; workgroup max and sum: v9 = this wave's normalizing factor, v27 = log2-sum-exp
v_mov_b32 v{T}, {C3}
s_mov_b32 s70, {LIMIT*8}
L_fw:
ds_read_b32 v{T+1}, v{T}
ds_read_b128 v[16:19], v3
ds_read_b128 v[20:23], v3 offset:16
ds_read_b32 v9, v9
s_waitcnt lgkmcnt(0)
v_readfirstlane_b32 s5, v{T+1}
s_cmp_ge_u32 s5, 4
s_cbranch_scc1 L_fd
s_sub_u32 s70, s70, 1
s_cbranch_scc1 L_fd
s_lshl_b32 s5, s3, 3
v_add_u32 v9, s5, v3
s_branch L_fw
L_fd:
v_max3_f32 v24, v16, v18, v20
v_max_f32 v24, v24, v22
v_sub_f32 v16, v16, v24
v_sub_f32 v18, v18, v24
v_sub_f32 v20, v20, v24
v_sub_f32 v22, v22, v24
v_sub_f32 v9, v9, v24
v_exp_f32 v16, v16
v_exp_f32 v18, v18
v_exp_f32 v20, v20
v_exp_f32 v22, v22
v_exp_f32 v9, v9
v_mul_f32 v25, v16, v17
v_fmac_f32 v25, v18, v19
v_fmac_f32 v25, v20, v21
v_fmac_f32 v25, v22, v23
v_rcp_f32 v26, v25
v_log_f32 v27, v25
v_mul_f32 v9, v9, v26
v_add_f32 v27, v27, v24
v_min_u32 v27, -2, v27""")

    def qread():
        stamp(6)
        e(f"; q fragments, s13 = store mode\nv_mov_b32 v{T}, {QF}\ns_mov_b32 s70, {LIMIT*8}\nL_qw:\nds_read_b32 v{T+1}, v{T}")
        for t in range(4):
            e(f"ds_read_b128 v[{Q+4*t}:{Q+4*t+3}], v{VW1} offset:{64*t}")
        e(f"""s_waitcnt lgkmcnt(0)
v_readfirstlane_b32 s13, v{T+1}
s_cmp_lg_u32 s13, 0
s_cbranch_scc1 L_qd
s_sub_u32 s70, s70, 1
s_cbranch_scc1 L_qd
s_sleep 2
s_branch L_qw
L_qd:""")
        stamp(7)

    def dep(n):
        return dm if n < 96 else d2

    landed = {}
    for n in range(128 + 64):
        for m in range(min(127, n - dep(n) - (boost if n < 128 else 0)) + 1):
            landed.setdefault(m, n)
    qslot = 32 + 4 * R - 3
    at(qslot, qread)
    kslot = {}
    for c in range(16):
        n0 = kslot[c] = max(landed[35 + 4 * c], qslot + 2 * c)
        assert c + R >= 16 or n0 + 1 < 32 + 4 * (c + R)
        at(n0, kread(c))
        at(n0 + 1, kmma(c))
        at(n0 + 2, kround(c))
    sA = kslot[7] + 3
    at(sA, maxA)
    for j in range(8):
        s0 = sA + 1 + 3 * j
        at(s0, pexp(j))
        for h in range(2):
            for fn in (aprep(j, 2 * h), aprep(j, 2 * h + 1), pv(j, 2 * h), pv(j, 2 * h + 1)):
                at(s0 + 1 + h, fn)
        assert s0 + 2 < 96 + 4 * j
        assert j == 7 or s0 + 2 < kslot[9 + j] + 1
    sB = kslot[15] + 3
    assert sA + 24 < sB and sB + 9 < 126
    at(sB, maxB)
    for j in range(8):
        at(sB + 1 + j, pexp(8 + j))
    at(sB + 9, mlwrite)
    at(127, factors)
    pre = {}
    last = 0
    for n in range(96, 128):
        j, r = (n - 96) // 4, n % 4
        s = max(landed[n], sB + 2 + j, last)
        while len(pre.get(s, [])) >= 4:
            s += 1
        last = s
        pre.setdefault(s, []).append((8 + j, r))
    nslots = max(max(work), last) + 1

    def t2load(j):
        e(f"buffer_load_dwordx4 v{VT2}, s[44:47], s72 offen nt lds")
        if j < 8:
            e(f"s_add_u32 s72, s72, s{74 if j % 3 == 2 else 73}\ns_add_u32 m0, m0, 1024")

    def cwait(depth):
        L = lab("w")
        e(f"s_waitcnt vmcnt({depth+boost-1})\ns_cbranch_vccnz {L}\ns_waitcnt vmcnt({depth-1})\n{L}:")

    def post(stage):
        e(f"v_mov_b32 v{VST}, {stage}\nds_write_b32 v{VPR}, v{VST}\nds_read_b32 v{VDE}, v{VDA}")

    def decide():
        e(f"s_waitcnt lgkmcnt(0)\nv_cmp_ne_u32 vcc, 0, v{VDE}")

    def vload(i, wait):
        if i % 4 == 0:
            e(f"s_xor_b32 s61, s60, {coff(i // 4)}")
        wait()
        V = VV + 4 * (i % 32)
        e(f"buffer_load_dwordx4 v[{V}:{V+3}], v{VO}, s[52:55], s61 offen offset:{(i % 4) * 1024} nt")

    def kload(i, depth):
        if i % 4 == 0:
            e(f"s_xor_b32 s62, s60, {coff(i // 4)}\ns_add_u32 m0, s67, {((i // 4) % R) * 4096}")
        cwait(depth)
        e(f"buffer_load_dwordx4 v{KD + i % 4}, s[48:51], s62 offen offset:{(i % 4) * 1024} nt lds")

    for p in range(18 + dw):
        if p == dw:
            e(f"s_lshl_b32 s5, s3, 2\ns_add_u32 s5, s5, {PRG}\nv_mov_b32 v{VPR}, s5\nv_mov_b32 v{VDA}, {DEC}\ns_barrier")
        if p > dw and p % 4 == 2:
            post(p // 4)
        if p == 18:
            vsetup()
        if p == 17 + dw:
            e(f"; this wave's part of the weight tile has landed\ns_waitcnt vmcnt({dw-1})")
            stamp(1)
            ldsarrive(C1, T)
            e("s_mov_b64 exec, -1")
        if p >= 18:
            vload(p - 18, lambda: e(f"s_waitcnt vmcnt({dw-1})"))
        else:
            if p >= dw:
                e(f"s_waitcnt vmcnt({dw-1})")
            e(f"buffer_load_dwordx4 v{VW1}, s[40:43], s72 offen nt lds")
            e(f"s_add_u32 s72, s72, s{62 if p % 3 < 2 else 63}\ns_add_u32 m0, m0, s{64 if p % 3 < 2 else 65}")
    e(f"""; tiles whose lines all have address bits [9:7] = 3 arrive late: start those workgroups on the deep queue
s_add_u32 s66, s40, s72
s_bfe_u32 s66, s66, 0x30007
s_cmp_eq_u32 s66, 3
s_cselect_b32 s66, 1, 0
s_cmp_ge_u32 s2, 208
s_cselect_b32 s66, 0, s66
s_waitcnt lgkmcnt(0)
v_mov_b32 v{VDE}, s66
ds_write_b32 v{VDA}, v{VDE}""")
    setup()
    decide()

    t2n = [0]

    def slot(n, t2):
        todo = pre.get(n, [])
        for (c, r) in todo:
            aprep(c, r)()
        if n == 32:
            stamp(2)
            e(f"; the K rings reuse the weight tile's LDS once it has been read\nv_mov_b32 v{T}, {C2}")
            ldsspin(T, 4, st=5)
        if n < 32 or 96 <= n < 128:
            vload(n if n < 32 else n - 64, lambda: cwait(dep(n)))
        elif n < 96:
            kload(n - 32, dep(n))
        else:
            if n - d2 <= 127:
                e(f"s_waitcnt vmcnt({127 - (n - d2) + (t2n[0] if t2 else 0)})")
            left = nslots - 1 - n
            if t2 and left > 0:
                for _ in range(-(-(8 - t2n[0]) // left)):
                    t2load(t2n[0])
                    t2n[0] += 1
        for (c, r) in todo:
            pv(c, r)()
        if n < 128 and n % 4 == 1:
            decide()
        if n < 128 and n % 4 == 0:
            post((n + 18) // 4)
        for fn in work.get(n, []):
            fn()

    for n in range(dw, 128):
        slot(n, False)
    e("; drain V; the wo / w_down roles queue their late tile behind it\ns_mov_b32 m0, s67\ns_sub_u32 s5, s2, 144\ns_cmp_lt_u32 s5, 64\ns_cbranch_scc1 L_tq")
    for n in range(128, nslots):
        slot(n, True)
    assert t2n[0] == 8
    e("s_branch L_tj\nL_tq:")
    for n in range(128, nslots):
        slot(n, False)
    e("L_tj:")
    for r in range(4):
        e(f"v_mul_f32 v{ACC+r}, v{ACC+r}, v9")
    e(f"ds_write_b128 v{VW2}, v[{ACC}:{ACC+3}]")
    stamp(4)
    e("s_cmp_lt_u32 s2, 208\ns_cbranch_scc1 L_t9")
    t2load(8)
    e("L_t9:\ns_waitcnt lgkmcnt(0)\ns_barrier\ns_cmp_lg_u32 s3, 0\ns_cbranch_scc1 L_sd")
    for w in range(4):
        e(f"ds_read_b128 v[{28+4*w}:{31+4*w}], v6 offset:{1024*w}")
    for w in range(1, 4):
        e(f"s_waitcnt lgkmcnt({3 - w})")
        for r in range(4):
            e(f"v_add_f32 v{28+r}, v{28+r}, v{28+4*w+r}")
    e("v_cvt_pk_bf16_f32 v28, v28, v29\nv_cvt_pk_bf16_f32 v29, v30, v31\nv_min_u32 v28, -2, v28\nv_min_u32 v29, -2, v29")
    dual("""buffer_store_dwordx2 v[28:29], v4, s[56:59], s63 offen POL
s_mov_b32 exec_lo, 1
s_mov_b32 exec_hi, 1
buffer_store_dword v27, v5, s[56:59], s63 offen offset:512 POL""", 13)
    e("ds_write_b32 v8, v27\ns_mov_b64 exec, -1\nds_write_b64 v7, v[28:29]")
    stamp(3)
    e("L_sd:\ns_waitcnt vmcnt(0) lgkmcnt(0)")
    stamp(5)
    e("s_barrier\ns_barrier\ns_branch L_fin")

    XN, WF, OF, AC, G, U = 16, 52, 160, 192, 208, 220
    e(f"""; ===== projection and hand-off waves (s4 = 0..3) =====
L_aux:
s_sub_u32 s4, s3, 4
v_mul_u32_u24 v1, 36, v0
s_mul_i32 s5, s4, 2304
v_lshlrev_b32 v2, 4, v0
v_mov_b32 v8, {CNT}
v_mov_b32 v4, 0
v_mov_b32 v5, 0
v_mov_b32 v6, 0
v_mov_b32 v7, 0
ds_write_b128 v8, v[4:7]
ds_write_b128 v8, v[4:7] offset:16
ds_write_b128 v8, v[4:7] offset:32
s_movk_i32 s42, 9216
s_mov_b32 s43, 0x20000
s_waitcnt lgkmcnt(0)
s_load_dword s14, s[38:39], 0
s_mov_b64 s[40:41], s[16:17]""")
    for k in range(3):
        e(f"buffer_load_dwordx3 v[{16+4*k}:{18+4*k}], v1, s[40:43], s5 offen offset:{12*k}")
    e("s_barrier")
    srd(56, 38, wsz)
    e(f"""s_add_u32 s13, s79, 64
s_bitcmp1_b32 s2, 3
s_cselect_b32 s60, 72, 0
s_add_u32 s13, s13, s60
s_cmp_ge_u32 s2, 144
s_cselect_b32 s13, s10, s13
s_lshl_b32 s13, s13, 11
s_add_u32 s13, s13, {PBUF}
s_getreg_b32 s78, hwreg(HW_REG_XCC_ID, 0, 4)
s_lshl_b32 s78, s78, 16
s_and_b32 s77, s2, 7
s_lshl_b32 s77, s77, 7
s_add_u32 s77, s77, {XID}
s_mov_b32 s68, 0xffff0000
s_mov_b32 s69, {f32(1/576)}
s_add_u32 s5, s5, {XS}
v_add_u32 v1, s5, v1
v_lshrrev_b32 v10, 4, v0
v_and_b32 v11, 15, v0
v_bfe_u32 v8, v0, 2, 2
v_lshl_add_u32 v12, v10, 3, v8
v_lshlrev_b32 v12, 7, v12
v_and_b32 v9, 3, v0
v_lshl_add_u32 v12, v9, 3, v12
v_lshrrev_b32 v13, 1, v8
v_and_b32 v8, 1, v10
v_lshl_or_b32 v13, v8, 1, v13
v_lshl_add_u32 v12, v13, 5, v12
s_lshl_b32 s60, s4, 5
v_xor_b32 v3, s60, v12
v_add_u32 v4, 0x10000, v3
v_and_b32 v14, 7, v0
v_bfe_u32 v15, v0, 2, 3
v_lshl_add_u32 v15, v9, 4, v15
v_lshlrev_b32 v15, 2, v15
v_mul_u32_u24 v5, 1152, v14
v_lshrrev_b32 v8, 3, v11
v_mul_u32_u24 v8, 576, v8
v_lshl_add_u32 v8, v10, 4, v8
v_add_u32 v5, v5, v8
v_add_u32 v5, {XS}, v5
s_mov_b32 s71, 0x07060302
v_and_b32 v57, 31, v0
v_lshlrev_b32 v57, 2, v57
s_waitcnt lgkmcnt(0)
s_add_u32 s14, s14, 1
s_and_b32 s15, s14, 0xffff
s_and_b32 s6, s14, 0xff
s_andn2_b32 s60, s14, 0xf0000
s_or_b32 s78, s78, s60
s_cmp_lg_u32 s4, 0
s_cbranch_scc1 L_a1
s_lshr_b32 s60, s2, 3
s_lshl_b32 s60, s60, 2
s_add_u32 s60, s60, s77
v_mov_b32 v8, s78
s_mov_b64 exec, 1
buffer_store_dword v8, v57, s[56:59], s60 offen
s_mov_b64 exec, -1
s_waitcnt vmcnt(1)
s_branch L_a2
L_a1:
s_waitcnt vmcnt(0)
L_a2:
; LayerNorm of two rows per wave, rounded to bf16 after every step like the reference""")
    raw = [16, 17, 18, 20, 21, 22, 24, 25, 26]

    def red32(v, t):
        for s in (8, 4, 2, 1):
            e(f"v_add_f32_dpp v{v}, v{v}, v{v} row_ror:{s} row_mask:0xf bank_mask:0xf")
        e(f"v_mov_b32 v{t}, v{v}\nv_permlane16_swap_b32 v{v}, v{t}\nv_add_f32 v{v}, v{v}, v{t}")

    for k in range(9):
        e(f"v_lshlrev_b32 v{28+2*k}, 16, v{raw[k]}\nv_and_b32 v{29+2*k}, s68, v{raw[k]}")
    e("v_pk_add_f32 v[46:47], v[28:29], v[30:31]")
    for k in range(2, 9):
        e(f"v_pk_add_f32 v[46:47], v[46:47], v[{28+2*k}:{29+2*k}]")
    e("v_add_f32 v46, v46, v47")
    red32(46, 47)
    e("v_mul_f32 v48, s69, v46\nv_sub_f32 v50, 0, v48\nv_sub_f32 v51, 0, v48")
    for k in range(9):
        e(f"v_pk_add_f32 v[8:9], v[{28+2*k}:{29+2*k}], v[50:51]")
        e("v_pk_mul_f32 v[46:47], v[8:9], v[8:9]" if k == 0 else "v_pk_fma_f32 v[46:47], v[8:9], v[8:9], v[46:47]")
    e("v_add_f32 v46, v46, v47")
    red32(46, 47)
    e("v_mul_f32 v46, s69, v46")
    rnd(46, 46)
    e(f"v_add_f32 v46, {f32(1e-5)}, v46")
    rnd(46, 46)
    e("v_sqrt_f32 v46, v46")
    rnd(46, 46)
    e("v_rcp_f32 v46, v46")
    rnd(50, 50)
    e("v_mov_b32 v51, v50\nv_mov_b32 v47, v46")
    for k in range(9):
        e(f"v_pk_add_f32 v[8:9], v[{28+2*k}:{29+2*k}], v[50:51]\nv_cvt_pk_bf16_f32 v9, v8, v9\nv_lshlrev_b32 v8, 16, v9\nv_and_b32 v9, s68, v9")
        e(f"v_pk_mul_f32 v[8:9], v[8:9], v[46:47]\nv_cvt_pk_bf16_f32 v{raw[k]}, v8, v9")
    for k in range(0, 8, 2):
        e(f"ds_write2_b32 v1, v{raw[k]}, v{raw[k+1]} offset0:{k} offset1:{k+1}")
    e(f"ds_write_b32 v1, v{raw[8]} offset:32")
    stamp(1)
    e(f"""v_mov_b32 v{G}, -1
v_mov_b32 v{G+1}, -1
v_mov_b32 v{G+2}, -1
v_mov_b32 v{G+3}, -1
s_lshl_b32 s61, s10, 2
s_add_u32 s61, s61, s4
s_mul_i32 s61, s61, {OSL}
s_add_u32 s61, s61, {OBUF}
v_mov_b32 v1, v57
s_waitcnt lgkmcnt(0)""")
    ldsarrive(C1, 8)
    e(f"""s_mov_b64 exec, -1
s_mov_b32 s70, 2
s_cmp_ge_u32 s2, 208
s_cbranch_scc1 L_a4
L_xid:
buffer_load_dword v{G+4}, v1, s[56:59], s77 offen sc1
s_waitcnt vmcnt(0)""")
    xidcheck(G + 4)
    e("""s_cmp_eq_u32 s7, 2
s_cbranch_scc1 L_xidd
s_sub_u32 s70, s70, 1
s_cbranch_scc0 L_xid
L_xidd:
s_cmp_lt_u32 s2, 144
s_cbranch_scc1 L_a4
s_mov_b32 exec_hi, 0xff""")
    dual(f"buffer_store_dwordx4 v[{G}:{G+3}], v2, s[56:59], s61 offen POL", 7)
    e("L_a4:\ns_mov_b64 exec, 1")
    ldsspin(8, 8)
    stamp(2)
    for i in range(9):
        e(f"ds_read_b128 v[{XN+4*i}:{XN+4*i+3}], v5 offset:{64*i}")
    for kk in range(18):
        trread(WF + 4 * kk, 3 if kk < 16 else 4, (kk % 16) * 4096)
    e(f"""s_lshl_b32 s60, s4, 9
s_add_u32 s60, s60, s13
v_mov_b32 v7, s68
v_mov_b32 v{CV}, {PRG}
s_lshr_b32 s61, s2, 3
s_lshl_b32 s61, s61, 2
v_mov_b32 v{CV+3}, s61
s_add_u32 s76, s77, {PLN - XID}
s_waitcnt lgkmcnt(0)""")
    ldsarrive(C2, 8)
    e("s_mov_b64 exec, -1\ns_cmp_ge_u32 s2, 208\ns_cbranch_scc1 L_aq")
    for i in range(9):
        for hf in range(2):
            mfma(AC + 4 * hf, WF + 4 * (9 * hf + i), XN + 4 * i, i == 0)
    for r in range(4):
        e(f"v_add_f32_dpp v{AC+r}, v{AC+4+r}, v{AC+r} row_ror:8 row_mask:0xf bank_mask:0xf")
    e(f"""; publish 8 x 16 values as (bf16 << 16 | tag)
v_cvt_pk_bf16_f32 v8, v{AC}, v{AC+1}
v_cvt_pk_bf16_f32 v9, v{AC+2}, v{AC+3}
ds_bpermute_b32 v8, v15, v8
ds_bpermute_b32 v9, v15, v9
s_waitcnt lgkmcnt(0)
v_lshl_or_b32 v16, v8, 16, s15
v_and_or_b32 v17, v8, v7, s15
v_lshl_or_b32 v18, v9, 16, s15
v_and_or_b32 v19, v9, v7, s15
s_waitcnt vmcnt(0)
s_mov_b32 exec_hi, 0""")
    dual("buffer_store_dwordx4 v[16:19], v2, s[56:59], s60 offen POL", 7)
    race = """s_mov_b64 s[60:61], 0
LOADS
s_waitcnt lgkmcnt(1)
s_add_u32 s62, s62, s60
s_sub_u32 s62, s62, s61
s_waitcnt lgkmcnt(0)"""
    la, lb = f"s_load_dword s60, s[38:39], {PRB} glc", f"s_load_dword s61, s[38:39], {PRB + 0x2000} glc"
    e(f"""s_mov_b32 exec_hi, -1
s_lshl_b32 s60, s4, 8
s_add_u32 s60, s60, s2
s_cmp_lg_u32 s60, {256 + 144}
s_cbranch_scc1 L_aq
v_lshlrev_b32 v8, 13, v0
v_mov_b32 v9, 1
s_mov_b32 s60, {PRB}
s_mov_b64 exec, 3
buffer_store_dword v9, v8, s[56:59], s60 offen sc1
s_mov_b64 exec, -1
s_mov_b32 s62, 0
s_mov_b32 s70, {trials - 1}
s_waitcnt vmcnt(0)
L_race:""")
    e(race.replace("LOADS", la + "\n" + lb))
    e(race.replace("LOADS", lb + "\n" + la))
    e(f"""s_sub_u32 s70, s70, 1
s_cbranch_scc0 L_race
s_cmp_lt_i32 s62, 0
s_cselect_b32 s60, 0x10000, 0
s_or_b32 s60, s60, s15
v_mov_b32 v8, s60
v_mov_b32 v9, s14
s_mov_b64 exec, 1
buffer_store_dwordx2 v[8:9], v2, s[56:59], 0 offen offset:{PAR} sc1
s_mov_b64 exec, -1
L_aq:""")
    control(T1)
    ldsspin(CV, T1, sleep=8, four=True)
    e(f"""; wave 3 gathers q for the stream waves
s_cmp_lg_u32 s4, 3
s_cbranch_scc1 L_a3
s_lshr_b32 s60, s9, 1
s_lshl_b32 s60, s60, 6
s_lshl_b32 s61, s8, 13
s_add_u32 s60, s60, s61
s_add_u32 s60, s60, {PBUF}
v_lshrrev_b32 v6, 2, v0
v_lshlrev_b32 v6, 9, v6
v_and_b32 v7, 3, v0
v_lshl_add_u32 v6, v7, 4, v6
buffer_load_dword v24, v1, s[56:59], s77 offen sc1""")
    poll("buffer_load_dwordx4 v[20:23], v6, s[56:59], s60 offen sc1 nt", tagcmp([20, 21, 22, 23], 7), 4)
    xidcheck(24)
    CEND = 136
    e(f"""v_perm_b32 v8, v21, v20, s71
v_perm_b32 v9, v23, v22, s71
v_lshlrev_b32 v6, 3, v0
v_add_u32 v6, {QS}, v6
ds_write_b64 v6, v[8:9]
v_mov_b32 v6, {QF}
v_mov_b32 v7, s7
s_waitcnt lgkmcnt(0)
ds_write_b32 v6, v7
L_a3:
v_mul_u32_u24 v4, {RING - 1024}, v10
v_add_u32 v4, v4, v3
v_mov_b32 v12, 0xffffff00
v_bfe_u32 v3, v0, 4, 1
v_lshlrev_b32 v3, 13, v3
v_lshrrev_b32 v8, 5, v0
v_lshl_add_u32 v3, v8, 15, v3
v_lshl_add_u32 v3, v14, 4, v3
s_and_b32 s64, s4, 1
s_lshl_b32 s65, s64, 12
s_lshr_b32 s61, s4, 1
s_lshl_b32 s61, s61, 14
s_add_u32 s65, s65, s61
s_lshl_b32 s61, s8, 7
s_add_u32 s65, s65, s61
s_add_u32 s65, s65, {PART}
s_cmp_lt_u32 s2, 144
s_cbranch_scc1 L_aO
s_cmp_ge_u32 s2, 208
s_cbranch_scc1 L_aD""")
    control(CEND)
    e(f"""s_branch L_fin
L_aD:
s_mul_i32 s60, s11, 9216
s_mul_i32 s61, s4, 2304
s_add_u32 s60, s60, s61
s_add_u32 s60, s60, {PBUF + 131072}
s_add_u32 s61, s60, {288 * 512}
s_mov_b32 s72, -1
s_mov_b32 s73, 0xffff
s_mov_b64 exec, s[72:73]""")
    poll("\n".join([f"buffer_load_dwordx4 v[{G+4*k}:{G+4*k+3}], v2, s[56:59], s60 offen offset:{768*k} sc1 nt" for k in range(3)] +
                   [f"buffer_load_dwordx4 v[{U+4*k}:{U+4*k+3}], v2, s[56:59], s61 offen offset:{768*k} sc1 nt" for k in range(3)]),
         tagcmp(list(range(G, G + 24)), 8), 8, restore="s[72:73]")
    c0 = -2 * LOG2E * 0.7978845608028654
    e(f"; gelu_tanh(g) = g / (1 + exp(-2 * sqrt(2/pi) * (g + 0.044715 g^3)))\nv_mov_b32 v32, {f32(c0)}\nv_mov_b32 v33, {f32(c0 * 0.044715)}\ns_mul_i32 s60, s4, 144")
    for k in range(6):
        e(f"""v_and_b32 v34, s68, v{G+2*k}
v_and_b32 v35, s68, v{G+2*k+1}
v_mul_f32 v36, v34, v34
v_mul_f32 v37, v35, v35
v_fma_f32 v36, v36, v33, v32
v_fma_f32 v37, v37, v33, v32
v_mul_f32 v36, v36, v34
v_mul_f32 v37, v37, v35
v_exp_f32 v36, v36
v_exp_f32 v37, v37
v_and_b32 v38, s68, v{U+2*k}
v_add_f32 v36, 1.0, v36
v_add_f32 v37, 1.0, v37
v_rcp_f32 v36, v36
v_rcp_f32 v37, v37
v_and_b32 v39, s68, v{U+2*k+1}
v_mul_f32 v34, v34, v36
v_mul_f32 v35, v35, v37
v_cvt_pk_bf16_f32 v35, v34, v35
v_lshlrev_b32 v34, 16, v35
v_and_b32 v35, s68, v35
v_mul_f32 v34, v34, v38
v_mul_f32 v35, v35, v39
v_cvt_pk_bf16_f32 v{40+k}, v34, v35""")
    for k in range(3):
        e(f"""v_add_u32 v34, s60, v0
v_bfe_u32 v35, v34, 2, 3
v_mul_u32_u24 v35, 576, v35
v_and_b32 v36, 3, v34
v_lshl_add_u32 v35, v36, 3, v35
v_and_b32 v34, 0xffe0, v34
v_add_u32 v35, v35, v34
v_add_u32 v35, {HS}, v35
ds_write_b64 v35, v[{40+2*k}:{41+2*k}]
s_add_u32 s60, s60, 48""")
    e("s_waitcnt lgkmcnt(0)")
    ldsarrive(CNT, 8)
    ldsspin(8, 4)
    e(f"v_mul_u32_u24 v5, 576, v14\nv_lshl_add_u32 v5, v10, 4, v5\nv_add_u32 v5, {HS}, v5")
    for i in range(9):
        e(f"ds_read_b128 v[{XN+4*i}:{XN+4*i+3}], v5 offset:{64*i}")
    e(f"""s_mul_i32 s60, s12, {3*65536}
s_add_u32 s60, s60, s65
s_add_u32 s60, s60, 2048
s_add_u32 s61, s60, 65536
s_add_u32 s62, s60, 131072
s_waitcnt lgkmcnt(0)""")
    for i in range(6):
        for sub in range(3):
            mfma(AC + 4 * sub, WF + 4 * (6 * sub + i), XN + 4 * i, i == 0)
    stamp(4)
    control(CEND)
    getside()
    e(f"; last 96 rows arrive with the late tile\ns_barrier\nds_read_b32 v{CV+4}, v{CV} offset:{SIDE - PRG}\ns_waitcnt lgkmcnt(0)\nv_xor_b32 v3, v3, v{CV+4}\ns_barrier")
    for j in range(9):
        trread(WF + 4 * j, 4, j * 1024)
    for j in range(9):
        if j % 3 == 0:
            e(f"s_waitcnt lgkmcnt({12 - 2 * j})")
        mfma(AC + 4 * (j % 3), WF + 4 * j, XN + 4 * (6 + j // 3), False)

    def publish(n, src, soffs):
        e("; partial outputs: f32 with the 8-bit tag in the low mantissa byte, one 128 B line = 8 batches x 4 columns")
        e("s_mov_b32 exec_lo, 0x00ff00ff\ns_mov_b32 exec_hi, 0x00ff00ff")
        for k in range(n):
            for r in range(4):
                e(f"v_and_or_b32 v{src+4*k+r}, v{src+4*k+r}, v12, s6")
            e(f"buffer_store_dwordx4 v[{src+4*k}:{src+4*k+3}], v3, s[56:59], s{soffs[k]} offen sc1")
        e("s_mov_b64 exec, -1")

    publish(3, AC, (60, 61, 62))
    stamp(7)
    e(f"""s_branch L_fin
L_aO:
s_lshl_b32 s61, s9, 16
s_add_u32 s65, s65, s61
v_mul_u32_u24 v6, {OSL}, v10
v_lshl_add_u32 v5, v11, 4, v6
s_lshl_b32 s62, s8, 2
s_add_u32 s62, s62, s4
s_mul_i32 s62, s62, {4*OSL}
s_add_u32 s62, s62, {OBUF}
s_mul_i32 s61, s4, {4*GST}
s_add_u32 s61, s61, {GB}
v_mul_u32_u24 v48, {GST}, v10
v_lshl_add_u32 v48, v11, 4, v48
v_add_u32 v48, s61, v48
s_lshl_b32 s61, s4, 5
s_add_u32 s61, s61, {LB}
v_lshl_add_u32 v49, v10, 3, s61
v_mul_u32_u24 v46, {GST}, v11
v_lshl_add_u32 v46, v10, 4, v46
v_add_u32 v46, {GB}, v46
v_lshlrev_b32 v47, 3, v11
v_add_u32 v47, {LB}, v47
s_andn2_b32 s74, s2, 6
s_and_b32 s61, s2, 2
s_lshl_b32 s61, s61, 1
s_or_b32 s74, s74, s61
s_lshl_b32 s74, s74, 12
s_lshl_b32 s61, s4, 5
s_add_u32 s74, s74, s61
s_add_u32 s74, s74, {PART}
v_lshrrev_b32 v8, 1, v0
v_lshlrev_b32 v7, 7, v8
v_and_b32 v8, 1, v0
v_lshl_add_u32 v7, v8, 4, v7
s_and_b32 s61, s2, 4
s_lshl_b32 s61, s61, 11
v_add_u32 v7, s61, v7
v_mov_b32 v26, 0xff
s_mul_i32 s75, s4, 2304
s_lshl_b32 s61, s9, 7
s_add_u32 s75, s75, s61
s_and_b32 s61, s8, 3
s_lshl_b32 s61, s61, 5
s_add_u32 s75, s75, s61
s_lshr_b32 s61, s8, 2
s_lshl_b32 s61, s61, 3
s_add_u32 s75, s75, s61
v_and_b32 v9, 1, v10
v_mul_u32_u24 v13, 1152, v8
v_lshl_add_u32 v13, v9, 1, v13
v_bfe_u32 v9, v0, 3, 1
v_lshl_add_u32 v13, v9, 2, v13
buffer_load_ushort v50, v13, s[40:43], s75 offen
s_lshr_b32 s61, s9, 1
s_and_b32 s60, s9, 1
s_lshl_b32 s60, s60, 3
s_add_u32 s61, s61, s60
s_lshl_b32 s60, s4, 2
s_sub_u32 s61, s61, s60
v_cmp_ne_u32 s[72:73], s61, v10""")
    srd(48, 34, 9216)
    control(CEND)
    getside()
    e("s_waitcnt vmcnt(0)\nv_lshlrev_b32 v50, 16, v50\ns_mov_b64 exec, s[72:73]\ns_barrier")
    stamp(5)

    def wofrags(back):
        e(f"s_mov_b64 exec, -1\nds_read_b32 v{CV+4}, v{CV} offset:{SIDE - PRG}\ns_barrier")
        stamp(4)
        for ks in range(8):
            trread(OF + 4 * ks, 4, ks * 1024)
        if back:
            e(f"s_mov_b64 exec, {back}")

    oloads = """buffer_load_dwordx4 v[28:31], v5, s[56:59], s62 offen sc1
buffer_load_dwordx4 v[32:35], v5, s[56:59], s62 offen offset:256 sc1
buffer_load_dwordx2 v[36:37], v6, s[56:59], s62 offen offset:512 sc1"""
    owrite = "ds_write_b128 v48, v[28:31]\nds_write_b128 v48, v[32:35] offset:256\nds_write_b64 v49, v[36:37]"
    ocmp = sentcmp(range(28, 38), 38)
    e(oloads + "\ns_waitcnt vmcnt(0)\n" + ocmp + "\ns_cbranch_vccnz L_og1")
    e(owrite)
    wofrags(None)
    e("s_branch L_og2\nL_og1:\ns_mov_b64 exec, vcc")
    poll(oloads, ocmp, 0, first=lambda: wofrags("vcc"), restore="s[72:73]")
    e(owrite + "\ns_mov_b64 exec, -1\nL_og2:")
    stamp(6)
    e("s_waitcnt lgkmcnt(0)\ns_barrier\nds_read_b64 v[36:37], v47")
    order = [0, 4, 1, 5, 2, 6, 3, 7]
    for ks in order:
        e(f"ds_read_b128 v[{WF+4*ks}:{WF+4*ks+3}], v46 offset:{64*ks}")
    e("""s_waitcnt lgkmcnt(8)
v_sub_f32_dpp v38, v36, v36 row_ror:8 row_mask:0xf bank_mask:0xf
v_sub_f32_dpp v39, v37, v37 row_ror:8 row_mask:0xf bank_mask:0xf""")
    fill = ["v_exp_f32 v38, v38", "v_exp_f32 v39, v39", "v_add_f32 v38, 1.0, v38", "v_add_f32 v39, 1.0, v39", "v_rcp_f32 v38, v38", "v_rcp_f32 v39, v39", f"v_xor_b32 v3, v3, v{CV+4}", f"v_xor_b32 v7, v7, v{CV+4}"]
    for i, ks in enumerate(order):
        e(f"s_waitcnt lgkmcnt({7 - i})")
        mfma(AC + 4 * (ks // 4), OF + 4 * ks, WF + 4 * ks, ks % 4 == 0)
        if i < len(fill):
            e(fill[i])
    for r in range(4):
        e(f"v_mul_f32 v{AC+r}, v{AC+r}, v38")
    for r in range(4):
        e(f"v_fmac_f32 v{AC+r}, v{AC+4+r}, v39")
    for r in range(4):
        e(f"v_add_f32_dpp v{AC+r}, v{AC+r}, v{AC+r} row_ror:8 row_mask:0xf bank_mask:0xf")
    publish(1, AC, (65,))
    stamp(3)
    e("; final sum of 8 outputs: lanes 0-31 hold 16 attention partials, lanes 32-63 hold 16 FFN partials\ns_waitcnt vmcnt(0)")
    chk = "\n".join(f"v_xor_b32 v{16+i}, s6, v{16+i}" for i in range(4)) + "\nv_or3_b32 v24, v16, v17, v18\nv_bitop3_b32 v24, v24, v26, v19 bitop3:0xc8\nv_cmp_ne_u32 vcc, 0, v24"
    poll("buffer_load_dwordx4 v[16:19], v7, s[56:59], s74 offen sc1", chk, 0, quad=True)
    e("""v_permlane16_swap_b32 v16, v17
v_permlane16_swap_b32 v18, v19
v_add_f32 v17, v16, v17
v_add_f32 v18, v18, v19
v_add_f32_dpp v16, v17, v17 row_ror:8 row_mask:0xf bank_mask:0x3
v_add_f32_dpp v16, v18, v18 row_ror:8 row_mask:0xf bank_mask:0xc
v_add_f32_dpp v16, v16, v16 row_shl:4 row_mask:0xf bank_mask:0x5
v_add_f32_dpp v16, v16, v16 quad_perm:[2,3,0,1] row_mask:0xf bank_mask:0xf""")
    rnd(16, 16)
    e("v_add_f32 v17, v16, v50")
    rnd(17, 17)
    e("""v_permlane32_swap_b32 v16, v18
v_add_f32 v17, v17, v18
v_cvt_pk_bf16_f32 v17, v17, v17
s_mov_b32 exec_lo, 0x03030303
s_mov_b32 exec_hi, 0
buffer_store_short v17, v13, s[48:51], s75 offen
s_mov_b64 exec, 1
s_add_u32 s60, s2, s4
s_cmp_lg_u32 s60, 0
s_cbranch_scc1 L_o3
v_mov_b32 v19, s14
buffer_store_dword v19, v2, s[56:59], 0 offen
L_o3:""")
    stamp(7)
    if amp:
        a, b, k = amp
        e(f"s_waitcnt lgkmcnt(0)\ns_sub_u32 s61, s{80+2*b}, s{80+2*a}\ns_mul_i32 s61, s61, {k}\nL_probe:\ns_memrealtime s[76:77]\ns_waitcnt lgkmcnt(0)\ns_sub_u32 s60, s76, s{80+2*a}\ns_cmp_lt_u32 s60, s61\ns_cbranch_scc1 L_probe")
    e("L_fin:")
    if diag:
        e("s_mov_b64 exec, -1\ns_cmp_lt_u32 s3, 4\ns_cbranch_scc1 L_dg\ns_sub_u32 s60, s2, 144\ns_cmp_lt_u32 s60, 64\ns_cbranch_scc1 L_end\nL_dg:")
        e("s_waitcnt vmcnt(0)\ns_memrealtime s[76:77]\ns_waitcnt lgkmcnt(0)\ns_getreg_b32 s77, hwreg(HW_REG_HW_ID)")
        for i in range(8):
            e(f"v_mov_b32 v{16+i}, s{80+2*i}")
        e(f"v_mov_b32 v24, s76\nv_mov_b32 v25, s77\nv_mov_b32 v1, 0\ns_lshl_b32 s60, s2, 3\ns_add_u32 s60, s60, s3\ns_lshl_b32 s60, s60, 6\ns_add_u32 s60, s60, {STAMP}")
        e("s_mov_b64 exec, 1\nbuffer_store_dwordx4 v[16:19], v1, s[56:59], s60 offen\nbuffer_store_dwordx4 v[20:23], v1, s[56:59], s60 offen offset:16\nbuffer_store_dwordx2 v[24:25], v1, s[56:59], s60 offen offset:32")
    e("L_end:\ns_endpgm")
    e(f""".section .rodata,"a"
.p2align 6
.amdhsa_kernel {KN}
.amdhsa_next_free_vgpr 256
.amdhsa_next_free_sgpr 102
.amdhsa_accum_offset 256
.amdhsa_group_segment_fixed_size 0
.amdhsa_kernarg_size 96
.amdhsa_user_sgpr_count 2
.amdhsa_user_sgpr_kernarg_segment_ptr 1
.amdhsa_system_sgpr_workgroup_id_x 1
.amdhsa_float_denorm_mode_32 3
.end_amdhsa_kernel""")
    return top + e.text()


def summary(T, cfg):
    import numpy as np
    S = T[:, :4]; A = T[:144, 4:]; D = T[208:, 4:]
    wd = S[:, :, 4].max(1); m = wd.max()
    return dict(startmax=S[:, :, 0].max(), B1med=float(np.median(S[:, :, 1])), B1max=S[:, :, 1].max(), B2max=S[:, :, 2].max(), qwait=(S[:, :, 7] - S[:, :, 6]).max(),
                xcdspread=max(wd[i::8].mean() for i in range(8)) - wd.mean(), meandone=wd.mean(), maxdone=m, opub=S[:, 0, 3].max() - m, t2=S[:, :, 5].max() - m,
                dpub=D[:, :, 7].max() - m, ogath=A[:, :, 6].max() - m, ppub=A[:, :, 3].max() - m, out=A[:, :, 7].max() - m, end=A[:, :, 8].max())


if __name__ == "__main__":
    kw = eval("dict(" + (sys.argv[2] if len(sys.argv) > 2 else "") + ")")
    open(sys.argv[1], "w").write(gen(**kw))
```

```python
import sys, struct
sys.path.insert(0, "dev")
from asmlib import Asm

KN = "parallel_sum__sliding_block_cached__geglu_ffn__decode_kernel"
REF = "parallel_sum__sliding_block_cached__geglu_ffn__decode.s.ref"

R = 8
RING = R * 4096
XS = 4 * RING
QS = XS + 9216
HS = QS + 512
ML = HS + 4608
CNT = ML + 64
QF, C1, C2, PRG, DEC, C3 = CNT + 4, CNT + 8, CNT + 12, CNT + 16, CNT + 32, CNT + 36
SIDE = CNT + 40
LB = CNT + 64
RED = LB + 128
GB = RED + 4096
GST = 528
LDS_SZ = GB + 16 * GST
XID, PLN, PBUF, OBUF, PART = 0x400, 0x800, 0x1000, 0x70000, 0xA0000
PAR, PRB = 0x200, 0x6C000
OSL = 640
WS_SZ = PART + 144 * 4096
STAMP = 0x200000
LIMIT = 2000000
LOG2E = 1.4426950408889634

DOC = """;
;
;
"""


def f32(x):
    return "0x%08x" % struct.unpack("<I", struct.pack("<f", x))[0]


def gen(dw=6, dm=5, d2=6, boost=3, thr=16, T1=48, diag=0, wmap=0, T2=96, trials=3, amp=None, qslot=56, fslot=124, win=((54, 64, 8),), dk=None, dw2=None, pw2=10):
    dk = dk or dw
    dw2 = dw2 or dw
    e = Asm()
    uid = [0]
    wsz = WS_SZ if not diag else 0x400000

    def lab(p):
        uid[0] += 1
        return f"L_{p}{uid[0]}"

    def coff(c):
        return ((c & 1) << 14) | ((c >> 1) << 16) | ((c & 1) << 13) | ((c >> 1 & 1) << 15)

    def stamp(i):
        if diag or (amp and i in amp[:2]):
            e(f"s_memrealtime s[{80 + 2 * i}:{81 + 2 * i}]")

    def srd(b, lo, size):
        e(f"s_mov_b32 s{b}, s{lo}\ns_mov_b32 s{b+1}, s{lo+1}\ns_mov_b32 s{b+2}, {size}\ns_mov_b32 s{b+3}, 0x20000")

    def rnd(dst, src):
        e(f"v_cvt_pk_bf16_f32 v{dst}, v{src}, v{src}\nv_lshlrev_b32 v{dst}, 16, v{dst}")

    def poll(loads, cmp, sleep, restore="-1", quad=False, first=None):
        L = lab("poll")
        e(f"s_mov_b32 s70, {LIMIT}")
        if first:
            e(loads)
            first()
            e(f"s_branch {L}_w")
        e(f"{L}:")
        e(loads)
        e(f"{L}_w:\ns_waitcnt vmcnt(0)")
        e(cmp)
        e(f"s_cbranch_vccz {L}_d" if quad else f"s_and_b64 exec, exec, vcc\ns_cbranch_scc0 {L}_d")
        e(f"s_sub_u32 s70, s70, 1\ns_cbranch_scc1 {L}_d")
        if quad:
            e("s_wqm_b64 exec, vcc")
        if sleep:
            e(f"s_sleep {sleep}")
        e(f"s_branch {L}\n{L}_d:\ns_mov_b64 exec, {restore}")

    def dual(stores, mode):
        L = lab("st")
        e(f"s_cmp_eq_u32 s{mode}, 2\ns_cbranch_scc0 {L}")
        e(stores.replace("POL", ""))
        e(f"s_branch {L}_d\n{L}:")
        e(stores.replace("POL", "sc1"))
        e(f"{L}_d:")

    def xidcheck(v):
        e(f"v_cmp_ne_u32 vcc, s78, v{v}\ns_cmp_eq_u32 vcc_lo, 0\ns_cselect_b32 s7, 2, 1")

    def ldsarrive(addr, va):
        e(f"s_mov_b64 exec, 1\nv_mov_b32 v{va}, {addr}\nv_mov_b32 v{va+1}, 1\nds_add_u32 v{va}, v{va+1}")

    def ldsspin(va, count, st=60, sleep=2, four=False):
        L = lab("spin")
        e(f"s_mov_b32 s70, {LIMIT*8}\n{L}:")
        if four:
            e(f"ds_read_b128 v[{va+4}:{va+7}], v{va}\ns_waitcnt lgkmcnt(0)\nv_add3_u32 v{va+1}, v{va+4}, v{va+5}, v{va+6}\nv_add_u32 v{va+1}, v{va+1}, v{va+7}")
        else:
            e(f"ds_read_b32 v{va+1}, v{va}\ns_waitcnt lgkmcnt(0)")
        e(f"""v_readfirstlane_b32 s{st}, v{va+1}
s_cmp_ge_u32 s{st}, {count}
s_cbranch_scc1 {L}_d
s_sub_u32 s70, s70, 1
s_cbranch_scc1 {L}_d
s_sleep {sleep}
s_branch {L}
{L}_d:
s_mov_b64 exec, -1""")

    CV = 232

    def control(until):
        L = lab("ctl")
        e(f"""; wave 2: post the stream position, count group members that are ahead, select the queue depth
s_cmp_lg_u32 s4, 2
s_cbranch_scc1 {L}_d
s_mov_b32 s70, {LIMIT}
{L}:
ds_read_b128 v[{CV+4}:{CV+7}], v{CV}
s_waitcnt lgkmcnt(0)
v_add3_u32 v{CV+1}, v{CV+4}, v{CV+5}, v{CV+6}
v_add_u32 v{CV+1}, v{CV+1}, v{CV+7}
v_readfirstlane_b32 s66, v{CV+1}
v_lshl_or_b32 v{CV+1}, v{CV+1}, 16, s15
s_mov_b64 exec, 1
buffer_store_dword v{CV+1}, v{CV+3}, s[56:59], s76 offen
s_mov_b64 exec, -1
s_cmp_ge_u32 s66, {until}
s_cbranch_scc1 {L}_d
buffer_load_dword v{CV+4}, v1, s[56:59], s76 offen sc1
v_add_u32 v{CV+1}, 0x10000, v{CV+1}
s_waitcnt vmcnt(0)
v_sub_u32 v{CV+4}, v{CV+4}, v{CV+1}
v_and_b32 v{CV+4}, 0x8000ffff, v{CV+4}
v_cmp_eq_u32 vcc, 0, v{CV+4}
s_bcnt1_i32_b32 s66, vcc_lo
s_cmp_ge_u32 s66, {thr}
s_cselect_b32 s66, 1, 0
v_mov_b32 v{CV+4}, s66
ds_write_b32 v{CV}, v{CV+4} offset:{DEC - PRG}
s_sub_u32 s70, s70, 1
s_cbranch_scc0 {L}
{L}_d:""")

    def getside():
        L = lab("side")
        e(f"; wave 3 fetches the announced bit for the partial output layout\ns_cmp_lg_u32 s4, 3\ns_cbranch_scc1 {L}")
        ldsspin(CV, T2, st=5, sleep=16, four=True)
        e(f"v_mov_b32 v{CV+2}, 0")
        poll(f"buffer_load_dwordx2 v[{CV+4}:{CV+5}], v{CV+2}, s[56:59], 0 offen offset:{PAR} sc1",
             f"v_xor_b32 v{CV+6}, s15, v{CV+4}\nv_and_b32 v{CV+6}, 0xfffeffff, v{CV+6}\nv_xor_b32 v{CV+5}, s14, v{CV+5}\nv_or_b32 v{CV+6}, v{CV+6}, v{CV+5}\nv_cmp_ne_u32 vcc, 0, v{CV+6}", 16)
        e(f"v_bfe_u32 v{CV+4}, v{CV+4}, 16, 1\nv_lshlrev_b32 v{CV+4}, 13, v{CV+4}\nds_write_b32 v{CV}, v{CV+4} offset:{SIDE - PRG}\ns_waitcnt lgkmcnt(0)\n{L}:")

    def sentcmp(regs, tmp):
        r = list(regs)
        out = []
        cur = r.pop(0)
        while r:
            out.append(f"v_max3_u32 v{tmp}, v{cur}, v{r[0]}, v{r[1]}" if len(r) > 1 else f"v_max_u32 v{tmp}, v{cur}, v{r[0]}")
            r = r[2:]
            cur = tmp
        out.append(f"v_cmp_eq_u32 vcc, -1, v{cur}")
        return "\n".join(out)

    def tagcmp(regs, tmp):
        out = [f"v_xor_b32 v{tmp}, s15, v{regs[0]}"]
        for r in regs[1:]:
            out.append(f"v_bitop3_b32 v{tmp}, v{r}, v{tmp}, s15 bitop3:0xde")
        out.append(f"v_and_b32 v{tmp}, 0xffff, v{tmp}\nv_cmp_ne_u32 vcc, 0, v{tmp}")
        return "\n".join(out)

    def allred_g(v, t, op):
        e(f"v_mov_b32 v{t}, v{v}\nv_permlane16_swap_b32 v{v}, v{t}\n{op} v{v}, v{v}, v{t}")
        e(f"v_mov_b32 v{t}, v{v}\nv_permlane32_swap_b32 v{v}, v{t}\n{op} v{v}, v{v}, v{t}")

    def mfma(D, A, B, first):
        e(f"v_mfma_f32_16x16x32_bf16 v[{D}:{D+3}], v[{A}:{A+3}], v[{B}:{B+3}], {'0' if first else f'v[{D}:{D+3}]'}")

    def trread(dst, addr, off):
        for hf in range(2):
            e(f"ds_read_b64_tr_b16 v[{dst+2*hf}:{dst+2*hf+1}], v{addr} offset:{off + hf * 512}")

    hdr = [l.rstrip("\n") for l in open(REF) if l.startswith(";") and "@launch" not in l and "Override" not in l and "grid=ceil" not in l]
    top = "\n".join(hdr) + f"\n; @launch grid=(256,1,1) block=(512,1,1) lds={LDS_SZ}\n" + DOC
    e(f""".amdgcn_target "amdgcn-amd-amdhsa--gfx950"
.text
.globl {KN}
.p2align 8
.type {KN},@function
{KN}:
s_cmp_ge_u32 s2, 256
s_cbranch_scc1 L_end
s_load_dwordx16 s[16:31], s[0:1], 0
s_load_dwordx8 s[32:39], s[0:1], 64""")
    if wmap:
        e("s_lshr_b32 s5, s2, 4\ns_add_u32 s6, s2, s5\ns_and_b32 s6, s6, 15\ns_andn2_b32 s2, s2, 15\ns_or_b32 s2, s2, s6")
    stamp(0)
    e("""v_lshrrev_b32 v1, 6, v0
v_and_b32 v0, 63, v0
v_readfirstlane_b32 s3, v1
s_xor_b32 s3, s3, 4
s_and_b32 s8, s2, 15
s_lshr_b32 s9, s2, 4
s_sub_u32 s12, s9, 13
s_lshl_b32 s10, s8, 2
s_add_u32 s10, s10, s9
s_sub_u32 s10, s10, 9
s_and_b32 s5, s2, 7
s_bfe_u32 s6, s2, 0x10003
s_lshl_b32 s11, s5, 1
s_add_u32 s11, s11, s6
s_mul_i32 s79, s5, 9
s_add_u32 s79, s79, s9
s_cmp_ge_u32 s3, 4
s_cbranch_scc1 L_aux""")

    VO, KD, KR, KW, VW1, VW2, Q, KF, AB, ACC, T, SD, SEL, SP = 1, 2, 6, 10, 14, 15, 16, 32, 48, 64, 68, 76, 80, 88
    MRUN, NEGM, LS, VT2, VST, VPR, VDE, VDA, VV = 120, 121, 122, 123, 124, 125, 126, 127, 128
    e(f"""; ===== stream waves (s3 = 0..3) =====
v_lshrrev_b32 v1, 3, v0
v_and_b32 v2, 7, v0
v_and_b32 v3, 2, v1
s_and_b32 s5, s3, 1
s_lshl_b32 s5, s5, 2
v_or_b32 v3, s5, v3
v_xor_b32 v2, v2, v3
v_lshlrev_b32 v2, 4, v2
s_lshl_b32 m0, s3, 10
s_mov_b32 s43, 0x20000
s_lshl_b32 s60, s79, 7
s_lshl_b32 s5, s10, 7
s_movk_i32 s7, 9216
s_mov_b32 s42, {576*9216}
s_cmp_ge_u32 s2, 144
s_cselect_b32 s60, s5, s60
s_cselect_b32 s7, 8192, s7
s_cselect_b32 s42, {576*8192}, s42
s_mul_i32 s5, s11, {288*1152}
s_mul_i32 s6, s12, 384
s_add_u32 s5, s5, s6
s_lshl_b32 s62, s7, 5
s_movk_i32 s64, 4096
s_cmp_ge_u32 s2, 208
s_cselect_b32 s60, s5, s60
s_cselect_b32 s7, 1152, s7
s_cselect_b32 s42, {4608*1152}, s42
s_cselect_b32 s63, {36864-256}, s62
s_cselect_b32 s62, 128, s62
s_cselect_b32 s65, {4096-49152}, s64
s_cselect_b32 s64, 24576, s64
s_mul_i32 s5, s3, s7
s_lshl_b32 s5, s5, 3
s_add_u32 s72, s60, s5
v_mad_u32_u24 v{VW1}, v1, s7, v2
s_bitcmp1_b32 s2, 3
s_waitcnt lgkmcnt(0)
s_cselect_b64 s[40:41], s[30:31], s[28:29]
s_cmp_ge_u32 s2, 144
s_cselect_b64 s[40:41], s[22:23], s[40:41]
s_cmp_ge_u32 s2, 208
s_cselect_b64 s[40:41], s[32:33], s[40:41]""")

    def vsetup():
        e("; s60 = this wave's base inside the K / V window, v2-v5 swizzled K source offsets")
        srd(48, 18, 0x10000000)
        e(f"""s_lshr_b32 s60, s9, 1
s_lshl_b32 s60, s60, 4
s_add_u32 s60, s60, s8
s_lshl_b32 s60, s60, 21
s_and_b32 s61, s9, 1
s_lshl_b32 s61, s61, 15
s_add_u32 s60, s60, s61
s_lshl_b32 s61, s3, 12
s_add_u32 s60, s60, s61
s_add_u32 s60, s60, {6144*256}
v_mul_u32_u24 v{VT2}, 1152, v1
v_add_u32 v{VT2}, v{VT2}, v2
v_lshlrev_b32 v{VO}, 4, v0""")
        e(f"v_lshrrev_b32 v{T}, 4, v0\nv_and_b32 v{T+1}, 15, v0\nv_lshlrev_b32 v{T+2}, 2, v{T}\nv_xor_b32 v{T+2}, v{T+2}, v{T+1}")
        e(f"v_lshlrev_b32 v{T+2}, 4, v{T+2}\nv_lshl_add_u32 v{KD}, v{T}, 8, v{T+2}")
        for r in range(1, 4):
            e(f"v_xor_b32 v{KD+r}, {16*r}, v{KD}")

    work = {}

    def at(slot, fn):
        work.setdefault(slot, []).append(fn)

    def setup():
        e("; late tile descriptor, K fragment addresses, byte selectors that build the diagonal P operand")
        srd(52, 20, 0x10000000)
        srd(56, 38, wsz)
        e(f"""s_mul_i32 s67, s3, {RING}
s_mul_i32 s5, s8, {256*1152}
s_mul_i32 s6, s3, {8*1152}
s_add_u32 s5, s5, s6
s_lshl_b32 s6, s9, 7
s_add_u32 s5, s5, s6
s_mov_b32 s46, {4096*1152}
s_mov_b32 s47, 0x20000
s_cmp_ge_u32 s2, 208
s_cselect_b32 s72, s72, s5
s_cselect_b32 s73, s62, {32*1152}
s_cselect_b32 s74, s63, {32*1152}
s_cselect_b64 s[44:45], s[32:33], s[24:25]
s_cselect_b32 s46, s42, s46""")
        e(f"v_lshrrev_b32 v{T}, 4, v0\nv_and_b32 v{T+1}, 15, v0\nv_add_u32 v{KW}, s67, v{VO}")
        e(f"v_and_b32 v{T+2}, 3, v0\nv_lshlrev_b32 v{T+2}, 2, v{T+2}\nv_lshrrev_b32 v{T+3}, 2, v{T+1}\nv_or_b32 v{T+2}, v{T+2}, v{T+3}")
        e(f"v_lshl_add_u32 v{T+2}, v{T+2}, 8, s67\nv_xor_b32 v{T+3}, v{T}, v{T+1}\nv_lshl_add_u32 v{KR}, v{T+3}, 4, v{T+2}")
        for t in range(1, 4):
            e(f"v_xor_b32 v{KR+t}, {64*t}, v{KR}")
        e(f"""v_and_b32 v{T+2}, 1, v0
v_cmp_eq_u32 vcc, 1, v{T+2}
v_mov_b32 v{T+3}, 0x0c0c0100
v_mov_b32 v{T+4}, 0x01000c0c
v_cndmask_b32 v{T+3}, v{T+3}, v{T+4}, vcc
v_mov_b32 v{T+4}, 0x0c0c0302
v_mov_b32 v{T+5}, 0x03020c0c
v_cndmask_b32 v{T+4}, v{T+4}, v{T+5}, vcc
v_mov_b32 v{T+5}, 0x0c0c0c0c
v_bfe_u32 v{T+2}, v0, 1, 2""")
        for k in range(4):
            e(f"v_cmp_eq_u32 vcc, {k}, v{T+2}\nv_cndmask_b32 v{SEL+k}, v{T+5}, v{T+3}, vcc\nv_cndmask_b32 v{SEL+4+k}, v{T+5}, v{T+4}, vcc")
        e(f"v_lshrrev_b32 v{T+2}, 3, v{T+1}\nv_lshlrev_b32 v{T+2}, 8, v{T+2}\nv_lshl_add_u32 v{T+2}, v{T}, 4, v{T+2}\nv_add_u32 v{VW1}, {QS}, v{T+2}")
        e(f"s_mov_b32 s68, 0xffff0000\ns_mov_b32 s69, {f32(128 ** -0.5)}\ns_mov_b32 s71, {f32(LOG2E)}")
        e(f"v_mov_b32 v{LS}, 0\nv_mov_b32 v{MRUN}, 0xff800000")
        for r in range(4):
            e(f"v_mov_b32 v{ACC+r}, 0")

    def kread(c):
        def f():
            off = 0 if c < 8 else (c - 8) * 4096
            if c < 8:
                for r in range(4):
                    b = VV + 16 * c + 4 * r
                    e(f"ds_write_b128 v{KW}, v[{b}:{b+3}] offset:{1024 * r}")
            for t in range(4):
                e(f"ds_read_b128 v[{KF+4*t}:{KF+4*t+3}], v{KR+t} offset:{off}")
        return f

    def kmma(c):
        def f():
            e(f"; K chunk {c}: scores\ns_waitcnt lgkmcnt(0)")
            for t in range(4):
                mfma(SD, KF + 4 * t, Q + 4 * t, t == 0)
        return f

    def unpack(dst, a, b):
        e(f"v_lshlrev_b32 v{dst}, 16, v{a}\nv_and_b32 v{dst+1}, s68, v{a}\nv_lshlrev_b32 v{dst+2}, 16, v{b}\nv_and_b32 v{dst+3}, s68, v{b}")

    def kround(c):
        def f():
            S = SP + 2 * c
            e(f"v_cvt_pk_bf16_f32 v{T}, v{SD}, v{SD+1}\nv_cvt_pk_bf16_f32 v{T+1}, v{SD+2}, v{SD+3}")
            unpack(T + 2, T, T + 1)
            for r in range(4):
                e(f"v_mul_f32 v{T+2+r}, s69, v{T+2+r}")
            e(f"v_cvt_pk_bf16_f32 v{S}, v{T+2}, v{T+3}\nv_cvt_pk_bf16_f32 v{S+1}, v{T+4}, v{T+5}")
            unpack(T + 2, S, S + 1)
            e(f"v_max3_f32 v{MRUN}, v{MRUN}, v{T+2}, v{T+3}\nv_max3_f32 v{MRUN}, v{MRUN}, v{T+4}, v{T+5}")
        return f

    def wmax():
        e("; max over this wave's 256 keys")
        allred_g(MRUN, T, "v_max_f32")
        e(f"v_mul_f32 v{NEGM}, s71, v{MRUN}\nv_sub_f32 v{NEGM}, 0, v{NEGM}")

    def pexp(c):
        def f():
            S = SP + 2 * c
            unpack(T + 2, S, S + 1)
            for r in range(4):
                e(f"v_fma_f32 v{T+2+r}, v{T+2+r}, s71, v{NEGM}")
            for r in range(4):
                e(f"v_exp_f32 v{T+2+r}, v{T+2+r}")
            e(f"v_add_f32 v{T}, v{T+2}, v{T+3}\nv_add_f32 v{T+1}, v{T+4}, v{T+5}\nv_add_f32 v{LS}, v{LS}, v{T}\nv_add_f32 v{LS}, v{LS}, v{T+1}")
            e(f"v_cvt_pk_bf16_f32 v{S}, v{T+2}, v{T+3}\nv_cvt_pk_bf16_f32 v{S+1}, v{T+4}, v{T+5}")
        return f

    def aprep(c, r):
        def f():
            S = SP + 2 * c + (r >> 1)
            for k in range(4):
                e(f"v_perm_b32 v{AB+4*r+k}, v{S}, v{S}, v{SEL + 4 * (r & 1) + k}")
        return f

    def pv(c, r):
        def f():
            mfma(ACC, AB + 4 * r, VV + 16 * (c % 8) + 4 * r, False)
        return f

    def mlwrite():
        e("; publish this wave's max and sum in LDS, prepare the combine addresses")
        allred_g(LS, T, "v_add_f32")
        e(f"v_sub_f32 v{T+2}, 0, v{NEGM}\nv_mov_b32 v{T+3}, v{LS}")
        e(f"v_bfe_u32 v{T}, v0, 3, 1\nv_lshlrev_b32 v{T}, 5, v{T}\ns_lshl_b32 s63, s3, 3\ns_add_u32 s63, s63, {ML}\nv_add_u32 v{T}, s63, v{T}")
        e(f"ds_write_b64 v{T}, v[{T+2}:{T+3}]")
        ldsarrive(C3, T)
        e(f"""s_mov_b64 exec, -1
s_lshl_b32 s63, s3, 10
s_add_u32 s63, s63, {RED}
v_add_u32 v{VW2}, s63, v{VO}
v_lshrrev_b32 v2, 5, v0
v_lshlrev_b32 v3, 5, v2
v_add_u32 v3, {ML}, v3
s_lshl_b32 s63, s3, 3
v_add_u32 v9, s63, v3
v_lshlrev_b32 v4, 3, v0
v_lshlrev_b32 v5, 2, v2
v_and_b32 v6, 1, v0
v_lshl_add_u32 v6, v2, 1, v6
v_bfe_u32 v7, v0, 1, 4
v_lshl_add_u32 v6, v6, 4, v7
v_lshlrev_b32 v6, 4, v6
v_add_u32 v6, {RED}, v6
s_lshr_b32 s62, s9, 1
s_and_b32 s63, s9, 1
s_lshl_b32 s63, s63, 3
s_add_u32 s62, s62, s63
s_mul_i32 s63, s62, {GST}
s_add_u32 s63, s63, {GB}
v_add_u32 v7, s63, v4
s_lshl_b32 s63, s62, 3
s_add_u32 s63, s63, {LB}
v_add_u32 v8, s63, v5
s_lshl_b32 s63, s8, 4
s_add_u32 s63, s63, s62
s_mul_i32 s63, s63, {OSL}
s_add_u32 s63, s63, {OBUF}""")

    def factors():
        e(f"""; workgroup max and sum: v9 = this wave's normalizing factor, v27 = log2-sum-exp
v_mov_b32 v{T}, {C3}
s_mov_b32 s70, {LIMIT*8}
L_fw:
ds_read_b32 v{T+1}, v{T}
ds_read_b128 v[16:19], v3
ds_read_b128 v[20:23], v3 offset:16
ds_read_b32 v9, v9
s_waitcnt lgkmcnt(0)
v_readfirstlane_b32 s5, v{T+1}
s_cmp_ge_u32 s5, 4
s_cbranch_scc1 L_fd
s_sub_u32 s70, s70, 1
s_cbranch_scc1 L_fd
s_lshl_b32 s5, s3, 3
v_add_u32 v9, s5, v3
s_branch L_fw
L_fd:
v_max3_f32 v24, v16, v18, v20
v_max_f32 v24, v24, v22
v_sub_f32 v16, v16, v24
v_sub_f32 v18, v18, v24
v_sub_f32 v20, v20, v24
v_sub_f32 v22, v22, v24
v_sub_f32 v9, v9, v24
v_exp_f32 v16, v16
v_exp_f32 v18, v18
v_exp_f32 v20, v20
v_exp_f32 v22, v22
v_exp_f32 v9, v9
v_mul_f32 v25, v16, v17
v_fmac_f32 v25, v18, v19
v_fmac_f32 v25, v20, v21
v_fmac_f32 v25, v22, v23
v_rcp_f32 v26, v25
v_log_f32 v27, v25
v_mul_f32 v9, v9, v26
v_add_f32 v27, v27, v24
v_min_u32 v27, -2, v27""")

    def qread():
        stamp(6)
        e(f"; q fragments, s13 = store mode\nv_mov_b32 v{T}, {QF}\ns_mov_b32 s70, {LIMIT*8}\nL_qw:\nds_read_b32 v{T+1}, v{T}")
        for t in range(4):
            e(f"ds_read_b128 v[{Q+4*t}:{Q+4*t+3}], v{VW1} offset:{64*t}")
        e(f"""s_waitcnt lgkmcnt(0)
v_readfirstlane_b32 s13, v{T+1}
s_cmp_lg_u32 s13, 0
s_cbranch_scc1 L_qd
s_sub_u32 s70, s70, 1
s_cbranch_scc1 L_qd
s_sleep 2
s_branch L_qw
L_qd:""")
        stamp(7)

    def dep(n):
        for lo, hi, dd in win:
            if lo <= n < hi:
                return dd
        return dm if n < 96 else d2

    landed = {}
    for n in range(128 + 64):
        for m in range(min(127, n - dep(n) - (boost if n < 128 else 0)) + 1):
            landed.setdefault(m, n)
    at(qslot, qread)
    n0 = qslot
    for i in range(8):
        for c in (8 + i, i):
            n0 = max(n0, landed[4 * c + 3])
            assert c >= 8 or n0 + 1 < 64 + 4 * c
            at(n0, kread(c))
            at(n0 + 1, kmma(c))
            at(n0 + 2, kround(c))
            n0 += 2
    sM = n0 + 1
    at(sM, wmax)
    for c in range(16):
        at(sM + 1 + c, pexp(c))
    at(sM + 17, mlwrite)
    assert sM + 17 < fslot <= 127
    at(fslot, factors)
    pre = {}
    last = 0
    for n in range(64, 128):
        c, r = (n - 64) // 4, n % 4
        s = max(landed[n], sM + 2 + c, last)
        while len(pre.get(s, [])) >= (2 if s < 128 else 4):
            s += 1
        last = s
        assert n >= 96 or s < n + 32
        pre.setdefault(s, []).append((c, r))
    nslots = max(max(work), last) + 1

    def t2load(j):
        e(f"buffer_load_dwordx4 v{VT2}, s[44:47], s72 offen nt lds")
        if j < 8:
            e(f"s_add_u32 s72, s72, s{74 if j % 3 == 2 else 73}\ns_add_u32 m0, m0, 1024")

    def cwait(depth):
        L = lab("w")
        e(f"s_waitcnt vmcnt({depth+boost-1})\ns_cbranch_vccnz {L}\ns_waitcnt vmcnt({depth-1})\n{L}:")

    def post(stage):
        e(f"v_mov_b32 v{VST}, {stage}\nds_write_b32 v{VPR}, v{VST}\nds_read_b32 v{VDE}, v{VDA}")

    def decide():
        e(f"s_waitcnt lgkmcnt(0)\nv_cmp_ne_u32 vcc, 0, v{VDE}")

    def vload(i, wait):
        if i % 4 == 0:
            e(f"s_xor_b32 s61, s60, {coff(i // 4)}")
        wait()
        V = VV + 4 * (i % 32)
        e(f"buffer_load_dwordx4 v[{V}:{V+3}], v{VO}, s[52:55], s61 offen offset:{(i % 4) * 1024} nt")

    def kload(i, wait):
        if i % 4 == 0:
            e(f"s_xor_b32 s61, s60, {coff(i // 4)}")
            if i >= 32:
                e(f"s_add_u32 m0, s67, {(i // 4 - 8) * 4096}")
        wait()
        if i < 32:
            e(f"buffer_load_dwordx4 v[{VV+4*i}:{VV+4*i+3}], v{KD + i % 4}, s[48:51], s61 offen offset:{(i % 4) * 1024} nt")
        else:
            e(f"buffer_load_dwordx4 v{KD + i % 4}, s[48:51], s61 offen offset:{(i % 4) * 1024} nt lds")

    for p in range(18 + dk):
        if p == dw:
            e(f"s_lshl_b32 s5, s3, 2\ns_add_u32 s5, s5, {PRG}\nv_mov_b32 v{VPR}, s5\nv_mov_b32 v{VDA}, {DEC}\ns_barrier")
        if p > dw and p % 4 == 2:
            post(p // 4)
        if p == 18:
            vsetup()
        if p == 17 + dk:
            e(f"; this wave's part of the weight tile has landed\ns_waitcnt vmcnt({dk-1})")
            stamp(1)
            ldsarrive(C1, T)
            e("s_mov_b64 exec, -1")
        if p >= 18:
            kload(p - 18, lambda: e(f"s_waitcnt vmcnt({dk-1})"))
        else:
            if p >= dw:
                e(f"s_waitcnt vmcnt({(dw if p < pw2 else dw2)-1})")
            e(f"buffer_load_dwordx4 v{VW1}, s[40:43], s72 offen nt lds")
            e(f"s_add_u32 s72, s72, s{62 if p % 3 < 2 else 63}\ns_add_u32 m0, m0, s{64 if p % 3 < 2 else 65}")
    e(f"""; tiles whose lines all have address bits [9:7] = 3 arrive late: start those workgroups on the deep queue
s_add_u32 s66, s40, s72
s_bfe_u32 s66, s66, 0x30007
s_cmp_eq_u32 s66, 3
s_cselect_b32 s66, 1, 0
s_cmp_ge_u32 s2, 208
s_cselect_b32 s66, 0, s66
s_waitcnt lgkmcnt(0)
v_mov_b32 v{VDE}, s66
ds_write_b32 v{VDA}, v{VDE}""")
    setup()
    decide()

    t2n = [0]

    def slot(n, t2):
        todo = pre.get(n, [])
        for (c, r) in todo:
            aprep(c, r)()
        if n == 32:
            stamp(2)
            e(f"; the K slots reuse the weight tile's LDS once it has been read\nv_mov_b32 v{T}, {C2}")
            ldsspin(T, 4, st=5)
        if n < 64:
            kload(n, lambda: cwait(dep(n)))
        elif n < 128:
            vload(n - 64, lambda: cwait(dep(n)))
        else:
            if n - d2 <= 127:
                e(f"s_waitcnt vmcnt({127 - (n - d2) + (t2n[0] if t2 else 0)})")
            left = nslots - 1 - n
            if t2 and left > 0:
                for _ in range(-(-(8 - t2n[0]) // left)):
                    t2load(t2n[0])
                    t2n[0] += 1
        for (c, r) in todo:
            pv(c, r)()
        if n < 128 and n % 4 == 1:
            decide()
        if n < 128 and n % 4 == 0:
            post((n + 18) // 4)
        for fn in work.get(n, []):
            fn()

    for n in range(dk, 128):
        slot(n, False)
    e("; drain V; the wo / w_down roles queue their late tile behind it\ns_mov_b32 m0, s67\ns_sub_u32 s5, s2, 144\ns_cmp_lt_u32 s5, 64\ns_cbranch_scc1 L_tq")
    for n in range(128, nslots):
        slot(n, True)
    assert t2n[0] == 8
    e("s_branch L_tj\nL_tq:")
    for n in range(128, nslots):
        slot(n, False)
    e("L_tj:")
    for r in range(4):
        e(f"v_mul_f32 v{ACC+r}, v{ACC+r}, v9")
    e(f"ds_write_b128 v{VW2}, v[{ACC}:{ACC+3}]")
    stamp(4)
    e("s_cmp_lt_u32 s2, 208\ns_cbranch_scc1 L_t9")
    t2load(8)
    e("L_t9:\ns_waitcnt lgkmcnt(0)\ns_barrier\ns_cmp_lg_u32 s3, 0\ns_cbranch_scc1 L_sd")
    for w in range(4):
        e(f"ds_read_b128 v[{28+4*w}:{31+4*w}], v6 offset:{1024*w}")
    for w in range(1, 4):
        e(f"s_waitcnt lgkmcnt({3 - w})")
        for r in range(4):
            e(f"v_add_f32 v{28+r}, v{28+r}, v{28+4*w+r}")
    e("v_cvt_pk_bf16_f32 v28, v28, v29\nv_cvt_pk_bf16_f32 v29, v30, v31\nv_min_u32 v28, -2, v28\nv_min_u32 v29, -2, v29")
    dual("""buffer_store_dwordx2 v[28:29], v4, s[56:59], s63 offen POL
s_mov_b32 exec_lo, 1
s_mov_b32 exec_hi, 1
buffer_store_dword v27, v5, s[56:59], s63 offen offset:512 POL""", 13)
    e("ds_write_b32 v8, v27\ns_mov_b64 exec, -1\nds_write_b64 v7, v[28:29]")
    stamp(3)
    e("L_sd:\ns_waitcnt vmcnt(0) lgkmcnt(0)")
    stamp(5)
    e("s_barrier\ns_barrier\ns_branch L_fin")

    XN, WF, OF, AC, G, U = 16, 52, 160, 192, 208, 220
    e(f"""; ===== projection and hand-off waves (s4 = 0..3) =====
L_aux:
s_sub_u32 s4, s3, 4
v_mul_u32_u24 v1, 36, v0
s_mul_i32 s5, s4, 2304
v_lshlrev_b32 v2, 4, v0
v_mov_b32 v8, {CNT}
v_mov_b32 v4, 0
v_mov_b32 v5, 0
v_mov_b32 v6, 0
v_mov_b32 v7, 0
ds_write_b128 v8, v[4:7]
ds_write_b128 v8, v[4:7] offset:16
ds_write_b128 v8, v[4:7] offset:32
s_movk_i32 s42, 9216
s_mov_b32 s43, 0x20000
s_waitcnt lgkmcnt(0)
s_load_dword s14, s[38:39], 0
s_mov_b64 s[40:41], s[16:17]""")
    for k in range(3):
        e(f"buffer_load_dwordx3 v[{16+4*k}:{18+4*k}], v1, s[40:43], s5 offen offset:{12*k}")
    e("s_barrier")
    srd(56, 38, wsz)
    e(f"""s_add_u32 s13, s79, 64
s_bitcmp1_b32 s2, 3
s_cselect_b32 s60, 72, 0
s_add_u32 s13, s13, s60
s_cmp_ge_u32 s2, 144
s_cselect_b32 s13, s10, s13
s_lshl_b32 s13, s13, 11
s_add_u32 s13, s13, {PBUF}
s_getreg_b32 s78, hwreg(HW_REG_XCC_ID, 0, 4)
s_lshl_b32 s78, s78, 16
s_and_b32 s77, s2, 7
s_lshl_b32 s77, s77, 7
s_add_u32 s77, s77, {XID}
s_mov_b32 s68, 0xffff0000
s_mov_b32 s69, {f32(1/576)}
s_add_u32 s5, s5, {XS}
v_add_u32 v1, s5, v1
v_lshrrev_b32 v10, 4, v0
v_and_b32 v11, 15, v0
v_bfe_u32 v8, v0, 2, 2
v_lshl_add_u32 v12, v10, 3, v8
v_lshlrev_b32 v12, 7, v12
v_and_b32 v9, 3, v0
v_lshl_add_u32 v12, v9, 3, v12
v_lshrrev_b32 v13, 1, v8
v_and_b32 v8, 1, v10
v_lshl_or_b32 v13, v8, 1, v13
v_lshl_add_u32 v12, v13, 5, v12
s_lshl_b32 s60, s4, 5
v_xor_b32 v3, s60, v12
v_add_u32 v4, 0x10000, v3
v_and_b32 v14, 7, v0
v_bfe_u32 v15, v0, 2, 3
v_lshl_add_u32 v15, v9, 4, v15
v_lshlrev_b32 v15, 2, v15
v_mul_u32_u24 v5, 1152, v14
v_lshrrev_b32 v8, 3, v11
v_mul_u32_u24 v8, 576, v8
v_lshl_add_u32 v8, v10, 4, v8
v_add_u32 v5, v5, v8
v_add_u32 v5, {XS}, v5
s_mov_b32 s71, 0x07060302
v_and_b32 v57, 31, v0
v_lshlrev_b32 v57, 2, v57
s_waitcnt lgkmcnt(0)
s_add_u32 s14, s14, 1
s_and_b32 s15, s14, 0xffff
s_and_b32 s6, s14, 0xff
s_andn2_b32 s60, s14, 0xf0000
s_or_b32 s78, s78, s60
s_cmp_lg_u32 s4, 0
s_cbranch_scc1 L_a1
s_lshr_b32 s60, s2, 3
s_lshl_b32 s60, s60, 2
s_add_u32 s60, s60, s77
v_mov_b32 v8, s78
s_mov_b64 exec, 1
buffer_store_dword v8, v57, s[56:59], s60 offen
s_mov_b64 exec, -1
s_waitcnt vmcnt(1)
s_branch L_a2
L_a1:
s_waitcnt vmcnt(0)
L_a2:
; LayerNorm of two rows per wave, rounded to bf16 after every step like the reference""")
    raw = [16, 17, 18, 20, 21, 22, 24, 25, 26]

    def red32(v, t):
        for s in (8, 4, 2, 1):
            e(f"v_add_f32_dpp v{v}, v{v}, v{v} row_ror:{s} row_mask:0xf bank_mask:0xf")
        e(f"v_mov_b32 v{t}, v{v}\nv_permlane16_swap_b32 v{v}, v{t}\nv_add_f32 v{v}, v{v}, v{t}")

    for k in range(9):
        e(f"v_lshlrev_b32 v{28+2*k}, 16, v{raw[k]}\nv_and_b32 v{29+2*k}, s68, v{raw[k]}")
    e("v_pk_add_f32 v[46:47], v[28:29], v[30:31]")
    for k in range(2, 9):
        e(f"v_pk_add_f32 v[46:47], v[46:47], v[{28+2*k}:{29+2*k}]")
    e("v_add_f32 v46, v46, v47")
    red32(46, 47)
    e("v_mul_f32 v48, s69, v46\nv_sub_f32 v50, 0, v48\nv_sub_f32 v51, 0, v48")
    for k in range(9):
        e(f"v_pk_add_f32 v[8:9], v[{28+2*k}:{29+2*k}], v[50:51]")
        e("v_pk_mul_f32 v[46:47], v[8:9], v[8:9]" if k == 0 else "v_pk_fma_f32 v[46:47], v[8:9], v[8:9], v[46:47]")
    e("v_add_f32 v46, v46, v47")
    red32(46, 47)
    e("v_mul_f32 v46, s69, v46")
    rnd(46, 46)
    e(f"v_add_f32 v46, {f32(1e-5)}, v46")
    rnd(46, 46)
    e("v_sqrt_f32 v46, v46")
    rnd(46, 46)
    e("v_rcp_f32 v46, v46")
    rnd(50, 50)
    e("v_mov_b32 v51, v50\nv_mov_b32 v47, v46")
    for k in range(9):
        e(f"v_pk_add_f32 v[8:9], v[{28+2*k}:{29+2*k}], v[50:51]\nv_cvt_pk_bf16_f32 v9, v8, v9\nv_lshlrev_b32 v8, 16, v9\nv_and_b32 v9, s68, v9")
        e(f"v_pk_mul_f32 v[8:9], v[8:9], v[46:47]\nv_cvt_pk_bf16_f32 v{raw[k]}, v8, v9")
    for k in range(0, 8, 2):
        e(f"ds_write2_b32 v1, v{raw[k]}, v{raw[k+1]} offset0:{k} offset1:{k+1}")
    e(f"ds_write_b32 v1, v{raw[8]} offset:32")
    stamp(1)
    e(f"""v_mov_b32 v{G}, -1
v_mov_b32 v{G+1}, -1
v_mov_b32 v{G+2}, -1
v_mov_b32 v{G+3}, -1
s_lshl_b32 s61, s10, 2
s_add_u32 s61, s61, s4
s_mul_i32 s61, s61, {OSL}
s_add_u32 s61, s61, {OBUF}
v_mov_b32 v1, v57
s_waitcnt lgkmcnt(0)""")
    ldsarrive(C1, 8)
    e(f"""s_mov_b64 exec, -1
s_mov_b32 s70, 2
s_cmp_ge_u32 s2, 208
s_cbranch_scc1 L_a4
L_xid:
buffer_load_dword v{G+4}, v1, s[56:59], s77 offen sc1
s_waitcnt vmcnt(0)""")
    xidcheck(G + 4)
    e("""s_cmp_eq_u32 s7, 2
s_cbranch_scc1 L_xidd
s_sub_u32 s70, s70, 1
s_cbranch_scc0 L_xid
L_xidd:
s_cmp_lt_u32 s2, 144
s_cbranch_scc1 L_a4
s_mov_b32 exec_hi, 0xff""")
    dual(f"buffer_store_dwordx4 v[{G}:{G+3}], v2, s[56:59], s61 offen POL", 7)
    e("L_a4:\ns_mov_b64 exec, 1")
    ldsspin(8, 8)
    stamp(2)
    for i in range(9):
        e(f"ds_read_b128 v[{XN+4*i}:{XN+4*i+3}], v5 offset:{64*i}")
    for kk in range(18):
        trread(WF + 4 * kk, 3 if kk < 16 else 4, (kk % 16) * 4096)
    e(f"""s_lshl_b32 s60, s4, 9
s_add_u32 s60, s60, s13
v_mov_b32 v7, s68
v_mov_b32 v{CV}, {PRG}
s_lshr_b32 s61, s2, 3
s_lshl_b32 s61, s61, 2
v_mov_b32 v{CV+3}, s61
s_add_u32 s76, s77, {PLN - XID}
s_waitcnt lgkmcnt(0)""")
    ldsarrive(C2, 8)
    e("s_mov_b64 exec, -1\ns_cmp_ge_u32 s2, 208\ns_cbranch_scc1 L_aq")
    for i in range(9):
        for hf in range(2):
            mfma(AC + 4 * hf, WF + 4 * (9 * hf + i), XN + 4 * i, i == 0)
    for r in range(4):
        e(f"v_add_f32_dpp v{AC+r}, v{AC+4+r}, v{AC+r} row_ror:8 row_mask:0xf bank_mask:0xf")
    e(f"""; publish 8 x 16 values as (bf16 << 16 | tag)
v_cvt_pk_bf16_f32 v8, v{AC}, v{AC+1}
v_cvt_pk_bf16_f32 v9, v{AC+2}, v{AC+3}
ds_bpermute_b32 v8, v15, v8
ds_bpermute_b32 v9, v15, v9
s_waitcnt lgkmcnt(0)
v_lshl_or_b32 v16, v8, 16, s15
v_and_or_b32 v17, v8, v7, s15
v_lshl_or_b32 v18, v9, 16, s15
v_and_or_b32 v19, v9, v7, s15
s_waitcnt vmcnt(0)
s_mov_b32 exec_hi, 0""")
    dual("buffer_store_dwordx4 v[16:19], v2, s[56:59], s60 offen POL", 7)
    race = """s_mov_b64 s[60:61], 0
LOADS
s_waitcnt lgkmcnt(1)
s_add_u32 s62, s62, s60
s_sub_u32 s62, s62, s61
s_waitcnt lgkmcnt(0)"""
    la, lb = f"s_load_dword s60, s[38:39], {PRB} glc", f"s_load_dword s61, s[38:39], {PRB + 0x2000} glc"
    e(f"""s_mov_b32 exec_hi, -1
s_lshl_b32 s60, s4, 8
s_add_u32 s60, s60, s2
s_cmp_lg_u32 s60, {256 + 144}
s_cbranch_scc1 L_aq
v_lshlrev_b32 v8, 13, v0
v_mov_b32 v9, 1
s_mov_b32 s60, {PRB}
s_mov_b64 exec, 3
buffer_store_dword v9, v8, s[56:59], s60 offen sc1
s_mov_b64 exec, -1
s_mov_b32 s62, 0
s_mov_b32 s70, {trials - 1}
s_waitcnt vmcnt(0)
L_race:""")
    e(race.replace("LOADS", la + "\n" + lb))
    e(race.replace("LOADS", lb + "\n" + la))
    e(f"""s_sub_u32 s70, s70, 1
s_cbranch_scc0 L_race
s_cmp_lt_i32 s62, 0
s_cselect_b32 s60, 0x10000, 0
s_or_b32 s60, s60, s15
v_mov_b32 v8, s60
v_mov_b32 v9, s14
s_mov_b64 exec, 1
buffer_store_dwordx2 v[8:9], v2, s[56:59], 0 offen offset:{PAR} sc1
s_mov_b64 exec, -1
L_aq:""")
    control(T1)
    ldsspin(CV, T1, sleep=8, four=True)
    e(f"""; wave 3 gathers q for the stream waves
s_cmp_lg_u32 s4, 3
s_cbranch_scc1 L_a3
s_lshr_b32 s60, s9, 1
s_lshl_b32 s60, s60, 6
s_lshl_b32 s61, s8, 13
s_add_u32 s60, s60, s61
s_add_u32 s60, s60, {PBUF}
v_lshrrev_b32 v6, 2, v0
v_lshlrev_b32 v6, 9, v6
v_and_b32 v7, 3, v0
v_lshl_add_u32 v6, v7, 4, v6
buffer_load_dword v24, v1, s[56:59], s77 offen sc1""")
    poll("buffer_load_dwordx4 v[20:23], v6, s[56:59], s60 offen sc1 nt", tagcmp([20, 21, 22, 23], 7), 4)
    xidcheck(24)
    CEND = 136
    e(f"""v_perm_b32 v8, v21, v20, s71
v_perm_b32 v9, v23, v22, s71
v_lshlrev_b32 v6, 3, v0
v_add_u32 v6, {QS}, v6
ds_write_b64 v6, v[8:9]
v_mov_b32 v6, {QF}
v_mov_b32 v7, s7
s_waitcnt lgkmcnt(0)
ds_write_b32 v6, v7
L_a3:
v_mul_u32_u24 v4, {RING - 1024}, v10
v_add_u32 v4, v4, v3
v_mov_b32 v12, 0xffffff00
v_bfe_u32 v3, v0, 4, 1
v_lshlrev_b32 v3, 13, v3
v_lshrrev_b32 v8, 5, v0
v_lshl_add_u32 v3, v8, 15, v3
v_lshl_add_u32 v3, v14, 4, v3
s_and_b32 s64, s4, 1
s_lshl_b32 s65, s64, 12
s_lshr_b32 s61, s4, 1
s_lshl_b32 s61, s61, 14
s_add_u32 s65, s65, s61
s_lshl_b32 s61, s8, 7
s_add_u32 s65, s65, s61
s_add_u32 s65, s65, {PART}
s_cmp_lt_u32 s2, 144
s_cbranch_scc1 L_aO
s_cmp_ge_u32 s2, 208
s_cbranch_scc1 L_aD""")
    control(CEND)
    e(f"""s_branch L_fin
L_aD:
s_mul_i32 s60, s11, 9216
s_mul_i32 s61, s4, 2304
s_add_u32 s60, s60, s61
s_add_u32 s60, s60, {PBUF + 131072}
s_add_u32 s61, s60, {288 * 512}
s_mov_b32 s72, -1
s_mov_b32 s73, 0xffff
s_mov_b64 exec, s[72:73]""")
    poll("\n".join([f"buffer_load_dwordx4 v[{G+4*k}:{G+4*k+3}], v2, s[56:59], s60 offen offset:{768*k} sc1 nt" for k in range(3)] +
                   [f"buffer_load_dwordx4 v[{U+4*k}:{U+4*k+3}], v2, s[56:59], s61 offen offset:{768*k} sc1 nt" for k in range(3)]),
         tagcmp(list(range(G, G + 24)), 8), 8, restore="s[72:73]")
    c0 = -2 * LOG2E * 0.7978845608028654
    e(f"; gelu_tanh(g) = g / (1 + exp(-2 * sqrt(2/pi) * (g + 0.044715 g^3)))\nv_mov_b32 v32, {f32(c0)}\nv_mov_b32 v33, {f32(c0 * 0.044715)}\ns_mul_i32 s60, s4, 144")
    for k in range(6):
        e(f"""v_and_b32 v34, s68, v{G+2*k}
v_and_b32 v35, s68, v{G+2*k+1}
v_mul_f32 v36, v34, v34
v_mul_f32 v37, v35, v35
v_fma_f32 v36, v36, v33, v32
v_fma_f32 v37, v37, v33, v32
v_mul_f32 v36, v36, v34
v_mul_f32 v37, v37, v35
v_exp_f32 v36, v36
v_exp_f32 v37, v37
v_and_b32 v38, s68, v{U+2*k}
v_add_f32 v36, 1.0, v36
v_add_f32 v37, 1.0, v37
v_rcp_f32 v36, v36
v_rcp_f32 v37, v37
v_and_b32 v39, s68, v{U+2*k+1}
v_mul_f32 v34, v34, v36
v_mul_f32 v35, v35, v37
v_cvt_pk_bf16_f32 v35, v34, v35
v_lshlrev_b32 v34, 16, v35
v_and_b32 v35, s68, v35
v_mul_f32 v34, v34, v38
v_mul_f32 v35, v35, v39
v_cvt_pk_bf16_f32 v{40+k}, v34, v35""")
    for k in range(3):
        e(f"""v_add_u32 v34, s60, v0
v_bfe_u32 v35, v34, 2, 3
v_mul_u32_u24 v35, 576, v35
v_and_b32 v36, 3, v34
v_lshl_add_u32 v35, v36, 3, v35
v_and_b32 v34, 0xffe0, v34
v_add_u32 v35, v35, v34
v_add_u32 v35, {HS}, v35
ds_write_b64 v35, v[{40+2*k}:{41+2*k}]
s_add_u32 s60, s60, 48""")
    e("s_waitcnt lgkmcnt(0)")
    ldsarrive(CNT, 8)
    ldsspin(8, 4)
    e(f"v_mul_u32_u24 v5, 576, v14\nv_lshl_add_u32 v5, v10, 4, v5\nv_add_u32 v5, {HS}, v5")
    for i in range(9):
        e(f"ds_read_b128 v[{XN+4*i}:{XN+4*i+3}], v5 offset:{64*i}")
    e(f"""s_mul_i32 s60, s12, {3*65536}
s_add_u32 s60, s60, s65
s_add_u32 s60, s60, 2048
s_add_u32 s61, s60, 65536
s_add_u32 s62, s60, 131072
s_waitcnt lgkmcnt(0)""")
    for i in range(6):
        for sub in range(3):
            mfma(AC + 4 * sub, WF + 4 * (6 * sub + i), XN + 4 * i, i == 0)
    stamp(4)
    control(CEND)
    getside()
    e(f"; last 96 rows arrive with the late tile\ns_barrier\nds_read_b32 v{CV+4}, v{CV} offset:{SIDE - PRG}\ns_waitcnt lgkmcnt(0)\nv_xor_b32 v3, v3, v{CV+4}\ns_barrier")
    for j in range(9):
        trread(WF + 4 * j, 4, j * 1024)
    for j in range(9):
        if j % 3 == 0:
            e(f"s_waitcnt lgkmcnt({12 - 2 * j})")
        mfma(AC + 4 * (j % 3), WF + 4 * j, XN + 4 * (6 + j // 3), False)

    def publish(n, src, soffs):
        e("; partial outputs: f32 with the 8-bit tag in the low mantissa byte, one 128 B line = 8 batches x 4 columns")
        e("s_mov_b32 exec_lo, 0x00ff00ff\ns_mov_b32 exec_hi, 0x00ff00ff")
        for k in range(n):
            for r in range(4):
                e(f"v_and_or_b32 v{src+4*k+r}, v{src+4*k+r}, v12, s6")
            e(f"buffer_store_dwordx4 v[{src+4*k}:{src+4*k+3}], v3, s[56:59], s{soffs[k]} offen sc1")
        e("s_mov_b64 exec, -1")

    publish(3, AC, (60, 61, 62))
    stamp(7)
    e(f"""s_branch L_fin
L_aO:
s_lshl_b32 s61, s9, 16
s_add_u32 s65, s65, s61
v_mul_u32_u24 v6, {OSL}, v10
v_lshl_add_u32 v5, v11, 4, v6
s_lshl_b32 s62, s8, 2
s_add_u32 s62, s62, s4
s_mul_i32 s62, s62, {4*OSL}
s_add_u32 s62, s62, {OBUF}
s_mul_i32 s61, s4, {4*GST}
s_add_u32 s61, s61, {GB}
v_mul_u32_u24 v48, {GST}, v10
v_lshl_add_u32 v48, v11, 4, v48
v_add_u32 v48, s61, v48
s_lshl_b32 s61, s4, 5
s_add_u32 s61, s61, {LB}
v_lshl_add_u32 v49, v10, 3, s61
v_mul_u32_u24 v46, {GST}, v11
v_lshl_add_u32 v46, v10, 4, v46
v_add_u32 v46, {GB}, v46
v_lshlrev_b32 v47, 3, v11
v_add_u32 v47, {LB}, v47
s_andn2_b32 s74, s2, 6
s_and_b32 s61, s2, 2
s_lshl_b32 s61, s61, 1
s_or_b32 s74, s74, s61
s_lshl_b32 s74, s74, 12
s_lshl_b32 s61, s4, 5
s_add_u32 s74, s74, s61
s_add_u32 s74, s74, {PART}
v_lshrrev_b32 v8, 1, v0
v_lshlrev_b32 v7, 7, v8
v_and_b32 v8, 1, v0
v_lshl_add_u32 v7, v8, 4, v7
s_and_b32 s61, s2, 4
s_lshl_b32 s61, s61, 11
v_add_u32 v7, s61, v7
v_mov_b32 v26, 0xff
s_mul_i32 s75, s4, 2304
s_lshl_b32 s61, s9, 7
s_add_u32 s75, s75, s61
s_and_b32 s61, s8, 3
s_lshl_b32 s61, s61, 5
s_add_u32 s75, s75, s61
s_lshr_b32 s61, s8, 2
s_lshl_b32 s61, s61, 3
s_add_u32 s75, s75, s61
v_and_b32 v9, 1, v10
v_mul_u32_u24 v13, 1152, v8
v_lshl_add_u32 v13, v9, 1, v13
v_bfe_u32 v9, v0, 3, 1
v_lshl_add_u32 v13, v9, 2, v13
buffer_load_ushort v50, v13, s[40:43], s75 offen
s_lshr_b32 s61, s9, 1
s_and_b32 s60, s9, 1
s_lshl_b32 s60, s60, 3
s_add_u32 s61, s61, s60
s_lshl_b32 s60, s4, 2
s_sub_u32 s61, s61, s60
v_cmp_ne_u32 s[72:73], s61, v10""")
    srd(48, 34, 9216)
    control(CEND)
    getside()
    e("s_waitcnt vmcnt(0)\nv_lshlrev_b32 v50, 16, v50\ns_mov_b64 exec, s[72:73]\ns_barrier")
    stamp(5)

    def wofrags(back):
        e(f"s_mov_b64 exec, -1\nds_read_b32 v{CV+4}, v{CV} offset:{SIDE - PRG}\ns_barrier")
        stamp(4)
        for ks in range(8):
            trread(OF + 4 * ks, 4, ks * 1024)
        if back:
            e(f"s_mov_b64 exec, {back}")

    oloads = """buffer_load_dwordx4 v[28:31], v5, s[56:59], s62 offen sc1
buffer_load_dwordx4 v[32:35], v5, s[56:59], s62 offen offset:256 sc1
buffer_load_dwordx2 v[36:37], v6, s[56:59], s62 offen offset:512 sc1"""
    owrite = "ds_write_b128 v48, v[28:31]\nds_write_b128 v48, v[32:35] offset:256\nds_write_b64 v49, v[36:37]"
    ocmp = sentcmp(range(28, 38), 38)
    e(oloads + "\ns_waitcnt vmcnt(0)\n" + ocmp + "\ns_cbranch_vccnz L_og1")
    e(owrite)
    wofrags(None)
    e("s_branch L_og2\nL_og1:\ns_mov_b64 exec, vcc")
    poll(oloads, ocmp, 0, first=lambda: wofrags("vcc"), restore="s[72:73]")
    e(owrite + "\ns_mov_b64 exec, -1\nL_og2:")
    stamp(6)
    e("s_waitcnt lgkmcnt(0)\ns_barrier\nds_read_b64 v[36:37], v47")
    order = [0, 4, 1, 5, 2, 6, 3, 7]
    for ks in order:
        e(f"ds_read_b128 v[{WF+4*ks}:{WF+4*ks+3}], v46 offset:{64*ks}")
    e("""s_waitcnt lgkmcnt(8)
v_sub_f32_dpp v38, v36, v36 row_ror:8 row_mask:0xf bank_mask:0xf
v_sub_f32_dpp v39, v37, v37 row_ror:8 row_mask:0xf bank_mask:0xf""")
    fill = ["v_exp_f32 v38, v38", "v_exp_f32 v39, v39", "v_add_f32 v38, 1.0, v38", "v_add_f32 v39, 1.0, v39", "v_rcp_f32 v38, v38", "v_rcp_f32 v39, v39", f"v_xor_b32 v3, v3, v{CV+4}", f"v_xor_b32 v7, v7, v{CV+4}"]
    for i, ks in enumerate(order):
        e(f"s_waitcnt lgkmcnt({7 - i})")
        mfma(AC + 4 * (ks // 4), OF + 4 * ks, WF + 4 * ks, ks % 4 == 0)
        if i < len(fill):
            e(fill[i])
    for r in range(4):
        e(f"v_mul_f32 v{AC+r}, v{AC+r}, v38")
    for r in range(4):
        e(f"v_fmac_f32 v{AC+r}, v{AC+4+r}, v39")
    for r in range(4):
        e(f"v_add_f32_dpp v{AC+r}, v{AC+r}, v{AC+r} row_ror:8 row_mask:0xf bank_mask:0xf")
    publish(1, AC, (65,))
    stamp(3)
    e("; final sum of 8 outputs: lanes 0-31 hold 16 attention partials, lanes 32-63 hold 16 FFN partials\ns_waitcnt vmcnt(0)")
    chk = "\n".join(f"v_xor_b32 v{16+i}, s6, v{16+i}" for i in range(4)) + "\nv_or3_b32 v24, v16, v17, v18\nv_bitop3_b32 v24, v24, v26, v19 bitop3:0xc8\nv_cmp_ne_u32 vcc, 0, v24"
    poll("buffer_load_dwordx4 v[16:19], v7, s[56:59], s74 offen sc1", chk, 0, quad=True)
    e("""v_permlane16_swap_b32 v16, v17
v_permlane16_swap_b32 v18, v19
v_add_f32 v17, v16, v17
v_add_f32 v18, v18, v19
v_add_f32_dpp v16, v17, v17 row_ror:8 row_mask:0xf bank_mask:0x3
v_add_f32_dpp v16, v18, v18 row_ror:8 row_mask:0xf bank_mask:0xc
v_add_f32_dpp v16, v16, v16 row_shl:4 row_mask:0xf bank_mask:0x5
v_add_f32_dpp v16, v16, v16 quad_perm:[2,3,0,1] row_mask:0xf bank_mask:0xf""")
    rnd(16, 16)
    e("v_add_f32 v17, v16, v50")
    rnd(17, 17)
    e("""v_permlane32_swap_b32 v16, v18
v_add_f32 v17, v17, v18
v_cvt_pk_bf16_f32 v17, v17, v17
s_mov_b32 exec_lo, 0x03030303
s_mov_b32 exec_hi, 0
buffer_store_short v17, v13, s[48:51], s75 offen
s_mov_b64 exec, 1
s_add_u32 s60, s2, s4
s_cmp_lg_u32 s60, 0
s_cbranch_scc1 L_o3
v_mov_b32 v19, s14
buffer_store_dword v19, v2, s[56:59], 0 offen
L_o3:""")
    stamp(7)
    if amp:
        a, b, k = amp
        e(f"s_waitcnt lgkmcnt(0)\ns_sub_u32 s61, s{80+2*b}, s{80+2*a}\ns_mul_i32 s61, s61, {k}\nL_probe:\ns_memrealtime s[76:77]\ns_waitcnt lgkmcnt(0)\ns_sub_u32 s60, s76, s{80+2*a}\ns_cmp_lt_u32 s60, s61\ns_cbranch_scc1 L_probe")
    e("L_fin:")
    if diag:
        e("s_mov_b64 exec, -1\ns_cmp_lt_u32 s3, 4\ns_cbranch_scc1 L_dg\ns_sub_u32 s60, s2, 144\ns_cmp_lt_u32 s60, 64\ns_cbranch_scc1 L_end\nL_dg:")
        e("s_waitcnt vmcnt(0)\ns_memrealtime s[76:77]\ns_waitcnt lgkmcnt(0)\ns_getreg_b32 s77, hwreg(HW_REG_HW_ID)")
        for i in range(8):
            e(f"v_mov_b32 v{16+i}, s{80+2*i}")
        e(f"v_mov_b32 v24, s76\nv_mov_b32 v25, s77\nv_mov_b32 v1, 0\ns_lshl_b32 s60, s2, 3\ns_add_u32 s60, s60, s3\ns_lshl_b32 s60, s60, 6\ns_add_u32 s60, s60, {STAMP}")
        e("s_mov_b64 exec, 1\nbuffer_store_dwordx4 v[16:19], v1, s[56:59], s60 offen\nbuffer_store_dwordx4 v[20:23], v1, s[56:59], s60 offen offset:16\nbuffer_store_dwordx2 v[24:25], v1, s[56:59], s60 offen offset:32")
    e("L_end:\ns_endpgm")
    e(f""".section .rodata,"a"
.p2align 6
.amdhsa_kernel {KN}
.amdhsa_next_free_vgpr 256
.amdhsa_next_free_sgpr 102
.amdhsa_accum_offset 256
.amdhsa_group_segment_fixed_size 0
.amdhsa_kernarg_size 96
.amdhsa_user_sgpr_count 2
.amdhsa_user_sgpr_kernarg_segment_ptr 1
.amdhsa_system_sgpr_workgroup_id_x 1
.amdhsa_float_denorm_mode_32 3
.end_amdhsa_kernel""")
    return top + e.text()


def summary(T, cfg):
    import numpy as np
    S = T[:, :4]; A = T[:144, 4:]; D = T[208:, 4:]
    wd = S[:, :, 4].max(1); m = wd.max()
    return dict(startmax=S[:, :, 0].max(), B1med=float(np.median(S[:, :, 1])), B1max=S[:, :, 1].max(), B2max=S[:, :, 2].max(), qwait=(S[:, :, 7] - S[:, :, 6]).max(),
                xcdspread=max(wd[i::8].mean() for i in range(8)) - wd.mean(), meandone=wd.mean(), maxdone=m, opub=S[:, 0, 3].max() - m, t2=S[:, :, 5].max() - m,
                dpub=D[:, :, 7].max() - m, ogath=A[:, :, 6].max() - m, ppub=A[:, :, 3].max() - m, out=A[:, :, 7].max() - m, end=A[:, :, 8].max())


if __name__ == "__main__":
    kw = eval("dict(" + (sys.argv[2] if len(sys.argv) > 2 else "") + ")")
    open(sys.argv[1], "w").write(gen(**kw))
```

```python
import sys, struct
sys.path.insert(0, "dev")
from asmlib import Asm

KN = "parallel_sum__sliding_block_cached__geglu_ffn__decode_kernel"
REF = "parallel_sum__sliding_block_cached__geglu_ffn__decode.s.ref"

R = 8
RING = R * 4096
XS = 4 * RING
QS = XS + 9216
HS = QS + 512
ML = HS + 4608
CNT = ML + 64
QF, C1, C2, PRG, DEC, C3 = CNT + 4, CNT + 8, CNT + 12, CNT + 16, CNT + 32, CNT + 36
SIDE = CNT + 40
LB = CNT + 64
RED = LB + 128
GB = RED + 4096
GST = 528
LDS_SZ = GB + 16 * GST
XID, PLN, PBUF, OBUF, PART = 0x400, 0x800, 0x1000, 0x70000, 0xA0000
PAR, PRB = 0x200, 0x6C000
OSL = 640
WS_SZ = PART + 144 * 4096
STAMP = 0x200000
LIMIT = 2000000
LOG2E = 1.4426950408889634

DOC = """;
;
;
"""


def f32(x):
    return "0x%08x" % struct.unpack("<I", struct.pack("<f", x))[0]


def gen(dw=6, dm=5, dt=7, d2=6, boost=3, thr=16, T1=56, TD=64, T2=96, trials=3, qslot=56, fslot=124, diag=0, wmap=0):
    e = Asm()
    uid = [0]
    wsz = WS_SZ if not diag else 0x400000

    def lab(p):
        uid[0] += 1
        return f"L_{p}{uid[0]}"

    def coff(c):
        return ((c & 1) << 14) | ((c >> 1) << 16) | ((c & 1) << 13) | ((c >> 1 & 1) << 15)

    def stamp(i):
        if diag:
            e(f"s_memrealtime s[{80 + 2 * i}:{81 + 2 * i}]")

    def srd(b, lo, size):
        e(f"s_mov_b32 s{b}, s{lo}\ns_mov_b32 s{b+1}, s{lo+1}\ns_mov_b32 s{b+2}, {size}\ns_mov_b32 s{b+3}, 0x20000")

    def rnd(dst, src):
        e(f"v_cvt_pk_bf16_f32 v{dst}, v{src}, v{src}\nv_lshlrev_b32 v{dst}, 16, v{dst}")

    def poll(loads, cmp, sleep, restore="-1", quad=False, first=None):
        L = lab("poll")
        e(f"s_mov_b32 s70, {LIMIT}")
        if first:
            e(loads)
            first()
            e(f"s_branch {L}_w")
        e(f"{L}:")
        e(loads)
        e(f"{L}_w:\ns_waitcnt vmcnt(0)")
        e(cmp)
        e(f"s_cbranch_vccz {L}_d" if quad else f"s_and_b64 exec, exec, vcc\ns_cbranch_scc0 {L}_d")
        e(f"s_sub_u32 s70, s70, 1\ns_cbranch_scc1 {L}_d")
        if quad:
            e("s_wqm_b64 exec, vcc")
        if sleep:
            e(f"s_sleep {sleep}")
        e(f"s_branch {L}\n{L}_d:\ns_mov_b64 exec, {restore}")

    def dual(stores, mode):
        L = lab("st")
        e(f"s_cmp_eq_u32 s{mode}, 2\ns_cbranch_scc0 {L}")
        e(stores.replace("POL", ""))
        e(f"s_branch {L}_d\n{L}:")
        e(stores.replace("POL", "sc1"))
        e(f"{L}_d:")

    def xidcheck(v):
        e(f"v_cmp_ne_u32 vcc, s78, v{v}\ns_cmp_eq_u32 vcc_lo, 0\ns_cselect_b32 s7, 2, 1")

    def ldsarrive(addr, va):
        e(f"s_mov_b64 exec, 1\nv_mov_b32 v{va}, {addr}\nv_mov_b32 v{va+1}, 1\nds_add_u32 v{va}, v{va+1}")

    def ldsspin(va, count, st=60, sleep=2, four=False):
        L = lab("spin")
        e(f"s_mov_b32 s70, {LIMIT*8}\n{L}:")
        if four:
            e(f"ds_read_b128 v[{va+4}:{va+7}], v{va}\ns_waitcnt lgkmcnt(0)\nv_add3_u32 v{va+1}, v{va+4}, v{va+5}, v{va+6}\nv_add_u32 v{va+1}, v{va+1}, v{va+7}")
        else:
            e(f"ds_read_b32 v{va+1}, v{va}\ns_waitcnt lgkmcnt(0)")
        e(f"""v_readfirstlane_b32 s{st}, v{va+1}
s_cmp_ge_u32 s{st}, {count}
s_cbranch_scc1 {L}_d
s_sub_u32 s70, s70, 1
s_cbranch_scc1 {L}_d
s_sleep {sleep}
s_branch {L}
{L}_d:
s_mov_b64 exec, -1""")

    CV = 232

    def control(until):
        L = lab("ctl")
        e(f"""; wave 2: post the stream position, count group members that are ahead, select the queue depth
s_cmp_lg_u32 s4, 2
s_cbranch_scc1 {L}_d
s_mov_b32 s70, {LIMIT}
{L}:
ds_read_b128 v[{CV+4}:{CV+7}], v{CV}
s_waitcnt lgkmcnt(0)
v_add3_u32 v{CV+1}, v{CV+4}, v{CV+5}, v{CV+6}
v_add_u32 v{CV+1}, v{CV+1}, v{CV+7}
v_readfirstlane_b32 s66, v{CV+1}
v_lshl_or_b32 v{CV+1}, v{CV+1}, 16, s15
s_mov_b64 exec, 1
buffer_store_dword v{CV+1}, v{CV+3}, s[56:59], s76 offen
s_mov_b64 exec, -1
s_cmp_ge_u32 s66, {until}
s_cbranch_scc1 {L}_d
buffer_load_dword v{CV+4}, v1, s[56:59], s76 offen sc1
v_add_u32 v{CV+1}, 0x10000, v{CV+1}
s_waitcnt vmcnt(0)
v_sub_u32 v{CV+4}, v{CV+4}, v{CV+1}
v_and_b32 v{CV+4}, 0x8000ffff, v{CV+4}
v_cmp_eq_u32 vcc, 0, v{CV+4}
s_bcnt1_i32_b32 s66, vcc_lo
s_cmp_ge_u32 s66, {thr}
s_cselect_b32 s66, 1, 0
v_mov_b32 v{CV+4}, s66
ds_write_b32 v{CV}, v{CV+4} offset:{DEC - PRG}
s_sub_u32 s70, s70, 1
s_cbranch_scc0 {L}
{L}_d:""")

    def getside():
        L = lab("side")
        e(f"; wave 3 fetches the announced bit for the partial output layout\ns_cmp_lg_u32 s4, 3\ns_cbranch_scc1 {L}")
        ldsspin(CV, T2, st=5, sleep=16, four=True)
        e(f"v_mov_b32 v{CV+2}, 0")
        poll(f"buffer_load_dwordx2 v[{CV+4}:{CV+5}], v{CV+2}, s[56:59], 0 offen offset:{PAR} sc1",
             f"v_xor_b32 v{CV+6}, s15, v{CV+4}\nv_and_b32 v{CV+6}, 0xfffeffff, v{CV+6}\nv_xor_b32 v{CV+5}, s14, v{CV+5}\nv_or_b32 v{CV+6}, v{CV+6}, v{CV+5}\nv_cmp_ne_u32 vcc, 0, v{CV+6}", 16)
        e(f"v_bfe_u32 v{CV+4}, v{CV+4}, 16, 1\nv_lshlrev_b32 v{CV+4}, 13, v{CV+4}\nds_write_b32 v{CV}, v{CV+4} offset:{SIDE - PRG}\ns_waitcnt lgkmcnt(0)\n{L}:")

    def sentcmp(regs, tmp):
        r = list(regs)
        out = []
        cur = r.pop(0)
        while r:
            out.append(f"v_max3_u32 v{tmp}, v{cur}, v{r[0]}, v{r[1]}" if len(r) > 1 else f"v_max_u32 v{tmp}, v{cur}, v{r[0]}")
            r = r[2:]
            cur = tmp
        out.append(f"v_cmp_eq_u32 vcc, -1, v{cur}")
        return "\n".join(out)

    def tagcmp(regs, tmp):
        out = [f"v_xor_b32 v{tmp}, s15, v{regs[0]}"]
        for r in regs[1:]:
            out.append(f"v_bitop3_b32 v{tmp}, v{r}, v{tmp}, s15 bitop3:0xde")
        out.append(f"v_and_b32 v{tmp}, 0xffff, v{tmp}\nv_cmp_ne_u32 vcc, 0, v{tmp}")
        return "\n".join(out)

    def allred_g(v, t, op):
        e(f"v_mov_b32 v{t}, v{v}\nv_permlane16_swap_b32 v{v}, v{t}\n{op} v{v}, v{v}, v{t}")
        e(f"v_mov_b32 v{t}, v{v}\nv_permlane32_swap_b32 v{v}, v{t}\n{op} v{v}, v{v}, v{t}")

    def mfma(D, A, B, first):
        e(f"v_mfma_f32_16x16x32_bf16 v[{D}:{D+3}], v[{A}:{A+3}], v[{B}:{B+3}], {'0' if first else f'v[{D}:{D+3}]'}")

    def trread(dst, addr, off):
        for hf in range(2):
            e(f"ds_read_b64_tr_b16 v[{dst+2*hf}:{dst+2*hf+1}], v{addr} offset:{off + hf * 512}")

    hdr = [l.rstrip("\n") for l in open(REF) if l.startswith(";") and "@launch" not in l and "Override" not in l and "grid=ceil" not in l]
    top = "\n".join(hdr) + f"\n; @launch grid=(256,1,1) block=(512,1,1) lds={LDS_SZ}\n" + DOC
    e(f""".amdgcn_target "amdgcn-amd-amdhsa--gfx950"
.text
.globl {KN}
.p2align 8
.type {KN},@function
{KN}:
s_cmp_ge_u32 s2, 256
s_cbranch_scc1 L_end
s_load_dwordx16 s[16:31], s[0:1], 0
s_load_dwordx8 s[32:39], s[0:1], 64""")
    if wmap:
        e("s_lshr_b32 s5, s2, 4\ns_add_u32 s6, s2, s5\ns_and_b32 s6, s6, 15\ns_andn2_b32 s2, s2, 15\ns_or_b32 s2, s2, s6")
    stamp(0)
    e("""v_lshrrev_b32 v1, 6, v0
v_and_b32 v0, 63, v0
v_readfirstlane_b32 s3, v1
s_xor_b32 s3, s3, 4
s_and_b32 s8, s2, 15
s_lshr_b32 s9, s2, 4
s_sub_u32 s12, s9, 13
s_lshl_b32 s10, s8, 2
s_add_u32 s10, s10, s9
s_sub_u32 s10, s10, 9
s_and_b32 s5, s2, 7
s_bfe_u32 s6, s2, 0x10003
s_lshl_b32 s11, s5, 1
s_add_u32 s11, s11, s6
s_mul_i32 s79, s5, 9
s_add_u32 s79, s79, s9
s_cmp_ge_u32 s3, 4
s_cbranch_scc1 L_aux""")

    VO, KD, KR, KW, VW1, VW2, Q, KF, AB, ACC, T, SD, SEL, SP = 1, 2, 6, 10, 14, 15, 16, 32, 48, 64, 68, 76, 80, 88
    MRUN, NEGM, LS, VT2, VST, VPR, VDE, VDA, VV = 120, 121, 122, 123, 124, 125, 126, 127, 128
    e(f"""; ===== stream waves (s3 = 0..3) =====
v_lshrrev_b32 v1, 3, v0
v_and_b32 v2, 7, v0
v_and_b32 v3, 2, v1
s_and_b32 s5, s3, 1
s_lshl_b32 s5, s5, 2
v_or_b32 v3, s5, v3
v_xor_b32 v2, v2, v3
v_lshlrev_b32 v2, 4, v2
s_lshl_b32 m0, s3, 10
s_mov_b32 s43, 0x20000
s_lshl_b32 s60, s79, 7
s_lshl_b32 s5, s10, 7
s_movk_i32 s7, 9216
s_mov_b32 s42, {576*9216}
s_cmp_ge_u32 s2, 144
s_cselect_b32 s60, s5, s60
s_cselect_b32 s7, 8192, s7
s_cselect_b32 s42, {576*8192}, s42
s_mul_i32 s5, s11, {288*1152}
s_mul_i32 s6, s12, 384
s_add_u32 s5, s5, s6
s_lshl_b32 s62, s7, 5
s_movk_i32 s64, 4096
s_cmp_ge_u32 s2, 208
s_cselect_b32 s60, s5, s60
s_cselect_b32 s7, 1152, s7
s_cselect_b32 s42, {4608*1152}, s42
s_cselect_b32 s63, {36864-256}, s62
s_cselect_b32 s62, 128, s62
s_cselect_b32 s65, {4096-49152}, s64
s_cselect_b32 s64, 24576, s64
s_mul_i32 s5, s3, s7
s_lshl_b32 s5, s5, 3
s_add_u32 s72, s60, s5
v_mad_u32_u24 v{VW1}, v1, s7, v2
s_bitcmp1_b32 s2, 3
s_waitcnt lgkmcnt(0)
s_cselect_b64 s[40:41], s[30:31], s[28:29]
s_cmp_ge_u32 s2, 144
s_cselect_b64 s[40:41], s[22:23], s[40:41]
s_cmp_ge_u32 s2, 208
s_cselect_b64 s[40:41], s[32:33], s[40:41]""")

    def vsetup():
        e("; s60 = this wave's base inside the K / V window, v2-v5 swizzled K source offsets")
        srd(48, 18, 0x10000000)
        e(f"""s_lshr_b32 s60, s9, 1
s_lshl_b32 s60, s60, 4
s_add_u32 s60, s60, s8
s_lshl_b32 s60, s60, 21
s_and_b32 s61, s9, 1
s_lshl_b32 s61, s61, 15
s_add_u32 s60, s60, s61
s_lshl_b32 s61, s3, 12
s_add_u32 s60, s60, s61
s_add_u32 s60, s60, {6144*256}
v_mul_u32_u24 v{VT2}, 1152, v1
v_add_u32 v{VT2}, v{VT2}, v2
v_lshlrev_b32 v{VO}, 4, v0""")
        e(f"v_lshrrev_b32 v{T}, 4, v0\nv_and_b32 v{T+1}, 15, v0\nv_lshlrev_b32 v{T+2}, 2, v{T}\nv_xor_b32 v{T+2}, v{T+2}, v{T+1}")
        e(f"v_lshlrev_b32 v{T+2}, 4, v{T+2}\nv_lshl_add_u32 v{KD}, v{T}, 8, v{T+2}")
        for r in range(1, 4):
            e(f"v_xor_b32 v{KD+r}, {16*r}, v{KD}")

    work = {}

    def at(slot, fn):
        work.setdefault(slot, []).append(fn)

    def setup():
        e("; late tile descriptor, K fragment addresses, byte selectors that build the diagonal P operand")
        srd(52, 20, 0x10000000)
        srd(56, 38, wsz)
        e(f"""s_mul_i32 s67, s3, {RING}
s_mul_i32 s5, s8, {256*1152}
s_mul_i32 s6, s3, {8*1152}
s_add_u32 s5, s5, s6
s_lshl_b32 s6, s9, 7
s_add_u32 s5, s5, s6
s_mov_b32 s46, {4096*1152}
s_mov_b32 s47, 0x20000
s_cmp_ge_u32 s2, 208
s_cselect_b32 s72, s72, s5
s_cselect_b32 s73, s62, {32*1152}
s_cselect_b32 s74, s63, {32*1152}
s_cselect_b64 s[44:45], s[32:33], s[24:25]
s_cselect_b32 s46, s42, s46""")
        e(f"v_lshrrev_b32 v{T}, 4, v0\nv_and_b32 v{T+1}, 15, v0\nv_add_u32 v{KW}, s67, v{VO}")
        e(f"v_and_b32 v{T+2}, 3, v0\nv_lshlrev_b32 v{T+2}, 2, v{T+2}\nv_lshrrev_b32 v{T+3}, 2, v{T+1}\nv_or_b32 v{T+2}, v{T+2}, v{T+3}")
        e(f"v_lshl_add_u32 v{T+2}, v{T+2}, 8, s67\nv_xor_b32 v{T+3}, v{T}, v{T+1}\nv_lshl_add_u32 v{KR}, v{T+3}, 4, v{T+2}")
        for t in range(1, 4):
            e(f"v_xor_b32 v{KR+t}, {64*t}, v{KR}")
        e(f"""v_and_b32 v{T+2}, 1, v0
v_cmp_eq_u32 vcc, 1, v{T+2}
v_mov_b32 v{T+3}, 0x0c0c0100
v_mov_b32 v{T+4}, 0x01000c0c
v_cndmask_b32 v{T+3}, v{T+3}, v{T+4}, vcc
v_mov_b32 v{T+4}, 0x0c0c0302
v_mov_b32 v{T+5}, 0x03020c0c
v_cndmask_b32 v{T+4}, v{T+4}, v{T+5}, vcc
v_mov_b32 v{T+5}, 0x0c0c0c0c
v_bfe_u32 v{T+2}, v0, 1, 2""")
        for k in range(4):
            e(f"v_cmp_eq_u32 vcc, {k}, v{T+2}\nv_cndmask_b32 v{SEL+k}, v{T+5}, v{T+3}, vcc\nv_cndmask_b32 v{SEL+4+k}, v{T+5}, v{T+4}, vcc")
        e(f"v_lshrrev_b32 v{T+2}, 3, v{T+1}\nv_lshlrev_b32 v{T+2}, 8, v{T+2}\nv_lshl_add_u32 v{T+2}, v{T}, 4, v{T+2}\nv_add_u32 v{VW1}, {QS}, v{T+2}")
        e(f"s_mov_b32 s68, 0xffff0000\ns_mov_b32 s69, {f32(128 ** -0.5)}\ns_mov_b32 s71, {f32(LOG2E)}")
        e(f"v_mov_b32 v{LS}, 0\nv_mov_b32 v{MRUN}, 0xff800000")
        for r in range(4):
            e(f"v_mov_b32 v{ACC+r}, 0")

    def kread(c):
        def f():
            off = 0 if c < 8 else (c - 8) * 4096
            if c < 8:
                for r in range(4):
                    b = VV + 16 * c + 4 * r
                    e(f"ds_write_b128 v{KW}, v[{b}:{b+3}] offset:{1024 * r}")
            for t in range(4):
                e(f"ds_read_b128 v[{KF+4*t}:{KF+4*t+3}], v{KR+t} offset:{off}")
        return f

    def kmma(c):
        def f():
            e(f"; K chunk {c}: scores\ns_waitcnt lgkmcnt(0)")
            for t in range(4):
                mfma(SD, KF + 4 * t, Q + 4 * t, t == 0)
        return f

    def unpack(dst, a, b):
        e(f"v_lshlrev_b32 v{dst}, 16, v{a}\nv_and_b32 v{dst+1}, s68, v{a}\nv_lshlrev_b32 v{dst+2}, 16, v{b}\nv_and_b32 v{dst+3}, s68, v{b}")

    def kround(c):
        def f():
            S = SP + 2 * c
            e(f"v_cvt_pk_bf16_f32 v{T}, v{SD}, v{SD+1}\nv_cvt_pk_bf16_f32 v{T+1}, v{SD+2}, v{SD+3}")
            unpack(T + 2, T, T + 1)
            for r in range(4):
                e(f"v_mul_f32 v{T+2+r}, s69, v{T+2+r}")
            e(f"v_cvt_pk_bf16_f32 v{S}, v{T+2}, v{T+3}\nv_cvt_pk_bf16_f32 v{S+1}, v{T+4}, v{T+5}")
            unpack(T + 2, S, S + 1)
            e(f"v_max3_f32 v{MRUN}, v{MRUN}, v{T+2}, v{T+3}\nv_max3_f32 v{MRUN}, v{MRUN}, v{T+4}, v{T+5}")
        return f

    def wmax():
        e("; max over this wave's 256 keys")
        allred_g(MRUN, T, "v_max_f32")
        e(f"v_mul_f32 v{NEGM}, s71, v{MRUN}\nv_sub_f32 v{NEGM}, 0, v{NEGM}")

    def pexp(c):
        def f():
            S = SP + 2 * c
            unpack(T + 2, S, S + 1)
            for r in range(4):
                e(f"v_fma_f32 v{T+2+r}, v{T+2+r}, s71, v{NEGM}")
            for r in range(4):
                e(f"v_exp_f32 v{T+2+r}, v{T+2+r}")
            e(f"v_add_f32 v{T}, v{T+2}, v{T+3}\nv_add_f32 v{T+1}, v{T+4}, v{T+5}\nv_add_f32 v{LS}, v{LS}, v{T}\nv_add_f32 v{LS}, v{LS}, v{T+1}")
            e(f"v_cvt_pk_bf16_f32 v{S}, v{T+2}, v{T+3}\nv_cvt_pk_bf16_f32 v{S+1}, v{T+4}, v{T+5}")
        return f

    def aprep(c, r):
        def f():
            S = SP + 2 * c + (r >> 1)
            for k in range(4):
                e(f"v_perm_b32 v{AB+4*r+k}, v{S}, v{S}, v{SEL + 4 * (r & 1) + k}")
        return f

    def pv(c, r):
        def f():
            mfma(ACC, AB + 4 * r, VV + 16 * (c % 8) + 4 * r, False)
        return f

    def mlwrite():
        e("; publish this wave's max and sum in LDS, prepare the combine addresses")
        allred_g(LS, T, "v_add_f32")
        e(f"v_sub_f32 v{T+2}, 0, v{NEGM}\nv_mov_b32 v{T+3}, v{LS}")
        e(f"v_bfe_u32 v{T}, v0, 3, 1\nv_lshlrev_b32 v{T}, 5, v{T}\ns_lshl_b32 s63, s3, 3\ns_add_u32 s63, s63, {ML}\nv_add_u32 v{T}, s63, v{T}")
        e(f"ds_write_b64 v{T}, v[{T+2}:{T+3}]")
        ldsarrive(C3, T)
        e(f"""s_mov_b64 exec, -1
s_lshl_b32 s63, s3, 10
s_add_u32 s63, s63, {RED}
v_add_u32 v{VW2}, s63, v{VO}
v_lshrrev_b32 v2, 5, v0
v_lshlrev_b32 v3, 5, v2
v_add_u32 v3, {ML}, v3
s_lshl_b32 s63, s3, 3
v_add_u32 v9, s63, v3
v_lshlrev_b32 v4, 3, v0
v_lshlrev_b32 v5, 2, v2
v_and_b32 v6, 1, v0
v_lshl_add_u32 v6, v2, 1, v6
v_bfe_u32 v7, v0, 1, 4
v_lshl_add_u32 v6, v6, 4, v7
v_lshlrev_b32 v6, 4, v6
v_add_u32 v6, {RED}, v6
s_lshr_b32 s62, s9, 1
s_and_b32 s63, s9, 1
s_lshl_b32 s63, s63, 3
s_add_u32 s62, s62, s63
s_mul_i32 s63, s62, {GST}
s_add_u32 s63, s63, {GB}
v_add_u32 v7, s63, v4
s_lshl_b32 s63, s62, 3
s_add_u32 s63, s63, {LB}
v_add_u32 v8, s63, v5
s_lshl_b32 s63, s8, 4
s_add_u32 s63, s63, s62
s_mul_i32 s63, s63, {OSL}
s_add_u32 s63, s63, {OBUF}""")

    def factors():
        e(f"""; workgroup max and sum: v9 = this wave's normalizing factor, v27 = log2-sum-exp
v_mov_b32 v{T}, {C3}
s_mov_b32 s70, {LIMIT*8}
L_fw:
ds_read_b32 v{T+1}, v{T}
ds_read_b128 v[16:19], v3
ds_read_b128 v[20:23], v3 offset:16
ds_read_b32 v9, v9
s_waitcnt lgkmcnt(0)
v_readfirstlane_b32 s5, v{T+1}
s_cmp_ge_u32 s5, 4
s_cbranch_scc1 L_fd
s_sub_u32 s70, s70, 1
s_cbranch_scc1 L_fd
s_lshl_b32 s5, s3, 3
v_add_u32 v9, s5, v3
s_branch L_fw
L_fd:
v_max3_f32 v24, v16, v18, v20
v_max_f32 v24, v24, v22
v_sub_f32 v16, v16, v24
v_sub_f32 v18, v18, v24
v_sub_f32 v20, v20, v24
v_sub_f32 v22, v22, v24
v_sub_f32 v9, v9, v24
v_exp_f32 v16, v16
v_exp_f32 v18, v18
v_exp_f32 v20, v20
v_exp_f32 v22, v22
v_exp_f32 v9, v9
v_mul_f32 v25, v16, v17
v_fmac_f32 v25, v18, v19
v_fmac_f32 v25, v20, v21
v_fmac_f32 v25, v22, v23
v_rcp_f32 v26, v25
v_log_f32 v27, v25
v_mul_f32 v9, v9, v26
v_add_f32 v27, v27, v24
v_min_u32 v27, -2, v27""")

    def qread():
        stamp(6)
        e(f"; q fragments, s13 = store mode\nv_mov_b32 v{T}, {QF}\ns_mov_b32 s70, {LIMIT*8}\nL_qw:\nds_read_b32 v{T+1}, v{T}")
        for t in range(4):
            e(f"ds_read_b128 v[{Q+4*t}:{Q+4*t+3}], v{VW1} offset:{64*t}")
        e(f"""s_waitcnt lgkmcnt(0)
v_readfirstlane_b32 s13, v{T+1}
s_cmp_lg_u32 s13, 0
s_cbranch_scc1 L_qd
s_sub_u32 s70, s70, 1
s_cbranch_scc1 L_qd
s_sleep 2
s_branch L_qw
L_qd:""")
        stamp(7)

    def dep(n):
        return dt if 56 <= n < 64 else dm if n < 96 else d2

    landed = {}
    for n in range(128 + 64):
        for m in range(min(127, n - dep(n) - (boost if n < 128 else 0)) + 1):
            landed.setdefault(m, n)
    at(qslot, qread)
    n0 = qslot
    for i in range(8):
        for c in (8 + i, i):
            n0 = max(n0, landed[4 * c + 3])
            assert c >= 8 or n0 + 1 < 64 + 4 * c
            at(n0, kread(c))
            at(n0 + 1, kmma(c))
            at(n0 + 2, kround(c))
            n0 += 2
    sM = n0 + 1
    at(sM, wmax)
    for c in range(16):
        at(sM + 1 + c, pexp(c))
    at(sM + 17, mlwrite)
    assert sM + 17 < fslot <= 127
    at(fslot, factors)
    pre = {}
    last = 0
    for n in range(64, 128):
        c, r = (n - 64) // 4, n % 4
        s = max(landed[n], sM + 2 + c, last)
        while len(pre.get(s, [])) >= (2 if s < 128 else 4):
            s += 1
        last = s
        assert n >= 96 or s < n + 32
        pre.setdefault(s, []).append((c, r))
    nslots = max(max(work), last) + 1

    def t2load(j):
        e(f"buffer_load_dwordx4 v{VT2}, s[44:47], s72 offen nt lds")
        if j < 8:
            e(f"s_add_u32 s72, s72, s{74 if j % 3 == 2 else 73}\ns_add_u32 m0, m0, 1024")

    def cwait(depth):
        L = lab("w")
        e(f"s_waitcnt vmcnt({depth+boost-1})\ns_cbranch_vccnz {L}\ns_waitcnt vmcnt({depth-1})\n{L}:")

    def post(stage):
        e(f"v_mov_b32 v{VST}, {stage}\nds_write_b32 v{VPR}, v{VST}\nds_read_b32 v{VDE}, v{VDA}")

    def decide():
        e(f"s_waitcnt lgkmcnt(0)\nv_cmp_ne_u32 vcc, 0, v{VDE}")

    def vload(i, wait):
        if i % 4 == 0:
            e(f"s_xor_b32 s61, s60, {coff(i // 4)}")
        wait()
        V = VV + 4 * (i % 32)
        e(f"buffer_load_dwordx4 v[{V}:{V+3}], v{VO}, s[52:55], s61 offen offset:{(i % 4) * 1024} nt")

    def kload(i, wait):
        if i % 4 == 0:
            e(f"s_xor_b32 s61, s60, {coff(i // 4)}")
            if i >= 32:
                e(f"s_add_u32 m0, s67, {(i // 4 - 8) * 4096}")
        wait()
        if i < 32:
            e(f"buffer_load_dwordx4 v[{VV+4*i}:{VV+4*i+3}], v{KD + i % 4}, s[48:51], s61 offen offset:{(i % 4) * 1024} nt")
        else:
            e(f"buffer_load_dwordx4 v{KD + i % 4}, s[48:51], s61 offen offset:{(i % 4) * 1024} nt lds")

    for p in range(18 + dw):
        if p == dw:
            e(f"s_lshl_b32 s5, s3, 2\ns_add_u32 s5, s5, {PRG}\nv_mov_b32 v{VPR}, s5\nv_mov_b32 v{VDA}, {DEC}\ns_barrier")
        if p > dw and p % 4 == 2:
            post(p // 4)
        if p == 18:
            vsetup()
        if p == 17 + dw:
            e(f"; this wave's part of the weight tile has landed\ns_waitcnt vmcnt({dw-1})")
            stamp(1)
            ldsarrive(C1, T)
            e("s_mov_b64 exec, -1")
        if p >= 18:
            kload(p - 18, lambda: e(f"s_waitcnt vmcnt({dw-1})"))
        else:
            if p >= dw:
                e(f"s_waitcnt vmcnt({dw-1})")
            e(f"buffer_load_dwordx4 v{VW1}, s[40:43], s72 offen nt lds")
            e(f"s_add_u32 s72, s72, s{62 if p % 3 < 2 else 63}\ns_add_u32 m0, m0, s{64 if p % 3 < 2 else 65}")
    e(f"""; tiles whose lines all have address bits [9:7] = 3 arrive late: start those workgroups on the deep queue
s_add_u32 s66, s40, s72
s_bfe_u32 s66, s66, 0x30007
s_cmp_eq_u32 s66, 3
s_cselect_b32 s66, 1, 0
s_cmp_ge_u32 s2, 208
s_cselect_b32 s66, 0, s66
s_waitcnt lgkmcnt(0)
v_mov_b32 v{VDE}, s66
ds_write_b32 v{VDA}, v{VDE}""")
    setup()
    decide()

    t2n = [0]

    def slot(n, t2):
        todo = pre.get(n, [])
        for (c, r) in todo:
            aprep(c, r)()
        if n == 32:
            stamp(2)
            e(f"; the K slots reuse the weight tile's LDS once it has been read\nv_mov_b32 v{T}, {C2}")
            ldsspin(T, 4, st=5)
        if n < 64:
            kload(n, lambda: cwait(dep(n)))
        elif n < 128:
            vload(n - 64, lambda: cwait(dep(n)))
        else:
            if n - d2 <= 127:
                e(f"s_waitcnt vmcnt({127 - (n - d2) + (t2n[0] if t2 else 0)})")
            left = nslots - 1 - n
            if t2 and left > 0:
                for _ in range(-(-(8 - t2n[0]) // left)):
                    t2load(t2n[0])
                    t2n[0] += 1
        for (c, r) in todo:
            pv(c, r)()
        if n < 128 and n % 4 == 1:
            decide()
        if n < 128 and n % 4 == 0:
            post((n + 18) // 4)
        for fn in work.get(n, []):
            fn()

    for n in range(dw, 128):
        slot(n, False)
    e("; drain V; the wo / w_down roles queue their late tile behind it\ns_mov_b32 m0, s67\ns_sub_u32 s5, s2, 144\ns_cmp_lt_u32 s5, 64\ns_cbranch_scc1 L_tq")
    for n in range(128, nslots):
        slot(n, True)
    assert t2n[0] == 8
    e("s_branch L_tj\nL_tq:")
    for n in range(128, nslots):
        slot(n, False)
    e("L_tj:")
    for r in range(4):
        e(f"v_mul_f32 v{ACC+r}, v{ACC+r}, v9")
    e(f"ds_write_b128 v{VW2}, v[{ACC}:{ACC+3}]")
    stamp(4)
    e("s_cmp_lt_u32 s2, 208\ns_cbranch_scc1 L_t9")
    t2load(8)
    e("L_t9:\ns_waitcnt lgkmcnt(0)\ns_barrier\ns_cmp_lg_u32 s3, 0\ns_cbranch_scc1 L_sd")
    for w in range(4):
        e(f"ds_read_b128 v[{28+4*w}:{31+4*w}], v6 offset:{1024*w}")
    for w in range(1, 4):
        e(f"s_waitcnt lgkmcnt({3 - w})")
        for r in range(4):
            e(f"v_add_f32 v{28+r}, v{28+r}, v{28+4*w+r}")
    e("v_cvt_pk_bf16_f32 v28, v28, v29\nv_cvt_pk_bf16_f32 v29, v30, v31\nv_min_u32 v28, -2, v28\nv_min_u32 v29, -2, v29")
    dual("""buffer_store_dwordx2 v[28:29], v4, s[56:59], s63 offen POL
s_mov_b32 exec_lo, 1
s_mov_b32 exec_hi, 1
buffer_store_dword v27, v5, s[56:59], s63 offen offset:512 POL""", 13)
    e("ds_write_b32 v8, v27\ns_mov_b64 exec, -1\nds_write_b64 v7, v[28:29]")
    stamp(3)
    e("L_sd:\ns_waitcnt vmcnt(0) lgkmcnt(0)")
    stamp(5)
    e("s_barrier\ns_barrier\ns_branch L_fin")

    XN, WF, OF, AC, G, U = 16, 52, 160, 192, 208, 220
    e(f"""; ===== projection and hand-off waves (s4 = 0..3) =====
L_aux:
s_sub_u32 s4, s3, 4
v_mul_u32_u24 v1, 36, v0
s_mul_i32 s5, s4, 2304
v_lshlrev_b32 v2, 4, v0
v_mov_b32 v8, {CNT}
v_mov_b32 v4, 0
v_mov_b32 v5, 0
v_mov_b32 v6, 0
v_mov_b32 v7, 0
ds_write_b128 v8, v[4:7]
ds_write_b128 v8, v[4:7] offset:16
ds_write_b128 v8, v[4:7] offset:32
s_movk_i32 s42, 9216
s_mov_b32 s43, 0x20000
s_waitcnt lgkmcnt(0)
s_load_dword s14, s[38:39], 0
s_mov_b64 s[40:41], s[16:17]""")
    for k in range(3):
        e(f"buffer_load_dwordx3 v[{16+4*k}:{18+4*k}], v1, s[40:43], s5 offen offset:{12*k}")
    e("s_barrier")
    srd(56, 38, wsz)
    e(f"""s_add_u32 s13, s79, 64
s_bitcmp1_b32 s2, 3
s_cselect_b32 s60, 72, 0
s_add_u32 s13, s13, s60
s_cmp_ge_u32 s2, 144
s_cselect_b32 s13, s10, s13
s_lshl_b32 s13, s13, 11
s_add_u32 s13, s13, {PBUF}
s_getreg_b32 s78, hwreg(HW_REG_XCC_ID, 0, 4)
s_lshl_b32 s78, s78, 16
s_and_b32 s77, s2, 7
s_lshl_b32 s77, s77, 7
s_add_u32 s77, s77, {XID}
s_mov_b32 s68, 0xffff0000
s_mov_b32 s69, {f32(1/576)}
s_add_u32 s5, s5, {XS}
v_add_u32 v1, s5, v1
v_lshrrev_b32 v10, 4, v0
v_and_b32 v11, 15, v0
v_bfe_u32 v8, v0, 2, 2
v_lshl_add_u32 v12, v10, 3, v8
v_lshlrev_b32 v12, 7, v12
v_and_b32 v9, 3, v0
v_lshl_add_u32 v12, v9, 3, v12
v_lshrrev_b32 v13, 1, v8
v_and_b32 v8, 1, v10
v_lshl_or_b32 v13, v8, 1, v13
v_lshl_add_u32 v12, v13, 5, v12
s_lshl_b32 s60, s4, 5
v_xor_b32 v3, s60, v12
v_add_u32 v4, 0x10000, v3
v_and_b32 v14, 7, v0
v_bfe_u32 v15, v0, 2, 3
v_lshl_add_u32 v15, v9, 4, v15
v_lshlrev_b32 v15, 2, v15
v_mul_u32_u24 v5, 1152, v14
v_lshrrev_b32 v8, 3, v11
v_mul_u32_u24 v8, 576, v8
v_lshl_add_u32 v8, v10, 4, v8
v_add_u32 v5, v5, v8
v_add_u32 v5, {XS}, v5
s_mov_b32 s71, 0x07060302
v_and_b32 v57, 31, v0
v_lshlrev_b32 v57, 2, v57
s_waitcnt lgkmcnt(0)
s_add_u32 s14, s14, 1
s_and_b32 s15, s14, 0xffff
s_and_b32 s6, s14, 0xff
s_andn2_b32 s60, s14, 0xf0000
s_or_b32 s78, s78, s60
s_cmp_lg_u32 s4, 0
s_cbranch_scc1 L_a1
s_lshr_b32 s60, s2, 3
s_lshl_b32 s60, s60, 2
s_add_u32 s60, s60, s77
v_mov_b32 v8, s78
s_mov_b64 exec, 1
buffer_store_dword v8, v57, s[56:59], s60 offen
s_mov_b64 exec, -1
s_waitcnt vmcnt(1)
s_branch L_a2
L_a1:
s_waitcnt vmcnt(0)
L_a2:
; LayerNorm of two rows per wave, rounded to bf16 after every step like the reference""")
    raw = [16, 17, 18, 20, 21, 22, 24, 25, 26]

    def red32(v, t):
        for s in (8, 4, 2, 1):
            e(f"v_add_f32_dpp v{v}, v{v}, v{v} row_ror:{s} row_mask:0xf bank_mask:0xf")
        e(f"v_mov_b32 v{t}, v{v}\nv_permlane16_swap_b32 v{v}, v{t}\nv_add_f32 v{v}, v{v}, v{t}")

    for k in range(9):
        e(f"v_lshlrev_b32 v{28+2*k}, 16, v{raw[k]}\nv_and_b32 v{29+2*k}, s68, v{raw[k]}")
    e("v_pk_add_f32 v[46:47], v[28:29], v[30:31]")
    for k in range(2, 9):
        e(f"v_pk_add_f32 v[46:47], v[46:47], v[{28+2*k}:{29+2*k}]")
    e("v_add_f32 v46, v46, v47")
    red32(46, 47)
    e("v_mul_f32 v48, s69, v46\nv_sub_f32 v50, 0, v48\nv_sub_f32 v51, 0, v48")
    for k in range(9):
        e(f"v_pk_add_f32 v[8:9], v[{28+2*k}:{29+2*k}], v[50:51]")
        e("v_pk_mul_f32 v[46:47], v[8:9], v[8:9]" if k == 0 else "v_pk_fma_f32 v[46:47], v[8:9], v[8:9], v[46:47]")
    e("v_add_f32 v46, v46, v47")
    red32(46, 47)
    e("v_mul_f32 v46, s69, v46")
    rnd(46, 46)
    e(f"v_add_f32 v46, {f32(1e-5)}, v46")
    rnd(46, 46)
    e("v_sqrt_f32 v46, v46")
    rnd(46, 46)
    e("v_rcp_f32 v46, v46")
    rnd(50, 50)
    e("v_mov_b32 v51, v50\nv_mov_b32 v47, v46")
    for k in range(9):
        e(f"v_pk_add_f32 v[8:9], v[{28+2*k}:{29+2*k}], v[50:51]\nv_cvt_pk_bf16_f32 v9, v8, v9\nv_lshlrev_b32 v8, 16, v9\nv_and_b32 v9, s68, v9")
        e(f"v_pk_mul_f32 v[8:9], v[8:9], v[46:47]\nv_cvt_pk_bf16_f32 v{raw[k]}, v8, v9")
    for k in range(0, 8, 2):
        e(f"ds_write2_b32 v1, v{raw[k]}, v{raw[k+1]} offset0:{k} offset1:{k+1}")
    e(f"ds_write_b32 v1, v{raw[8]} offset:32")
    stamp(1)
    e(f"""v_mov_b32 v{G}, -1
v_mov_b32 v{G+1}, -1
v_mov_b32 v{G+2}, -1
v_mov_b32 v{G+3}, -1
s_lshl_b32 s61, s10, 2
s_add_u32 s61, s61, s4
s_mul_i32 s61, s61, {OSL}
s_add_u32 s61, s61, {OBUF}
v_mov_b32 v1, v57
s_waitcnt lgkmcnt(0)""")
    ldsarrive(C1, 8)
    e(f"""s_mov_b64 exec, -1
s_mov_b32 s70, 2
s_cmp_ge_u32 s2, 208
s_cbranch_scc1 L_a4
L_xid:
buffer_load_dword v{G+4}, v1, s[56:59], s77 offen sc1
s_waitcnt vmcnt(0)""")
    xidcheck(G + 4)
    e("""s_cmp_eq_u32 s7, 2
s_cbranch_scc1 L_xidd
s_sub_u32 s70, s70, 1
s_cbranch_scc0 L_xid
L_xidd:
s_cmp_lt_u32 s2, 144
s_cbranch_scc1 L_a4
s_mov_b32 exec_hi, 0xff""")
    dual(f"buffer_store_dwordx4 v[{G}:{G+3}], v2, s[56:59], s61 offen POL", 7)
    e("L_a4:\ns_mov_b64 exec, 1")
    ldsspin(8, 8)
    stamp(2)
    for i in range(9):
        e(f"ds_read_b128 v[{XN+4*i}:{XN+4*i+3}], v5 offset:{64*i}")
    for kk in range(18):
        trread(WF + 4 * kk, 3 if kk < 16 else 4, (kk % 16) * 4096)
    e(f"""s_lshl_b32 s60, s4, 9
s_add_u32 s60, s60, s13
v_mov_b32 v7, s68
v_mov_b32 v{CV}, {PRG}
s_lshr_b32 s61, s2, 3
s_lshl_b32 s61, s61, 2
v_mov_b32 v{CV+3}, s61
s_add_u32 s76, s77, {PLN - XID}
s_waitcnt lgkmcnt(0)""")
    ldsarrive(C2, 8)
    e("s_mov_b64 exec, -1\ns_cmp_ge_u32 s2, 208\ns_cbranch_scc1 L_aq")
    for i in range(9):
        for hf in range(2):
            mfma(AC + 4 * hf, WF + 4 * (9 * hf + i), XN + 4 * i, i == 0)
    for r in range(4):
        e(f"v_add_f32_dpp v{AC+r}, v{AC+4+r}, v{AC+r} row_ror:8 row_mask:0xf bank_mask:0xf")
    e(f"""; publish 8 x 16 values as (bf16 << 16 | tag)
v_cvt_pk_bf16_f32 v8, v{AC}, v{AC+1}
v_cvt_pk_bf16_f32 v9, v{AC+2}, v{AC+3}
ds_bpermute_b32 v8, v15, v8
ds_bpermute_b32 v9, v15, v9
s_waitcnt lgkmcnt(0)
v_lshl_or_b32 v16, v8, 16, s15
v_and_or_b32 v17, v8, v7, s15
v_lshl_or_b32 v18, v9, 16, s15
v_and_or_b32 v19, v9, v7, s15
s_waitcnt vmcnt(0)
s_mov_b32 exec_hi, 0""")
    dual("buffer_store_dwordx4 v[16:19], v2, s[56:59], s60 offen POL", 7)
    race = """s_mov_b64 s[60:61], 0
LOADS
s_waitcnt lgkmcnt(1)
s_add_u32 s62, s62, s60
s_sub_u32 s62, s62, s61
s_waitcnt lgkmcnt(0)"""
    la, lb = f"s_load_dword s60, s[38:39], {PRB} glc", f"s_load_dword s61, s[38:39], {PRB + 0x2000} glc"
    e(f"""s_mov_b32 exec_hi, -1
s_lshl_b32 s60, s4, 8
s_add_u32 s60, s60, s2
s_cmp_lg_u32 s60, {256 + 144}
s_cbranch_scc1 L_aq
v_lshlrev_b32 v8, 13, v0
v_mov_b32 v9, 1
s_mov_b32 s60, {PRB}
s_mov_b64 exec, 3
buffer_store_dword v9, v8, s[56:59], s60 offen sc1
s_mov_b64 exec, -1
s_mov_b32 s62, 0
s_mov_b32 s70, {trials - 1}
s_waitcnt vmcnt(0)
L_race:""")
    e(race.replace("LOADS", la + "\n" + lb))
    e(race.replace("LOADS", lb + "\n" + la))
    e(f"""s_sub_u32 s70, s70, 1
s_cbranch_scc0 L_race
s_cmp_lt_i32 s62, 0
s_cselect_b32 s60, 0x10000, 0
s_or_b32 s60, s60, s15
v_mov_b32 v8, s60
v_mov_b32 v9, s14
s_mov_b64 exec, 1
buffer_store_dwordx2 v[8:9], v2, s[56:59], 0 offen offset:{PAR} sc1
s_mov_b64 exec, -1
L_aq:""")
    control(T1)
    ldsspin(CV, T1, sleep=8, four=True)
    e(f"""; wave 3 gathers q for the stream waves
s_cmp_lg_u32 s4, 3
s_cbranch_scc1 L_a3
s_lshr_b32 s60, s9, 1
s_lshl_b32 s60, s60, 6
s_lshl_b32 s61, s8, 13
s_add_u32 s60, s60, s61
s_add_u32 s60, s60, {PBUF}
v_lshrrev_b32 v6, 2, v0
v_lshlrev_b32 v6, 9, v6
v_and_b32 v7, 3, v0
v_lshl_add_u32 v6, v7, 4, v6
buffer_load_dword v24, v1, s[56:59], s77 offen sc1""")
    poll("buffer_load_dwordx4 v[20:23], v6, s[56:59], s60 offen sc1 nt", tagcmp([20, 21, 22, 23], 7), 4)
    xidcheck(24)
    CEND = 136
    e(f"""v_perm_b32 v8, v21, v20, s71
v_perm_b32 v9, v23, v22, s71
v_lshlrev_b32 v6, 3, v0
v_add_u32 v6, {QS}, v6
ds_write_b64 v6, v[8:9]
v_mov_b32 v6, {QF}
v_mov_b32 v7, s7
s_waitcnt lgkmcnt(0)
ds_write_b32 v6, v7
L_a3:
v_mul_u32_u24 v4, {RING - 1024}, v10
v_add_u32 v4, v4, v3
v_mov_b32 v12, 0xffffff00
v_bfe_u32 v3, v0, 4, 1
v_lshlrev_b32 v3, 13, v3
v_lshrrev_b32 v8, 5, v0
v_lshl_add_u32 v3, v8, 15, v3
v_lshl_add_u32 v3, v14, 4, v3
s_and_b32 s64, s4, 1
s_lshl_b32 s65, s64, 12
s_lshr_b32 s61, s4, 1
s_lshl_b32 s61, s61, 14
s_add_u32 s65, s65, s61
s_lshl_b32 s61, s8, 7
s_add_u32 s65, s65, s61
s_add_u32 s65, s65, {PART}
s_cmp_lt_u32 s2, 144
s_cbranch_scc1 L_aO
s_cmp_ge_u32 s2, 208
s_cbranch_scc1 L_aD""")
    control(CEND)
    e(f"""s_branch L_fin
L_aD:""")
    control(TD)
    ldsspin(CV, TD, sleep=8, four=True)
    e(f"""s_mul_i32 s60, s11, 9216
s_mul_i32 s61, s4, 2304
s_add_u32 s60, s60, s61
s_add_u32 s60, s60, {PBUF + 131072}
s_add_u32 s61, s60, {288 * 512}
s_mov_b32 s72, -1
s_mov_b32 s73, 0xffff
s_mov_b64 exec, s[72:73]""")
    poll("\n".join([f"buffer_load_dwordx4 v[{G+4*k}:{G+4*k+3}], v2, s[56:59], s60 offen offset:{768*k} sc1 nt" for k in range(3)] +
                   [f"buffer_load_dwordx4 v[{U+4*k}:{U+4*k+3}], v2, s[56:59], s61 offen offset:{768*k} sc1 nt" for k in range(3)]),
         tagcmp(list(range(G, G + 24)), 8), 8, restore="s[72:73]")
    c0 = -2 * LOG2E * 0.7978845608028654
    e(f"; gelu_tanh(g) = g / (1 + exp(-2 * sqrt(2/pi) * (g + 0.044715 g^3)))\nv_mov_b32 v32, {f32(c0)}\nv_mov_b32 v33, {f32(c0 * 0.044715)}\ns_mul_i32 s60, s4, 144")
    for k in range(6):
        e(f"""v_and_b32 v34, s68, v{G+2*k}
v_and_b32 v35, s68, v{G+2*k+1}
v_mul_f32 v36, v34, v34
v_mul_f32 v37, v35, v35
v_fma_f32 v36, v36, v33, v32
v_fma_f32 v37, v37, v33, v32
v_mul_f32 v36, v36, v34
v_mul_f32 v37, v37, v35
v_exp_f32 v36, v36
v_exp_f32 v37, v37
v_and_b32 v38, s68, v{U+2*k}
v_add_f32 v36, 1.0, v36
v_add_f32 v37, 1.0, v37
v_rcp_f32 v36, v36
v_rcp_f32 v37, v37
v_and_b32 v39, s68, v{U+2*k+1}
v_mul_f32 v34, v34, v36
v_mul_f32 v35, v35, v37
v_cvt_pk_bf16_f32 v35, v34, v35
v_lshlrev_b32 v34, 16, v35
v_and_b32 v35, s68, v35
v_mul_f32 v34, v34, v38
v_mul_f32 v35, v35, v39
v_cvt_pk_bf16_f32 v{40+k}, v34, v35""")
    for k in range(3):
        e(f"""v_add_u32 v34, s60, v0
v_bfe_u32 v35, v34, 2, 3
v_mul_u32_u24 v35, 576, v35
v_and_b32 v36, 3, v34
v_lshl_add_u32 v35, v36, 3, v35
v_and_b32 v34, 0xffe0, v34
v_add_u32 v35, v35, v34
v_add_u32 v35, {HS}, v35
ds_write_b64 v35, v[{40+2*k}:{41+2*k}]
s_add_u32 s60, s60, 48""")
    e("s_waitcnt lgkmcnt(0)")
    ldsarrive(CNT, 8)
    ldsspin(8, 4)
    e(f"v_mul_u32_u24 v5, 576, v14\nv_lshl_add_u32 v5, v10, 4, v5\nv_add_u32 v5, {HS}, v5")
    for i in range(9):
        e(f"ds_read_b128 v[{XN+4*i}:{XN+4*i+3}], v5 offset:{64*i}")
    e(f"""s_mul_i32 s60, s12, {3*65536}
s_add_u32 s60, s60, s65
s_add_u32 s60, s60, 2048
s_add_u32 s61, s60, 65536
s_add_u32 s62, s60, 131072
s_waitcnt lgkmcnt(0)""")
    for i in range(6):
        for sub in range(3):
            mfma(AC + 4 * sub, WF + 4 * (6 * sub + i), XN + 4 * i, i == 0)
    stamp(4)
    control(CEND)
    getside()
    e(f"; last 96 rows arrive with the late tile\ns_barrier\nds_read_b32 v{CV+4}, v{CV} offset:{SIDE - PRG}\ns_waitcnt lgkmcnt(0)\nv_xor_b32 v3, v3, v{CV+4}\ns_barrier")
    for j in range(9):
        trread(WF + 4 * j, 4, j * 1024)
    for j in range(9):
        if j % 3 == 0:
            e(f"s_waitcnt lgkmcnt({12 - 2 * j})")
        mfma(AC + 4 * (j % 3), WF + 4 * j, XN + 4 * (6 + j // 3), False)

    def publish(n, src, soffs):
        e("; partial outputs: f32 with the 8-bit tag in the low mantissa byte, one 128 B line = 8 batches x 4 columns")
        e("s_mov_b32 exec_lo, 0x00ff00ff\ns_mov_b32 exec_hi, 0x00ff00ff")
        for k in range(n):
            for r in range(4):
                e(f"v_and_or_b32 v{src+4*k+r}, v{src+4*k+r}, v12, s6")
            e(f"buffer_store_dwordx4 v[{src+4*k}:{src+4*k+3}], v3, s[56:59], s{soffs[k]} offen sc1")
        e("s_mov_b64 exec, -1")

    publish(3, AC, (60, 61, 62))
    stamp(7)
    e(f"""s_branch L_fin
L_aO:
s_lshl_b32 s61, s9, 16
s_add_u32 s65, s65, s61
v_mul_u32_u24 v6, {OSL}, v10
v_lshl_add_u32 v5, v11, 4, v6
s_lshl_b32 s62, s8, 2
s_add_u32 s62, s62, s4
s_mul_i32 s62, s62, {4*OSL}
s_add_u32 s62, s62, {OBUF}
s_mul_i32 s61, s4, {4*GST}
s_add_u32 s61, s61, {GB}
v_mul_u32_u24 v48, {GST}, v10
v_lshl_add_u32 v48, v11, 4, v48
v_add_u32 v48, s61, v48
s_lshl_b32 s61, s4, 5
s_add_u32 s61, s61, {LB}
v_lshl_add_u32 v49, v10, 3, s61
v_mul_u32_u24 v46, {GST}, v11
v_lshl_add_u32 v46, v10, 4, v46
v_add_u32 v46, {GB}, v46
v_lshlrev_b32 v47, 3, v11
v_add_u32 v47, {LB}, v47
s_andn2_b32 s74, s2, 6
s_and_b32 s61, s2, 2
s_lshl_b32 s61, s61, 1
s_or_b32 s74, s74, s61
s_lshl_b32 s74, s74, 12
s_lshl_b32 s61, s4, 5
s_add_u32 s74, s74, s61
s_add_u32 s74, s74, {PART}
v_lshrrev_b32 v8, 1, v0
v_lshlrev_b32 v7, 7, v8
v_and_b32 v8, 1, v0
v_lshl_add_u32 v7, v8, 4, v7
s_and_b32 s61, s2, 4
s_lshl_b32 s61, s61, 11
v_add_u32 v7, s61, v7
v_mov_b32 v26, 0xff
s_mul_i32 s75, s4, 2304
s_lshl_b32 s61, s9, 7
s_add_u32 s75, s75, s61
s_and_b32 s61, s8, 3
s_lshl_b32 s61, s61, 5
s_add_u32 s75, s75, s61
s_lshr_b32 s61, s8, 2
s_lshl_b32 s61, s61, 3
s_add_u32 s75, s75, s61
v_and_b32 v9, 1, v10
v_mul_u32_u24 v13, 1152, v8
v_lshl_add_u32 v13, v9, 1, v13
v_bfe_u32 v9, v0, 3, 1
v_lshl_add_u32 v13, v9, 2, v13
buffer_load_ushort v50, v13, s[40:43], s75 offen
s_lshr_b32 s61, s9, 1
s_and_b32 s60, s9, 1
s_lshl_b32 s60, s60, 3
s_add_u32 s61, s61, s60
s_lshl_b32 s60, s4, 2
s_sub_u32 s61, s61, s60
v_cmp_ne_u32 s[72:73], s61, v10""")
    srd(48, 34, 9216)
    control(CEND)
    getside()
    e("s_waitcnt vmcnt(0)\nv_lshlrev_b32 v50, 16, v50\ns_mov_b64 exec, s[72:73]\ns_barrier")
    stamp(5)

    def wofrags(back):
        e(f"s_mov_b64 exec, -1\nds_read_b32 v{CV+4}, v{CV} offset:{SIDE - PRG}\ns_barrier")
        stamp(4)
        for ks in range(8):
            trread(OF + 4 * ks, 4, ks * 1024)
        if back:
            e(f"s_mov_b64 exec, {back}")

    oloads = """buffer_load_dwordx4 v[28:31], v5, s[56:59], s62 offen sc1
buffer_load_dwordx4 v[32:35], v5, s[56:59], s62 offen offset:256 sc1
buffer_load_dwordx2 v[36:37], v6, s[56:59], s62 offen offset:512 sc1"""
    owrite = "ds_write_b128 v48, v[28:31]\nds_write_b128 v48, v[32:35] offset:256\nds_write_b64 v49, v[36:37]"
    ocmp = sentcmp(range(28, 38), 38)
    e(oloads + "\ns_waitcnt vmcnt(0)\n" + ocmp + "\ns_cbranch_vccnz L_og1")
    e(owrite)
    wofrags(None)
    e("s_branch L_og2\nL_og1:\ns_mov_b64 exec, vcc")
    poll(oloads, ocmp, 0, first=lambda: wofrags("vcc"), restore="s[72:73]")
    e(owrite + "\ns_mov_b64 exec, -1\nL_og2:")
    stamp(6)
    e("s_waitcnt lgkmcnt(0)\ns_barrier\nds_read_b64 v[36:37], v47")
    order = [0, 4, 1, 5, 2, 6, 3, 7]
    for ks in order:
        e(f"ds_read_b128 v[{WF+4*ks}:{WF+4*ks+3}], v46 offset:{64*ks}")
    e("""s_waitcnt lgkmcnt(8)
v_sub_f32_dpp v38, v36, v36 row_ror:8 row_mask:0xf bank_mask:0xf
v_sub_f32_dpp v39, v37, v37 row_ror:8 row_mask:0xf bank_mask:0xf""")
    fill = ["v_exp_f32 v38, v38", "v_exp_f32 v39, v39", "v_add_f32 v38, 1.0, v38", "v_add_f32 v39, 1.0, v39", "v_rcp_f32 v38, v38", "v_rcp_f32 v39, v39", f"v_xor_b32 v3, v3, v{CV+4}", f"v_xor_b32 v7, v7, v{CV+4}"]
    for i, ks in enumerate(order):
        e(f"s_waitcnt lgkmcnt({7 - i})")
        mfma(AC + 4 * (ks // 4), OF + 4 * ks, WF + 4 * ks, ks % 4 == 0)
        if i < len(fill):
            e(fill[i])
    for r in range(4):
        e(f"v_mul_f32 v{AC+r}, v{AC+r}, v38")
    for r in range(4):
        e(f"v_fmac_f32 v{AC+r}, v{AC+4+r}, v39")
    for r in range(4):
        e(f"v_add_f32_dpp v{AC+r}, v{AC+r}, v{AC+r} row_ror:8 row_mask:0xf bank_mask:0xf")
    publish(1, AC, (65,))
    stamp(3)
    e("; final sum of 8 outputs: lanes 0-31 hold 16 attention partials, lanes 32-63 hold 16 FFN partials\ns_waitcnt vmcnt(0)")
    chk = "\n".join(f"v_xor_b32 v{16+i}, s6, v{16+i}" for i in range(4)) + "\nv_or3_b32 v24, v16, v17, v18\nv_bitop3_b32 v24, v24, v26, v19 bitop3:0xc8\nv_cmp_ne_u32 vcc, 0, v24"
    poll("buffer_load_dwordx4 v[16:19], v7, s[56:59], s74 offen sc1", chk, 0, quad=True)
    e("""v_permlane16_swap_b32 v16, v17
v_permlane16_swap_b32 v18, v19
v_add_f32 v17, v16, v17
v_add_f32 v18, v18, v19
v_add_f32_dpp v16, v17, v17 row_ror:8 row_mask:0xf bank_mask:0x3
v_add_f32_dpp v16, v18, v18 row_ror:8 row_mask:0xf bank_mask:0xc
v_add_f32_dpp v16, v16, v16 row_shl:4 row_mask:0xf bank_mask:0x5
v_add_f32_dpp v16, v16, v16 quad_perm:[2,3,0,1] row_mask:0xf bank_mask:0xf""")
    rnd(16, 16)
    e("v_add_f32 v17, v16, v50")
    rnd(17, 17)
    e("""v_permlane32_swap_b32 v16, v18
v_add_f32 v17, v17, v18
v_cvt_pk_bf16_f32 v17, v17, v17
s_mov_b32 exec_lo, 0x03030303
s_mov_b32 exec_hi, 0
buffer_store_short v17, v13, s[48:51], s75 offen
s_mov_b64 exec, 1
s_add_u32 s60, s2, s4
s_cmp_lg_u32 s60, 0
s_cbranch_scc1 L_o3
v_mov_b32 v19, s14
buffer_store_dword v19, v2, s[56:59], 0 offen
L_o3:""")
    stamp(7)
    e("L_fin:")
    if diag:
        e("s_mov_b64 exec, -1\ns_cmp_lt_u32 s3, 4\ns_cbranch_scc1 L_dg\ns_sub_u32 s60, s2, 144\ns_cmp_lt_u32 s60, 64\ns_cbranch_scc1 L_end\nL_dg:")
        e("s_waitcnt vmcnt(0)\ns_memrealtime s[76:77]\ns_waitcnt lgkmcnt(0)\ns_getreg_b32 s77, hwreg(HW_REG_HW_ID)")
        for i in range(8):
            e(f"v_mov_b32 v{16+i}, s{80+2*i}")
        e(f"v_mov_b32 v24, s76\nv_mov_b32 v25, s77\nv_mov_b32 v1, 0\ns_lshl_b32 s60, s2, 3\ns_add_u32 s60, s60, s3\ns_lshl_b32 s60, s60, 6\ns_add_u32 s60, s60, {STAMP}")
        e("s_mov_b64 exec, 1\nbuffer_store_dwordx4 v[16:19], v1, s[56:59], s60 offen\nbuffer_store_dwordx4 v[20:23], v1, s[56:59], s60 offen offset:16\nbuffer_store_dwordx2 v[24:25], v1, s[56:59], s60 offen offset:32")
    e("L_end:\ns_endpgm")
    e(f""".section .rodata,"a"
.p2align 6
.amdhsa_kernel {KN}
.amdhsa_next_free_vgpr 256
.amdhsa_next_free_sgpr 102
.amdhsa_accum_offset 256
.amdhsa_group_segment_fixed_size 0
.amdhsa_kernarg_size 96
.amdhsa_user_sgpr_count 2
.amdhsa_user_sgpr_kernarg_segment_ptr 1
.amdhsa_system_sgpr_workgroup_id_x 1
.amdhsa_float_denorm_mode_32 3
.end_amdhsa_kernel""")
    return top + e.text()


def summary(T, cfg):
    import numpy as np
    S = T[:, :4]; A = T[:144, 4:]; D = T[208:, 4:]
    wd = S[:, :, 4].max(1); m = wd.max()
    return dict(startmax=S[:, :, 0].max(), B1med=float(np.median(S[:, :, 1])), B1max=S[:, :, 1].max(), B2max=S[:, :, 2].max(), qwait=(S[:, :, 7] - S[:, :, 6]).max(),
                xcdspread=max(wd[i::8].mean() for i in range(8)) - wd.mean(), meandone=wd.mean(), maxdone=m, opub=S[:, 0, 3].max() - m, t2=S[:, :, 5].max() - m,
                dpub=D[:, :, 7].max() - m, ogath=A[:, :, 6].max() - m, ppub=A[:, :, 3].max() - m, out=A[:, :, 7].max() - m, end=A[:, :, 8].max())


if __name__ == "__main__":
    kw = eval("dict(" + (sys.argv[2] if len(sys.argv) > 2 else "") + ")")
    open(sys.argv[1], "w").write(gen(**kw))
```

```python
import sys, struct
sys.path.insert(0, "dev")
from asmlib import Asm

KN = "parallel_sum__sliding_block_cached__geglu_ffn__decode_kernel"
REF = "parallel_sum__sliding_block_cached__geglu_ffn__decode.s.ref"

R = 8
RING = R * 4096
XS = 4 * RING
QS = XS + 9216
HS = QS + 512
ML = HS + 4608
CNT = ML + 64
QF, C1, C2, PRG, DEC, C3 = CNT + 4, CNT + 8, CNT + 12, CNT + 16, CNT + 32, CNT + 36
SIDE = CNT + 40
LB = CNT + 64
RED = LB + 128
GB = RED + 4096
GST = 528
LDS_SZ = GB + 16 * GST
XID, PLN, PBUF, OBUF, PART = 0x400, 0x800, 0x1000, 0x70000, 0xA0000
PAR, PRB = 0x200, 0x6C000
OSL = 640
WS_SZ = PART + 144 * 4096
STAMP = 0x200000
LIMIT = 2000000
LOG2E = 1.4426950408889634

DOC = """;
;
;
"""


def f32(x):
    return "0x%08x" % struct.unpack("<I", struct.pack("<f", x))[0]


def gen(dw=6, dm=5, dt=7, d2=6, boost=3, thr=16, T1=56, TD=64, T2=96, trials=3, qslot=56, fslot=124, diag=0, wmap=0):
    e = Asm()
    uid = [0]
    wsz = WS_SZ if not diag else 0x400000

    def lab(p):
        uid[0] += 1
        return f"L_{p}{uid[0]}"

    def coff(c):
        return ((c & 1) << 14) | ((c >> 1) << 16) | ((c & 1) << 13) | ((c >> 1 & 1) << 15)

    def stamp(i):
        if diag:
            e(f"s_memrealtime s[{80 + 2 * i}:{81 + 2 * i}]")

    def srd(b, lo, size):
        e(f"s_mov_b32 s{b}, s{lo}\ns_mov_b32 s{b+1}, s{lo+1}\ns_mov_b32 s{b+2}, {size}\ns_mov_b32 s{b+3}, 0x20000")

    def rnd(dst, src):
        e(f"v_cvt_pk_bf16_f32 v{dst}, v{src}, v{src}\nv_lshlrev_b32 v{dst}, 16, v{dst}")

    def poll(loads, cmp, sleep, restore="-1", quad=False, first=None):
        L = lab("poll")
        e(f"s_mov_b32 s70, {LIMIT}")
        if first:
            e(loads)
            first()
            e(f"s_branch {L}_w")
        e(f"{L}:")
        e(loads)
        e(f"{L}_w:\ns_waitcnt vmcnt(0)")
        e(cmp)
        e(f"s_cbranch_vccz {L}_d" if quad else f"s_and_b64 exec, exec, vcc\ns_cbranch_scc0 {L}_d")
        e(f"s_sub_u32 s70, s70, 1\ns_cbranch_scc1 {L}_d")
        if quad:
            e("s_wqm_b64 exec, vcc")
        if sleep:
            e(f"s_sleep {sleep}")
        e(f"s_branch {L}\n{L}_d:\ns_mov_b64 exec, {restore}")

    def dual(stores, mode):
        L = lab("st")
        e(f"s_cmp_eq_u32 s{mode}, 2\ns_cbranch_scc0 {L}")
        e(stores.replace("POL", ""))
        e(f"s_branch {L}_d\n{L}:")
        e(stores.replace("POL", "sc1"))
        e(f"{L}_d:")

    def xidcheck(v):
        e(f"v_cmp_ne_u32 vcc, s78, v{v}\ns_cmp_eq_u32 vcc_lo, 0\ns_cselect_b32 s7, 2, 1")

    def ldsarrive(addr, va):
        e(f"s_mov_b64 exec, 1\nv_mov_b32 v{va}, {addr}\nv_mov_b32 v{va+1}, 1\nds_add_u32 v{va}, v{va+1}")

    def ldsspin(va, count, st=60, sleep=2, four=False):
        L = lab("spin")
        e(f"s_mov_b32 s70, {LIMIT*8}\n{L}:")
        if four:
            e(f"ds_read_b128 v[{va+4}:{va+7}], v{va}\ns_waitcnt lgkmcnt(0)\nv_add3_u32 v{va+1}, v{va+4}, v{va+5}, v{va+6}\nv_add_u32 v{va+1}, v{va+1}, v{va+7}")
        else:
            e(f"ds_read_b32 v{va+1}, v{va}\ns_waitcnt lgkmcnt(0)")
        e(f"""v_readfirstlane_b32 s{st}, v{va+1}
s_cmp_ge_u32 s{st}, {count}
s_cbranch_scc1 {L}_d
s_sub_u32 s70, s70, 1
s_cbranch_scc1 {L}_d
s_sleep {sleep}
s_branch {L}
{L}_d:
s_mov_b64 exec, -1""")

    CV = 232

    def control(until):
        L = lab("ctl")
        e(f"""; wave 2: post the stream position, count group members that are ahead, select the queue depth
s_cmp_lg_u32 s4, 2
s_cbranch_scc1 {L}_d
s_mov_b32 s70, {LIMIT}
{L}:
ds_read_b128 v[{CV+4}:{CV+7}], v{CV}
s_waitcnt lgkmcnt(0)
v_add3_u32 v{CV+1}, v{CV+4}, v{CV+5}, v{CV+6}
v_add_u32 v{CV+1}, v{CV+1}, v{CV+7}
v_readfirstlane_b32 s66, v{CV+1}
v_lshl_or_b32 v{CV+1}, v{CV+1}, 16, s15
s_mov_b64 exec, 1
buffer_store_dword v{CV+1}, v{CV+3}, s[56:59], s76 offen
s_mov_b64 exec, -1
s_cmp_ge_u32 s66, {until}
s_cbranch_scc1 {L}_d
buffer_load_dword v{CV+4}, v1, s[56:59], s76 offen sc1
v_add_u32 v{CV+1}, 0x10000, v{CV+1}
s_waitcnt vmcnt(0)
v_sub_u32 v{CV+4}, v{CV+4}, v{CV+1}
v_and_b32 v{CV+4}, 0x8000ffff, v{CV+4}
v_cmp_eq_u32 vcc, 0, v{CV+4}
s_bcnt1_i32_b32 s66, vcc_lo
s_cmp_ge_u32 s66, {thr}
s_cselect_b32 s66, 1, 0
v_mov_b32 v{CV+4}, s66
ds_write_b32 v{CV}, v{CV+4} offset:{DEC - PRG}
s_sub_u32 s70, s70, 1
s_cbranch_scc0 {L}
{L}_d:""")

    PA = 244

    def paddr(dst, scc):
        e(f"""; a partial line = 2 batches x 16 columns; group 2p + h sums rows 2p, 2p + 1 of column half h
s_lshl_b32 s5, s{scc}, 2
s_add_u32 s5, s5, s4
s_cmp_ge_u32 s5, 18
s_cselect_b32 s67, {(18 << 15) - (1 << 12)}, 0
s_lshl_b32 s5, s5, 15
s_sub_u32 s5, s5, s67
v_bfe_u32 v8, v0, 3, 1
v_lshl_add_u32 v{dst}, v8, 14, s5
v_bfe_u32 v8, v0, 4, 1
v_lshl_add_u32 v{dst}, v8, 13, v{dst}
v_lshl_add_u32 v{dst}, v14, 4, v{dst}""")

    def getside():
        L = lab("side")
        e(f"; wave 3 fetches the announced bit for the partial output layout\ns_cmp_lg_u32 s4, 3\ns_cbranch_scc1 {L}")
        ldsspin(CV, T2, st=5, sleep=16, four=True)
        e(f"v_mov_b32 v{CV+2}, 0")
        poll(f"buffer_load_dwordx2 v[{CV+4}:{CV+5}], v{CV+2}, s[56:59], 0 offen offset:{PAR} sc1",
             f"v_xor_b32 v{CV+6}, s15, v{CV+4}\nv_and_b32 v{CV+6}, 0xfffeffff, v{CV+6}\nv_xor_b32 v{CV+5}, s14, v{CV+5}\nv_or_b32 v{CV+6}, v{CV+6}, v{CV+5}\nv_cmp_ne_u32 vcc, 0, v{CV+6}", 16)
        e(f"v_bfe_u32 v{CV+4}, v{CV+4}, 16, 1\nv_lshlrev_b32 v{CV+4}, 13, v{CV+4}\nds_write_b32 v{CV}, v{CV+4} offset:{SIDE - PRG}\ns_waitcnt lgkmcnt(0)\n{L}:")

    def sentcmp(regs, tmp):
        r = list(regs)
        out = []
        cur = r.pop(0)
        while r:
            out.append(f"v_max3_u32 v{tmp}, v{cur}, v{r[0]}, v{r[1]}" if len(r) > 1 else f"v_max_u32 v{tmp}, v{cur}, v{r[0]}")
            r = r[2:]
            cur = tmp
        out.append(f"v_cmp_eq_u32 vcc, -1, v{cur}")
        return "\n".join(out)

    def tagcmp(regs, tmp):
        out = [f"v_xor_b32 v{tmp}, s15, v{regs[0]}"]
        for r in regs[1:]:
            out.append(f"v_bitop3_b32 v{tmp}, v{r}, v{tmp}, s15 bitop3:0xde")
        out.append(f"v_and_b32 v{tmp}, 0xffff, v{tmp}\nv_cmp_ne_u32 vcc, 0, v{tmp}")
        return "\n".join(out)

    def allred_g(v, t, op):
        e(f"v_mov_b32 v{t}, v{v}\nv_permlane16_swap_b32 v{v}, v{t}\n{op} v{v}, v{v}, v{t}")
        e(f"v_mov_b32 v{t}, v{v}\nv_permlane32_swap_b32 v{v}, v{t}\n{op} v{v}, v{v}, v{t}")

    def mfma(D, A, B, first):
        e(f"v_mfma_f32_16x16x32_bf16 v[{D}:{D+3}], v[{A}:{A+3}], v[{B}:{B+3}], {'0' if first else f'v[{D}:{D+3}]'}")

    def trread(dst, addr, off):
        for hf in range(2):
            e(f"ds_read_b64_tr_b16 v[{dst+2*hf}:{dst+2*hf+1}], v{addr} offset:{off + hf * 512}")

    hdr = [l.rstrip("\n") for l in open(REF) if l.startswith(";") and "@launch" not in l and "Override" not in l and "grid=ceil" not in l]
    top = "\n".join(hdr) + f"\n; @launch grid=(256,1,1) block=(512,1,1) lds={LDS_SZ}\n" + DOC
    e(f""".amdgcn_target "amdgcn-amd-amdhsa--gfx950"
.text
.globl {KN}
.p2align 8
.type {KN},@function
{KN}:
s_cmp_ge_u32 s2, 256
s_cbranch_scc1 L_end
s_load_dwordx16 s[16:31], s[0:1], 0
s_load_dwordx8 s[32:39], s[0:1], 64""")
    if wmap:
        e("s_lshr_b32 s5, s2, 4\ns_add_u32 s6, s2, s5\ns_and_b32 s6, s6, 15\ns_andn2_b32 s2, s2, 15\ns_or_b32 s2, s2, s6")
    stamp(0)
    e("""v_lshrrev_b32 v1, 6, v0
v_and_b32 v0, 63, v0
v_readfirstlane_b32 s3, v1
s_xor_b32 s3, s3, 4
s_and_b32 s8, s2, 15
s_lshr_b32 s9, s2, 4
s_sub_u32 s12, s9, 13
s_lshl_b32 s10, s8, 2
s_add_u32 s10, s10, s9
s_sub_u32 s10, s10, 9
s_and_b32 s5, s2, 7
s_bfe_u32 s6, s2, 0x10003
s_lshl_b32 s11, s5, 1
s_add_u32 s11, s11, s6
s_mul_i32 s79, s5, 9
s_add_u32 s79, s79, s9
s_cmp_ge_u32 s3, 4
s_cbranch_scc1 L_aux""")

    VO, KD, KR, KW, VW1, VW2, Q, KF, AB, ACC, T, SD, SEL, SP = 1, 2, 6, 10, 14, 15, 16, 32, 48, 64, 68, 76, 80, 88
    MRUN, NEGM, LS, VT2, VST, VPR, VDE, VDA, VV = 120, 121, 122, 123, 124, 125, 126, 127, 128
    e(f"""; ===== stream waves (s3 = 0..3) =====
v_lshrrev_b32 v1, 3, v0
v_and_b32 v2, 7, v0
v_and_b32 v3, 2, v1
s_and_b32 s5, s3, 1
s_lshl_b32 s5, s5, 2
v_or_b32 v3, s5, v3
v_xor_b32 v2, v2, v3
v_lshlrev_b32 v2, 4, v2
s_lshl_b32 m0, s3, 10
s_mov_b32 s43, 0x20000
s_lshl_b32 s60, s79, 7
s_lshl_b32 s5, s10, 7
s_movk_i32 s7, 9216
s_mov_b32 s42, {576*9216}
s_cmp_ge_u32 s2, 144
s_cselect_b32 s60, s5, s60
s_cselect_b32 s7, 8192, s7
s_cselect_b32 s42, {576*8192}, s42
s_mul_i32 s5, s11, {288*1152}
s_mul_i32 s6, s12, 384
s_add_u32 s5, s5, s6
s_lshl_b32 s62, s7, 5
s_movk_i32 s64, 4096
s_cmp_ge_u32 s2, 208
s_cselect_b32 s60, s5, s60
s_cselect_b32 s7, 1152, s7
s_cselect_b32 s42, {4608*1152}, s42
s_cselect_b32 s63, {36864-256}, s62
s_cselect_b32 s62, 128, s62
s_cselect_b32 s65, {4096-49152}, s64
s_cselect_b32 s64, 24576, s64
s_mul_i32 s5, s3, s7
s_lshl_b32 s5, s5, 3
s_add_u32 s72, s60, s5
v_mad_u32_u24 v{VW1}, v1, s7, v2
s_bitcmp1_b32 s2, 3
s_waitcnt lgkmcnt(0)
s_cselect_b64 s[40:41], s[30:31], s[28:29]
s_cmp_ge_u32 s2, 144
s_cselect_b64 s[40:41], s[22:23], s[40:41]
s_cmp_ge_u32 s2, 208
s_cselect_b64 s[40:41], s[32:33], s[40:41]""")

    def vsetup():
        e("; s60 = this wave's base inside the K / V window, v2-v5 swizzled K source offsets")
        srd(48, 18, 0x10000000)
        e(f"""s_lshr_b32 s60, s9, 1
s_lshl_b32 s60, s60, 4
s_add_u32 s60, s60, s8
s_lshl_b32 s60, s60, 21
s_and_b32 s61, s9, 1
s_lshl_b32 s61, s61, 15
s_add_u32 s60, s60, s61
s_lshl_b32 s61, s3, 12
s_add_u32 s60, s60, s61
s_add_u32 s60, s60, {6144*256}
v_mul_u32_u24 v{VT2}, 1152, v1
v_add_u32 v{VT2}, v{VT2}, v2
v_lshlrev_b32 v{VO}, 4, v0""")
        e(f"v_lshrrev_b32 v{T}, 4, v0\nv_and_b32 v{T+1}, 15, v0\nv_lshlrev_b32 v{T+2}, 2, v{T}\nv_xor_b32 v{T+2}, v{T+2}, v{T+1}")
        e(f"v_lshlrev_b32 v{T+2}, 4, v{T+2}\nv_lshl_add_u32 v{KD}, v{T}, 8, v{T+2}")
        for r in range(1, 4):
            e(f"v_xor_b32 v{KD+r}, {16*r}, v{KD}")

    work = {}

    def at(slot, fn):
        work.setdefault(slot, []).append(fn)

    def setup():
        e("; late tile descriptor, K fragment addresses, byte selectors that build the diagonal P operand")
        srd(52, 20, 0x10000000)
        srd(56, 38, wsz)
        e(f"""s_mul_i32 s67, s3, {RING}
s_mul_i32 s5, s8, {256*1152}
s_mul_i32 s6, s3, {8*1152}
s_add_u32 s5, s5, s6
s_lshl_b32 s6, s9, 7
s_add_u32 s5, s5, s6
s_mov_b32 s46, {4096*1152}
s_mov_b32 s47, 0x20000
s_cmp_ge_u32 s2, 208
s_cselect_b32 s72, s72, s5
s_cselect_b32 s73, s62, {32*1152}
s_cselect_b32 s74, s63, {32*1152}
s_cselect_b64 s[44:45], s[32:33], s[24:25]
s_cselect_b32 s46, s42, s46""")
        e(f"v_lshrrev_b32 v{T}, 4, v0\nv_and_b32 v{T+1}, 15, v0\nv_add_u32 v{KW}, s67, v{VO}")
        e(f"v_and_b32 v{T+2}, 3, v0\nv_lshlrev_b32 v{T+2}, 2, v{T+2}\nv_lshrrev_b32 v{T+3}, 2, v{T+1}\nv_or_b32 v{T+2}, v{T+2}, v{T+3}")
        e(f"v_lshl_add_u32 v{T+2}, v{T+2}, 8, s67\nv_xor_b32 v{T+3}, v{T}, v{T+1}\nv_lshl_add_u32 v{KR}, v{T+3}, 4, v{T+2}")
        for t in range(1, 4):
            e(f"v_xor_b32 v{KR+t}, {64*t}, v{KR}")
        e(f"""v_and_b32 v{T+2}, 1, v0
v_cmp_eq_u32 vcc, 1, v{T+2}
v_mov_b32 v{T+3}, 0x0c0c0100
v_mov_b32 v{T+4}, 0x01000c0c
v_cndmask_b32 v{T+3}, v{T+3}, v{T+4}, vcc
v_mov_b32 v{T+4}, 0x0c0c0302
v_mov_b32 v{T+5}, 0x03020c0c
v_cndmask_b32 v{T+4}, v{T+4}, v{T+5}, vcc
v_mov_b32 v{T+5}, 0x0c0c0c0c
v_bfe_u32 v{T+2}, v0, 1, 2""")
        for k in range(4):
            e(f"v_cmp_eq_u32 vcc, {k}, v{T+2}\nv_cndmask_b32 v{SEL+k}, v{T+5}, v{T+3}, vcc\nv_cndmask_b32 v{SEL+4+k}, v{T+5}, v{T+4}, vcc")
        e(f"v_lshrrev_b32 v{T+2}, 3, v{T+1}\nv_lshlrev_b32 v{T+2}, 8, v{T+2}\nv_lshl_add_u32 v{T+2}, v{T}, 4, v{T+2}\nv_add_u32 v{VW1}, {QS}, v{T+2}")
        e(f"s_mov_b32 s68, 0xffff0000\ns_mov_b32 s69, {f32(128 ** -0.5)}\ns_mov_b32 s71, {f32(LOG2E)}")
        e(f"v_mov_b32 v{LS}, 0\nv_mov_b32 v{MRUN}, 0xff800000")
        for r in range(4):
            e(f"v_mov_b32 v{ACC+r}, 0")

    def kread(c):
        def f():
            off = 0 if c < 8 else (c - 8) * 4096
            if c < 8:
                for r in range(4):
                    b = VV + 16 * c + 4 * r
                    e(f"ds_write_b128 v{KW}, v[{b}:{b+3}] offset:{1024 * r}")
            for t in range(4):
                e(f"ds_read_b128 v[{KF+4*t}:{KF+4*t+3}], v{KR+t} offset:{off}")
        return f

    def kmma(c):
        def f():
            e(f"; K chunk {c}: scores\ns_waitcnt lgkmcnt(0)")
            for t in range(4):
                mfma(SD, KF + 4 * t, Q + 4 * t, t == 0)
        return f

    def unpack(dst, a, b):
        e(f"v_lshlrev_b32 v{dst}, 16, v{a}\nv_and_b32 v{dst+1}, s68, v{a}\nv_lshlrev_b32 v{dst+2}, 16, v{b}\nv_and_b32 v{dst+3}, s68, v{b}")

    def kround(c):
        def f():
            S = SP + 2 * c
            e(f"v_cvt_pk_bf16_f32 v{T}, v{SD}, v{SD+1}\nv_cvt_pk_bf16_f32 v{T+1}, v{SD+2}, v{SD+3}")
            unpack(T + 2, T, T + 1)
            for r in range(4):
                e(f"v_mul_f32 v{T+2+r}, s69, v{T+2+r}")
            e(f"v_cvt_pk_bf16_f32 v{S}, v{T+2}, v{T+3}\nv_cvt_pk_bf16_f32 v{S+1}, v{T+4}, v{T+5}")
            unpack(T + 2, S, S + 1)
            e(f"v_max3_f32 v{MRUN}, v{MRUN}, v{T+2}, v{T+3}\nv_max3_f32 v{MRUN}, v{MRUN}, v{T+4}, v{T+5}")
        return f

    def wmax():
        e("; max over this wave's 256 keys")
        allred_g(MRUN, T, "v_max_f32")
        e(f"v_mul_f32 v{NEGM}, s71, v{MRUN}\nv_sub_f32 v{NEGM}, 0, v{NEGM}")

    def pexp(c):
        def f():
            S = SP + 2 * c
            unpack(T + 2, S, S + 1)
            for r in range(4):
                e(f"v_fma_f32 v{T+2+r}, v{T+2+r}, s71, v{NEGM}")
            for r in range(4):
                e(f"v_exp_f32 v{T+2+r}, v{T+2+r}")
            e(f"v_add_f32 v{T}, v{T+2}, v{T+3}\nv_add_f32 v{T+1}, v{T+4}, v{T+5}\nv_add_f32 v{LS}, v{LS}, v{T}\nv_add_f32 v{LS}, v{LS}, v{T+1}")
            e(f"v_cvt_pk_bf16_f32 v{S}, v{T+2}, v{T+3}\nv_cvt_pk_bf16_f32 v{S+1}, v{T+4}, v{T+5}")
        return f

    def aprep(c, r):
        def f():
            S = SP + 2 * c + (r >> 1)
            for k in range(4):
                e(f"v_perm_b32 v{AB+4*r+k}, v{S}, v{S}, v{SEL + 4 * (r & 1) + k}")
        return f

    def pv(c, r):
        def f():
            mfma(ACC, AB + 4 * r, VV + 16 * (c % 8) + 4 * r, False)
        return f

    def mlwrite():
        e("; publish this wave's max and sum in LDS, prepare the combine addresses")
        allred_g(LS, T, "v_add_f32")
        e(f"v_sub_f32 v{T+2}, 0, v{NEGM}\nv_mov_b32 v{T+3}, v{LS}")
        e(f"v_bfe_u32 v{T}, v0, 3, 1\nv_lshlrev_b32 v{T}, 5, v{T}\ns_lshl_b32 s63, s3, 3\ns_add_u32 s63, s63, {ML}\nv_add_u32 v{T}, s63, v{T}")
        e(f"ds_write_b64 v{T}, v[{T+2}:{T+3}]")
        ldsarrive(C3, T)
        e(f"""s_mov_b64 exec, -1
s_lshl_b32 s63, s3, 10
s_add_u32 s63, s63, {RED}
v_add_u32 v{VW2}, s63, v{VO}
v_lshrrev_b32 v2, 5, v0
v_lshlrev_b32 v3, 5, v2
v_add_u32 v3, {ML}, v3
s_lshl_b32 s63, s3, 3
v_add_u32 v9, s63, v3
v_lshlrev_b32 v4, 3, v0
v_lshlrev_b32 v5, 2, v2
v_and_b32 v6, 1, v0
v_lshl_add_u32 v6, v2, 1, v6
v_bfe_u32 v7, v0, 1, 4
v_lshl_add_u32 v6, v6, 4, v7
v_lshlrev_b32 v6, 4, v6
v_add_u32 v6, {RED}, v6
s_lshr_b32 s62, s9, 1
s_and_b32 s63, s9, 1
s_lshl_b32 s63, s63, 3
s_add_u32 s62, s62, s63
s_mul_i32 s63, s62, {GST}
s_add_u32 s63, s63, {GB}
v_add_u32 v7, s63, v4
s_lshl_b32 s63, s62, 3
s_add_u32 s63, s63, {LB}
v_add_u32 v8, s63, v5
v_and_b32 v2, 15, v0
v_lshl_add_u32 v5, v2, 3, v5
s_lshl_b32 s63, s8, 4
s_add_u32 s63, s63, s62
s_mul_i32 s63, s63, {OSL}
s_add_u32 s63, s63, {OBUF}""")

    def factors():
        e(f"""; workgroup max and sum: v9 = this wave's normalizing factor, v27 = log2-sum-exp
v_mov_b32 v{T}, {C3}
s_mov_b32 s70, {LIMIT*8}
L_fw:
ds_read_b32 v{T+1}, v{T}
ds_read_b128 v[16:19], v3
ds_read_b128 v[20:23], v3 offset:16
ds_read_b32 v9, v9
s_waitcnt lgkmcnt(0)
v_readfirstlane_b32 s5, v{T+1}
s_cmp_ge_u32 s5, 4
s_cbranch_scc1 L_fd
s_sub_u32 s70, s70, 1
s_cbranch_scc1 L_fd
s_lshl_b32 s5, s3, 3
v_add_u32 v9, s5, v3
s_branch L_fw
L_fd:
v_max3_f32 v24, v16, v18, v20
v_max_f32 v24, v24, v22
v_sub_f32 v16, v16, v24
v_sub_f32 v18, v18, v24
v_sub_f32 v20, v20, v24
v_sub_f32 v22, v22, v24
v_sub_f32 v9, v9, v24
v_exp_f32 v16, v16
v_exp_f32 v18, v18
v_exp_f32 v20, v20
v_exp_f32 v22, v22
v_exp_f32 v9, v9
v_mul_f32 v25, v16, v17
v_fmac_f32 v25, v18, v19
v_fmac_f32 v25, v20, v21
v_fmac_f32 v25, v22, v23
v_rcp_f32 v26, v25
v_log_f32 v27, v25
v_mul_f32 v9, v9, v26
v_add_f32 v27, v27, v24
v_min_u32 v27, -2, v27""")

    def qread():
        stamp(6)
        e(f"; q fragments, s13 = store mode\nv_mov_b32 v{T}, {QF}\ns_mov_b32 s70, {LIMIT*8}\nL_qw:\nds_read_b32 v{T+1}, v{T}")
        for t in range(4):
            e(f"ds_read_b128 v[{Q+4*t}:{Q+4*t+3}], v{VW1} offset:{64*t}")
        e(f"""s_waitcnt lgkmcnt(0)
v_readfirstlane_b32 s13, v{T+1}
s_cmp_lg_u32 s13, 0
s_cbranch_scc1 L_qd
s_sub_u32 s70, s70, 1
s_cbranch_scc1 L_qd
s_sleep 2
s_branch L_qw
L_qd:""")
        stamp(7)

    def dep(n):
        return dt if 56 <= n < 64 else dm if n < 96 else d2

    landed = {}
    for n in range(128 + 64):
        for m in range(min(127, n - dep(n) - (boost if n < 128 else 0)) + 1):
            landed.setdefault(m, n)
    at(qslot, qread)
    n0 = qslot
    for i in range(8):
        for c in (8 + i, i):
            n0 = max(n0, landed[4 * c + 3])
            assert c >= 8 or n0 + 1 < 64 + 4 * c
            at(n0, kread(c))
            at(n0 + 1, kmma(c))
            at(n0 + 2, kround(c))
            n0 += 2
    sM = n0 + 1
    at(sM, wmax)
    for c in range(16):
        at(sM + 1 + c, pexp(c))
    at(sM + 17, mlwrite)
    assert sM + 17 < fslot <= 127
    at(fslot, factors)
    pre = {}
    last = 0
    for n in range(64, 128):
        c, r = (n - 64) // 4, n % 4
        s = max(landed[n], sM + 2 + c, last)
        while len(pre.get(s, [])) >= (2 if s < 128 else 4):
            s += 1
        last = s
        assert n >= 96 or s < n + 32
        pre.setdefault(s, []).append((c, r))
    nslots = max(max(work), last) + 1

    def t2load(j):
        e(f"buffer_load_dwordx4 v{VT2}, s[44:47], s72 offen nt lds")
        if j < 8:
            e(f"s_add_u32 s72, s72, s{74 if j % 3 == 2 else 73}\ns_add_u32 m0, m0, 1024")

    def cwait(depth):
        L = lab("w")
        e(f"s_waitcnt vmcnt({depth+boost-1})\ns_cbranch_vccnz {L}\ns_waitcnt vmcnt({depth-1})\n{L}:")

    def post(stage):
        e(f"v_mov_b32 v{VST}, {stage}\nds_write_b32 v{VPR}, v{VST}\nds_read_b32 v{VDE}, v{VDA}")

    def decide():
        e(f"s_waitcnt lgkmcnt(0)\nv_cmp_ne_u32 vcc, 0, v{VDE}")

    def vload(i, wait):
        if i % 4 == 0:
            e(f"s_xor_b32 s61, s60, {coff(i // 4)}")
        wait()
        V = VV + 4 * (i % 32)
        e(f"buffer_load_dwordx4 v[{V}:{V+3}], v{VO}, s[52:55], s61 offen offset:{(i % 4) * 1024} nt")

    def kload(i, wait):
        if i % 4 == 0:
            e(f"s_xor_b32 s61, s60, {coff(i // 4)}")
            if i >= 32:
                e(f"s_add_u32 m0, s67, {(i // 4 - 8) * 4096}")
        wait()
        if i < 32:
            e(f"buffer_load_dwordx4 v[{VV+4*i}:{VV+4*i+3}], v{KD + i % 4}, s[48:51], s61 offen offset:{(i % 4) * 1024} nt")
        else:
            e(f"buffer_load_dwordx4 v{KD + i % 4}, s[48:51], s61 offen offset:{(i % 4) * 1024} nt lds")

    for p in range(18 + dw):
        if p == dw:
            e(f"s_lshl_b32 s5, s3, 2\ns_add_u32 s5, s5, {PRG}\nv_mov_b32 v{VPR}, s5\nv_mov_b32 v{VDA}, {DEC}\ns_barrier")
        if p > dw and p % 4 == 2:
            post(p // 4)
        if p == 18:
            vsetup()
        if p == 17 + dw:
            e(f"; this wave's part of the weight tile has landed\ns_waitcnt vmcnt({dw-1})")
            stamp(1)
            ldsarrive(C1, T)
            e("s_mov_b64 exec, -1")
        if p >= 18:
            kload(p - 18, lambda: e(f"s_waitcnt vmcnt({dw-1})"))
        else:
            if p >= dw:
                e(f"s_waitcnt vmcnt({dw-1})")
            e(f"buffer_load_dwordx4 v{VW1}, s[40:43], s72 offen nt lds")
            e(f"s_add_u32 s72, s72, s{62 if p % 3 < 2 else 63}\ns_add_u32 m0, m0, s{64 if p % 3 < 2 else 65}")
    e(f"""; tiles whose lines all have address bits [9:7] = 3 arrive late: start those workgroups on the deep queue
s_add_u32 s66, s40, s72
s_bfe_u32 s66, s66, 0x30007
s_cmp_eq_u32 s66, 3
s_cselect_b32 s66, 1, 0
s_cmp_ge_u32 s2, 208
s_cselect_b32 s66, 0, s66
s_waitcnt lgkmcnt(0)
v_mov_b32 v{VDE}, s66
ds_write_b32 v{VDA}, v{VDE}""")
    setup()
    decide()

    t2n = [0]

    def slot(n, t2):
        todo = pre.get(n, [])
        for (c, r) in todo:
            aprep(c, r)()
        if n == 32:
            stamp(2)
            e(f"; the K slots reuse the weight tile's LDS once it has been read\nv_mov_b32 v{T}, {C2}")
            ldsspin(T, 4, st=5)
        if n < 64:
            kload(n, lambda: cwait(dep(n)))
        elif n < 128:
            vload(n - 64, lambda: cwait(dep(n)))
        else:
            if n - d2 <= 127:
                e(f"s_waitcnt vmcnt({127 - (n - d2) + (t2n[0] if t2 else 0)})")
            left = nslots - 1 - n
            if t2 and left > 0:
                for _ in range(-(-(8 - t2n[0]) // left)):
                    t2load(t2n[0])
                    t2n[0] += 1
        for (c, r) in todo:
            pv(c, r)()
        if n < 128 and n % 4 == 1:
            decide()
        if n < 128 and n % 4 == 0:
            post((n + 18) // 4)
        for fn in work.get(n, []):
            fn()

    for n in range(dw, 128):
        slot(n, False)
    e("; drain V; the wo / w_down roles queue their late tile behind it\ns_mov_b32 m0, s67\ns_sub_u32 s5, s2, 144\ns_cmp_lt_u32 s5, 64\ns_cbranch_scc1 L_tq")
    for n in range(128, nslots):
        slot(n, True)
    assert t2n[0] == 8
    e("s_branch L_tj\nL_tq:")
    for n in range(128, nslots):
        slot(n, False)
    e("L_tj:")
    for r in range(4):
        e(f"v_mul_f32 v{ACC+r}, v{ACC+r}, v9")
    e(f"ds_write_b128 v{VW2}, v[{ACC}:{ACC+3}]")
    stamp(4)
    e("s_cmp_lt_u32 s2, 208\ns_cbranch_scc1 L_t9")
    t2load(8)
    e("L_t9:\ns_waitcnt lgkmcnt(0)\ns_barrier\ns_cmp_lg_u32 s3, 0\ns_cbranch_scc1 L_sd")
    for w in range(4):
        e(f"ds_read_b128 v[{28+4*w}:{31+4*w}], v6 offset:{1024*w}")
    for w in range(1, 4):
        e(f"s_waitcnt lgkmcnt({3 - w})")
        for r in range(4):
            e(f"v_add_f32 v{28+r}, v{28+r}, v{28+4*w+r}")
    e("v_cvt_pk_bf16_f32 v28, v28, v29\nv_cvt_pk_bf16_f32 v29, v30, v31\nv_min_u32 v28, -2, v28\nv_min_u32 v29, -2, v29")
    dual(f"""buffer_store_dwordx2 v[28:29], v4, s[56:59], s63 offen POL
s_mov_b32 exec_lo, 0xffff
s_mov_b32 exec_hi, 0xffff
buffer_store_dword v27, v5, s[56:59], s63 offen offset:512 POL""", 13)
    e("ds_write_b32 v8, v27\ns_mov_b64 exec, -1\nds_write_b64 v7, v[28:29]")
    stamp(3)
    e("L_sd:\ns_waitcnt vmcnt(0) lgkmcnt(0)")
    stamp(5)
    e("s_barrier\ns_barrier\ns_branch L_fin")

    XN, WF, OF, AC, G, U = 16, 52, 160, 192, 208, 220
    e(f"""; ===== projection and hand-off waves (s4 = 0..3) =====
L_aux:
s_sub_u32 s4, s3, 4
v_mul_u32_u24 v1, 36, v0
s_mul_i32 s5, s4, 2304
v_lshlrev_b32 v2, 4, v0
v_mov_b32 v8, {CNT}
v_mov_b32 v4, 0
v_mov_b32 v5, 0
v_mov_b32 v6, 0
v_mov_b32 v7, 0
ds_write_b128 v8, v[4:7]
ds_write_b128 v8, v[4:7] offset:16
ds_write_b128 v8, v[4:7] offset:32
s_movk_i32 s42, 9216
s_mov_b32 s43, 0x20000
s_waitcnt lgkmcnt(0)
s_load_dword s14, s[38:39], 0
s_mov_b64 s[40:41], s[16:17]""")
    for k in range(3):
        e(f"buffer_load_dwordx3 v[{16+4*k}:{18+4*k}], v1, s[40:43], s5 offen offset:{12*k}")
    e("s_barrier")
    srd(56, 38, wsz)
    e(f"""s_add_u32 s13, s79, 64
s_bitcmp1_b32 s2, 3
s_cselect_b32 s60, 72, 0
s_add_u32 s13, s13, s60
s_cmp_ge_u32 s2, 144
s_cselect_b32 s13, s10, s13
s_lshl_b32 s13, s13, 11
s_add_u32 s13, s13, {PBUF}
s_getreg_b32 s78, hwreg(HW_REG_XCC_ID, 0, 4)
s_lshl_b32 s78, s78, 16
s_and_b32 s77, s2, 7
s_lshl_b32 s77, s77, 7
s_add_u32 s77, s77, {XID}
s_mov_b32 s68, 0xffff0000
s_mov_b32 s69, {f32(1/576)}
s_add_u32 s5, s5, {XS}
v_add_u32 v1, s5, v1
v_lshrrev_b32 v10, 4, v0
v_and_b32 v11, 15, v0
v_bfe_u32 v8, v0, 2, 2
v_lshl_add_u32 v12, v10, 3, v8
v_lshlrev_b32 v12, 7, v12
v_and_b32 v9, 3, v0
v_lshl_add_u32 v12, v9, 3, v12
v_lshrrev_b32 v13, 1, v8
v_and_b32 v8, 1, v10
v_lshl_or_b32 v13, v8, 1, v13
v_lshl_add_u32 v12, v13, 5, v12
s_lshl_b32 s60, s4, 5
v_xor_b32 v3, s60, v12
v_add_u32 v4, 0x10000, v3
v_and_b32 v14, 7, v0
v_bfe_u32 v15, v0, 2, 3
v_lshl_add_u32 v15, v9, 4, v15
v_lshlrev_b32 v15, 2, v15
v_mul_u32_u24 v5, 1152, v14
v_lshrrev_b32 v8, 3, v11
v_mul_u32_u24 v8, 576, v8
v_lshl_add_u32 v8, v10, 4, v8
v_add_u32 v5, v5, v8
v_add_u32 v5, {XS}, v5
s_mov_b32 s71, 0x07060302
v_and_b32 v57, 31, v0
v_lshlrev_b32 v57, 2, v57
s_waitcnt lgkmcnt(0)
s_add_u32 s14, s14, 1
s_and_b32 s15, s14, 0xffff
s_and_b32 s6, s14, 0xff
s_andn2_b32 s60, s14, 0xf0000
s_or_b32 s78, s78, s60
s_cmp_lg_u32 s4, 0
s_cbranch_scc1 L_a1
s_lshr_b32 s60, s2, 3
s_lshl_b32 s60, s60, 2
s_add_u32 s60, s60, s77
v_mov_b32 v8, s78
s_mov_b64 exec, 1
buffer_store_dword v8, v57, s[56:59], s60 offen
s_mov_b64 exec, -1
s_waitcnt vmcnt(1)
s_branch L_a2
L_a1:
s_waitcnt vmcnt(0)
L_a2:
; LayerNorm of two rows per wave, rounded to bf16 after every step like the reference""")
    raw = [16, 17, 18, 20, 21, 22, 24, 25, 26]

    def red32(v, t):
        for s in (8, 4, 2, 1):
            e(f"v_add_f32_dpp v{v}, v{v}, v{v} row_ror:{s} row_mask:0xf bank_mask:0xf")
        e(f"v_mov_b32 v{t}, v{v}\nv_permlane16_swap_b32 v{v}, v{t}\nv_add_f32 v{v}, v{v}, v{t}")

    for k in range(9):
        e(f"v_lshlrev_b32 v{28+2*k}, 16, v{raw[k]}\nv_and_b32 v{29+2*k}, s68, v{raw[k]}")
    e("v_pk_add_f32 v[46:47], v[28:29], v[30:31]")
    for k in range(2, 9):
        e(f"v_pk_add_f32 v[46:47], v[46:47], v[{28+2*k}:{29+2*k}]")
    e("v_add_f32 v46, v46, v47")
    red32(46, 47)
    e("v_mul_f32 v48, s69, v46\nv_sub_f32 v50, 0, v48\nv_sub_f32 v51, 0, v48")
    for k in range(9):
        e(f"v_pk_add_f32 v[8:9], v[{28+2*k}:{29+2*k}], v[50:51]")
        e("v_pk_mul_f32 v[46:47], v[8:9], v[8:9]" if k == 0 else "v_pk_fma_f32 v[46:47], v[8:9], v[8:9], v[46:47]")
    e("v_add_f32 v46, v46, v47")
    red32(46, 47)
    e("v_mul_f32 v46, s69, v46")
    rnd(46, 46)
    e(f"v_add_f32 v46, {f32(1e-5)}, v46")
    rnd(46, 46)
    e("v_sqrt_f32 v46, v46")
    rnd(46, 46)
    e("v_rcp_f32 v46, v46")
    rnd(50, 50)
    e("v_mov_b32 v51, v50\nv_mov_b32 v47, v46")
    for k in range(9):
        e(f"v_pk_add_f32 v[8:9], v[{28+2*k}:{29+2*k}], v[50:51]\nv_cvt_pk_bf16_f32 v9, v8, v9\nv_lshlrev_b32 v8, 16, v9\nv_and_b32 v9, s68, v9")
        e(f"v_pk_mul_f32 v[8:9], v[8:9], v[46:47]\nv_cvt_pk_bf16_f32 v{raw[k]}, v8, v9")
    for k in range(0, 8, 2):
        e(f"ds_write2_b32 v1, v{raw[k]}, v{raw[k+1]} offset0:{k} offset1:{k+1}")
    e(f"ds_write_b32 v1, v{raw[8]} offset:32")
    stamp(1)
    e(f"""v_mov_b32 v{G}, -1
v_mov_b32 v{G+1}, -1
v_mov_b32 v{G+2}, -1
v_mov_b32 v{G+3}, -1
s_lshl_b32 s61, s10, 2
s_add_u32 s61, s61, s4
s_mul_i32 s61, s61, {OSL}
s_add_u32 s61, s61, {OBUF}
v_mov_b32 v1, v57
s_waitcnt lgkmcnt(0)""")
    ldsarrive(C1, 8)
    e(f"""s_mov_b64 exec, -1
s_mov_b32 s70, 2
s_cmp_ge_u32 s2, 208
s_cbranch_scc1 L_a4
L_xid:
buffer_load_dword v{G+4}, v1, s[56:59], s77 offen sc1
s_waitcnt vmcnt(0)""")
    xidcheck(G + 4)
    e("""s_cmp_eq_u32 s7, 2
s_cbranch_scc1 L_xidd
s_sub_u32 s70, s70, 1
s_cbranch_scc0 L_xid
L_xidd:
s_cmp_lt_u32 s2, 144
s_cbranch_scc1 L_a4
s_mov_b32 exec_hi, 0xff""")
    dual(f"buffer_store_dwordx4 v[{G}:{G+3}], v2, s[56:59], s61 offen POL", 7)
    e("L_a4:\ns_mov_b64 exec, 1")
    ldsspin(8, 8)
    stamp(2)
    for i in range(9):
        e(f"ds_read_b128 v[{XN+4*i}:{XN+4*i+3}], v5 offset:{64*i}")
    for kk in range(18):
        trread(WF + 4 * kk, 3 if kk < 16 else 4, (kk % 16) * 4096)
    e(f"""s_lshl_b32 s60, s4, 9
s_add_u32 s60, s60, s13
v_mov_b32 v7, s68
v_mov_b32 v{CV}, {PRG}
s_lshr_b32 s61, s2, 3
s_lshl_b32 s61, s61, 2
v_mov_b32 v{CV+3}, s61
s_add_u32 s76, s77, {PLN - XID}
s_waitcnt lgkmcnt(0)""")
    ldsarrive(C2, 8)
    e("s_mov_b64 exec, -1\ns_cmp_ge_u32 s2, 208\ns_cbranch_scc1 L_aq")
    for i in range(9):
        for hf in range(2):
            mfma(AC + 4 * hf, WF + 4 * (9 * hf + i), XN + 4 * i, i == 0)
    for r in range(4):
        e(f"v_add_f32_dpp v{AC+r}, v{AC+4+r}, v{AC+r} row_ror:8 row_mask:0xf bank_mask:0xf")
    e(f"""; publish 8 x 16 values as (bf16 << 16 | tag)
v_cvt_pk_bf16_f32 v8, v{AC}, v{AC+1}
v_cvt_pk_bf16_f32 v9, v{AC+2}, v{AC+3}
ds_bpermute_b32 v8, v15, v8
ds_bpermute_b32 v9, v15, v9
s_waitcnt lgkmcnt(0)
v_lshl_or_b32 v16, v8, 16, s15
v_and_or_b32 v17, v8, v7, s15
v_lshl_or_b32 v18, v9, 16, s15
v_and_or_b32 v19, v9, v7, s15
s_waitcnt vmcnt(0)
s_mov_b32 exec_hi, 0""")
    dual("buffer_store_dwordx4 v[16:19], v2, s[56:59], s60 offen POL", 7)
    race = """s_mov_b64 s[60:61], 0
LOADS
s_waitcnt lgkmcnt(1)
s_add_u32 s62, s62, s60
s_sub_u32 s62, s62, s61
s_waitcnt lgkmcnt(0)"""
    la, lb = f"s_load_dword s60, s[38:39], {PRB} glc", f"s_load_dword s61, s[38:39], {PRB + 0x2000} glc"
    e(f"""s_mov_b32 exec_hi, -1
s_lshl_b32 s60, s4, 8
s_add_u32 s60, s60, s2
s_cmp_lg_u32 s60, {256 + 144}
s_cbranch_scc1 L_aq
v_lshlrev_b32 v8, 13, v0
v_mov_b32 v9, 1
s_mov_b32 s60, {PRB}
s_mov_b64 exec, 3
buffer_store_dword v9, v8, s[56:59], s60 offen sc1
s_mov_b64 exec, -1
s_mov_b32 s62, 0
s_mov_b32 s70, {trials - 1}
s_waitcnt vmcnt(0)
L_race:""")
    e(race.replace("LOADS", la + "\n" + lb))
    e(race.replace("LOADS", lb + "\n" + la))
    e(f"""s_sub_u32 s70, s70, 1
s_cbranch_scc0 L_race
s_cmp_lt_i32 s62, 0
s_cselect_b32 s60, 0x10000, 0
s_or_b32 s60, s60, s15
v_mov_b32 v8, s60
v_mov_b32 v9, s14
s_mov_b64 exec, 1
buffer_store_dwordx2 v[8:9], v2, s[56:59], 0 offen offset:{PAR} sc1
s_mov_b64 exec, -1
L_aq:""")
    control(T1)
    ldsspin(CV, T1, sleep=8, four=True)
    e(f"""; wave 3 gathers q for the stream waves
s_cmp_lg_u32 s4, 3
s_cbranch_scc1 L_a3
s_lshr_b32 s60, s9, 1
s_lshl_b32 s60, s60, 6
s_lshl_b32 s61, s8, 13
s_add_u32 s60, s60, s61
s_add_u32 s60, s60, {PBUF}
v_lshrrev_b32 v6, 2, v0
v_lshlrev_b32 v6, 9, v6
v_and_b32 v7, 3, v0
v_lshl_add_u32 v6, v7, 4, v6
buffer_load_dword v24, v1, s[56:59], s77 offen sc1""")
    poll("buffer_load_dwordx4 v[20:23], v6, s[56:59], s60 offen sc1 nt", tagcmp([20, 21, 22, 23], 7), 4)
    xidcheck(24)
    CEND = 136
    e(f"""v_perm_b32 v8, v21, v20, s71
v_perm_b32 v9, v23, v22, s71
v_lshlrev_b32 v6, 3, v0
v_add_u32 v6, {QS}, v6
ds_write_b64 v6, v[8:9]
v_mov_b32 v6, {QF}
v_mov_b32 v7, s7
s_waitcnt lgkmcnt(0)
ds_write_b32 v6, v7
L_a3:
v_mul_u32_u24 v4, {RING - 1024}, v10
v_add_u32 v4, v4, v3
v_mov_b32 v12, 0xffffff00
s_lshl_b32 s65, s8, 7
s_add_u32 s65, s65, {PART}
s_cmp_lt_u32 s2, 144
s_cbranch_scc1 L_aO
s_cmp_ge_u32 s2, 208
s_cbranch_scc1 L_aD""")
    control(CEND)
    e(f"""s_branch L_fin
L_aD:""")
    control(TD)
    ldsspin(CV, TD, sleep=8, four=True)
    e(f"""s_mul_i32 s60, s11, 9216
s_mul_i32 s61, s4, 2304
s_add_u32 s60, s60, s61
s_add_u32 s60, s60, {PBUF + 131072}
s_add_u32 s61, s60, {288 * 512}
s_mov_b32 s72, -1
s_mov_b32 s73, 0xffff
s_mov_b64 exec, s[72:73]""")
    poll("\n".join([f"buffer_load_dwordx4 v[{G+4*k}:{G+4*k+3}], v2, s[56:59], s60 offen offset:{768*k} sc1 nt" for k in range(3)] +
                   [f"buffer_load_dwordx4 v[{U+4*k}:{U+4*k+3}], v2, s[56:59], s61 offen offset:{768*k} sc1 nt" for k in range(3)]),
         tagcmp(list(range(G, G + 24)), 8), 8, restore="s[72:73]")
    c0 = -2 * LOG2E * 0.7978845608028654
    e(f"; gelu_tanh(g) = g / (1 + exp(-2 * sqrt(2/pi) * (g + 0.044715 g^3)))\nv_mov_b32 v32, {f32(c0)}\nv_mov_b32 v33, {f32(c0 * 0.044715)}\ns_mul_i32 s60, s4, 144")
    for k in range(6):
        e(f"""v_and_b32 v34, s68, v{G+2*k}
v_and_b32 v35, s68, v{G+2*k+1}
v_mul_f32 v36, v34, v34
v_mul_f32 v37, v35, v35
v_fma_f32 v36, v36, v33, v32
v_fma_f32 v37, v37, v33, v32
v_mul_f32 v36, v36, v34
v_mul_f32 v37, v37, v35
v_exp_f32 v36, v36
v_exp_f32 v37, v37
v_and_b32 v38, s68, v{U+2*k}
v_add_f32 v36, 1.0, v36
v_add_f32 v37, 1.0, v37
v_rcp_f32 v36, v36
v_rcp_f32 v37, v37
v_and_b32 v39, s68, v{U+2*k+1}
v_mul_f32 v34, v34, v36
v_mul_f32 v35, v35, v37
v_cvt_pk_bf16_f32 v35, v34, v35
v_lshlrev_b32 v34, 16, v35
v_and_b32 v35, s68, v35
v_mul_f32 v34, v34, v38
v_mul_f32 v35, v35, v39
v_cvt_pk_bf16_f32 v{40+k}, v34, v35""")
    for k in range(3):
        e(f"""v_add_u32 v34, s60, v0
v_bfe_u32 v35, v34, 2, 3
v_mul_u32_u24 v35, 576, v35
v_and_b32 v36, 3, v34
v_lshl_add_u32 v35, v36, 3, v35
v_and_b32 v34, 0xffe0, v34
v_add_u32 v35, v35, v34
v_add_u32 v35, {HS}, v35
ds_write_b64 v35, v[{40+2*k}:{41+2*k}]
s_add_u32 s60, s60, 48""")
    e("s_waitcnt lgkmcnt(0)")
    ldsarrive(CNT, 8)
    ldsspin(8, 4)
    e(f"v_mul_u32_u24 v5, 576, v14\nv_lshl_add_u32 v5, v10, 4, v5\nv_add_u32 v5, {HS}, v5")
    for i in range(9):
        e(f"ds_read_b128 v[{XN+4*i}:{XN+4*i+3}], v5 offset:{64*i}")
    for sub in range(3):
        e(f"s_mul_i32 s60, s12, 3\ns_add_u32 s60, s60, {sub}")
        paddr(PA + sub, 60)
    e("s_add_u32 s65, s65, 2048\ns_waitcnt lgkmcnt(0)")
    for i in range(6):
        for sub in range(3):
            mfma(AC + 4 * sub, WF + 4 * (6 * sub + i), XN + 4 * i, i == 0)
    stamp(4)
    control(CEND)
    getside()
    e(f"; last 96 rows arrive with the late tile\ns_barrier\nds_read_b32 v{CV+4}, v{CV} offset:{SIDE - PRG}\ns_waitcnt lgkmcnt(0)\nv_xor_b32 v{PA}, v{PA}, v{CV+4}\nv_xor_b32 v{PA+1}, v{PA+1}, v{CV+4}\nv_xor_b32 v{PA+2}, v{PA+2}, v{CV+4}\ns_barrier")
    for j in range(9):
        trread(WF + 4 * j, 4, j * 1024)
    for j in range(9):
        if j % 3 == 0:
            e(f"s_waitcnt lgkmcnt({12 - 2 * j})")
        mfma(AC + 4 * (j % 3), WF + 4 * j, XN + 4 * (6 + j // 3), False)

    def publish(n, src):
        e("; partial outputs: f32 with the 8-bit tag in the low mantissa byte, whole 128 B lines")
        for r in range(4 * n):
            e(f"v_and_or_b32 v{src+r}, v{src+r}, v12, s6\nds_bpermute_b32 v{G+r}, v15, v{src+r}")
        e("s_mov_b32 exec_hi, 0")
        for k in range(n):
            e(f"s_waitcnt lgkmcnt({4 * (n - 1 - k)})\nbuffer_store_dwordx4 v[{G+4*k}:{G+4*k+3}], v{PA+k}, s[56:59], s65 offen sc1")
        e("s_mov_b64 exec, -1")

    publish(3, AC)
    stamp(7)
    e(f"""s_branch L_fin
L_aO:""")
    paddr(PA, 9)
    e(f"""v_mul_u32_u24 v6, {OSL}, v10
v_lshl_add_u32 v5, v11, 4, v6
s_lshl_b32 s62, s8, 2
s_add_u32 s62, s62, s4
s_mul_i32 s62, s62, {4*OSL}
s_add_u32 s62, s62, {OBUF}
s_mul_i32 s61, s4, {4*GST}
s_add_u32 s61, s61, {GB}
v_mul_u32_u24 v48, {GST}, v10
v_lshl_add_u32 v48, v11, 4, v48
v_add_u32 v48, s61, v48
s_lshl_b32 s61, s4, 5
s_add_u32 s61, s61, {LB}
v_lshl_add_u32 v49, v10, 3, s61
v_mul_u32_u24 v46, {GST}, v11
v_lshl_add_u32 v46, v10, 4, v46
v_add_u32 v46, {GB}, v46
v_lshlrev_b32 v47, 3, v11
v_add_u32 v47, {LB}, v47
s_andn2_b32 s74, s2, 6
s_and_b32 s61, s2, 2
s_lshl_b32 s61, s61, 1
s_or_b32 s74, s74, s61
s_lshl_b32 s74, s74, 12
s_lshl_b32 s61, s4, 5
s_add_u32 s74, s74, s61
s_add_u32 s74, s74, {PART}
v_lshrrev_b32 v8, 1, v0
v_lshlrev_b32 v7, 7, v8
v_and_b32 v8, 1, v0
v_lshl_add_u32 v7, v8, 4, v7
s_and_b32 s61, s2, 4
s_lshl_b32 s61, s61, 11
v_add_u32 v7, s61, v7
v_mov_b32 v26, 0xff
s_and_b32 s75, s2, 6
s_lshr_b32 s61, s4, 1
s_add_u32 s75, s75, s61
s_mul_i32 s75, s75, 1152
s_and_b32 s61, s2, 1
s_mul_i32 s61, s61, 576
s_add_u32 s75, s75, s61
s_lshr_b32 s61, s2, 3
s_lshl_b32 s61, s61, 5
s_add_u32 s75, s75, s61
s_and_b32 s61, s4, 1
s_lshl_b32 s61, s61, 4
s_add_u32 s75, s75, s61
v_and_b32 v9, 1, v10
v_lshlrev_b32 v9, 1, v9
v_lshl_add_u32 v13, v8, 3, v9
v_bfe_u32 v9, v0, 3, 1
v_lshl_add_u32 v13, v9, 2, v13
buffer_load_ushort v50, v13, s[40:43], s75 offen
s_lshr_b32 s61, s9, 1
s_and_b32 s60, s9, 1
s_lshl_b32 s60, s60, 3
s_add_u32 s61, s61, s60
s_lshl_b32 s60, s4, 2
s_sub_u32 s61, s61, s60
v_cmp_ne_u32 s[72:73], s61, v10""")
    srd(48, 34, 9216)
    control(CEND)
    getside()
    e("s_waitcnt vmcnt(0)\nv_lshlrev_b32 v50, 16, v50\ns_mov_b64 exec, s[72:73]\ns_barrier")
    stamp(5)

    def wofrags(back):
        e(f"s_mov_b64 exec, -1\nds_read_b32 v{CV+4}, v{CV} offset:{SIDE - PRG}\ns_barrier")
        stamp(4)
        for ks in range(8):
            trread(OF + 4 * ks, 4, ks * 1024)
        if back:
            e(f"s_mov_b64 exec, {back}")

    oloads = """buffer_load_dwordx4 v[28:31], v5, s[56:59], s62 offen sc1
buffer_load_dwordx4 v[32:35], v5, s[56:59], s62 offen offset:256 sc1
buffer_load_dwordx2 v[36:37], v6, s[56:59], s62 offen offset:512 sc1"""
    owrite = "ds_write_b128 v48, v[28:31]\nds_write_b128 v48, v[32:35] offset:256\nds_write_b64 v49, v[36:37]"
    ocmp = sentcmp(range(28, 38), 38)
    e(oloads + "\ns_waitcnt vmcnt(0)\n" + ocmp + "\ns_cbranch_vccnz L_og1")
    e(owrite)
    wofrags(None)
    e("s_branch L_og2\nL_og1:\ns_mov_b64 exec, vcc")
    poll(oloads, ocmp, 0, first=lambda: wofrags("vcc"), restore="s[72:73]")
    e(owrite + "\ns_mov_b64 exec, -1\nL_og2:")
    stamp(6)
    e("s_waitcnt lgkmcnt(0)\ns_barrier\nds_read_b64 v[36:37], v47")
    order = [0, 4, 1, 5, 2, 6, 3, 7]
    for ks in order:
        e(f"ds_read_b128 v[{WF+4*ks}:{WF+4*ks+3}], v46 offset:{64*ks}")
    e("""s_waitcnt lgkmcnt(8)
v_sub_f32_dpp v38, v36, v36 row_ror:8 row_mask:0xf bank_mask:0xf
v_sub_f32_dpp v39, v37, v37 row_ror:8 row_mask:0xf bank_mask:0xf""")
    fill = ["v_exp_f32 v38, v38", "v_exp_f32 v39, v39", "v_add_f32 v38, 1.0, v38", "v_add_f32 v39, 1.0, v39", "v_rcp_f32 v38, v38", "v_rcp_f32 v39, v39", f"v_xor_b32 v{PA}, v{PA}, v{CV+4}", f"v_xor_b32 v7, v7, v{CV+4}"]
    for i, ks in enumerate(order):
        e(f"s_waitcnt lgkmcnt({7 - i})")
        mfma(AC + 4 * (ks // 4), OF + 4 * ks, WF + 4 * ks, ks % 4 == 0)
        if i < len(fill):
            e(fill[i])
    for r in range(4):
        e(f"v_mul_f32 v{AC+r}, v{AC+r}, v38")
    for r in range(4):
        e(f"v_fmac_f32 v{AC+r}, v{AC+4+r}, v39")
    for r in range(4):
        e(f"v_add_f32_dpp v{AC+r}, v{AC+r}, v{AC+r} row_ror:8 row_mask:0xf bank_mask:0xf")
    publish(1, AC)
    stamp(3)
    e("; final sum of 8 outputs: lanes 0-31 hold 16 attention partials, lanes 32-63 hold 16 FFN partials\ns_waitcnt vmcnt(0)")
    chk = "\n".join(f"v_xor_b32 v{16+i}, s6, v{16+i}" for i in range(4)) + "\nv_or3_b32 v24, v16, v17, v18\nv_bitop3_b32 v24, v24, v26, v19 bitop3:0xc8\nv_cmp_ne_u32 vcc, 0, v24"
    poll("buffer_load_dwordx4 v[16:19], v7, s[56:59], s74 offen sc1", chk, 0, quad=True)
    e("""v_permlane16_swap_b32 v16, v17
v_permlane16_swap_b32 v18, v19
v_add_f32 v17, v16, v17
v_add_f32 v18, v18, v19
v_add_f32_dpp v16, v17, v17 row_ror:8 row_mask:0xf bank_mask:0x3
v_add_f32_dpp v16, v18, v18 row_ror:8 row_mask:0xf bank_mask:0xc
v_add_f32_dpp v16, v16, v16 row_shl:4 row_mask:0xf bank_mask:0x5
v_add_f32_dpp v16, v16, v16 quad_perm:[2,3,0,1] row_mask:0xf bank_mask:0xf""")
    rnd(16, 16)
    e("v_add_f32 v17, v16, v50")
    rnd(17, 17)
    e(f"""v_permlane32_swap_b32 v16, v18
v_add_f32 v17, v17, v18
v_cvt_pk_bf16_f32 v17, v17, v17
s_mov_b32 exec_lo, 0x03030303
s_mov_b32 exec_hi, 0
buffer_store_short v17, v13, s[48:51], s75 offen
s_mov_b32 exec_lo, -1
s_add_u32 s60, s2, s4
s_cmp_lg_u32 s60, 0
s_cbranch_scc1 L_o3
v_mov_b32 v19, s14
buffer_store_dword v19, v1, s[56:59], 0 offen
L_o3:""")
    stamp(7)
    e("L_fin:")
    if diag:
        e("s_mov_b64 exec, -1\ns_cmp_lt_u32 s3, 4\ns_cbranch_scc1 L_dg\ns_sub_u32 s60, s2, 144\ns_cmp_lt_u32 s60, 64\ns_cbranch_scc1 L_end\nL_dg:")
        e("s_waitcnt vmcnt(0)\ns_memrealtime s[76:77]\ns_waitcnt lgkmcnt(0)\ns_getreg_b32 s77, hwreg(HW_REG_HW_ID)")
        for i in range(8):
            e(f"v_mov_b32 v{16+i}, s{80+2*i}")
        e(f"v_mov_b32 v24, s76\nv_mov_b32 v25, s77\nv_mov_b32 v1, 0\ns_lshl_b32 s60, s2, 3\ns_add_u32 s60, s60, s3\ns_lshl_b32 s60, s60, 6\ns_add_u32 s60, s60, {STAMP}")
        e("s_mov_b64 exec, 1\nbuffer_store_dwordx4 v[16:19], v1, s[56:59], s60 offen\nbuffer_store_dwordx4 v[20:23], v1, s[56:59], s60 offen offset:16\nbuffer_store_dwordx2 v[24:25], v1, s[56:59], s60 offen offset:32")
    e("L_end:\ns_endpgm")
    e(f""".section .rodata,"a"
.p2align 6
.amdhsa_kernel {KN}
.amdhsa_next_free_vgpr 256
.amdhsa_next_free_sgpr 102
.amdhsa_accum_offset 256
.amdhsa_group_segment_fixed_size 0
.amdhsa_kernarg_size 96
.amdhsa_user_sgpr_count 2
.amdhsa_user_sgpr_kernarg_segment_ptr 1
.amdhsa_system_sgpr_workgroup_id_x 1
.amdhsa_float_denorm_mode_32 3
.end_amdhsa_kernel""")
    return top + e.text()


def summary(T, cfg):
    import numpy as np
    S = T[:, :4]; A = T[:144, 4:]; D = T[208:, 4:]
    wd = S[:, :, 4].max(1); m = wd.max()
    return dict(startmax=S[:, :, 0].max(), B1med=float(np.median(S[:, :, 1])), B1max=S[:, :, 1].max(), B2max=S[:, :, 2].max(), qwait=(S[:, :, 7] - S[:, :, 6]).max(),
                xcdspread=max(wd[i::8].mean() for i in range(8)) - wd.mean(), meandone=wd.mean(), maxdone=m, opub=S[:, 0, 3].max() - m, t2=S[:, :, 5].max() - m,
                dpub=D[:, :, 7].max() - m, ogath=A[:, :, 6].max() - m, ppub=A[:, :, 3].max() - m, out=A[:, :, 7].max() - m, end=A[:, :, 8].max())


if __name__ == "__main__":
    kw = eval("dict(" + (sys.argv[2] if len(sys.argv) > 2 else "") + ")")
    open(sys.argv[1], "w").write(gen(**kw))
```

```python
import sys, struct
sys.path.insert(0, "dev")
from asmlib import Asm

KN = "parallel_sum__sliding_block_cached__geglu_ffn__decode_kernel"
REF = "parallel_sum__sliding_block_cached__geglu_ffn__decode.s.ref"

R = 8
RING = R * 4096
XS = 4 * RING
QS = XS + 9216
HS = QS + 512
ML = HS + 4608
CNT = ML + 64
QF, C1, C2, PRG, DEC, C3 = CNT + 4, CNT + 8, CNT + 12, CNT + 16, CNT + 32, CNT + 36
SIDE = CNT + 40
LB = CNT + 64
RED = LB + 128
GB = RED + 4096
GST = 528
LDS_SZ = GB + 16 * GST
XID, PLN, PBUF, OBUF, PART = 0x400, 0x800, 0x1000, 0x70000, 0xA0000
PAR, PRB = 0x200, 0x6C000
OSL = 640
WS_SZ = PART + 144 * 4096
STAMP = 0x200000
LIMIT = 2000000
LOG2E = 1.4426950408889634

DOC = """;
;
;
"""


def f32(x):
    return "0x%08x" % struct.unpack("<I", struct.pack("<f", x))[0]


def gen(dw=6, dm=5, d2=6, boost=3, thr=16, T1=56, TD=64, latepub=0, gpol="sc1 nt", diag=0, wmap=0, T2=96, trials=3, amp=None, qslot=56, fslot=124, win=((56, 64, 7),), dk=None, dw2=None, pw2=10):
    dk = dk or dw
    dw2 = dw2 or dw
    e = Asm()
    uid = [0]
    wsz = WS_SZ if not diag else 0x400000

    def lab(p):
        uid[0] += 1
        return f"L_{p}{uid[0]}"

    def coff(c):
        return ((c & 1) << 14) | ((c >> 1) << 16) | ((c & 1) << 13) | ((c >> 1 & 1) << 15)

    def stamp(i):
        if diag or (amp and i in amp[:2]):
            e(f"s_memrealtime s[{80 + 2 * i}:{81 + 2 * i}]")

    def srd(b, lo, size):
        e(f"s_mov_b32 s{b}, s{lo}\ns_mov_b32 s{b+1}, s{lo+1}\ns_mov_b32 s{b+2}, {size}\ns_mov_b32 s{b+3}, 0x20000")

    def rnd(dst, src):
        e(f"v_cvt_pk_bf16_f32 v{dst}, v{src}, v{src}\nv_lshlrev_b32 v{dst}, 16, v{dst}")

    def poll(loads, cmp, sleep, restore="-1", quad=False, first=None):
        L = lab("poll")
        e(f"s_mov_b32 s70, {LIMIT}")
        if first:
            e(loads)
            first()
            e(f"s_branch {L}_w")
        e(f"{L}:")
        e(loads)
        e(f"{L}_w:\ns_waitcnt vmcnt(0)")
        e(cmp)
        e(f"s_cbranch_vccz {L}_d" if quad else f"s_and_b64 exec, exec, vcc\ns_cbranch_scc0 {L}_d")
        e(f"s_sub_u32 s70, s70, 1\ns_cbranch_scc1 {L}_d")
        if quad:
            e("s_wqm_b64 exec, vcc")
        if sleep:
            e(f"s_sleep {sleep}")
        e(f"s_branch {L}\n{L}_d:\ns_mov_b64 exec, {restore}")

    def dual(stores, mode):
        L = lab("st")
        e(f"s_cmp_eq_u32 s{mode}, 2\ns_cbranch_scc0 {L}")
        e(stores.replace("POL", ""))
        e(f"s_branch {L}_d\n{L}:")
        e(stores.replace("POL", "sc1"))
        e(f"{L}_d:")

    def xidcheck(v):
        e(f"v_cmp_ne_u32 vcc, s78, v{v}\ns_cmp_eq_u32 vcc_lo, 0\ns_cselect_b32 s7, 2, 1")

    def ldsarrive(addr, va):
        e(f"s_mov_b64 exec, 1\nv_mov_b32 v{va}, {addr}\nv_mov_b32 v{va+1}, 1\nds_add_u32 v{va}, v{va+1}")

    def ldsspin(va, count, st=60, sleep=2, four=False):
        L = lab("spin")
        e(f"s_mov_b32 s70, {LIMIT*8}\n{L}:")
        if four:
            e(f"ds_read_b128 v[{va+4}:{va+7}], v{va}\ns_waitcnt lgkmcnt(0)\nv_add3_u32 v{va+1}, v{va+4}, v{va+5}, v{va+6}\nv_add_u32 v{va+1}, v{va+1}, v{va+7}")
        else:
            e(f"ds_read_b32 v{va+1}, v{va}\ns_waitcnt lgkmcnt(0)")
        e(f"""v_readfirstlane_b32 s{st}, v{va+1}
s_cmp_ge_u32 s{st}, {count}
s_cbranch_scc1 {L}_d
s_sub_u32 s70, s70, 1
s_cbranch_scc1 {L}_d
s_sleep {sleep}
s_branch {L}
{L}_d:
s_mov_b64 exec, -1""")

    CV = 232

    def control(until):
        L = lab("ctl")
        e(f"""; wave 2: post the stream position, count group members that are ahead, select the queue depth
s_cmp_lg_u32 s4, 2
s_cbranch_scc1 {L}_d
s_mov_b32 s70, {LIMIT}
{L}:
ds_read_b128 v[{CV+4}:{CV+7}], v{CV}
s_waitcnt lgkmcnt(0)
v_add3_u32 v{CV+1}, v{CV+4}, v{CV+5}, v{CV+6}
v_add_u32 v{CV+1}, v{CV+1}, v{CV+7}
v_readfirstlane_b32 s66, v{CV+1}
v_lshl_or_b32 v{CV+1}, v{CV+1}, 16, s15
s_mov_b64 exec, 1
buffer_store_dword v{CV+1}, v{CV+3}, s[56:59], s76 offen
s_mov_b64 exec, -1
s_cmp_ge_u32 s66, {until}
s_cbranch_scc1 {L}_d
buffer_load_dword v{CV+4}, v1, s[56:59], s76 offen sc1
v_add_u32 v{CV+1}, 0x10000, v{CV+1}
s_waitcnt vmcnt(0)
v_sub_u32 v{CV+4}, v{CV+4}, v{CV+1}
v_and_b32 v{CV+4}, 0x8000ffff, v{CV+4}
v_cmp_eq_u32 vcc, 0, v{CV+4}
s_bcnt1_i32_b32 s66, vcc_lo
s_cmp_ge_u32 s66, {thr}
s_cselect_b32 s66, 1, 0
v_mov_b32 v{CV+4}, s66
ds_write_b32 v{CV}, v{CV+4} offset:{DEC - PRG}
s_sub_u32 s70, s70, 1
s_cbranch_scc0 {L}
{L}_d:""")

    def getside():
        L = lab("side")
        e(f"; wave 3 fetches the announced bit for the partial output layout\ns_cmp_lg_u32 s4, 3\ns_cbranch_scc1 {L}")
        ldsspin(CV, T2, st=5, sleep=16, four=True)
        e(f"v_mov_b32 v{CV+2}, 0")
        poll(f"buffer_load_dwordx2 v[{CV+4}:{CV+5}], v{CV+2}, s[56:59], 0 offen offset:{PAR} sc1",
             f"v_xor_b32 v{CV+6}, s15, v{CV+4}\nv_and_b32 v{CV+6}, 0xfffeffff, v{CV+6}\nv_xor_b32 v{CV+5}, s14, v{CV+5}\nv_or_b32 v{CV+6}, v{CV+6}, v{CV+5}\nv_cmp_ne_u32 vcc, 0, v{CV+6}", 16)
        e(f"v_bfe_u32 v{CV+4}, v{CV+4}, 16, 1\nv_lshlrev_b32 v{CV+4}, 13, v{CV+4}\nds_write_b32 v{CV}, v{CV+4} offset:{SIDE - PRG}\ns_waitcnt lgkmcnt(0)\n{L}:")

    def sentcmp(regs, tmp):
        r = list(regs)
        out = []
        cur = r.pop(0)
        while r:
            out.append(f"v_max3_u32 v{tmp}, v{cur}, v{r[0]}, v{r[1]}" if len(r) > 1 else f"v_max_u32 v{tmp}, v{cur}, v{r[0]}")
            r = r[2:]
            cur = tmp
        out.append(f"v_cmp_eq_u32 vcc, -1, v{cur}")
        return "\n".join(out)

    def tagcmp(regs, tmp):
        out = [f"v_xor_b32 v{tmp}, s15, v{regs[0]}"]
        for r in regs[1:]:
            out.append(f"v_bitop3_b32 v{tmp}, v{r}, v{tmp}, s15 bitop3:0xde")
        out.append(f"v_and_b32 v{tmp}, 0xffff, v{tmp}\nv_cmp_ne_u32 vcc, 0, v{tmp}")
        return "\n".join(out)

    def allred_g(v, t, op):
        e(f"v_mov_b32 v{t}, v{v}\nv_permlane16_swap_b32 v{v}, v{t}\n{op} v{v}, v{v}, v{t}")
        e(f"v_mov_b32 v{t}, v{v}\nv_permlane32_swap_b32 v{v}, v{t}\n{op} v{v}, v{v}, v{t}")

    def mfma(D, A, B, first):
        e(f"v_mfma_f32_16x16x32_bf16 v[{D}:{D+3}], v[{A}:{A+3}], v[{B}:{B+3}], {'0' if first else f'v[{D}:{D+3}]'}")

    def trread(dst, addr, off):
        for hf in range(2):
            e(f"ds_read_b64_tr_b16 v[{dst+2*hf}:{dst+2*hf+1}], v{addr} offset:{off + hf * 512}")

    hdr = [l.rstrip("\n") for l in open(REF) if l.startswith(";") and "@launch" not in l and "Override" not in l and "grid=ceil" not in l]
    top = "\n".join(hdr) + f"\n; @launch grid=(256,1,1) block=(512,1,1) lds={LDS_SZ}\n" + DOC
    e(f""".amdgcn_target "amdgcn-amd-amdhsa--gfx950"
.text
.globl {KN}
.p2align 8
.type {KN},@function
{KN}:
s_cmp_ge_u32 s2, 256
s_cbranch_scc1 L_end
s_load_dwordx16 s[16:31], s[0:1], 0
s_load_dwordx8 s[32:39], s[0:1], 64""")
    if wmap:
        e("s_lshr_b32 s5, s2, 4\ns_add_u32 s6, s2, s5\ns_and_b32 s6, s6, 15\ns_andn2_b32 s2, s2, 15\ns_or_b32 s2, s2, s6")
    stamp(0)
    e("""v_lshrrev_b32 v1, 6, v0
v_and_b32 v0, 63, v0
v_readfirstlane_b32 s3, v1
s_xor_b32 s3, s3, 4
s_and_b32 s8, s2, 15
s_lshr_b32 s9, s2, 4
s_sub_u32 s12, s9, 13
s_lshl_b32 s10, s8, 2
s_add_u32 s10, s10, s9
s_sub_u32 s10, s10, 9
s_and_b32 s5, s2, 7
s_bfe_u32 s6, s2, 0x10003
s_lshl_b32 s11, s5, 1
s_add_u32 s11, s11, s6
s_mul_i32 s79, s5, 9
s_add_u32 s79, s79, s9
s_cmp_ge_u32 s3, 4
s_cbranch_scc1 L_aux""")

    VO, KD, KR, KW, VW1, VW2, Q, KF, AB, ACC, T, SD, SEL, SP = 1, 2, 6, 10, 14, 15, 16, 32, 48, 64, 68, 76, 80, 88
    MRUN, NEGM, LS, VT2, VST, VPR, VDE, VDA, VV = 120, 121, 122, 123, 124, 125, 126, 127, 128
    e(f"""; ===== stream waves (s3 = 0..3) =====
v_lshrrev_b32 v1, 3, v0
v_and_b32 v2, 7, v0
v_and_b32 v3, 2, v1
s_and_b32 s5, s3, 1
s_lshl_b32 s5, s5, 2
v_or_b32 v3, s5, v3
v_xor_b32 v2, v2, v3
v_lshlrev_b32 v2, 4, v2
s_lshl_b32 m0, s3, 10
s_mov_b32 s43, 0x20000
s_lshl_b32 s60, s79, 7
s_lshl_b32 s5, s10, 7
s_movk_i32 s7, 9216
s_mov_b32 s42, {576*9216}
s_cmp_ge_u32 s2, 144
s_cselect_b32 s60, s5, s60
s_cselect_b32 s7, 8192, s7
s_cselect_b32 s42, {576*8192}, s42
s_mul_i32 s5, s11, {288*1152}
s_mul_i32 s6, s12, 384
s_add_u32 s5, s5, s6
s_lshl_b32 s62, s7, 5
s_movk_i32 s64, 4096
s_cmp_ge_u32 s2, 208
s_cselect_b32 s60, s5, s60
s_cselect_b32 s7, 1152, s7
s_cselect_b32 s42, {4608*1152}, s42
s_cselect_b32 s63, {36864-256}, s62
s_cselect_b32 s62, 128, s62
s_cselect_b32 s65, {4096-49152}, s64
s_cselect_b32 s64, 24576, s64
s_mul_i32 s5, s3, s7
s_lshl_b32 s5, s5, 3
s_add_u32 s72, s60, s5
v_mad_u32_u24 v{VW1}, v1, s7, v2
s_bitcmp1_b32 s2, 3
s_waitcnt lgkmcnt(0)
s_cselect_b64 s[40:41], s[30:31], s[28:29]
s_cmp_ge_u32 s2, 144
s_cselect_b64 s[40:41], s[22:23], s[40:41]
s_cmp_ge_u32 s2, 208
s_cselect_b64 s[40:41], s[32:33], s[40:41]""")

    def vsetup():
        e("; s60 = this wave's base inside the K / V window, v2-v5 swizzled K source offsets")
        srd(48, 18, 0x10000000)
        e(f"""s_lshr_b32 s60, s9, 1
s_lshl_b32 s60, s60, 4
s_add_u32 s60, s60, s8
s_lshl_b32 s60, s60, 21
s_and_b32 s61, s9, 1
s_lshl_b32 s61, s61, 15
s_add_u32 s60, s60, s61
s_lshl_b32 s61, s3, 12
s_add_u32 s60, s60, s61
s_add_u32 s60, s60, {6144*256}
v_mul_u32_u24 v{VT2}, 1152, v1
v_add_u32 v{VT2}, v{VT2}, v2
v_lshlrev_b32 v{VO}, 4, v0""")
        e(f"v_lshrrev_b32 v{T}, 4, v0\nv_and_b32 v{T+1}, 15, v0\nv_lshlrev_b32 v{T+2}, 2, v{T}\nv_xor_b32 v{T+2}, v{T+2}, v{T+1}")
        e(f"v_lshlrev_b32 v{T+2}, 4, v{T+2}\nv_lshl_add_u32 v{KD}, v{T}, 8, v{T+2}")
        for r in range(1, 4):
            e(f"v_xor_b32 v{KD+r}, {16*r}, v{KD}")

    work = {}

    def at(slot, fn):
        work.setdefault(slot, []).append(fn)

    def setup():
        e("; late tile descriptor, K fragment addresses, byte selectors that build the diagonal P operand")
        srd(52, 20, 0x10000000)
        srd(56, 38, wsz)
        e(f"""s_mul_i32 s67, s3, {RING}
s_mul_i32 s5, s8, {256*1152}
s_mul_i32 s6, s3, {8*1152}
s_add_u32 s5, s5, s6
s_lshl_b32 s6, s9, 7
s_add_u32 s5, s5, s6
s_mov_b32 s46, {4096*1152}
s_mov_b32 s47, 0x20000
s_cmp_ge_u32 s2, 208
s_cselect_b32 s72, s72, s5
s_cselect_b32 s73, s62, {32*1152}
s_cselect_b32 s74, s63, {32*1152}
s_cselect_b64 s[44:45], s[32:33], s[24:25]
s_cselect_b32 s46, s42, s46""")
        e(f"v_lshrrev_b32 v{T}, 4, v0\nv_and_b32 v{T+1}, 15, v0\nv_add_u32 v{KW}, s67, v{VO}")
        e(f"v_and_b32 v{T+2}, 3, v0\nv_lshlrev_b32 v{T+2}, 2, v{T+2}\nv_lshrrev_b32 v{T+3}, 2, v{T+1}\nv_or_b32 v{T+2}, v{T+2}, v{T+3}")
        e(f"v_lshl_add_u32 v{T+2}, v{T+2}, 8, s67\nv_xor_b32 v{T+3}, v{T}, v{T+1}\nv_lshl_add_u32 v{KR}, v{T+3}, 4, v{T+2}")
        for t in range(1, 4):
            e(f"v_xor_b32 v{KR+t}, {64*t}, v{KR}")
        e(f"""v_and_b32 v{T+2}, 1, v0
v_cmp_eq_u32 vcc, 1, v{T+2}
v_mov_b32 v{T+3}, 0x0c0c0100
v_mov_b32 v{T+4}, 0x01000c0c
v_cndmask_b32 v{T+3}, v{T+3}, v{T+4}, vcc
v_mov_b32 v{T+4}, 0x0c0c0302
v_mov_b32 v{T+5}, 0x03020c0c
v_cndmask_b32 v{T+4}, v{T+4}, v{T+5}, vcc
v_mov_b32 v{T+5}, 0x0c0c0c0c
v_bfe_u32 v{T+2}, v0, 1, 2""")
        for k in range(4):
            e(f"v_cmp_eq_u32 vcc, {k}, v{T+2}\nv_cndmask_b32 v{SEL+k}, v{T+5}, v{T+3}, vcc\nv_cndmask_b32 v{SEL+4+k}, v{T+5}, v{T+4}, vcc")
        e(f"v_lshrrev_b32 v{T+2}, 3, v{T+1}\nv_lshlrev_b32 v{T+2}, 8, v{T+2}\nv_lshl_add_u32 v{T+2}, v{T}, 4, v{T+2}\nv_add_u32 v{VW1}, {QS}, v{T+2}")
        e(f"s_mov_b32 s68, 0xffff0000\ns_mov_b32 s69, {f32(128 ** -0.5)}\ns_mov_b32 s71, {f32(LOG2E)}")
        e(f"v_mov_b32 v{LS}, 0\nv_mov_b32 v{MRUN}, 0xff800000")
        for r in range(4):
            e(f"v_mov_b32 v{ACC+r}, 0")

    def kread(c):
        def f():
            off = 0 if c < 8 else (c - 8) * 4096
            if c < 8:
                for r in range(4):
                    b = VV + 16 * c + 4 * r
                    e(f"ds_write_b128 v{KW}, v[{b}:{b+3}] offset:{1024 * r}")
            for t in range(4):
                e(f"ds_read_b128 v[{KF+4*t}:{KF+4*t+3}], v{KR+t} offset:{off}")
        return f

    def kmma(c):
        def f():
            e(f"; K chunk {c}: scores\ns_waitcnt lgkmcnt(0)")
            for t in range(4):
                mfma(SD, KF + 4 * t, Q + 4 * t, t == 0)
        return f

    def unpack(dst, a, b):
        e(f"v_lshlrev_b32 v{dst}, 16, v{a}\nv_and_b32 v{dst+1}, s68, v{a}\nv_lshlrev_b32 v{dst+2}, 16, v{b}\nv_and_b32 v{dst+3}, s68, v{b}")

    def kround(c):
        def f():
            S = SP + 2 * c
            e(f"v_cvt_pk_bf16_f32 v{T}, v{SD}, v{SD+1}\nv_cvt_pk_bf16_f32 v{T+1}, v{SD+2}, v{SD+3}")
            unpack(T + 2, T, T + 1)
            for r in range(4):
                e(f"v_mul_f32 v{T+2+r}, s69, v{T+2+r}")
            e(f"v_cvt_pk_bf16_f32 v{S}, v{T+2}, v{T+3}\nv_cvt_pk_bf16_f32 v{S+1}, v{T+4}, v{T+5}")
            unpack(T + 2, S, S + 1)
            e(f"v_max3_f32 v{MRUN}, v{MRUN}, v{T+2}, v{T+3}\nv_max3_f32 v{MRUN}, v{MRUN}, v{T+4}, v{T+5}")
        return f

    def wmax():
        e("; max over this wave's 256 keys")
        allred_g(MRUN, T, "v_max_f32")
        e(f"v_mul_f32 v{NEGM}, s71, v{MRUN}\nv_sub_f32 v{NEGM}, 0, v{NEGM}")

    def pexp(c):
        def f():
            S = SP + 2 * c
            unpack(T + 2, S, S + 1)
            for r in range(4):
                e(f"v_fma_f32 v{T+2+r}, v{T+2+r}, s71, v{NEGM}")
            for r in range(4):
                e(f"v_exp_f32 v{T+2+r}, v{T+2+r}")
            e(f"v_add_f32 v{T}, v{T+2}, v{T+3}\nv_add_f32 v{T+1}, v{T+4}, v{T+5}\nv_add_f32 v{LS}, v{LS}, v{T}\nv_add_f32 v{LS}, v{LS}, v{T+1}")
            e(f"v_cvt_pk_bf16_f32 v{S}, v{T+2}, v{T+3}\nv_cvt_pk_bf16_f32 v{S+1}, v{T+4}, v{T+5}")
        return f

    def aprep(c, r):
        def f():
            S = SP + 2 * c + (r >> 1)
            for k in range(4):
                e(f"v_perm_b32 v{AB+4*r+k}, v{S}, v{S}, v{SEL + 4 * (r & 1) + k}")
        return f

    def pv(c, r):
        def f():
            mfma(ACC, AB + 4 * r, VV + 16 * (c % 8) + 4 * r, False)
        return f

    def mlwrite():
        e("; publish this wave's max and sum in LDS, prepare the combine addresses")
        allred_g(LS, T, "v_add_f32")
        e(f"v_sub_f32 v{T+2}, 0, v{NEGM}\nv_mov_b32 v{T+3}, v{LS}")
        e(f"v_bfe_u32 v{T}, v0, 3, 1\nv_lshlrev_b32 v{T}, 5, v{T}\ns_lshl_b32 s63, s3, 3\ns_add_u32 s63, s63, {ML}\nv_add_u32 v{T}, s63, v{T}")
        e(f"ds_write_b64 v{T}, v[{T+2}:{T+3}]")
        ldsarrive(C3, T)
        e(f"""s_mov_b64 exec, -1
s_lshl_b32 s63, s3, 10
s_add_u32 s63, s63, {RED}
v_add_u32 v{VW2}, s63, v{VO}
v_lshrrev_b32 v2, 5, v0
v_lshlrev_b32 v3, 5, v2
v_add_u32 v3, {ML}, v3
s_lshl_b32 s63, s3, 3
v_add_u32 v9, s63, v3
v_lshlrev_b32 v4, 3, v0
v_lshlrev_b32 v5, 2, v2
v_and_b32 v6, 1, v0
v_lshl_add_u32 v6, v2, 1, v6
v_bfe_u32 v7, v0, 1, 4
v_lshl_add_u32 v6, v6, 4, v7
v_lshlrev_b32 v6, 4, v6
v_add_u32 v6, {RED}, v6
s_lshr_b32 s62, s9, 1
s_and_b32 s63, s9, 1
s_lshl_b32 s63, s63, 3
s_add_u32 s62, s62, s63
s_mul_i32 s63, s62, {GST}
s_add_u32 s63, s63, {GB}
v_add_u32 v7, s63, v4
s_lshl_b32 s63, s62, 3
s_add_u32 s63, s63, {LB}
v_add_u32 v8, s63, v5
s_lshl_b32 s63, s8, 4
s_add_u32 s63, s63, s62
s_mul_i32 s63, s63, {OSL}
s_add_u32 s63, s63, {OBUF}""")

    def factors():
        e(f"""; workgroup max and sum: v9 = this wave's normalizing factor, v27 = log2-sum-exp
v_mov_b32 v{T}, {C3}
s_mov_b32 s70, {LIMIT*8}
L_fw:
ds_read_b32 v{T+1}, v{T}
ds_read_b128 v[16:19], v3
ds_read_b128 v[20:23], v3 offset:16
ds_read_b32 v9, v9
s_waitcnt lgkmcnt(0)
v_readfirstlane_b32 s5, v{T+1}
s_cmp_ge_u32 s5, 4
s_cbranch_scc1 L_fd
s_sub_u32 s70, s70, 1
s_cbranch_scc1 L_fd
s_lshl_b32 s5, s3, 3
v_add_u32 v9, s5, v3
s_branch L_fw
L_fd:
v_max3_f32 v24, v16, v18, v20
v_max_f32 v24, v24, v22
v_sub_f32 v16, v16, v24
v_sub_f32 v18, v18, v24
v_sub_f32 v20, v20, v24
v_sub_f32 v22, v22, v24
v_sub_f32 v9, v9, v24
v_exp_f32 v16, v16
v_exp_f32 v18, v18
v_exp_f32 v20, v20
v_exp_f32 v22, v22
v_exp_f32 v9, v9
v_mul_f32 v25, v16, v17
v_fmac_f32 v25, v18, v19
v_fmac_f32 v25, v20, v21
v_fmac_f32 v25, v22, v23
v_rcp_f32 v26, v25
v_log_f32 v27, v25
v_mul_f32 v9, v9, v26
v_add_f32 v27, v27, v24
v_min_u32 v27, -2, v27""")

    def qread():
        stamp(6)
        e(f"; q fragments, s13 = store mode\nv_mov_b32 v{T}, {QF}\ns_mov_b32 s70, {LIMIT*8}\nL_qw:\nds_read_b32 v{T+1}, v{T}")
        for t in range(4):
            e(f"ds_read_b128 v[{Q+4*t}:{Q+4*t+3}], v{VW1} offset:{64*t}")
        e(f"""s_waitcnt lgkmcnt(0)
v_readfirstlane_b32 s13, v{T+1}
s_cmp_lg_u32 s13, 0
s_cbranch_scc1 L_qd
s_sub_u32 s70, s70, 1
s_cbranch_scc1 L_qd
s_sleep 2
s_branch L_qw
L_qd:""")
        stamp(7)

    def dep(n):
        for lo, hi, dd in win:
            if lo <= n < hi:
                return dd
        return dm if n < 96 else d2

    landed = {}
    for n in range(128 + 64):
        for m in range(min(127, n - dep(n) - (boost if n < 128 else 0)) + 1):
            landed.setdefault(m, n)
    at(qslot, qread)
    n0 = qslot
    for i in range(8):
        for c in (8 + i, i):
            n0 = max(n0, landed[4 * c + 3])
            assert c >= 8 or n0 + 1 < 64 + 4 * c
            at(n0, kread(c))
            at(n0 + 1, kmma(c))
            at(n0 + 2, kround(c))
            n0 += 2
    sM = n0 + 1
    at(sM, wmax)
    for c in range(16):
        at(sM + 1 + c, pexp(c))
    at(sM + 17, mlwrite)
    assert sM + 17 < fslot <= 127
    at(fslot, factors)
    pre = {}
    last = 0
    for n in range(64, 128):
        c, r = (n - 64) // 4, n % 4
        s = max(landed[n], sM + 2 + c, last)
        while len(pre.get(s, [])) >= (2 if s < 128 else 4):
            s += 1
        last = s
        assert n >= 96 or s < n + 32
        pre.setdefault(s, []).append((c, r))
    nslots = max(max(work), last) + 1

    def t2load(j):
        e(f"buffer_load_dwordx4 v{VT2}, s[44:47], s72 offen nt lds")
        if j < 8:
            e(f"s_add_u32 s72, s72, s{74 if j % 3 == 2 else 73}\ns_add_u32 m0, m0, 1024")

    def cwait(depth):
        L = lab("w")
        e(f"s_waitcnt vmcnt({depth+boost-1})\ns_cbranch_vccnz {L}\ns_waitcnt vmcnt({depth-1})\n{L}:")

    def post(stage):
        e(f"v_mov_b32 v{VST}, {stage}\nds_write_b32 v{VPR}, v{VST}\nds_read_b32 v{VDE}, v{VDA}")

    def decide():
        e(f"s_waitcnt lgkmcnt(0)\nv_cmp_ne_u32 vcc, 0, v{VDE}")

    def vload(i, wait):
        if i % 4 == 0:
            e(f"s_xor_b32 s61, s60, {coff(i // 4)}")
        wait()
        V = VV + 4 * (i % 32)
        e(f"buffer_load_dwordx4 v[{V}:{V+3}], v{VO}, s[52:55], s61 offen offset:{(i % 4) * 1024} nt")

    def kload(i, wait):
        if i % 4 == 0:
            e(f"s_xor_b32 s61, s60, {coff(i // 4)}")
            if i >= 32:
                e(f"s_add_u32 m0, s67, {(i // 4 - 8) * 4096}")
        wait()
        if i < 32:
            e(f"buffer_load_dwordx4 v[{VV+4*i}:{VV+4*i+3}], v{KD + i % 4}, s[48:51], s61 offen offset:{(i % 4) * 1024} nt")
        else:
            e(f"buffer_load_dwordx4 v{KD + i % 4}, s[48:51], s61 offen offset:{(i % 4) * 1024} nt lds")

    for p in range(18 + dk):
        if p == dw:
            e(f"s_lshl_b32 s5, s3, 2\ns_add_u32 s5, s5, {PRG}\nv_mov_b32 v{VPR}, s5\nv_mov_b32 v{VDA}, {DEC}\ns_barrier")
        if p > dw and p % 4 == 2:
            post(p // 4)
        if p == 18:
            vsetup()
        if p == 17 + dk:
            e(f"; this wave's part of the weight tile has landed\ns_waitcnt vmcnt({dk-1})")
            stamp(1)
            ldsarrive(C1, T)
            e("s_mov_b64 exec, -1")
        if p >= 18:
            kload(p - 18, lambda: e(f"s_waitcnt vmcnt({dk-1})"))
        else:
            if p >= dw:
                e(f"s_waitcnt vmcnt({(dw if p < pw2 else dw2)-1})")
            e(f"buffer_load_dwordx4 v{VW1}, s[40:43], s72 offen nt lds")
            e(f"s_add_u32 s72, s72, s{62 if p % 3 < 2 else 63}\ns_add_u32 m0, m0, s{64 if p % 3 < 2 else 65}")
    e(f"""; tiles whose lines all have address bits [9:7] = 3 arrive late: start those workgroups on the deep queue
s_add_u32 s66, s40, s72
s_bfe_u32 s66, s66, 0x30007
s_cmp_eq_u32 s66, 3
s_cselect_b32 s66, 1, 0
s_cmp_ge_u32 s2, 208
s_cselect_b32 s66, 0, s66
s_waitcnt lgkmcnt(0)
v_mov_b32 v{VDE}, s66
ds_write_b32 v{VDA}, v{VDE}""")
    setup()
    decide()

    t2n = [0]

    def slot(n, t2):
        todo = pre.get(n, [])
        for (c, r) in todo:
            aprep(c, r)()
        if n == 32:
            stamp(2)
            e(f"; the K slots reuse the weight tile's LDS once it has been read\nv_mov_b32 v{T}, {C2}")
            ldsspin(T, 4, st=5)
        if n < 64:
            kload(n, lambda: cwait(dep(n)))
        elif n < 128:
            vload(n - 64, lambda: cwait(dep(n)))
        else:
            if n - d2 <= 127:
                e(f"s_waitcnt vmcnt({127 - (n - d2) + (t2n[0] if t2 else 0)})")
            left = nslots - 1 - n
            if t2 and left > 0:
                for _ in range(-(-(8 - t2n[0]) // left)):
                    t2load(t2n[0])
                    t2n[0] += 1
        for (c, r) in todo:
            pv(c, r)()
        if n < 128 and n % 4 == 1:
            decide()
        if n < 128 and n % 4 == 0:
            post((n + 18) // 4)
        for fn in work.get(n, []):
            fn()

    for n in range(dk, 128):
        slot(n, False)
    e("; drain V; the wo / w_down roles queue their late tile behind it\ns_mov_b32 m0, s67\ns_sub_u32 s5, s2, 144\ns_cmp_lt_u32 s5, 64\ns_cbranch_scc1 L_tq")
    for n in range(128, nslots):
        slot(n, True)
    assert t2n[0] == 8
    e("s_branch L_tj\nL_tq:")
    for n in range(128, nslots):
        slot(n, False)
    e("L_tj:")
    for r in range(4):
        e(f"v_mul_f32 v{ACC+r}, v{ACC+r}, v9")
    e(f"ds_write_b128 v{VW2}, v[{ACC}:{ACC+3}]")
    stamp(4)
    e("s_cmp_lt_u32 s2, 208\ns_cbranch_scc1 L_t9")
    t2load(8)
    e("L_t9:\ns_waitcnt lgkmcnt(0)\ns_barrier\ns_cmp_lg_u32 s3, 0\ns_cbranch_scc1 L_sd")
    for w in range(4):
        e(f"ds_read_b128 v[{28+4*w}:{31+4*w}], v6 offset:{1024*w}")
    for w in range(1, 4):
        e(f"s_waitcnt lgkmcnt({3 - w})")
        for r in range(4):
            e(f"v_add_f32 v{28+r}, v{28+r}, v{28+4*w+r}")
    e("v_cvt_pk_bf16_f32 v28, v28, v29\nv_cvt_pk_bf16_f32 v29, v30, v31\nv_min_u32 v28, -2, v28\nv_min_u32 v29, -2, v29")
    dual("""buffer_store_dwordx2 v[28:29], v4, s[56:59], s63 offen POL
s_mov_b32 exec_lo, 1
s_mov_b32 exec_hi, 1
buffer_store_dword v27, v5, s[56:59], s63 offen offset:512 POL""", 13)
    e("ds_write_b32 v8, v27\ns_mov_b64 exec, -1\nds_write_b64 v7, v[28:29]")
    stamp(3)
    e("L_sd:\ns_waitcnt vmcnt(0) lgkmcnt(0)")
    stamp(5)
    e("s_barrier\ns_barrier\ns_branch L_fin")

    XN, WF, OF, AC, G, U = 16, 52, 160, 192, 208, 220
    e(f"""; ===== projection and hand-off waves (s4 = 0..3) =====
L_aux:
s_sub_u32 s4, s3, 4
v_mul_u32_u24 v1, 36, v0
s_mul_i32 s5, s4, 2304
v_lshlrev_b32 v2, 4, v0
v_mov_b32 v8, {CNT}
v_mov_b32 v4, 0
v_mov_b32 v5, 0
v_mov_b32 v6, 0
v_mov_b32 v7, 0
ds_write_b128 v8, v[4:7]
ds_write_b128 v8, v[4:7] offset:16
ds_write_b128 v8, v[4:7] offset:32
s_movk_i32 s42, 9216
s_mov_b32 s43, 0x20000
s_waitcnt lgkmcnt(0)
s_load_dword s14, s[38:39], 0
s_mov_b64 s[40:41], s[16:17]""")
    for k in range(3):
        e(f"buffer_load_dwordx3 v[{16+4*k}:{18+4*k}], v1, s[40:43], s5 offen offset:{12*k}")
    e("s_barrier")
    srd(56, 38, wsz)
    e(f"""s_add_u32 s13, s79, 64
s_bitcmp1_b32 s2, 3
s_cselect_b32 s60, 72, 0
s_add_u32 s13, s13, s60
s_cmp_ge_u32 s2, 144
s_cselect_b32 s13, s10, s13
s_lshl_b32 s13, s13, 11
s_add_u32 s13, s13, {PBUF}
s_getreg_b32 s78, hwreg(HW_REG_XCC_ID, 0, 4)
s_lshl_b32 s78, s78, 16
s_and_b32 s77, s2, 7
s_lshl_b32 s77, s77, 7
s_add_u32 s77, s77, {XID}
s_mov_b32 s68, 0xffff0000
s_mov_b32 s69, {f32(1/576)}
s_add_u32 s5, s5, {XS}
v_add_u32 v1, s5, v1
v_lshrrev_b32 v10, 4, v0
v_and_b32 v11, 15, v0
v_bfe_u32 v8, v0, 2, 2
v_lshl_add_u32 v12, v10, 3, v8
v_lshlrev_b32 v12, 7, v12
v_and_b32 v9, 3, v0
v_lshl_add_u32 v12, v9, 3, v12
v_lshrrev_b32 v13, 1, v8
v_and_b32 v8, 1, v10
v_lshl_or_b32 v13, v8, 1, v13
v_lshl_add_u32 v12, v13, 5, v12
s_lshl_b32 s60, s4, 5
v_xor_b32 v3, s60, v12
v_add_u32 v4, 0x10000, v3
v_and_b32 v14, 7, v0
v_bfe_u32 v15, v0, 2, 3
v_lshl_add_u32 v15, v9, 4, v15
v_lshlrev_b32 v15, 2, v15
v_mul_u32_u24 v5, 1152, v14
v_lshrrev_b32 v8, 3, v11
v_mul_u32_u24 v8, 576, v8
v_lshl_add_u32 v8, v10, 4, v8
v_add_u32 v5, v5, v8
v_add_u32 v5, {XS}, v5
s_mov_b32 s71, 0x07060302
v_and_b32 v57, 31, v0
v_lshlrev_b32 v57, 2, v57
s_waitcnt lgkmcnt(0)
s_add_u32 s14, s14, 1
s_and_b32 s15, s14, 0xffff
s_and_b32 s6, s14, 0xff
s_andn2_b32 s60, s14, 0xf0000
s_or_b32 s78, s78, s60
s_cmp_lg_u32 s4, 0
s_cbranch_scc1 L_a1
s_lshr_b32 s60, s2, 3
s_lshl_b32 s60, s60, 2
s_add_u32 s60, s60, s77
v_mov_b32 v8, s78
s_mov_b64 exec, 1
buffer_store_dword v8, v57, s[56:59], s60 offen
s_mov_b64 exec, -1
s_waitcnt vmcnt(1)
s_branch L_a2
L_a1:
s_waitcnt vmcnt(0)
L_a2:
; LayerNorm of two rows per wave, rounded to bf16 after every step like the reference""")
    raw = [16, 17, 18, 20, 21, 22, 24, 25, 26]

    def red32(v, t):
        for s in (8, 4, 2, 1):
            e(f"v_add_f32_dpp v{v}, v{v}, v{v} row_ror:{s} row_mask:0xf bank_mask:0xf")
        e(f"v_mov_b32 v{t}, v{v}\nv_permlane16_swap_b32 v{v}, v{t}\nv_add_f32 v{v}, v{v}, v{t}")

    for k in range(9):
        e(f"v_lshlrev_b32 v{28+2*k}, 16, v{raw[k]}\nv_and_b32 v{29+2*k}, s68, v{raw[k]}")
    e("v_pk_add_f32 v[46:47], v[28:29], v[30:31]")
    for k in range(2, 9):
        e(f"v_pk_add_f32 v[46:47], v[46:47], v[{28+2*k}:{29+2*k}]")
    e("v_add_f32 v46, v46, v47")
    red32(46, 47)
    e("v_mul_f32 v48, s69, v46\nv_sub_f32 v50, 0, v48\nv_sub_f32 v51, 0, v48")
    for k in range(9):
        e(f"v_pk_add_f32 v[8:9], v[{28+2*k}:{29+2*k}], v[50:51]")
        e("v_pk_mul_f32 v[46:47], v[8:9], v[8:9]" if k == 0 else "v_pk_fma_f32 v[46:47], v[8:9], v[8:9], v[46:47]")
    e("v_add_f32 v46, v46, v47")
    red32(46, 47)
    e("v_mul_f32 v46, s69, v46")
    rnd(46, 46)
    e(f"v_add_f32 v46, {f32(1e-5)}, v46")
    rnd(46, 46)
    e("v_sqrt_f32 v46, v46")
    rnd(46, 46)
    e("v_rcp_f32 v46, v46")
    rnd(50, 50)
    e("v_mov_b32 v51, v50\nv_mov_b32 v47, v46")
    for k in range(9):
        e(f"v_pk_add_f32 v[8:9], v[{28+2*k}:{29+2*k}], v[50:51]\nv_cvt_pk_bf16_f32 v9, v8, v9\nv_lshlrev_b32 v8, 16, v9\nv_and_b32 v9, s68, v9")
        e(f"v_pk_mul_f32 v[8:9], v[8:9], v[46:47]\nv_cvt_pk_bf16_f32 v{raw[k]}, v8, v9")
    for k in range(0, 8, 2):
        e(f"ds_write2_b32 v1, v{raw[k]}, v{raw[k+1]} offset0:{k} offset1:{k+1}")
    e(f"ds_write_b32 v1, v{raw[8]} offset:32")
    stamp(1)
    e(f"""v_mov_b32 v{G}, -1
v_mov_b32 v{G+1}, -1
v_mov_b32 v{G+2}, -1
v_mov_b32 v{G+3}, -1
s_lshl_b32 s61, s10, 2
s_add_u32 s61, s61, s4
s_mul_i32 s61, s61, {OSL}
s_add_u32 s61, s61, {OBUF}
v_mov_b32 v1, v57
s_waitcnt lgkmcnt(0)""")
    ldsarrive(C1, 8)
    e(f"""s_mov_b64 exec, -1
s_mov_b32 s70, 2
s_cmp_ge_u32 s2, 208
s_cbranch_scc1 L_a4
L_xid:
buffer_load_dword v{G+4}, v1, s[56:59], s77 offen sc1
s_waitcnt vmcnt(0)""")
    xidcheck(G + 4)
    e("""s_cmp_eq_u32 s7, 2
s_cbranch_scc1 L_xidd
s_sub_u32 s70, s70, 1
s_cbranch_scc0 L_xid
L_xidd:
s_cmp_lt_u32 s2, 144
s_cbranch_scc1 L_a4
s_mov_b32 exec_hi, 0xff""")
    dual(f"buffer_store_dwordx4 v[{G}:{G+3}], v2, s[56:59], s61 offen POL", 7)
    e("L_a4:\ns_mov_b64 exec, 1")
    ldsspin(8, 8)
    stamp(2)
    for i in range(9):
        e(f"ds_read_b128 v[{XN+4*i}:{XN+4*i+3}], v5 offset:{64*i}")
    for kk in range(18):
        trread(WF + 4 * kk, 3 if kk < 16 else 4, (kk % 16) * 4096)
    e(f"""s_lshl_b32 s60, s4, 9
s_add_u32 s60, s60, s13
v_mov_b32 v7, s68
v_mov_b32 v{CV}, {PRG}
s_lshr_b32 s61, s2, 3
s_lshl_b32 s61, s61, 2
v_mov_b32 v{CV+3}, s61
s_add_u32 s76, s77, {PLN - XID}
s_waitcnt lgkmcnt(0)""")
    ldsarrive(C2, 8)
    e("s_mov_b64 exec, -1\ns_cmp_ge_u32 s2, 208\ns_cbranch_scc1 L_aq")
    for i in range(9):
        for hf in range(2):
            mfma(AC + 4 * hf, WF + 4 * (9 * hf + i), XN + 4 * i, i == 0)
    for r in range(4):
        e(f"v_add_f32_dpp v{AC+r}, v{AC+4+r}, v{AC+r} row_ror:8 row_mask:0xf bank_mask:0xf")
    e(f"""; publish 8 x 16 values as (bf16 << 16 | tag)
v_cvt_pk_bf16_f32 v8, v{AC}, v{AC+1}
v_cvt_pk_bf16_f32 v9, v{AC+2}, v{AC+3}
ds_bpermute_b32 v8, v15, v8
ds_bpermute_b32 v9, v15, v9
s_waitcnt lgkmcnt(0)
v_lshl_or_b32 v16, v8, 16, s15
v_and_or_b32 v17, v8, v7, s15
v_lshl_or_b32 v18, v9, 16, s15
v_and_or_b32 v19, v9, v7, s15
s_mov_b32 s13, s60
""" + ("s_cmp_lt_u32 s2, 144\ns_cbranch_scc1 L_aq" if latepub else "") + """
s_waitcnt vmcnt(0)
s_mov_b32 exec_hi, 0""")
    dual("buffer_store_dwordx4 v[16:19], v2, s[56:59], s13 offen POL", 7)
    race = """s_mov_b64 s[60:61], 0
LOADS
s_waitcnt lgkmcnt(1)
s_add_u32 s62, s62, s60
s_sub_u32 s62, s62, s61
s_waitcnt lgkmcnt(0)"""
    la, lb = f"s_load_dword s60, s[38:39], {PRB} glc", f"s_load_dword s61, s[38:39], {PRB + 0x2000} glc"
    e(f"""s_mov_b32 exec_hi, -1
s_lshl_b32 s60, s4, 8
s_add_u32 s60, s60, s2
s_cmp_lg_u32 s60, {256 + 144}
s_cbranch_scc1 L_aq
v_lshlrev_b32 v8, 13, v0
v_mov_b32 v9, 1
s_mov_b32 s60, {PRB}
s_mov_b64 exec, 3
buffer_store_dword v9, v8, s[56:59], s60 offen sc1
s_mov_b64 exec, -1
s_mov_b32 s62, 0
s_mov_b32 s70, {trials - 1}
s_waitcnt vmcnt(0)
L_race:""")
    e(race.replace("LOADS", la + "\n" + lb))
    e(race.replace("LOADS", lb + "\n" + la))
    e(f"""s_sub_u32 s70, s70, 1
s_cbranch_scc0 L_race
s_cmp_lt_i32 s62, 0
s_cselect_b32 s60, 0x10000, 0
s_or_b32 s60, s60, s15
v_mov_b32 v8, s60
v_mov_b32 v9, s14
s_mov_b64 exec, 1
buffer_store_dwordx2 v[8:9], v2, s[56:59], 0 offen offset:{PAR} sc1
s_mov_b64 exec, -1
L_aq:""")
    control(T1)
    ldsspin(CV, T1, sleep=8, four=True)
    if latepub:
        e("; gate / up tiles are published shortly before their readers look for them\ns_cmp_ge_u32 s2, 144\ns_cbranch_scc1 L_a5\ns_mov_b32 exec_hi, 0")
        dual("buffer_store_dwordx4 v[16:19], v2, s[56:59], s13 offen POL", 7)
        e("s_mov_b32 exec_hi, -1\nL_a5:")
    e(f"""; wave 3 gathers q for the stream waves
s_cmp_lg_u32 s4, 3
s_cbranch_scc1 L_a3
s_lshr_b32 s60, s9, 1
s_lshl_b32 s60, s60, 6
s_lshl_b32 s61, s8, 13
s_add_u32 s60, s60, s61
s_add_u32 s60, s60, {PBUF}
v_lshrrev_b32 v6, 2, v0
v_lshlrev_b32 v6, 9, v6
v_and_b32 v7, 3, v0
v_lshl_add_u32 v6, v7, 4, v6
buffer_load_dword v24, v1, s[56:59], s77 offen sc1""")
    poll("buffer_load_dwordx4 v[20:23], v6, s[56:59], s60 offen sc1 nt", tagcmp([20, 21, 22, 23], 7), 4)
    xidcheck(24)
    CEND = 136
    e(f"""v_perm_b32 v8, v21, v20, s71
v_perm_b32 v9, v23, v22, s71
v_lshlrev_b32 v6, 3, v0
v_add_u32 v6, {QS}, v6
ds_write_b64 v6, v[8:9]
v_mov_b32 v6, {QF}
v_mov_b32 v7, s7
s_waitcnt lgkmcnt(0)
ds_write_b32 v6, v7
L_a3:
v_mul_u32_u24 v4, {RING - 1024}, v10
v_add_u32 v4, v4, v3
v_mov_b32 v12, 0xffffff00
v_bfe_u32 v3, v0, 4, 1
v_lshlrev_b32 v3, 13, v3
v_lshrrev_b32 v8, 5, v0
v_lshl_add_u32 v3, v8, 15, v3
v_lshl_add_u32 v3, v14, 4, v3
s_and_b32 s64, s4, 1
s_lshl_b32 s65, s64, 12
s_lshr_b32 s61, s4, 1
s_lshl_b32 s61, s61, 14
s_add_u32 s65, s65, s61
s_lshl_b32 s61, s8, 7
s_add_u32 s65, s65, s61
s_add_u32 s65, s65, {PART}
s_cmp_lt_u32 s2, 144
s_cbranch_scc1 L_aO
s_cmp_ge_u32 s2, 208
s_cbranch_scc1 L_aD""")
    control(CEND)
    e(f"""s_branch L_fin
L_aD:""")
    if TD:
        control(TD)
        ldsspin(CV, TD, sleep=8, four=True)
    e(f"""s_mul_i32 s60, s11, 9216
s_mul_i32 s61, s4, 2304
s_add_u32 s60, s60, s61
s_add_u32 s60, s60, {PBUF + 131072}
s_add_u32 s61, s60, {288 * 512}
s_mov_b32 s72, -1
s_mov_b32 s73, 0xffff
s_mov_b64 exec, s[72:73]""")
    poll("\n".join([f"buffer_load_dwordx4 v[{G+4*k}:{G+4*k+3}], v2, s[56:59], s60 offen offset:{768*k} {gpol}" for k in range(3)] +
                   [f"buffer_load_dwordx4 v[{U+4*k}:{U+4*k+3}], v2, s[56:59], s61 offen offset:{768*k} {gpol}" for k in range(3)]),
         tagcmp(list(range(G, G + 24)), 8), 8, restore="s[72:73]")
    c0 = -2 * LOG2E * 0.7978845608028654
    e(f"; gelu_tanh(g) = g / (1 + exp(-2 * sqrt(2/pi) * (g + 0.044715 g^3)))\nv_mov_b32 v32, {f32(c0)}\nv_mov_b32 v33, {f32(c0 * 0.044715)}\ns_mul_i32 s60, s4, 144")
    for k in range(6):
        e(f"""v_and_b32 v34, s68, v{G+2*k}
v_and_b32 v35, s68, v{G+2*k+1}
v_mul_f32 v36, v34, v34
v_mul_f32 v37, v35, v35
v_fma_f32 v36, v36, v33, v32
v_fma_f32 v37, v37, v33, v32
v_mul_f32 v36, v36, v34
v_mul_f32 v37, v37, v35
v_exp_f32 v36, v36
v_exp_f32 v37, v37
v_and_b32 v38, s68, v{U+2*k}
v_add_f32 v36, 1.0, v36
v_add_f32 v37, 1.0, v37
v_rcp_f32 v36, v36
v_rcp_f32 v37, v37
v_and_b32 v39, s68, v{U+2*k+1}
v_mul_f32 v34, v34, v36
v_mul_f32 v35, v35, v37
v_cvt_pk_bf16_f32 v35, v34, v35
v_lshlrev_b32 v34, 16, v35
v_and_b32 v35, s68, v35
v_mul_f32 v34, v34, v38
v_mul_f32 v35, v35, v39
v_cvt_pk_bf16_f32 v{40+k}, v34, v35""")
    for k in range(3):
        e(f"""v_add_u32 v34, s60, v0
v_bfe_u32 v35, v34, 2, 3
v_mul_u32_u24 v35, 576, v35
v_and_b32 v36, 3, v34
v_lshl_add_u32 v35, v36, 3, v35
v_and_b32 v34, 0xffe0, v34
v_add_u32 v35, v35, v34
v_add_u32 v35, {HS}, v35
ds_write_b64 v35, v[{40+2*k}:{41+2*k}]
s_add_u32 s60, s60, 48""")
    e("s_waitcnt lgkmcnt(0)")
    ldsarrive(CNT, 8)
    ldsspin(8, 4)
    e(f"v_mul_u32_u24 v5, 576, v14\nv_lshl_add_u32 v5, v10, 4, v5\nv_add_u32 v5, {HS}, v5")
    for i in range(9):
        e(f"ds_read_b128 v[{XN+4*i}:{XN+4*i+3}], v5 offset:{64*i}")
    e(f"""s_mul_i32 s60, s12, {3*65536}
s_add_u32 s60, s60, s65
s_add_u32 s60, s60, 2048
s_add_u32 s61, s60, 65536
s_add_u32 s62, s60, 131072
s_waitcnt lgkmcnt(0)""")
    for i in range(6):
        for sub in range(3):
            mfma(AC + 4 * sub, WF + 4 * (6 * sub + i), XN + 4 * i, i == 0)
    stamp(4)
    control(CEND)
    getside()
    e(f"; last 96 rows arrive with the late tile\ns_barrier\nds_read_b32 v{CV+4}, v{CV} offset:{SIDE - PRG}\ns_waitcnt lgkmcnt(0)\nv_xor_b32 v3, v3, v{CV+4}\ns_barrier")
    for j in range(9):
        trread(WF + 4 * j, 4, j * 1024)
    for j in range(9):
        if j % 3 == 0:
            e(f"s_waitcnt lgkmcnt({12 - 2 * j})")
        mfma(AC + 4 * (j % 3), WF + 4 * j, XN + 4 * (6 + j // 3), False)

    def publish(n, src, soffs):
        e("; partial outputs: f32 with the 8-bit tag in the low mantissa byte, one 128 B line = 8 batches x 4 columns")
        e("s_mov_b32 exec_lo, 0x00ff00ff\ns_mov_b32 exec_hi, 0x00ff00ff")
        for k in range(n):
            for r in range(4):
                e(f"v_and_or_b32 v{src+4*k+r}, v{src+4*k+r}, v12, s6")
            e(f"buffer_store_dwordx4 v[{src+4*k}:{src+4*k+3}], v3, s[56:59], s{soffs[k]} offen sc1")
        e("s_mov_b64 exec, -1")

    publish(3, AC, (60, 61, 62))
    stamp(7)
    e(f"""s_branch L_fin
L_aO:
s_lshl_b32 s61, s9, 16
s_add_u32 s65, s65, s61
v_mul_u32_u24 v6, {OSL}, v10
v_lshl_add_u32 v5, v11, 4, v6
s_lshl_b32 s62, s8, 2
s_add_u32 s62, s62, s4
s_mul_i32 s62, s62, {4*OSL}
s_add_u32 s62, s62, {OBUF}
s_mul_i32 s61, s4, {4*GST}
s_add_u32 s61, s61, {GB}
v_mul_u32_u24 v48, {GST}, v10
v_lshl_add_u32 v48, v11, 4, v48
v_add_u32 v48, s61, v48
s_lshl_b32 s61, s4, 5
s_add_u32 s61, s61, {LB}
v_lshl_add_u32 v49, v10, 3, s61
v_mul_u32_u24 v46, {GST}, v11
v_lshl_add_u32 v46, v10, 4, v46
v_add_u32 v46, {GB}, v46
v_lshlrev_b32 v47, 3, v11
v_add_u32 v47, {LB}, v47
s_andn2_b32 s74, s2, 6
s_and_b32 s61, s2, 2
s_lshl_b32 s61, s61, 1
s_or_b32 s74, s74, s61
s_lshl_b32 s74, s74, 12
s_lshl_b32 s61, s4, 5
s_add_u32 s74, s74, s61
s_add_u32 s74, s74, {PART}
v_lshrrev_b32 v8, 1, v0
v_lshlrev_b32 v7, 7, v8
v_and_b32 v8, 1, v0
v_lshl_add_u32 v7, v8, 4, v7
s_and_b32 s61, s2, 4
s_lshl_b32 s61, s61, 11
v_add_u32 v7, s61, v7
v_mov_b32 v26, 0xff
s_mul_i32 s75, s4, 2304
s_lshl_b32 s61, s9, 7
s_add_u32 s75, s75, s61
s_and_b32 s61, s8, 3
s_lshl_b32 s61, s61, 5
s_add_u32 s75, s75, s61
s_lshr_b32 s61, s8, 2
s_lshl_b32 s61, s61, 3
s_add_u32 s75, s75, s61
v_and_b32 v9, 1, v10
v_mul_u32_u24 v13, 1152, v8
v_lshl_add_u32 v13, v9, 1, v13
v_bfe_u32 v9, v0, 3, 1
v_lshl_add_u32 v13, v9, 2, v13
buffer_load_ushort v50, v13, s[40:43], s75 offen
s_lshr_b32 s61, s9, 1
s_and_b32 s60, s9, 1
s_lshl_b32 s60, s60, 3
s_add_u32 s61, s61, s60
s_lshl_b32 s60, s4, 2
s_sub_u32 s61, s61, s60
v_cmp_ne_u32 s[72:73], s61, v10""")
    srd(48, 34, 9216)
    control(CEND)
    getside()
    e("s_waitcnt vmcnt(0)\nv_lshlrev_b32 v50, 16, v50\ns_mov_b64 exec, s[72:73]\ns_barrier")
    stamp(5)

    def wofrags(back):
        e(f"s_mov_b64 exec, -1\nds_read_b32 v{CV+4}, v{CV} offset:{SIDE - PRG}\ns_barrier")
        stamp(4)
        for ks in range(8):
            trread(OF + 4 * ks, 4, ks * 1024)
        if back:
            e(f"s_mov_b64 exec, {back}")

    oloads = """buffer_load_dwordx4 v[28:31], v5, s[56:59], s62 offen sc1
buffer_load_dwordx4 v[32:35], v5, s[56:59], s62 offen offset:256 sc1
buffer_load_dwordx2 v[36:37], v6, s[56:59], s62 offen offset:512 sc1"""
    owrite = "ds_write_b128 v48, v[28:31]\nds_write_b128 v48, v[32:35] offset:256\nds_write_b64 v49, v[36:37]"
    ocmp = sentcmp(range(28, 38), 38)
    e(oloads + "\ns_waitcnt vmcnt(0)\n" + ocmp + "\ns_cbranch_vccnz L_og1")
    e(owrite)
    wofrags(None)
    e("s_branch L_og2\nL_og1:\ns_mov_b64 exec, vcc")
    poll(oloads, ocmp, 0, first=lambda: wofrags("vcc"), restore="s[72:73]")
    e(owrite + "\ns_mov_b64 exec, -1\nL_og2:")
    stamp(6)
    e("s_waitcnt lgkmcnt(0)\ns_barrier\nds_read_b64 v[36:37], v47")
    order = [0, 4, 1, 5, 2, 6, 3, 7]
    for ks in order:
        e(f"ds_read_b128 v[{WF+4*ks}:{WF+4*ks+3}], v46 offset:{64*ks}")
    e("""s_waitcnt lgkmcnt(8)
v_sub_f32_dpp v38, v36, v36 row_ror:8 row_mask:0xf bank_mask:0xf
v_sub_f32_dpp v39, v37, v37 row_ror:8 row_mask:0xf bank_mask:0xf""")
    fill = ["v_exp_f32 v38, v38", "v_exp_f32 v39, v39", "v_add_f32 v38, 1.0, v38", "v_add_f32 v39, 1.0, v39", "v_rcp_f32 v38, v38", "v_rcp_f32 v39, v39", f"v_xor_b32 v3, v3, v{CV+4}", f"v_xor_b32 v7, v7, v{CV+4}"]
    for i, ks in enumerate(order):
        e(f"s_waitcnt lgkmcnt({7 - i})")
        mfma(AC + 4 * (ks // 4), OF + 4 * ks, WF + 4 * ks, ks % 4 == 0)
        if i < len(fill):
            e(fill[i])
    for r in range(4):
        e(f"v_mul_f32 v{AC+r}, v{AC+r}, v38")
    for r in range(4):
        e(f"v_fmac_f32 v{AC+r}, v{AC+4+r}, v39")
    for r in range(4):
        e(f"v_add_f32_dpp v{AC+r}, v{AC+r}, v{AC+r} row_ror:8 row_mask:0xf bank_mask:0xf")
    publish(1, AC, (65,))
    stamp(3)
    e("; final sum of 8 outputs: lanes 0-31 hold 16 attention partials, lanes 32-63 hold 16 FFN partials\ns_waitcnt vmcnt(0)")
    chk = "\n".join(f"v_xor_b32 v{16+i}, s6, v{16+i}" for i in range(4)) + "\nv_or3_b32 v24, v16, v17, v18\nv_bitop3_b32 v24, v24, v26, v19 bitop3:0xc8\nv_cmp_ne_u32 vcc, 0, v24"
    poll("buffer_load_dwordx4 v[16:19], v7, s[56:59], s74 offen sc1", chk, 0, quad=True)
    e("""v_permlane16_swap_b32 v16, v17
v_permlane16_swap_b32 v18, v19
v_add_f32 v17, v16, v17
v_add_f32 v18, v18, v19
v_add_f32_dpp v16, v17, v17 row_ror:8 row_mask:0xf bank_mask:0x3
v_add_f32_dpp v16, v18, v18 row_ror:8 row_mask:0xf bank_mask:0xc
v_add_f32_dpp v16, v16, v16 row_shl:4 row_mask:0xf bank_mask:0x5
v_add_f32_dpp v16, v16, v16 quad_perm:[2,3,0,1] row_mask:0xf bank_mask:0xf""")
    rnd(16, 16)
    e("v_add_f32 v17, v16, v50")
    rnd(17, 17)
    e("""v_permlane32_swap_b32 v16, v18
v_add_f32 v17, v17, v18
v_cvt_pk_bf16_f32 v17, v17, v17
s_mov_b32 exec_lo, 0x03030303
s_mov_b32 exec_hi, 0
buffer_store_short v17, v13, s[48:51], s75 offen
s_mov_b64 exec, 1
s_add_u32 s60, s2, s4
s_cmp_lg_u32 s60, 0
s_cbranch_scc1 L_o3
v_mov_b32 v19, s14
buffer_store_dword v19, v2, s[56:59], 0 offen
L_o3:""")
    stamp(7)
    if amp:
        a, b, k = amp
        e(f"s_waitcnt lgkmcnt(0)\ns_sub_u32 s61, s{80+2*b}, s{80+2*a}\ns_mul_i32 s61, s61, {k}\nL_probe:\ns_memrealtime s[76:77]\ns_waitcnt lgkmcnt(0)\ns_sub_u32 s60, s76, s{80+2*a}\ns_cmp_lt_u32 s60, s61\ns_cbranch_scc1 L_probe")
    e("L_fin:")
    if diag:
        e("s_mov_b64 exec, -1\ns_cmp_lt_u32 s3, 4\ns_cbranch_scc1 L_dg\ns_sub_u32 s60, s2, 144\ns_cmp_lt_u32 s60, 64\ns_cbranch_scc1 L_end\nL_dg:")
        e("s_waitcnt vmcnt(0)\ns_memrealtime s[76:77]\ns_waitcnt lgkmcnt(0)\ns_getreg_b32 s77, hwreg(HW_REG_HW_ID)")
        for i in range(8):
            e(f"v_mov_b32 v{16+i}, s{80+2*i}")
        e(f"v_mov_b32 v24, s76\nv_mov_b32 v25, s77\nv_mov_b32 v1, 0\ns_lshl_b32 s60, s2, 3\ns_add_u32 s60, s60, s3\ns_lshl_b32 s60, s60, 6\ns_add_u32 s60, s60, {STAMP}")
        e("s_mov_b64 exec, 1\nbuffer_store_dwordx4 v[16:19], v1, s[56:59], s60 offen\nbuffer_store_dwordx4 v[20:23], v1, s[56:59], s60 offen offset:16\nbuffer_store_dwordx2 v[24:25], v1, s[56:59], s60 offen offset:32")
    e("L_end:\ns_endpgm")
    e(f""".section .rodata,"a"
.p2align 6
.amdhsa_kernel {KN}
.amdhsa_next_free_vgpr 256
.amdhsa_next_free_sgpr 102
.amdhsa_accum_offset 256
.amdhsa_group_segment_fixed_size 0
.amdhsa_kernarg_size 96
.amdhsa_user_sgpr_count 2
.amdhsa_user_sgpr_kernarg_segment_ptr 1
.amdhsa_system_sgpr_workgroup_id_x 1
.amdhsa_float_denorm_mode_32 3
.end_amdhsa_kernel""")
    return top + e.text()


def summary(T, cfg):
    import numpy as np
    S = T[:, :4]; A = T[:144, 4:]; D = T[208:, 4:]
    wd = S[:, :, 4].max(1); m = wd.max()
    return dict(startmax=S[:, :, 0].max(), B1med=float(np.median(S[:, :, 1])), B1max=S[:, :, 1].max(), B2max=S[:, :, 2].max(), qwait=(S[:, :, 7] - S[:, :, 6]).max(),
                xcdspread=max(wd[i::8].mean() for i in range(8)) - wd.mean(), meandone=wd.mean(), maxdone=m, opub=S[:, 0, 3].max() - m, t2=S[:, :, 5].max() - m,
                dpub=D[:, :, 7].max() - m, ogath=A[:, :, 6].max() - m, ppub=A[:, :, 3].max() - m, out=A[:, :, 7].max() - m, end=A[:, :, 8].max())


if __name__ == "__main__":
    kw = eval("dict(" + (sys.argv[2] if len(sys.argv) > 2 else "") + ")")
    open(sys.argv[1], "w").write(gen(**kw))
```
